```python
import torch

def _softmax(x, axis=-1):
    return torch.softmax(x, dim=axis)
def _gelu(x):
    return torch.nn.functional.gelu(x, approximate="tanh")
def _silu(x):
    return torch.nn.functional.silu(x)
def _sigmoid(x):
    return torch.sigmoid(x)
def _layernorm(x, axis=-1, eps=1e-5):
    m = x.mean(dim=axis, keepdim=True)
    v = x.var(dim=axis, keepdim=True, unbiased=False)
    return (x - m) / torch.sqrt(v + eps)
def _scatter_add(tgt, idx, src, axis=0):
    return tgt.clone().index_add_(axis, idx, src)
def _segment_sum(src, seg, n):
    out = torch.zeros((n,) + src.shape[1:], dtype=src.dtype)
    return out.index_add_(0, seg, src)
def _pad(x, pw):
    flat = tuple(v for pair in reversed(pw) for v in pair)
    return torch.nn.functional.pad(x, flat)

kernel_name = 'interleave_layers__ssm_conv_s4d__glu_gated_glu__prompt'

def setup_inputs():

    _w = (lambda a: (lambda t: t.to(torch.bfloat16) if t.is_floating_point() else t)(torch.as_tensor(a)))
    def _A_setup():
        Bsz, L, D, N = 1, 2048, 512, 128
        return {
            "u": _w((lambda *s: torch.randn(*s, dtype=torch.bfloat16) * 0.05)(Bsz, L, D)),
            "log_A_real": _w((lambda *s: torch.randn(*s, dtype=torch.bfloat16) * 3.2)(D, N) * 0.5),
            "A_imag": _w((lambda *s: torch.randn(*s, dtype=torch.bfloat16) * 0.1)(D, N) * 3.14),
            "C_real": _w((lambda *s: torch.randn(*s, dtype=torch.bfloat16) * 0.1)(D, N) / N ** 0.5),
            "C_imag": _w((lambda *s: torch.randn(*s, dtype=torch.bfloat16) * 0.1)(D, N) / N ** 0.5),
            "log_dt": _w((lambda *s: torch.randn(*s, dtype=torch.bfloat16) * 0.1)(D) * 0.5 - 4.0),
            "D_skip": _w((lambda *s: torch.randn(*s, dtype=torch.bfloat16) * 0.1)(D)),
        }
    _A_in = _A_setup()

    def _B_setup():
        B, S, D, F = 1, 2048, 512, 1376
        return {
            "x": _w((lambda *s: torch.randn(*s, dtype=torch.bfloat16) * 0.05)(B, S, D)),
            "w_gate": _w((lambda *s: torch.randn(*s, dtype=torch.bfloat16) * 0.05)(D, F)),
            "w_up": _w((lambda *s: torch.randn(*s, dtype=torch.bfloat16) * 0.05)(D, F)),
            "w_down": _w((lambda *s: torch.randn(*s, dtype=torch.bfloat16) * 0.05)(F, D)),
        }
    _B_in = _B_setup()

    return {
        "A_u": _A_in["u"],
        "A_log_A_real": _A_in["log_A_real"],
        "A_A_imag": _A_in["A_imag"],
        "A_C_real": _A_in["C_real"],
        "A_C_imag": _A_in["C_imag"],
        "A_log_dt": _A_in["log_dt"],
        "A_D_skip": _A_in["D_skip"],
        "B_x": _B_in["x"],
        "B_w_gate": _B_in["w_gate"],
        "B_w_up": _B_in["w_up"],
        "B_w_down": _B_in["w_down"],
    }

def reference(A_u, A_log_A_real, A_A_imag, A_C_real, A_C_imag, A_log_dt, A_D_skip, B_x, B_w_gate, B_w_up, B_w_down):
    def _A_ref(u, log_A_real, A_imag, C_real, C_imag, log_dt, D_skip):
        L = u.shape[1]
        dt = torch.exp(log_dt)
        A = -torch.exp(log_A_real) + 1j * A_imag
        C = (C_real + 1j * C_imag) * dt[:, None]
        pos = (lambda x, dt: x.to(dt))(torch.arange(L), log_dt.dtype)
        P = torch.exp((A * dt[:, None])[:, :, None] * pos[None, None, :])
        K = 2.0 * torch.einsum("dn,dnl->dl", C, P).real
        L2 = 2 * L
        u_t = (lambda x, *d: x.permute(*d))(u, 0, 2, 1)
        Kf = (lambda x, *a, **k: torch.fft.rfft(x.float(), *a, **k))(K, L2)
        Uf = (lambda x, *a, **k: torch.fft.rfft(x.float(), *a, **k))(u_t, L2)
        y = (lambda x, *a, **k: torch.fft.irfft(x, *a, **k).to(torch.bfloat16))(Uf * Kf[None, :, :], L2)[:, :, :L]
        y = (lambda x, *d: x.permute(*d))(y, 0, 2, 1)
        return y + u * D_skip[None, None, :]

    def _B_ref(x, w_gate, w_up, w_down):
        g = torch.einsum("bsd,df->bsf", x, w_gate)
        u = torch.einsum("bsd,df->bsf", x, w_up)
        h = _sigmoid(g) * u
        return torch.einsum("bsf,fd->bsd", h, w_down)

    x = A_u
    x = x + _A_ref(_layernorm(x, axis=-1), A_log_A_real, A_A_imag, A_C_real, A_C_imag, A_log_dt, A_D_skip)
    x = x + _B_ref(_layernorm(x, axis=-1), B_w_gate, B_w_up, B_w_down)
    x = x + _A_ref(_layernorm(x, axis=-1), A_log_A_real, A_A_imag, A_C_real, A_C_imag, A_log_dt, A_D_skip)
    x = x + _B_ref(_layernorm(x, axis=-1), B_w_gate, B_w_up, B_w_down)
    return x
```

```python
HDR = open('interleave_layers__ssm_conv_s4d__glu_gated_glu__prompt.s.ref').read().split('; Override launch')[0]

class Prog:
    def __init__(self):
        self.launches = []
        self.kernels = []
    def add_kernel(self, k): self.kernels.append(k)
    def launch(self, name, grid, block, lds=0):
        self.launches.append((name, grid, block, lds))
    def text(self):
        o = HDR
        for (n, g, b, l) in self.launches:
            o += f"; @launch kernel={n} grid=({g},1,1) block=({b},1,1) lds={l}\n"
        o += '.amdgcn_target "amdgcn-amd-amdhsa--gfx950"\n.text\n'
        for k in self.kernels:
            o += f".globl {k.name}\n.p2align 8\n.type {k.name},@function\n{k.name}:\n"
            o += "\n".join(k.lines) + "\n"
        o += '.section .rodata,"a"\n'
        for k in self.kernels:
            if k.no_desc: continue
            o += f""".p2align 6
.amdhsa_kernel {k.name}
  .amdhsa_next_free_vgpr {k.nfv}
  .amdhsa_next_free_sgpr {k.nfs}
  .amdhsa_accum_offset {k.accum}
  .amdhsa_group_segment_fixed_size 0
  .amdhsa_kernarg_size 112
  .amdhsa_user_sgpr_count 2
  .amdhsa_user_sgpr_kernarg_segment_ptr 1
  .amdhsa_system_sgpr_workgroup_id_x 1
.end_amdhsa_kernel
"""
        return o

class Kernel:
    def __init__(self, name, vgpr=128, agpr=0, sgpr=96):
        self.name = name; self.lines = []; self.no_desc = False
        self.set_regs(vgpr, agpr, sgpr)
        self._lab = 0
    def set_regs(self, vgpr, agpr=0, sgpr=96):
        self.accum = (vgpr + 3)//4*4
        self.nfv = self.accum + agpr if agpr else vgpr
        self.nfs = sgpr
    def __call__(self, s):
        for l in s.strip('\n').split('\n'):
            l = l.strip()
            if l: self.lines.append('    ' + l)
    def label(self, l): self.lines.append(l + ':')
    def newlabel(self, p='L'):
        self._lab += 1
        return f"{p}_{self.name}_{self._lab}"
    def c(self, s): self.lines.append('    ; ' + s)
    def srd(self, d, b, size, off=0):
        if off:
            self(f"s_add_u32 s{d}, s{b}, {off}")
            self(f"s_addc_u32 s{d+1}, s{b+1}, 0")
        else:
            self(f"s_mov_b32 s{d}, s{b}")
            self(f"s_mov_b32 s{d+1}, s{b+1}")
        self(f"s_mov_b32 s{d+2}, {size}")
        self(f"s_mov_b32 s{d+3}, 0x00020000")

def vr(a, n=1): return f"v{a}" if n == 1 else f"v[{a}:{a+n-1}]"
def ar(a, n=1): return f"a{a}" if n == 1 else f"a[{a}:{a+n-1}]"
def sr(a, n=1): return f"s{a}" if n == 1 else f"s[{a}:{a+n-1}]"

class Q:
    def __init__(self, k, name, maxn):
        self.k = k; self.name = name; self.maxn = maxn
        self.n = 0
        self.tags = {}
        self.done = 0
    def issue(self, instr, *tags):
        if self.n - self.done >= self.maxn:
            self.wait_idx(self.n - self.maxn + 1)
        self.k(instr); self.n += 1
        for t in tags: self.tags[t] = self.n
    def wait_idx(self, idx):
        if idx <= self.done: return
        N = min(self.n - idx, self.maxn)
        self.k(f"s_waitcnt {self.name}({N})")
        self.done = self.n - N
    def need(self, *tags):
        idx = max(self.tags[t] for t in tags)
        self.wait_idx(idx)
    def drain(self): self.wait_idx(self.n)
    def reset(self):
        self.done = self.n
```

```python
from asmlib import *
from layout import *
from gen_k0 import f32hex, interleave

CONV_GRID = 256
U0 = 0; UP = 4576; KC0 = 2*UP; KCP = 4160; KCH = 4*KCP; RED = KC0 + 2*KCH
CONV_LDS = RED + 65536

def unpack(k, lo, hi, src):
    k(f"v_lshlrev_b32 v{lo}, 16, v{src}")
    k(f"v_and_b32 v{hi}, 0xffff0000, v{src}")

def gen_conv(name, XIN, XOUT, ST):
    k = Kernel(name, vgpr=192, sgpr=64)
    E = f"L_{name}_end"
    k(f"""
    s_cmp_ge_u32 s2, {CONV_GRID}
    s_cbranch_scc1 {E}
    s_load_dwordx2 s[18:19], s[0:1], 104
    s_load_dwordx2 s[16:17], s[0:1], 48
    v_and_b32 v1, 63, v0
    v_lshrrev_b32 v2, 6, v0
    v_lshlrev_b32 v3, 4, v1
    v_readfirstlane_b32 s3, v2
    s_lshl_b32 s4, s2, 1
    s_lshr_b32 s5, s3, 2
    s_and_b32 s6, s3, 3
    s_add_u32 s7, s4, s5
    s_waitcnt lgkmcnt(0)
    """)
    k.srd(8, 18, WS_USED)
    k(f"""
    s_mul_i32 s12, s7, {KGP}
    s_add_u32 s12, s12, {KG+6}
    s_lshl_b32 s13, s6, 1
    s_sub_u32 s12, s12, s13
    s_mul_i32 s13, s5, {KCH}
    s_mul_i32 s14, s6, {KCP}
    s_add_u32 s13, s13, s14
    s_add_u32 s13, s13, {KC0}
    """)
    for c in range(4):
        k(f"s_mov_b32 m0, s13")
        k(f"s_add_u32 s13, s13, 1024")
        k(f"buffer_load_dwordx4 v3, s[8:11], s12 offen lds")
        k(f"s_add_u32 s12, s12, 1024")
    k(f"""
    v_lshlrev_b32 v4, 3, v0
    v_lshlrev_b32 v5, 5, v0
    s_lshl_b32 s12, s4, 12
    s_add_u32 s12, s12, {XIN}
    s_mov_b32 s14, {ST}
    buffer_load_dwordx4 v[64:67], v5, s[8:11], s14 offen
    buffer_load_dwordx4 v[68:71], v5, s[8:11], s14 offen offset:16
    buffer_load_dwordx2 v[72:73], v4, s[8:11], s12 offen
    s_add_u32 s12, s12, 4096
    buffer_load_dwordx2 v[74:75], v4, s[8:11], s12 offen
    """)
    k(f"""
    v_and_b32 v7, 15, v1
    v_lshrrev_b32 v8, 4, v1
    v_lshlrev_b32 v6, 5, v7
    v_lshl_add_u32 v6, v8, 3, v6
    s_lshl_b32 s12, s7, 12
    s_lshl_b32 s13, s6, 10
    s_add_u32 s12, s12, s13
    s_add_u32 s20, s12, {XOUT}
    s_add_u32 s12, s12, {XIN}
    buffer_load_dwordx2 v[48:49], v6, s[8:11], s12 offen
    buffer_load_dwordx2 v[50:51], v6, s[8:11], s12 offen offset:512
    s_lshl_b32 s12, s7, 1
    v_mov_b32 v9, s12
    global_load_ushort v52, v9, s[16:17]
    """)
    k(f"""
    v_mov_b32 v12, 0
    v_mov_b32 v13, 0
    v_mov_b32 v14, 0
    v_mov_b32 v15, 0
    s_mul_i32 s13, s5, {KCH}
    s_mul_i32 s14, s6, {KCP}
    s_add_u32 s13, s13, s14
    s_add_u32 s13, s13, {KC0+4096}
    v_add_u32 v9, s13, v3
    s_mul_i32 s13, s5, {UP}
    v_add_u32 v10, s13, v3
    v_cmp_gt_u32 vcc, 2, v1
    s_and_saveexec_b64 s[22:23], vcc
    ds_write_b128 v9, v[12:15]
    s_mov_b64 exec, s[22:23]
    v_cmp_gt_u32 vcc, 30, v1
    s_and_saveexec_b64 s[22:23], vcc
    ds_write_b128 v10, v[12:15]
    s_mov_b64 exec, s[22:23]
    """)
    for r in range(32): k(f"v_mov_b32 v{16+r}, 0")
    k(f"""
    v_and_b32 v9, 3, v7
    v_mul_u32_u24 v9, {KCP}, v9
    v_lshrrev_b32 v10, 2, v7
    v_lshlrev_b32 v10, 3, v10
    v_sub_u32 v9, v9, v10
    v_lshl_add_u32 v9, v8, 4, v9
    s_mul_i32 s13, s5, {KCH}
    s_add_u32 s13, s13, {KC0+24}
    s_lshl_b32 s14, s6, 7
    s_sub_u32 s13, s13, s14
    v_add_u32 v10, s13, v9
    v_lshlrev_b32 v11, 5, v7
    v_lshl_add_u32 v11, v8, 4, v11
    s_mul_i32 s13, s5, {UP}
    s_add_u32 s13, s13, 384
    s_sub_u32 s13, s13, s14
    v_add_u32 v11, s13, v11
    s_mov_b32 s24, {f32hex(1.0/512)}
    s_mov_b32 s25, {f32hex(1e-5)}
    s_waitcnt vmcnt(5)
    """)
    for r in range(4):
        k(f"v_mul_f32 v{64+2*r}, s24, v{64+2*r}")
        k(f"v_mul_f32 v{65+2*r}, s24, v{65+2*r}")
    for r in range(4): k(f"v_fma_f32 v{65+2*r}, -v{64+2*r}, v{64+2*r}, v{65+2*r}")
    for r in range(4): k(f"v_max_f32 v{65+2*r}, 0, v{65+2*r}")
    k("v_cvt_pk_bf16_f32 v76, v64, v66")
    k("v_cvt_pk_bf16_f32 v77, v68, v70")
    k("v_cvt_pk_bf16_f32 v78, v65, v67")
    k("v_cvt_pk_bf16_f32 v79, v69, v71")
    unpack(k, 80, 81, 76); unpack(k, 82, 83, 77); unpack(k, 84, 85, 78); unpack(k, 86, 87, 79)
    for r in range(4): k(f"v_add_f32 v{84+r}, s25, v{84+r}")
    k("v_cvt_pk_bf16_f32 v78, v84, v85")
    k("v_cvt_pk_bf16_f32 v79, v86, v87")
    unpack(k, 84, 85, 78); unpack(k, 86, 87, 79)
    for r in range(4): k(f"v_sqrt_f32 v{84+r}, v{84+r}")
    k("s_nop 0")
    k("v_cvt_pk_bf16_f32 v78, v84, v85")
    k("v_cvt_pk_bf16_f32 v79, v86, v87")
    unpack(k, 84, 85, 78); unpack(k, 86, 87, 79)
    for r in range(4): k(f"v_rcp_f32 v{84+r}, v{84+r}")
    k("s_waitcnt vmcnt(3)")
    for ch in range(2):
        x = 72 + 2*ch; T = 88 + 4*ch
        unpack(k, T, T+1, x); unpack(k, T+2, T+3, x+1)
        for r in range(4): k(f"v_sub_f32 v{T+r}, v{T+r}, v{80+r}")
        k(f"v_cvt_pk_bf16_f32 v{x}, v{T}, v{T+1}")
        k(f"v_cvt_pk_bf16_f32 v{x+1}, v{T+2}, v{T+3}")
        unpack(k, T, T+1, x); unpack(k, T+2, T+3, x+1)
        for r in range(4): k(f"v_mul_f32 v{T+r}, v{T+r}, v{84+r}")
        k(f"v_cvt_pk_bf16_f32 v{x}, v{T}, v{T+1}")
        k(f"v_cvt_pk_bf16_f32 v{x+1}, v{T+2}, v{T+3}")
        k(f"ds_write_b64 v4, v[{x}:{x+1}] offset:{480 + ch*UP}")
    k("s_waitcnt vmcnt(0) lgkmcnt(0)")
    k("s_barrier")
    def loads(i0p, FA, FB):
        o = []
        for s in range(8):
            off = 64*(63 - i0p - 8*s)
            o.append(f"ds_read_b64 v[{FA+4*s}:{FA+4*s+1}], v10 offset:{off}")
            o.append(f"ds_read_b64 v[{FA+4*s+2}:{FA+4*s+3}], v10 offset:{off+8}")
            o.append(f"ds_read_b128 v[{FB+4*s}:{FB+4*s+3}], v11 offset:{512*s + 64*(1-i0p)}")
        return o
    def mf(FA, FB, m):
        o = []
        for s in range(8):
            for w in range(8):
                if s + w <= 7 and max(s, w) == m:
                    c = s + w
                    o.append(f"v_mfma_f32_16x16x32_bf16 v[{16+4*c}:{19+4*c}], v[{FA+4*s}:{FA+4*s+3}], v[{FB+4*w}:{FB+4*w+3}], v[{16+4*c}:{19+4*c}]")
        return o
    l0 = loads(0, 64, 96); l1 = loads(1, 128, 160)
    allloads = l0 + l1
    issued = 0
    def issue(n):
        nonlocal issued
        for x in allloads[issued:issued+n]: k(x)
        issued = min(len(allloads), issued+n)
    issue(12)
    for i0p, (FA, FB) in enumerate([(64, 96), (128, 160)]):
        for m in range(8):
            need = 24*i0p + 3*(m+1)
            issue(max(0, need - issued))
            k(f"s_waitcnt lgkmcnt({min(15, issued-need)})")
            ms = mf(FA, FB, m)
            nl = min(len(allloads)-issued, max(3, len(ms)//2), 12 - (issued-need))
            nl = max(nl, 0)
            extra = allloads[issued:issued+nl]; issued += nl
            for x in interleave(ms, extra): k(x)
    assert issued == len(allloads)
    k(f"""
    s_lshl_b32 s13, s5, 15
    s_lshl_b32 s14, s6, 10
    s_add_u32 s13, s13, s14
    s_add_u32 s13, s13, {RED}
    v_add_u32 v9, s13, v3
    s_lshl_b32 s13, s5, 15
    s_lshl_b32 s14, s6, 13
    s_add_u32 s13, s13, s14
    s_add_u32 s13, s13, {RED}
    v_add_u32 v12, s13, v3
    s_mul_i32 s13, s5, {UP}
    s_lshl_b32 s14, s6, 10
    s_add_u32 s13, s13, s14
    s_add_u32 s13, s13, 480
    v_add_u32 v13, s13, v6
    v_lshlrev_b32 v52, 16, v52
    """)
    for p in range(4):
        if p < 3:
            k(f"s_cmp_lg_u32 s6, {p}")
            k(f"s_cbranch_scc1 L_{name}_rv{p+1}")
        else:
            k("s_nop 1")
        for c in range(8):
            if c in (2*p, 2*p+1): continue
            k(f"ds_write_b128 v9, v[{16+4*c}:{19+4*c}] offset:{4096*c}")
        for r in range(8): k(f"v_mov_b32 v{56+r}, v{16+8*p+r}")
        k("s_waitcnt lgkmcnt(0)")
        k("s_barrier")
        others = [q for q in range(4) if q != p]
        for t in range(2):
            for j, q in enumerate(others):
                k(f"ds_read_b128 v[{64+12*t+4*j}:{67+12*t+4*j}], v12 offset:{4096*t + 1024*q}")
        if p < 3:
            k(f"s_branch L_{name}_ep")
            k.label(f"L_{name}_rv{p+1}")
    k.label(f"L_{name}_ep")
    k("ds_read_b64 v[88:89], v13")
    k("ds_read_b64 v[90:91], v13 offset:512")
    for t in range(2):
        k(f"s_waitcnt lgkmcnt({5-3*t})")
        for r in range(4):
            k(f"v_add_f32 v{56+4*t+r}, v{56+4*t+r}, v{64+12*t+r}")
            k(f"v_add_f32 v{68+12*t+r}, v{68+12*t+r}, v{72+12*t+r}")
        for r in range(4): k(f"v_add_f32 v{56+4*t+r}, v{56+4*t+r}, v{68+12*t+r}")
    k("s_waitcnt lgkmcnt(0)")
    for j in range(4): k(f"v_cvt_pk_bf16_f32 v{64+j}, v{56+2*j}, v{57+2*j}")
    for j in range(4): unpack(k, 72+2*j, 73+2*j, 88+j)
    for j in range(4): unpack(k, 56+2*j, 57+2*j, 64+j)
    for j in range(8): k(f"v_mul_f32 v{72+j}, v{72+j}, v52")
    for j in range(4): k(f"v_cvt_pk_bf16_f32 v{64+j}, v{72+2*j}, v{73+2*j}")
    for j in range(4): unpack(k, 72+2*j, 73+2*j, 64+j)
    for j in range(8): k(f"v_add_f32 v{56+j}, v{56+j}, v{72+j}")
    for j in range(4): k(f"v_cvt_pk_bf16_f32 v{64+j}, v{56+2*j}, v{57+2*j}")
    for j in range(4): unpack(k, 72+2*j, 73+2*j, 48+j)
    for j in range(4): unpack(k, 56+2*j, 57+2*j, 64+j)
    for j in range(8): k(f"v_add_f32 v{56+j}, v{56+j}, v{72+j}")
    for j in range(4): k(f"v_cvt_pk_bf16_f32 v{64+j}, v{56+2*j}, v{57+2*j}")
    k("buffer_store_dwordx2 v[64:65], v6, s[8:11], s20 offen")
    k("buffer_store_dwordx2 v[66:67], v6, s[8:11], s20 offen offset:512")
    k.label(E)
    k("s_endpgm")
    return k

if __name__ == '__main__':
    from gen_k0 import *
    p = Prog()
    p.add_kernel(gen_k0())
    p.add_kernel(gen_conv('conv1_kernel', XT0, XT1, ST1))
    p.launch('k0_kernel', K0_GRID, 256, K0_LDS)
    p.launch('conv1_kernel', CONV_GRID, 512, CONV_LDS)
    open('c1.s','w').write(p.text())
```

```python
from asmlib import *
from layout import *
from gen_k0 import f32hex
from gen_conv import unpack

DN_GRID = 256
DN_LDS = 49152

def gen_down(name, XIN, XOUT, final):
    k = Kernel(name, vgpr=208, agpr=256, sgpr=64)
    vm = Q(k, 'vmcnt', 63); lg = Q(k, 'lgkmcnt', 15)
    E = f"L_{name}_end"
    ACC = 16; FV = 80; RES = 176; T = 192
    k(f"""
    s_cmp_ge_u32 s2, {DN_GRID}
    s_cbranch_scc1 {E}
    s_load_dwordx2 s[18:19], s[0:1], 104
    s_load_dwordx2 s[16:17], s[0:1], 88
    v_and_b32 v1, 63, v0
    v_lshrrev_b32 v2, 6, v0
    v_lshlrev_b32 v3, 4, v1
    v_readfirstlane_b32 s3, v2
    s_lshr_b32 s4, s2, 3
    s_and_b32 s5, s2, 7
    s_lshr_b32 s6, s3, 1
    s_and_b32 s7, s3, 1
    """)
    k(f"""
    s_lshl_b32 s12, s5, 1
    s_add_u32 s13, s12, s6
    s_xor_b32 s14, s13, 1
    s_mul_i32 s20, s13, {86*1024}
    s_mul_i32 s21, s14, {86*1024}
    s_lshl_b32 s12, s4, 1
    s_add_u32 s15, s12, s7
    s_xor_b32 s14, s15, 1
    s_mul_i32 s22, s15, {86*1024}
    s_mul_i32 s23, s14, {86*1024}
    s_lshl_b32 s12, s3, 10
    s_add_u32 s14, s12, {WD}
    s_add_u32 s20, s20, s14
    s_add_u32 s21, s21, s14
    s_add_u32 s14, s12, {H}
    s_add_u32 s22, s22, s14
    s_add_u32 s23, s23, s14
    v_mov_b32 v4, v3
    s_waitcnt lgkmcnt(0)
    """)
    k.srd(8, 18, WS_USED)
    def freg(j, i):
        n = 4*j + i
        return f"a[{4*n}:{4*n+3}]" if n < 64 else f"v[{FV+4*(n-64)}:{FV+4*(n-64)+3}]"
    def loads(j, tracked=True):
        for i in range(4):
            ins = f"buffer_load_dwordx4 {freg(j,i)}, v4, s[8:11], s{20+i} offen"
            if tracked: vm.issue(ins, f"S{j}")
            else: k(ins)
        k("v_add_u32 v4, 4096, v4")
    def mfmas(j):
        for ad in range(2):
            for al in range(2):
                a = ACC + 16*(2*ad+al)
                k(f"v_mfma_f32_32x32x16_bf16 v[{a}:{a+15}], {freg(j,ad)}, {freg(j,2+al)}, v[{a}:{a+15}]")
    PRE = 15
    for j in range(PRE): loads(j)
    for r in range(64): k(f"v_mov_b32 v{ACC+r}, 0")
    k(f"""
    v_and_b32 v6, 31, v1
    v_lshrrev_b32 v7, 5, v1
    v_lshlrev_b32 v5, 14, v7
    v_lshl_add_u32 v5, v6, 1, v5
    s_lshl_b32 s24, s13, 17
    s_lshl_b32 s25, s15, 6
    s_add_u32 s24, s24, s25
    s_add_u32 s25, s24, {XOUT if not final else 0}
    s_add_u32 s24, s24, {XIN}
    """)
    def resload(n):
        q, r = n >> 2, n & 3
        k(f"s_add_u32 s26, s24, {(8*q+r)*4096}")
        vm.issue(f"buffer_load_ushort v{RES+n}, v5, s[8:11], s26 offen", f"R{n}")
    rn = 0
    for j in range(21):
        vm.need(f"S{j}")
        mfmas(j)
        if j + PRE < 21: loads(j+PRE)
        elif j + PRE == 21:
            k("s_cmp_ge_u32 s3, 2")
            k(f"s_cbranch_scc1 L_{name}_sk1")
            loads(21, tracked=False)
            k.label(f"L_{name}_sk1")
            vm.tags["S21"] = vm.n
        else:
            for _ in range(4):
                if rn < 16: resload(rn); rn += 1
    assert rn == 16
    k("s_cmp_ge_u32 s3, 2")
    k(f"s_cbranch_scc1 L_{name}_sk2")
    k(f"s_waitcnt vmcnt(16)")
    mfmas(21)
    k.label(f"L_{name}_sk2")
    for a in (1, 2, 3):
        k(f"""
        s_xor_b32 s26, s3, {a}
        s_mul_i32 s26, s26, 12288
        s_add_u32 s26, s26, {(a-1)*4096}
        v_add_u32 v{8+a}, s26, v3
        """)
    k(f"""
    s_mul_i32 s26, s3, 12288
    v_add_u32 v8, s26, v3
    s_nop 7
    """)
    for a in (1, 2, 3):
        for q in range(4):
            lg.issue(f"ds_write_b128 v{8+a}, v[{ACC+16*a+4*q}:{ACC+16*a+4*q+3}] offset:{1024*q}", "rw")
    lg.drain()
    k("s_barrier")
    for q in range(4):
        for a in range(3):
            lg.issue(f"ds_read_b128 v[{FV+16*a+4*q}:{FV+16*a+4*q+3}], v8 offset:{4096*a+1024*q}", f"rr{q}")
    vm.drain()
    for n in range(16): k(f"v_lshlrev_b32 v{RES+n}, 16, v{RES+n}")
    if not final:
        k("v_mov_b32 v12, 0")
        k("v_mov_b32 v13, 0")
        k("v_mov_b32 v14, 0x3f803f80")
    else:
        k.srd(28, 16, 2048*512*2)
        k(f"""
        v_lshlrev_b32 v5, 10, v6
        v_lshl_add_u32 v5, v7, 4, v5
        s_lshl_b32 s25, s15, 15
        s_lshl_b32 s26, s13, 6
        s_add_u32 s25, s25, s26
        """)
    for q in range(4):
        lg.need(f"rr{q}")
        a = ACC+4*q
        for j in (0, 2):
            k(f"v_pk_add_f32 v[{a+j}:{a+j+1}], v[{a+j}:{a+j+1}], v[{FV+4*q+j}:{FV+4*q+j+1}]")
            k(f"v_pk_add_f32 v[{FV+16+4*q+j}:{FV+16+4*q+j+1}], v[{FV+16+4*q+j}:{FV+16+4*q+j+1}], v[{FV+32+4*q+j}:{FV+32+4*q+j+1}]")
        for j in (0, 2):
            k(f"v_pk_add_f32 v[{a+j}:{a+j+1}], v[{a+j}:{a+j+1}], v[{FV+16+4*q+j}:{FV+16+4*q+j+1}]")
        k(f"v_cvt_pk_bf16_f32 v{T+2*q}, v{a}, v{a+1}")
        k(f"v_cvt_pk_bf16_f32 v{T+2*q+1}, v{a+2}, v{a+3}")
        unpack(k, a, a+1, T+2*q); unpack(k, a+2, a+3, T+2*q+1)
        for j in (0, 2):
            k(f"v_pk_add_f32 v[{a+j}:{a+j+1}], v[{a+j}:{a+j+1}], v[{RES+4*q+j}:{RES+4*q+j+1}]")
        k(f"v_cvt_pk_bf16_f32 v{T+2*q}, v{a}, v{a+1}")
        k(f"v_cvt_pk_bf16_f32 v{T+2*q+1}, v{a+2}, v{a+3}")
        if not final:
            for r in range(4):
                k(f"s_add_u32 s26, s25, {(8*q+r)*4096}")
                op = "buffer_store_short_d16_hi" if r & 1 else "buffer_store_short"
                k(f"{op} v{T+2*q+(r>>1)}, v5, s[8:11], s26 offen")
            for j in range(2):
                k(f"v_dot2_f32_bf16 v12, v{T+2*q+j}, v14, v12")
                k(f"v_dot2_f32_bf16 v13, v{T+2*q+j}, v{T+2*q+j}, v13")
        elif q & 1:
            o = T + 2*(q-1)
            k("s_nop 1")
            k(f"v_permlane32_swap_b32 v{o}, v{o+2}")
            k(f"v_permlane32_swap_b32 v{o+1}, v{o+3}")
            k(f"buffer_store_dwordx4 v[{o}:{o+3}], v5, s[28:31], s25 offen offset:{16*(q-1)}")
    if not final:
        k(f"""
        s_nop 2
        v_permlane32_swap_b32 v12, v13
        v_lshlrev_b32 v5, 3, v6
        v_lshl_add_u32 v5, v7, 2, v5
        s_lshl_b32 s26, s15, 8
        s_add_u32 s26, s26, {ST3}
        v_add_f32 v12, v12, v13
        buffer_atomic_add_f32 v12, v5, s[8:11], s26 offen
        """)
    k.label(E)
    k("s_endpgm")
    return k
```

```python
from asmlib import *
from layout import *
from gen_k0 import f32hex, LOG2E
from gen_conv import unpack

GU_GRID = 242
XP = 192
STX = 98304; FIN = STX + 8192
GU_LDS = FIN + 8*1536

def stats_final(k, S, Qr, T, sInv, sEps):
    for j in range(2):
        k(f"v_mul_f32 v{S[j]}, s{sInv}, v{S[j]}")
        k(f"v_mul_f32 v{Qr[j]}, s{sInv}, v{Qr[j]}")
    for j in range(2): k(f"v_fma_f32 v{Qr[j]}, -v{S[j]}, v{S[j]}, v{Qr[j]}")
    for j in range(2): k(f"v_max_f32 v{Qr[j]}, 0, v{Qr[j]}")
    k(f"v_cvt_pk_bf16_f32 v{T+4}, v{S[0]}, v{S[1]}")
    k(f"v_cvt_pk_bf16_f32 v{T+5}, v{Qr[0]}, v{Qr[1]}")
    unpack(k, T, T+1, T+4); unpack(k, T+2, T+3, T+5)
    for j in range(2): k(f"v_add_f32 v{T+2+j}, s{sEps}, v{T+2+j}")
    k(f"v_cvt_pk_bf16_f32 v{T+5}, v{T+2}, v{T+3}")
    unpack(k, T+2, T+3, T+5)
    for j in range(2): k(f"v_sqrt_f32 v{T+2+j}, v{T+2+j}")
    k("s_nop 0")
    k(f"v_cvt_pk_bf16_f32 v{T+5}, v{T+2}, v{T+3}")
    unpack(k, T+2, T+3, T+5)

def gen_gu(name, XIN):
    k = Kernel(name, vgpr=256, sgpr=64)
    vm = Q(k, 'vmcnt', 63); lg = Q(k, 'lgkmcnt', 15)
    E = f"L_{name}_end"
    ACC = 32; XF = 80; SA = 16; SF = 104; W = 128; CSV = 112
    k(f"""
    s_cmp_ge_u32 s2, {GU_GRID}
    s_cbranch_scc1 {E}
    s_load_dwordx2 s[18:19], s[0:1], 104
    v_and_b32 v1, 63, v0
    v_lshrrev_b32 v2, 6, v0
    v_lshlrev_b32 v3, 4, v1
    v_readfirstlane_b32 s3, v2
    s_mul_i32 s4, s2, 373
    s_lshr_b32 s4, s4, 12
    s_mul_i32 s5, s4, 11
    s_sub_u32 s5, s2, s5
    s_lshl_b32 s6, s5, 3
    s_add_u32 s6, s6, s3
    """)
    for i in range(3):
        k(f"""
        v_add_u32 v7, {64*i}, v1
        v_mul_u32_u24 v8, 0xaaab, v7
        v_lshrrev_b32 v8, 19, v8
        v_mul_u32_u24 v9, 12, v8
        v_sub_u32 v9, v7, v9
        v_lshrrev_b32 v10, 2, v8
        v_and_b32 v10, 2, v10
        v_xor_b32 v9, v9, v10
        v_lshlrev_b32 v9, 4, v9
        v_lshl_add_u32 v{4+i}, v8, 12, v9
        """)
    k(f"""
    s_mul_i32 s12, s4, 192
    s_lshl_b32 s13, s3, 16
    s_add_u32 s12, s12, s13
    s_add_u32 s12, s12, {XIN}
    s_mul_i32 s13, s3, 3072
    s_lshl_b32 s14, s6, 15
    s_add_u32 s14, s14, {WGU}
    s_waitcnt lgkmcnt(0)
    """)
    k.srd(8, 18, WS_USED)
    def xdma(p):
        for i in range(3):
            k(f"s_add_u32 m0, s13, {p*24576 + i*1024}")
            if i == 0 and p > 0: k(f"s_add_u32 s12, s12, {128*4096}")
            else: k("s_nop 0")
            vm.issue(f"buffer_load_dwordx4 v{4+i}, s[8:11], s12 offen lds", f"X{p}")
    def wload(ks):
        if ks % 2 == 0 and ks > 0: k(f"s_add_u32 s14, s14, 4096")
        o = (ks % 2)*2048
        vm.issue(f"buffer_load_dwordx4 v[{W+8*ks}:{W+8*ks+3}], v3, s[8:11], s14 offen offset:{o}", f"W{ks}")
        vm.issue(f"buffer_load_dwordx4 v[{W+8*ks+4}:{W+8*ks+7}], v3, s[8:11], s14 offen offset:{o+1024}", f"W{ks}")
    xdma(0)
    for ks in range(4): wload(ks)
    xdma(1); xdma(2); xdma(3)
    for ks in range(4, 16): wload(ks)
    k(f"""
    v_lshrrev_b32 v7, 4, v1
    v_and_b32 v8, 15, v1
    v_lshlrev_b32 v9, 4, v7
    s_lshl_b32 s15, s6, 6
    s_add_u32 s15, s15, {CS}
    """)
    vm.issue(f"buffer_load_dwordx4 v[{CSV}:{CSV+3}], v9, s[8:11], s15 offen", "CS")
    k(f"s_add_u32 s15, s15, {CSP}")
    vm.issue(f"buffer_load_dwordx4 v[{CSV+4}:{CSV+7}], v9, s[8:11], s15 offen", "CS")
    k(f"""
    v_lshrrev_b32 v9, 2, v8
    v_lshl_add_u32 v9, v7, 3, v9
    v_mul_u32_u24 v9, {XP}, v9
    v_and_b32 v10, 3, v8
    v_lshl_add_u32 v9, v10, 3, v9
    v_and_b32 v11, 1, v7
    v_lshlrev_b32 v11, 5, v11
    v_add_u32 v10, v9, v11
    v_sub_u32 v11, v9, v11
    v_add_u32 v12, 49152, v10
    v_add_u32 v13, 49152, v11
    s_mul_i32 s15, s3, 6144
    v_add_u32 v14, s15, v10
    v_add_u32 v15, s15, v11
    v_mov_b32 v28, 0x3f803f80
    s_mov_b32 s24, {f32hex(1.0/512)}
    s_mov_b32 s25, {f32hex(1e-5)}
    s_mov_b32 s26, {f32hex(-LOG2E)}
    """)
    for r in range(48): k(f"v_mov_b32 v{ACC+r}, 0")
    for r in range(12): k(f"v_mov_b32 v{SA+r}, 0")
    def xread(ks, t):
        b = (10 if ks < 8 else 12) + (t & 1)
        off = (ks % 8)*6144 + t*32
        lg.issue(f"ds_read_b64_tr_b16 v[{XF+4*t}:{XF+4*t+1}], v{b} offset:{off}", f"x{ks}_{t}")
        lg.issue(f"ds_read_b64_tr_b16 v[{XF+4*t+2}:{XF+4*t+3}], v{b} offset:{off+4*XP}", f"x{ks}_{t}")
    fillers = []
    def st_read(half, t, buf):
        def f():
            b = 14 + (t & 1); off = half*49152 + t*32
            lg.issue(f"ds_read_b64_tr_b16 v[{SF+4*buf}:{SF+4*buf+1}], v{b} offset:{off}", f"s{half}_{t}")
            lg.issue(f"ds_read_b64_tr_b16 v[{SF+4*buf+2}:{SF+4*buf+3}], v{b} offset:{off+4*XP}", f"s{half}_{t}")
        return f
    def st_dot(half, t, buf, j0):
        def f():
            lg.need(f"s{half}_{t}")
            for j in (j0, j0+1):
                r = SF+4*buf+j
                k(f"v_dot2_f32_bf16 v{SA+t}, v{r}, v28, v{SA+t}")
                k(f"v_dot2_f32_bf16 v{SA+6+t}, v{r}, v{r}, v{SA+6+t}")
        return f
    seq = [(h, t) for h in range(2) for t in range(6)]
    fillers.append(st_read(*seq[0], 0))
    for n, (h, t) in enumerate(seq):
        if n+1 < len(seq): fillers.append(st_read(*seq[n+1], (n+1) & 1))
        fillers.append(st_dot(h, t, n & 1, 0)); fillers.append(st_dot(h, t, n & 1, 2))
    def st_reduce1():
        k("s_nop 1")
        for b in (SA, SA+6):
            for j in range(3): k(f"v_permlane32_swap_b32 v{b+2*j}, v{b+2*j+1}")
        for b in (SA, SA+6):
            for j in range(3): k(f"v_add_f32 v{b+2*j}, v{b+2*j}, v{b+2*j+1}")
        k(f"v_mov_b32 v{SA+5}, v{SA+4}")
        k(f"v_mov_b32 v{SA+11}, v{SA+10}")
    def st_reduce2():
        k("s_nop 1")
        for b in (SA, SA+6):
            k(f"v_permlane16_swap_b32 v{b}, v{b+2}")
            k(f"v_permlane16_swap_b32 v{b+4}, v{b+5}")
        k(f"v_add_f32 v{SF}, v{SA}, v{SA+2}")
        k(f"v_add_f32 v{SF+1}, v{SA+6}, v{SA+8}")
        k(f"v_add_f32 v{SF+2}, v{SA+4}, v{SA+5}")
        k(f"v_add_f32 v{SF+3}, v{SA+10}, v{SA+11}")
        k(f"s_lshl_b32 s15, s3, 10")
        k(f"v_add_u32 v9, s15, v3")
        lg.issue(f"ds_write_b128 v9, v[{SF}:{SF+3}] offset:{STX-65536+65536 if STX<65536 else 0}" if STX < 65536 else f"ds_write_b128 v29, v[{SF}:{SF+3}]", "stw")
    k(f"""
    s_lshl_b32 s15, s3, 10
    s_add_u32 s15, s15, {STX}
    v_add_u32 v29, s15, v3
    v_add_u32 v30, {STX}, v3
    """)
    fillers.append(st_reduce1); fillers.append(st_reduce2)
    PB2 = len(fillers)
    R0 = W
    post = []
    def p_read():
        for w in range(8): lg.issue(f"ds_read_b128 v[{R0+4*w}:{R0+4*w+3}], v30 offset:{1024*w}", f"p{w}")
    def p_sum(a):
        def f():
            lg.need(f"p{2*a}", f"p{2*a+1}")
            for j in (0, 2): k(f"v_pk_add_f32 v[{R0+8*a+j}:{R0+8*a+j+1}], v[{R0+8*a+j}:{R0+8*a+j+1}], v[{R0+8*a+4+j}:{R0+8*a+5+j}]")
        return f
    def p_sum2():
        for j in (0, 2):
            k(f"v_pk_add_f32 v[{R0+j}:{R0+j+1}], v[{R0+j}:{R0+j+1}], v[{R0+8+j}:{R0+9+j}]")
            k(f"v_pk_add_f32 v[{R0+16+j}:{R0+17+j}], v[{R0+16+j}:{R0+17+j}], v[{R0+24+j}:{R0+25+j}]")
        for j in (0, 2):
            k(f"v_pk_add_f32 v[{R0+j}:{R0+j+1}], v[{R0+j}:{R0+j+1}], v[{R0+16+j}:{R0+17+j}]")
    def p_fin():
        T = R0+8
        stats_final(k, [R0, R0+2], [R0+1, R0+3], T, 24, 25)
        for j in range(2):
            k(f"v_rcp_f32 v{R0+17+4*j}, v{T+2+j}")
            k(f"v_sub_f32 v{R0+16+4*j}, 0, v{T+j}")
            k(f"v_mov_b32 v{R0+18+4*j}, v{T+2+j}")
            k(f"v_mul_f32 v{R0+17+4*j}, s26, v{R0+17+4*j}")
        k(f"""
        s_mul_i32 s15, s3, 1536
        s_add_u32 s15, s15, {FIN}
        v_lshl_add_u32 v31, v8, 4, s15
        v_and_b32 v9, 1, v7
        v_lshlrev_b32 v9, 9, v9
        v_lshrrev_b32 v2, 1, v7
        v_lshl_add_u32 v2, v2, 8, v31
        v_add_u32 v9, v9, v2
        """)
        lg.issue(f"ds_write_b128 v9, v[{R0+16}:{R0+19}]", "fw")
        lg.issue(f"ds_write_b128 v2, v[{R0+20}:{R0+23}] offset:1024", "fw")
    FC = W + 32
    def p_rd():
        lg.need("fw")
        for t in range(6): lg.issue(f"ds_read_b128 v[{FC+4*t}:{FC+4*t+3}], v31 offset:{256*t}", f"fc{t}")
    post = [p_read, None, None, p_sum(0), p_sum(1), p_sum(2), p_sum(3), p_sum2, p_fin, None, None, p_rd]
    vm.need("X0")
    k("s_barrier")
    for t in range(6): xread(0, t)
    fi = 0; pi = 0; b2done = False
    for ks in range(16):
        if ks == 3:
            vm.need("X3"); k("s_barrier")
        if ks >= 11 and not b2done:
            assert fi == len(fillers)
            lg.need("stw"); k("s_barrier"); b2done = True
        vm.need(f"W{ks}")
        for t in range(6):
            lg.need(f"x{ks}_{t}")
            xf = f"v[{XF+4*t}:{XF+4*t+3}]"
            k(f"v_mfma_f32_16x16x32_bf16 v[{ACC+8*t}:{ACC+8*t+3}], v[{W+8*ks}:{W+8*ks+3}], {xf}, v[{ACC+8*t}:{ACC+8*t+3}]")
            k(f"v_mfma_f32_16x16x32_bf16 v[{ACC+8*t+4}:{ACC+8*t+7}], v[{W+8*ks+4}:{W+8*ks+7}], {xf}, v[{ACC+8*t+4}:{ACC+8*t+7}]")
            if ks < 15: xread(ks+1, t)
            if ks >= 3 and fi < len(fillers):
                fillers[fi](); fi += 1
            elif b2done and pi < len(post):
                if post[pi]: post[pi]()
                pi += 1
    assert pi == len(post)
    vm.need("CS")
    k(f"""
    s_cmp_ge_u32 s6, 86
    s_cbranch_scc1 {E}
    s_mul_i32 s15, s4, {3*86*1024}
    s_lshl_b32 s16, s6, 10
    s_add_u32 s15, s15, s16
    s_add_u32 s15, s15, {H}
    s_nop 3
    """)
    HO = XF
    for t in range(6):
        lg.need(f"fc{t}")
        g = ACC+8*t; u = g+4; c = FC+4*t
        for j in (0, 2):
            k(f"v_pk_fma_f32 v[{g+j}:{g+j+1}], v[{CSV+j}:{CSV+j+1}], v[{c}:{c+1}], v[{g+j}:{g+j+1}] op_sel_hi:[1,0,1]")
        for j in (0, 2):
            k(f"v_pk_mul_f32 v[{g+j}:{g+j+1}], v[{g+j}:{g+j+1}], v[{c}:{c+1}] op_sel:[0,1] op_sel_hi:[1,1]")
        for j in range(4): k(f"v_exp_f32 v{g+j}, v{g+j}")
        for j in (0, 2):
            k(f"v_pk_fma_f32 v[{u+j}:{u+j+1}], v[{CSV+4+j}:{CSV+5+j}], v[{c}:{c+1}], v[{u+j}:{u+j+1}] op_sel_hi:[1,0,1]")
        for j in (0, 2):
            k(f"v_pk_fma_f32 v[{g+j}:{g+j+1}], v[{g+j}:{g+j+1}], v[{c+2}:{c+3}], v[{c+2}:{c+3}] op_sel_hi:[1,0,0]")
        for j in range(4): k(f"v_rcp_f32 v{g+j}, v{g+j}")
        k("s_nop 0")
        for j in (0, 2):
            k(f"v_pk_mul_f32 v[{u+j}:{u+j+1}], v[{u+j}:{u+j+1}], v[{g+j}:{g+j+1}]")
        o = HO + 4*(t//2) + 2*(t & 1)
        k(f"v_cvt_pk_bf16_f32 v{o}, v{u}, v{u+1}")
        k(f"v_cvt_pk_bf16_f32 v{o+1}, v{u+2}, v{u+3}")
        if t & 1:
            j = t//2; o = HO+4*j
            k("s_nop 1")
            k(f"v_permlane16_swap_b32 v{o}, v{o+2}")
            k(f"v_permlane16_swap_b32 v{o+1}, v{o+3}")
            if j == 1:
                k(f"s_cmp_eq_u32 s4, 21")
                k(f"s_cbranch_scc1 {E}")
            k(f"buffer_store_dwordx4 v[{o}:{o+3}], v3, s[8:11], s15 offen")
            k(f"s_add_u32 s15, s15, {86*1024}")
    k.label(E)
    k("s_endpgm")
    return k
```

```python
from asmlib import *
from layout import *
import struct
def f32hex(x): return hex(struct.unpack('<I', struct.pack('<f', x))[0])
import math
LOG2E = 1.4426950408889634
LOG2E_HI = struct.unpack('<f', struct.pack('<f', LOG2E))[0]
LOG2E_LO = LOG2E - LOG2E_HI
LN2 = math.log(2.0)
INV2PI = 1.0/(2*math.pi)

NKG, NT, NWGU, NWD = 512, 64, 86, 43
K0_GRID = NKG + NT + NWGU + NWD
K0_LDS = 36*1024

def interleave(a, b):
    out = []; na, nb = len(a), len(b)
    if nb == 0: return list(a)
    j = 0
    for i, x in enumerate(a):
        out.append(x)
        while j < nb and (j+1)*na <= (i+1)*nb:
            out.append(b[j]); j += 1
    out += b[j:]
    return out

def exp_bf16(k, dst, x, t0, t1, sL, sLlo, sLn2):
    k(f"v_mul_f32 v{t0}, s{sL}, v{x}")
    k(f"v_fma_f32 v{t1}, v{x}, s{sL}, -v{t0}")
    k(f"v_fmac_f32 v{t1}, s{sLlo}, v{x}")
    k(f"v_exp_f32 v{t0}, v{t0}")
    k(f"v_mul_f32 v{t1}, s{sLn2}, v{t1}")
    k(f"v_fma_f32 v{t0}, v{t0}, v{t1}, v{t0}")
    k(f"v_cvt_pk_bf16_f32 v{t0}, v{t0}, v{t0}")
    k(f"v_lshlrev_b32 v{dst}, 16, v{t0}")

def gen_k0():
    k = Kernel('k0_kernel', vgpr=96, sgpr=64)
    k(f"""
    s_load_dwordx8 s[8:15], s[0:1], 8
    s_load_dwordx2 s[16:17], s[0:1], 40
    s_load_dwordx2 s[18:19], s[0:1], 104
    s_load_dwordx2 s[20:21], s[0:1], 0
    s_load_dwordx4 s[24:27], s[0:1], 64
    s_load_dwordx2 s[28:29], s[0:1], 80
    v_and_b32 v1, 63, v0
    v_lshrrev_b32 v2, 6, v0
    s_nop 0
    v_readfirstlane_b32 s3, v2
    s_cmp_ge_u32 s2, {NKG}
    s_cbranch_scc1 L_k0_other
    """)
    k.c("Kgen")
    PT = 2048; T16 = 2048 + 4*3072
    k(f"""
    v_and_b32 v3, 31, v1
    s_lshl_b32 s4, s2, 7
    s_lshl_b32 s5, s3, 5
    s_add_u32 s4, s4, s5
    v_add_u32 v4, s4, v3
    v_lshlrev_b32 v4, 1, v4
    s_lshl_b32 s5, s2, 1
    v_mov_b32 v5, s5
    s_waitcnt lgkmcnt(0)
    global_load_ushort v6, v4, s[8:9]
    global_load_ushort v7, v4, s[10:11]
    global_load_ushort v8, v4, s[12:13]
    global_load_ushort v9, v4, s[14:15]
    global_load_ushort v10, v5, s[16:17]
    s_mov_b32 s30, {f32hex(LOG2E_HI)}
    s_mov_b32 s31, {f32hex(LOG2E_LO)}
    s_mov_b32 s32, {f32hex(LN2)}
    s_mov_b32 s33, {f32hex(INV2PI)}
    """)
    k("""
    v_and_b32 v11, 15, v1
    v_lshrrev_b32 v12, 3, v11
    v_lshlrev_b32 v12, 7, v12
    v_and_b32 v13, 7, v11
    v_add_u32 v12, v12, v13
    v_cvt_f32_u32 v20, v12
    v_lshrrev_b32 v12, 2, v11
    v_lshlrev_b32 v12, 7, v12
    v_and_b32 v13, 3, v11
    v_lshl_add_u32 v12, v13, 1, v12
    v_add_u32 v12, 0x100, v12
    v_subrev_u32 v13, 8, v11
    v_lshrrev_b32 v13, 1, v13
    v_lshlrev_b32 v13, 7, v13
    v_and_b32 v14, 1, v11
    v_lshl_add_u32 v13, v14, 2, v13
    v_add_u32 v13, 0x200, v13
    v_cmp_gt_u32 vcc, 8, v11
    v_lshlrev_b32 v14, 7, v11
    v_add_u32 v14, 0x400, v14
    v_cndmask_b32 v12, v13, v12, vcc
    v_cvt_f32_u32 v21, v12
    v_cvt_f32_u32 v22, v14
    v_lshlrev_b32 v14, 3, v11
    v_cvt_f32_u32 v23, v14
    """)
    for r in range(12): k(f"v_mov_b32 v{24+r}, 0")
    k("s_waitcnt vmcnt(0)")
    for r in (6,7,8,9,10): k(f"v_lshlrev_b32 v{r}, 16, v{r}")
    exp_bf16(k, 10, 10, 12, 13, 30, 31, 32)
    exp_bf16(k, 6, 6, 12, 13, 30, 31, 32)
    k(f"""
    v_mul_f32 v6, v6, v10
    v_mul_f32 v7, v7, v10
    v_add_f32 v10, v10, v10
    v_mul_f32 v16, s30, v6
    v_mul_f32 v17, s33, v7
    v_mul_f32 v18, v8, v10
    v_mul_f32 v19, v9, v10
    v_sub_f32 v16, 0, v16
    s_lshl_b32 s5, s3, 9
    v_lshl_add_u32 v12, v3, 4, s5
    ds_write_b128 v12, v[16:19]
    v_lshrrev_b32 v13, 4, v1
    v_lshl_add_u32 v13, v13, 4, s5
    s_waitcnt lgkmcnt(0)
    """)
    for t in range(8): k(f"ds_read_b128 v[{36+4*t}:{39+4*t}], v13 offset:{64*t}")
    pend = []
    for t in range(8):
        zr, zi, cr, ci = 36+4*t, 37+4*t, 38+4*t, 39+4*t
        S = 80 + 8*(t & 1)
        va = []
        va.append(f"s_waitcnt lgkmcnt({7-t})")
        for c in range(4): va.append(f"v_mul_f32 v{68+c}, v{zr}, v{20+c}")
        for c in range(4): va.append(f"v_mul_f32 v{72+c}, v{zi}, v{20+c}")
        for c in range(4): va.append(f"v_exp_f32 v{68+c}, v{68+c}")
        for c in range(4): va.append(f"v_fract_f32 v{72+c}, v{72+c}")
        for c in range(4): va.append(f"v_cos_f32 v{76+c}, v{72+c}")
        for c in range(4): va.append(f"v_sin_f32 v{4+c}, v{72+c}")
        va.append(f"v_mul_f32 v8, v71, v{cr}")
        va.append(f"v_mul_f32 v9, v71, v{ci}")
        for c in range(3): va.append(f"v_mul_f32 v{S+c}, v{68+c}, v{76+c}")
        va.append(f"v_mul_f32 v{S+6}, v8, v79")
        va.append(f"v_mul_f32 v{S+7}, v8, v7")
        for c in range(3): va.append(f"v_mul_f32 v{S+3+c}, v{68+c}, v{4+c}")
        va.append(f"v_fma_f32 v{S+6}, -v9, v7, v{S+6}")
        va.append(f"v_fma_f32 v{S+7}, -v9, v79, -v{S+7}")
        merged = va[:3] + interleave(va[3:], pend)
        for l in merged: k(l)
        pend = []
        for c in range(3): pend.append(f"v_mfma_f32_16x16x4_f32 v[{24+4*c}:{27+4*c}], v{S+c}, v{S+6}, v[{24+4*c}:{27+4*c}]")
        for c in range(3): pend.append(f"v_mfma_f32_16x16x4_f32 v[{24+4*c}:{27+4*c}], v{S+3+c}, v{S+7}, v[{24+4*c}:{27+4*c}]")
    k("s_nop 1")
    for l in pend: k(l)
    k(f"""
    s_mul_i32 s5, s3, 3072
    s_add_u32 s5, s5, {PT}
    v_lshl_add_u32 v12, v1, 4, s5
    s_nop 7
    s_nop 1
    ds_write_b128 v12, v[24:27]
    ds_write_b128 v12, v[28:31] offset:1024
    ds_write_b128 v12, v[32:35] offset:2048
    s_waitcnt lgkmcnt(0)
    s_barrier
    s_cmp_eq_u32 s3, 3
    s_cbranch_scc1 L_kg_stage2
    """)
    k(f"""
    v_lshlrev_b32 v12, 4, v0
    ds_read_b128 v[24:27], v12 offset:{PT}
    ds_read_b128 v[28:31], v12 offset:{PT+3072}
    ds_read_b128 v[32:35], v12 offset:{PT+2*3072}
    ds_read_b128 v[36:39], v12 offset:{PT+3*3072}
    v_lshrrev_b32 v13, 4, v1
    v_and_b32 v14, 15, v1
    v_lshlrev_b32 v14, 4, v14
    """)
    k(f"""
    s_cmp_eq_u32 s3, 1
    s_cbranch_scc1 L_kg_t1
    s_cmp_eq_u32 s3, 2
    s_cbranch_scc1 L_kg_t2
    v_lshrrev_b32 v15, 1, v13
    v_lshlrev_b32 v15, 8, v15
    v_and_b32 v16, 1, v13
    v_lshl_add_u32 v15, v16, 3, v15
    v_add_u32 v16, v15, v14
    v_add_u32 v17, 2, v16
    v_add_u32 v18, 4, v16
    v_add_u32 v19, 6, v16
    s_branch L_kg_w
    """)
    k.label("L_kg_t1")
    k(f"""
    v_lshlrev_b32 v15, 8, v13
    v_add_u32 v15, 0x200, v15
    v_add_u32 v16, v15, v14
    v_add_u32 v17, 4, v16
    v_add_u32 v18, 8, v16
    v_add_u32 v19, 12, v16
    v_lshlrev_b32 v15, 9, v13
    v_add_u32 v15, v15, v14
    v_add_u32 v20, 8, v15
    v_add_u32 v21, 0x100, v15
    v_add_u32 v22, 0x108, v15
    v_cmp_gt_u32 vcc, 2, v13
    s_nop 1
    v_cndmask_b32 v16, v15, v16, vcc
    v_cndmask_b32 v17, v20, v17, vcc
    v_cndmask_b32 v18, v21, v18, vcc
    v_cndmask_b32 v19, v22, v19, vcc
    s_branch L_kg_w
    """)
    k.label("L_kg_t2")
    k(f"""
    v_lshlrev_b32 v15, 10, v13
    v_add_u32 v15, 0x800, v15
    v_add_u32 v16, v15, v14
    v_add_u32 v17, 0x100, v16
    v_add_u32 v18, 0x200, v16
    v_add_u32 v19, 0x300, v16
    """)
    k.label("L_kg_w")
    k("s_waitcnt lgkmcnt(0)")
    for r in range(4):
        k(f"v_add_f32 v{24+r}, v{24+r}, v{28+r}")
        k(f"v_add_f32 v{32+r}, v{32+r}, v{36+r}")
    for r in range(4): k(f"v_add_f32 v{24+r}, v{24+r}, v{32+r}")
    k(f"""
    v_cvt_pk_bf16_f32 v24, v24, v25
    v_cvt_pk_bf16_f32 v26, v26, v27
    ds_write_b16 v16, v24 offset:{T16}
    ds_write_b16_d16_hi v17, v24 offset:{T16}
    ds_write_b16 v18, v26 offset:{T16}
    ds_write_b16_d16_hi v19, v26 offset:{T16}
    s_waitcnt lgkmcnt(0)
    """)
    k.label("L_kg_stage2")
    k("s_barrier")
    k("""
    v_lshlrev_b32 v12, 4, v0
    v_sub_u32 v12, 4094, v12
    """)
    for e in range(8):
        k(f"v_subrev_u32 v{24+e}, {2*e}, v12")
    for e in range(8): k(f"v_cvt_f32_u32 v{24+e}, v{24+e}")
    for e in range(0, 8, 2): k(f"v_cvt_pk_bf16_f32 v{32+e}, v{24+e}, v{25+e}")
    for e in range(0, 8, 2):
        k(f"v_and_b32 v{33+e}, 0xffff0000, v{32+e}")
        k(f"v_lshlrev_b32 v{32+e}, 16, v{32+e}")
    for e in range(8): k(f"v_cvt_u32_f32 v{32+e}, v{32+e}")
    for e in range(8):
        k(f"ds_read_u16 v{24+e}, v{32+e} offset:{T16}")
    k(f"""
    s_mul_i32 s5, s2, {KGP}
    s_add_u32 s5, s5, {KG}
    s_add_u32 s18, s18, s5
    s_addc_u32 s19, s19, 0
    v_lshlrev_b32 v12, 4, v0
    v_mov_b32 v44, 0
    v_mov_b32 v45, 0
    v_mov_b32 v46, 0
    v_mov_b32 v47, 0
    s_waitcnt lgkmcnt(0)
    v_lshl_or_b32 v40, v25, 16, v24
    v_lshl_or_b32 v41, v27, 16, v26
    v_lshl_or_b32 v42, v29, 16, v28
    v_lshl_or_b32 v43, v31, 16, v30
    global_store_dwordx4 v12, v[40:43], s[18:19]
    v_cmp_gt_u32 vcc, 2, v0
    s_and_saveexec_b64 s[6:7], vcc
    s_cbranch_execz L_k0_end
    v_add_u32 v12, 4096, v12
    global_store_dwordx4 v12, v[44:47], s[18:19]
    s_branch L_k0_end
    """)
    k.label("L_k0_other")
    k(f"""
    s_sub_u32 s2, s2, {NKG}
    s_cmp_ge_u32 s2, {NT}
    s_cbranch_scc1 L_k0_w
    """)
    TP = 1088
    k.c("role T")
    k(f"""
    v_lshrrev_b32 v3, 3, v0
    v_and_b32 v4, 7, v0
    s_lshl_b32 s4, s2, 15
    v_lshlrev_b32 v5, 10, v3
    v_lshl_add_u32 v5, v4, 4, v5
    v_add_u32 v5, s4, v5
    s_waitcnt lgkmcnt(0)
    """)
    for c in range(8): k(f"global_load_dwordx4 v[{16+4*c}:{19+4*c}], v5, s[20:21] offset:{128*c}")
    k(f"""
    v_mul_u32_u24 v6, {TP}, v3
    v_lshl_add_u32 v6, v4, 4, v6
    v_mov_b32 v8, 0
    v_mov_b32 v9, 0
    v_mov_b32 v10, 0
    v_mov_b32 v11, 0
    v_mov_b32 v7, 0x3f803f80
    """)
    for c in range(8):
        k(f"s_waitcnt vmcnt({7-c})")
        k(f"ds_write_b128 v6, v[{16+4*c}:{19+4*c}] offset:{128*c}")
        for j in range(4):
            r = 16+4*c+j
            k(f"v_dot2_f32_bf16 v{8+(j&1)}, v{r}, v7, v{8+(j&1)}")
            k(f"v_dot2_f32_bf16 v{10+(j&1)}, v{r}, v{r}, v{10+(j&1)}")
    k("""
    s_nop 2
    v_add_f32 v8, v8, v9
    v_add_f32 v9, v10, v11
    s_nop 1
    v_add_f32 v8, v8, v8 quad_perm:[1,0,3,2] row_mask:0xf bank_mask:0xf
    v_add_f32 v9, v9, v9 quad_perm:[1,0,3,2] row_mask:0xf bank_mask:0xf
    s_nop 1
    v_add_f32 v8, v8, v8 quad_perm:[2,3,0,1] row_mask:0xf bank_mask:0xf
    v_add_f32 v9, v9, v9 quad_perm:[2,3,0,1] row_mask:0xf bank_mask:0xf
    s_nop 1
    v_add_f32 v8, v8, v8 row_half_mirror row_mask:0xf bank_mask:0xf
    v_add_f32 v9, v9, v9 row_half_mirror row_mask:0xf bank_mask:0xf
    """)
    k(f"""
    s_lshl_b32 s4, s2, 8
    s_add_u32 s4, s4, {ST1}
    v_lshlrev_b32 v12, 3, v3
    v_add_u32 v12, s4, v12
    v_mov_b32 v10, 0
    v_mov_b32 v11, 0
    v_cmp_eq_u32 vcc, 0, v4
    s_and_saveexec_b64 s[6:7], vcc
    global_store_dwordx2 v12, v[8:9], s[18:19]
    v_add_u32 v12, {ST3-ST1}, v12
    global_store_dwordx2 v12, v[10:11], s[18:19]
    s_mov_b64 exec, s[6:7]
    s_waitcnt lgkmcnt(0)
    s_barrier
    """)
    k(f"""
    v_lshrrev_b32 v3, 4, v1
    v_and_b32 v4, 15, v1
    v_lshrrev_b32 v5, 2, v4
    v_lshl_add_u32 v5, v3, 3, v5
    v_mul_u32_u24 v5, {TP}, v5
    v_and_b32 v6, 3, v4
    v_lshl_add_u32 v5, v6, 3, v5
    s_lshl_b32 s4, s3, 8
    v_add_u32 v5, s4, v5
    """)
    for b in range(8):
        k(f"ds_read_b64_tr_b16 v[{16+4*b}:{17+4*b}], v5 offset:{32*b}")
        k(f"ds_read_b64_tr_b16 v[{18+4*b}:{19+4*b}], v5 offset:{32*b+4*TP}")
    k(f"""
    s_lshl_b32 s4, s3, 19
    s_lshl_b32 s5, s2, 6
    s_add_u32 s4, s4, s5
    s_add_u32 s4, s4, {XT0}
    v_lshlrev_b32 v6, 12, v4
    v_lshl_add_u32 v6, v3, 4, v6
    v_add_u32 v6, s4, v6
    """)
    for b in range(8):
        k(f"s_waitcnt lgkmcnt({14-2*b})")
        k(f"global_store_dwordx4 v6, v[{16+4*b}:{19+4*b}], s[18:19]")
        if b < 7: k(f"v_add_u32 v6, 0x10000, v6")
    k("s_branch L_k0_end")
    k.label("L_k0_w")
    k(f"""
    s_sub_u32 s2, s2, {NT}
    s_cmp_ge_u32 s2, {NWGU}
    s_cbranch_scc1 L_k0_wd
    s_waitcnt lgkmcnt(0)
    s_and_b32 s4, s2, 1
    s_lshr_b32 s5, s2, 1
    s_cmp_eq_u32 s4, 0
    s_cselect_b32 s36, s24, s26
    s_cselect_b32 s37, s25, s27
    s_mov_b32 s38, {D*F*2}
    s_mov_b32 s39, 0x00020000
    """)
    k(f"""
    v_lshrrev_b32 v3, 2, v1
    v_and_b32 v4, 3, v1
    v_mul_u32_u24 v3, {F*2}, v3
    v_lshl_add_u32 v3, v4, 4, v3
    s_mul_i32 s6, s3, {128*F*2}
    s_lshl_b32 s7, s5, 6
    s_add_u32 s6, s6, s7
    s_lshl_b32 s7, s3, 13
    """)
    for t in range(8):
        k(f"s_mov_b32 m0, s7")
        k(f"s_add_u32 s7, s7, 1024")
        k(f"buffer_load_dwordx4 v3, s[36:39], s6 offen lds")
        k(f"s_add_u32 s6, s6, {16*F*2}")
    k(f"""
    v_lshrrev_b32 v3, 4, v1
    v_and_b32 v4, 15, v1
    v_lshrrev_b32 v5, 2, v4
    v_lshl_add_u32 v5, v3, 3, v5
    v_lshlrev_b32 v5, 6, v5
    v_and_b32 v6, 3, v4
    v_lshl_add_u32 v5, v6, 3, v5
    s_lshl_b32 s7, s3, 13
    v_add_u32 v5, s7, v5
    v_mov_b32 v8, 0
    v_mov_b32 v9, 0
    v_mov_b32 v7, 0x3f803f80
    s_lshl_b32 s6, s5, 16
    s_lshl_b32 s7, s3, 13
    s_add_u32 s6, s6, s7
    s_lshl_b32 s7, s4, 10
    s_add_u32 s6, s6, s7
    s_add_u32 s6, s6, {WGU}
    v_lshl_add_u32 v6, v1, 4, s6
    v_add_u32 v11, 0x8000, v6
    s_waitcnt vmcnt(0)
    """)
    for t in range(8):
        ks, hf = t >> 1, t & 1
        k(f"ds_read_b64_tr_b16 v[{16+4*t}:{17+4*t}], v5 offset:{2048*ks + 32*hf}")
        k(f"ds_read_b64_tr_b16 v[{18+4*t}:{19+4*t}], v5 offset:{2048*ks + 32*hf + 256}")
    for t in range(8):
        ks, hf = t >> 1, t & 1
        k(f"s_waitcnt lgkmcnt({14-2*t})")
        if ks == 2 and hf == 0:
            k("v_add_u32 v6, 4096, v6")
            k("v_add_u32 v11, 4096, v11")
        k(f"global_store_dwordx4 v{11 if hf else 6}, v[{16+4*t}:{19+4*t}], s[18:19] offset:{2048*(ks&1)}")
        for j in range(4):
            k(f"v_dot2_f32_bf16 v{8+hf}, v{16+4*t+j}, v7, v{8+hf}")
    k(f"""
    s_lshl_b32 s7, s3, 9
    v_lshl_add_u32 v10, v1, 2, s7
    s_nop 1
    ds_write_b32 v10, v8 offset:32768
    ds_write_b32 v10, v9 offset:33024
    s_waitcnt lgkmcnt(0)
    s_barrier
    v_cmp_gt_u32 vcc, 32, v0
    s_and_saveexec_b64 s[6:7], vcc
    s_cbranch_execz L_k0_end
    v_lshlrev_b32 v10, 8, v3
    v_lshl_add_u32 v10, v4, 2, v10
    """)
    for j in range(16): k(f"ds_read_b32 v{16+j}, v10 offset:{32768+512*(j>>2)+64*(j&3)}")
    k(f"""
    s_mul_i32 s6, s4, {CSP}
    s_lshl_b32 s7, s5, 7
    s_add_u32 s6, s6, s7
    s_add_u32 s6, s6, {CS}
    v_lshl_add_u32 v10, v0, 2, s6
    s_waitcnt lgkmcnt(0)
    """)
    for st in (1, 2, 4, 8):
        for j in range(0, 16, 2*st): k(f"v_add_f32 v{16+j}, v{16+j}, v{16+j+st}")
    k("""
    global_store_dword v10, v16, s[18:19]
    s_branch L_k0_end
    """)
    k.label("L_k0_wd")
    k(f"""
    s_sub_u32 s2, s2, {NWGU}
    s_cmp_ge_u32 s2, {NWD}
    s_cbranch_scc1 L_k0_end
    s_waitcnt lgkmcnt(0)
    s_mov_b32 s36, s28
    s_mov_b32 s37, s29
    s_mov_b32 s38, {D*F*2}
    s_mov_b32 s39, 0x00020000
    v_lshlrev_b32 v3, 4, v1
    s_lshl_b32 s6, s2, 15
    s_lshl_b32 s7, s3, 13
    s_add_u32 s6, s6, s7
    s_mul_i32 s7, s3, {8*TP}
    """)
    for t in range(8):
        k(f"s_mov_b32 m0, s7")
        k(f"s_add_u32 s7, s7, {TP}")
        k(f"buffer_load_dwordx4 v3, s[36:39], s6 offen lds")
        k(f"s_add_u32 s6, s6, 1024")
    k(f"""
    v_lshrrev_b32 v3, 5, v1
    v_and_b32 v4, 15, v1
    v_lshrrev_b32 v5, 2, v4
    v_lshl_add_u32 v5, v3, 3, v5
    v_mul_u32_u24 v5, {TP}, v5
    v_and_b32 v6, 3, v4
    v_lshl_add_u32 v5, v6, 3, v5
    v_and_b32 v6, 16, v1
    v_lshl_add_u32 v5, v6, 1, v5
    s_lshl_b32 s7, s3, 8
    v_add_u32 v5, s7, v5
    s_mul_i32 s6, s3, {4*86*1024}
    s_lshl_b32 s7, s2, 11
    s_add_u32 s6, s6, s7
    s_add_u32 s6, s6, {WD}
    v_lshl_add_u32 v6, v1, 4, s6
    s_waitcnt vmcnt(0)
    s_barrier
    """)
    for b in range(4):
        for s in range(2):
            t = 2*b+s
            k(f"ds_read_b64_tr_b16 v[{16+4*t}:{17+4*t}], v5 offset:{64*b + 16*s*TP}")
            k(f"ds_read_b64_tr_b16 v[{18+4*t}:{19+4*t}], v5 offset:{64*b + (16*s+4)*TP}")
    for b in range(4):
        for s in range(2):
            t = 2*b+s
            k(f"s_waitcnt lgkmcnt({14-2*t})")
            k(f"global_store_dwordx4 v6, v[{16+4*t}:{19+4*t}], s[18:19] offset:{1024*s}")
        if b < 3: k(f"v_add_u32 v6, {86*1024}, v6")
    k.label("L_k0_end")
    k("s_endpgm")
    return k

if __name__ == '__main__':
    p = Prog()
    p.add_kernel(gen_k0())
    p.launch('k0_kernel', K0_GRID, 256, K0_LDS)
    open('k0.s','w').write(p.text())
```

```python
MB = 1 << 20
L, D, NS, F = 2048, 512, 128, 1376
XT0, XT1, XT2, XT3 = 0, 2*MB, 4*MB, 6*MB
KG = 8*MB; KGP = 4128
ST1 = 10*MB + 512*1024
ST3 = ST1 + 16384
CS  = ST3 + 16384
CSP = 1408*4
WGU = 11*MB
WD  = 14*MB
H   = 16*MB
WS_USED = 24*MB
FCG1 = CS + 32768
FCG2 = FCG1 + 32768
```

```python
import sys
from gen_k0 import *
from gen_conv import *
from gen_gu import *
from gen_down import *
def build(extra_empty=0):
    p = Prog()
    p.add_kernel(gen_k0())
    p.add_kernel(gen_conv('conv1_kernel', XT0, XT1, ST1))
    p.add_kernel(gen_gu('gu1_kernel', XT1))
    p.add_kernel(gen_down('dn1_kernel', XT1, XT2, False))
    p.add_kernel(gen_conv('conv2_kernel', XT2, XT3, ST3))
    p.add_kernel(gen_gu('gu2_kernel', XT3))
    p.add_kernel(gen_down('dn2_kernel', XT3, 0, True))
    p.launch('k0_kernel', K0_GRID, 256, K0_LDS)
    p.launch('conv1_kernel', CONV_GRID, 512, CONV_LDS)
    p.launch('gu1_kernel', GU_GRID, 512, GU_LDS)
    p.launch('dn1_kernel', DN_GRID, 256, DN_LDS)
    p.launch('conv2_kernel', CONV_GRID, 512, CONV_LDS)
    p.launch('gu2_kernel', GU_GRID, 512, GU_LDS)
    p.launch('dn2_kernel', DN_GRID, 256, DN_LDS)
    if extra_empty:
        e = Kernel('empty_kernel', vgpr=8, sgpr=16); e("s_endpgm"); p.add_kernel(e)
        for i in range(extra_empty): p.launch('empty_kernel', 256, 64, 0)
    return p.text()
if __name__ == '__main__':
    out = sys.argv[1] if len(sys.argv) > 1 else 'all.s'
    ne = int(sys.argv[2]) if len(sys.argv) > 2 else 0
    open(out,'w').write(build(ne))
```

```python
from asmlib import *
from layout import *
from gen_k0 import f32hex, LOG2E
from gen_conv import unpack

GU_GRID = 242
XP = 192
STX = 98304; FIN = STX + 8192
GU_LDS = FIN + 8*3072

def stats_final(k, S, Qr, T, sInv, sEps):
    for j in range(2):
        k(f"v_mul_f32 v{S[j]}, s{sInv}, v{S[j]}")
        k(f"v_mul_f32 v{Qr[j]}, s{sInv}, v{Qr[j]}")
    for j in range(2): k(f"v_fma_f32 v{Qr[j]}, -v{S[j]}, v{S[j]}, v{Qr[j]}")
    for j in range(2): k(f"v_max_f32 v{Qr[j]}, 0, v{Qr[j]}")
    k(f"v_cvt_pk_bf16_f32 v{T+4}, v{S[0]}, v{S[1]}")
    k(f"v_cvt_pk_bf16_f32 v{T+5}, v{Qr[0]}, v{Qr[1]}")
    unpack(k, T, T+1, T+4); unpack(k, T+2, T+3, T+5)
    for j in range(2): k(f"v_add_f32 v{T+2+j}, s{sEps}, v{T+2+j}")
    k(f"v_cvt_pk_bf16_f32 v{T+5}, v{T+2}, v{T+3}")
    unpack(k, T+2, T+3, T+5)
    for j in range(2): k(f"v_sqrt_f32 v{T+2+j}, v{T+2+j}")
    k("s_nop 0")
    k(f"v_cvt_pk_bf16_f32 v{T+5}, v{T+2}, v{T+3}")
    unpack(k, T+2, T+3, T+5)

def gen_gu(name, XIN):
    k = Kernel(name, vgpr=256, sgpr=64)
    vm = Q(k, 'vmcnt', 63); lg = Q(k, 'lgkmcnt', 15)
    E = f"L_{name}_end"
    ACC = 32; XF = 80; SA = 16; SF = 104; W = 128; CSV = 112
    k(f"""
    s_cmp_ge_u32 s2, {GU_GRID}
    s_cbranch_scc1 {E}
    s_load_dwordx2 s[18:19], s[0:1], 104
    v_and_b32 v1, 63, v0
    v_lshrrev_b32 v2, 6, v0
    v_lshlrev_b32 v3, 4, v1
    v_readfirstlane_b32 s3, v2
    s_mul_i32 s4, s2, 373
    s_lshr_b32 s4, s4, 12
    s_mul_i32 s5, s4, 11
    s_sub_u32 s5, s2, s5
    s_lshl_b32 s6, s5, 3
    s_add_u32 s6, s6, s3
    """)
    for i in range(3):
        k(f"""
        v_add_u32 v7, {64*i}, v1
        v_mul_u32_u24 v8, 0xaaab, v7
        v_lshrrev_b32 v8, 19, v8
        v_mul_u32_u24 v9, 12, v8
        v_sub_u32 v9, v7, v9
        v_lshrrev_b32 v10, 2, v8
        v_and_b32 v10, 2, v10
        v_xor_b32 v9, v9, v10
        v_lshlrev_b32 v9, 4, v9
        v_lshl_add_u32 v{4+i}, v8, 12, v9
        """)
    k(f"""
    s_mul_i32 s12, s4, 192
    s_lshl_b32 s13, s3, 16
    s_add_u32 s12, s12, s13
    s_add_u32 s12, s12, {XIN}
    s_mul_i32 s13, s3, 3072
    s_lshl_b32 s14, s6, 15
    s_add_u32 s14, s14, {WGU}
    s_waitcnt lgkmcnt(0)
    """)
    k.srd(8, 18, WS_USED)
    def xdma(p):
        for i in range(3):
            k(f"s_add_u32 m0, s13, {p*24576 + i*1024}")
            if i == 0 and p > 0: k(f"s_add_u32 s12, s12, {128*4096}")
            else: k("s_nop 0")
            vm.issue(f"buffer_load_dwordx4 v{4+i}, s[8:11], s12 offen lds", f"X{p}")
    def wload(ks):
        if ks % 2 == 0 and ks > 0: k(f"s_add_u32 s14, s14, 4096")
        o = (ks % 2)*2048
        vm.issue(f"buffer_load_dwordx4 v[{W+8*ks}:{W+8*ks+3}], v3, s[8:11], s14 offen offset:{o}", f"W{ks}")
        vm.issue(f"buffer_load_dwordx4 v[{W+8*ks+4}:{W+8*ks+7}], v3, s[8:11], s14 offen offset:{o+1024}", f"W{ks}")
    xdma(0)
    for ks in range(4): wload(ks)
    xdma(1); xdma(2); xdma(3)
    for ks in range(4, 16): wload(ks)
    k(f"""
    v_lshrrev_b32 v7, 4, v1
    v_and_b32 v8, 15, v1
    v_lshlrev_b32 v9, 4, v7
    s_lshl_b32 s15, s6, 6
    s_add_u32 s15, s15, {CS}
    """)
    vm.issue(f"buffer_load_dwordx4 v[{CSV}:{CSV+3}], v9, s[8:11], s15 offen", "CS")
    k(f"s_add_u32 s15, s15, {CSP}")
    vm.issue(f"buffer_load_dwordx4 v[{CSV+4}:{CSV+7}], v9, s[8:11], s15 offen", "CS")
    k(f"""
    v_lshrrev_b32 v9, 2, v8
    v_lshl_add_u32 v9, v7, 3, v9
    v_mul_u32_u24 v9, {XP}, v9
    v_and_b32 v10, 3, v8
    v_lshl_add_u32 v9, v10, 3, v9
    v_and_b32 v11, 1, v7
    v_lshlrev_b32 v11, 5, v11
    v_add_u32 v10, v9, v11
    v_sub_u32 v11, v9, v11
    v_add_u32 v12, 49152, v10
    v_add_u32 v13, 49152, v11
    s_mul_i32 s15, s3, 6144
    v_add_u32 v14, s15, v10
    v_add_u32 v15, s15, v11
    v_mov_b32 v28, 0x3f803f80
    s_mov_b32 s24, {f32hex(1.0/512)}
    s_mov_b32 s25, {f32hex(1e-5)}
    s_mov_b32 s26, {f32hex(-LOG2E)}
    """)
    for r in range(48): k(f"v_mov_b32 v{ACC+r}, 0")
    for r in range(12): k(f"v_mov_b32 v{SA+r}, 0")
    def xread(ks, t):
        b = (10 if ks < 8 else 12) + (t & 1)
        off = (ks % 8)*6144 + t*32
        lg.issue(f"ds_read_b64_tr_b16 v[{XF+4*t}:{XF+4*t+1}], v{b} offset:{off}", f"x{ks}_{t}")
        lg.issue(f"ds_read_b64_tr_b16 v[{XF+4*t+2}:{XF+4*t+3}], v{b} offset:{off+4*XP}", f"x{ks}_{t}")
    fillers = []
    def st_read(half, t, buf):
        def f():
            b = 14 + (t & 1); off = half*49152 + t*32
            lg.issue(f"ds_read_b64_tr_b16 v[{SF+4*buf}:{SF+4*buf+1}], v{b} offset:{off}", f"s{half}_{t}")
            lg.issue(f"ds_read_b64_tr_b16 v[{SF+4*buf+2}:{SF+4*buf+3}], v{b} offset:{off+4*XP}", f"s{half}_{t}")
        return f
    def st_dot(half, t, buf, j0):
        def f():
            lg.need(f"s{half}_{t}")
            for j in (j0, j0+1):
                r = SF+4*buf+j
                k(f"v_dot2_f32_bf16 v{SA+t}, v{r}, v28, v{SA+t}")
                k(f"v_dot2_f32_bf16 v{SA+6+t}, v{r}, v{r}, v{SA+6+t}")
        return f
    seq = [(h, t) for h in range(2) for t in range(6)]
    fillers.append(st_read(*seq[0], 0))
    for n, (h, t) in enumerate(seq):
        if n+1 < len(seq): fillers.append(st_read(*seq[n+1], (n+1) & 1))
        fillers.append(st_dot(h, t, n & 1, 0)); fillers.append(st_dot(h, t, n & 1, 2))
    def st_reduce1():
        k("s_nop 1")
        for b in (SA, SA+6):
            for j in range(3): k(f"v_permlane32_swap_b32 v{b+2*j}, v{b+2*j+1}")
        for b in (SA, SA+6):
            for j in range(3): k(f"v_add_f32 v{b+2*j}, v{b+2*j}, v{b+2*j+1}")
        k(f"v_mov_b32 v{SA+5}, v{SA+4}")
        k(f"v_mov_b32 v{SA+11}, v{SA+10}")
    def st_reduce2():
        k("s_nop 1")
        for b in (SA, SA+6):
            k(f"v_permlane16_swap_b32 v{b}, v{b+2}")
            k(f"v_permlane16_swap_b32 v{b+4}, v{b+5}")
        k(f"v_add_f32 v{SF}, v{SA}, v{SA+2}")
        k(f"v_add_f32 v{SF+1}, v{SA+6}, v{SA+8}")
        k(f"v_add_f32 v{SF+2}, v{SA+4}, v{SA+5}")
        k(f"v_add_f32 v{SF+3}, v{SA+10}, v{SA+11}")
        k(f"s_lshl_b32 s15, s3, 10")
        k(f"v_add_u32 v9, s15, v3")
        lg.issue(f"ds_write_b128 v9, v[{SF}:{SF+3}] offset:{STX-65536+65536 if STX<65536 else 0}" if STX < 65536 else f"ds_write_b128 v29, v[{SF}:{SF+3}]", "stw")
    k(f"""
    s_lshl_b32 s15, s3, 10
    s_add_u32 s15, s15, {STX}
    v_add_u32 v29, s15, v3
    v_add_u32 v30, {STX}, v3
    """)
    fillers.append(st_reduce1); fillers.append(st_reduce2)
    PB2 = len(fillers)
    R0 = W
    post = []
    def p_read():
        for w in range(8): lg.issue(f"ds_read_b128 v[{R0+4*w}:{R0+4*w+3}], v30 offset:{1024*w}", f"p{w}")
    def p_sum(a):
        def f():
            lg.need(f"p{2*a}", f"p{2*a+1}")
            for j in (0, 2): k(f"v_pk_add_f32 v[{R0+8*a+j}:{R0+8*a+j+1}], v[{R0+8*a+j}:{R0+8*a+j+1}], v[{R0+8*a+4+j}:{R0+8*a+5+j}]")
        return f
    def p_sum2():
        for j in (0, 2):
            k(f"v_pk_add_f32 v[{R0+j}:{R0+j+1}], v[{R0+j}:{R0+j+1}], v[{R0+8+j}:{R0+9+j}]")
            k(f"v_pk_add_f32 v[{R0+16+j}:{R0+17+j}], v[{R0+16+j}:{R0+17+j}], v[{R0+24+j}:{R0+25+j}]")
        for j in (0, 2):
            k(f"v_pk_add_f32 v[{R0+j}:{R0+j+1}], v[{R0+j}:{R0+j+1}], v[{R0+16+j}:{R0+17+j}]")
    def p_fin():
        T = R0+8
        stats_final(k, [R0, R0+2], [R0+1, R0+3], T, 24, 25)
        for j in range(2):
            o = R0+16+8*j
            k(f"v_rcp_f32 v{o+2}, v{T+2+j}")
            k(f"v_sub_f32 v{o}, 0, v{T+j}")
            k(f"v_sub_f32 v{o+1}, 0, v{T+j}")
            k(f"v_mov_b32 v{o+4}, v{T+2+j}")
            k(f"v_mov_b32 v{o+5}, v{T+2+j}")
            k(f"v_mul_f32 v{o+3}, s26, v{o+2}")
            k(f"v_mul_f32 v{o+2}, s26, v{o+2}")
        k(f"""
        s_mul_i32 s15, s3, 3072
        s_add_u32 s15, s15, {FIN}
        v_lshl_add_u32 v31, v8, 5, s15
        v_and_b32 v9, 1, v7
        v_lshlrev_b32 v9, 10, v9
        v_lshrrev_b32 v2, 1, v7
        v_lshl_add_u32 v2, v2, 9, v31
        v_add_u32 v9, v9, v2
        """)
        lg.issue(f"ds_write_b128 v9, v[{R0+16}:{R0+19}]", "fw")
        lg.issue(f"ds_write_b64 v9, v[{R0+20}:{R0+21}] offset:16", "fw")
        lg.issue(f"ds_write_b128 v2, v[{R0+24}:{R0+27}] offset:2048", "fw")
        lg.issue(f"ds_write_b64 v2, v[{R0+28}:{R0+29}] offset:2064", "fw")
    FC = W + 32
    def p_rd(t0):
        def f():
            lg.need("fw")
            for t in (t0, t0+1):
                lg.issue(f"ds_read_b128 v[{FC+6*t}:{FC+6*t+3}], v31 offset:{512*t}", f"fc{t}")
                lg.issue(f"ds_read_b64 v[{FC+6*t+4}:{FC+6*t+5}], v31 offset:{512*t+16}", f"fc{t}")
        return f
    post = [p_read, None, None, p_sum(0), p_sum(1), p_sum(2), p_sum(3), p_sum2, p_fin, None, None, p_rd(0), p_rd(2), p_rd(4)]
    vm.need("X0")
    k("s_barrier")
    for t in range(6): xread(0, t)
    fi = 0; pi = 0; b2done = False
    for ks in range(16):
        if ks == 3:
            vm.need("X3"); k("s_barrier")
        if ks >= 11 and not b2done:
            assert fi == len(fillers)
            lg.need("stw"); k("s_barrier"); b2done = True
        vm.need(f"W{ks}")
        for t in range(6):
            lg.need(f"x{ks}_{t}")
            xf = f"v[{XF+4*t}:{XF+4*t+3}]"
            k(f"v_mfma_f32_16x16x32_bf16 v[{ACC+8*t}:{ACC+8*t+3}], v[{W+8*ks}:{W+8*ks+3}], {xf}, v[{ACC+8*t}:{ACC+8*t+3}]")
            k(f"v_mfma_f32_16x16x32_bf16 v[{ACC+8*t+4}:{ACC+8*t+7}], v[{W+8*ks+4}:{W+8*ks+7}], {xf}, v[{ACC+8*t+4}:{ACC+8*t+7}]")
            if ks < 15: xread(ks+1, t)
            if ks >= 3 and fi < len(fillers):
                fillers[fi](); fi += 1
            elif b2done and pi < len(post):
                if post[pi]: post[pi]()
                pi += 1
    assert pi == len(post)
    vm.need("CS")
    k(f"""
    s_cmp_ge_u32 s6, 86
    s_cbranch_scc1 {E}
    s_mul_i32 s15, s4, {3*86*1024}
    s_lshl_b32 s16, s6, 10
    s_add_u32 s15, s15, s16
    s_add_u32 s15, s15, {H}
    s_nop 3
    """)
    HO = XF
    for t in range(6):
        lg.need(f"fc{t}")
        g = ACC+8*t; u = g+4; c = FC+6*t
        for j in (0, 2):
            k(f"v_pk_fma_f32 v[{g+j}:{g+j+1}], v[{CSV+j}:{CSV+j+1}], v[{c}:{c+1}], v[{g+j}:{g+j+1}]")
        for j in (0, 2):
            k(f"v_pk_mul_f32 v[{g+j}:{g+j+1}], v[{g+j}:{g+j+1}], v[{c+2}:{c+3}]")
        for j in range(4): k(f"v_exp_f32 v{g+j}, v{g+j}")
        for j in (0, 2):
            k(f"v_pk_fma_f32 v[{u+j}:{u+j+1}], v[{CSV+4+j}:{CSV+5+j}], v[{c}:{c+1}], v[{u+j}:{u+j+1}]")
        for j in (0, 2):
            k(f"v_pk_fma_f32 v[{g+j}:{g+j+1}], v[{g+j}:{g+j+1}], v[{c+4}:{c+5}], v[{c+4}:{c+5}]")
        for j in range(4): k(f"v_rcp_f32 v{g+j}, v{g+j}")
        k("s_nop 0")
        for j in (0, 2):
            k(f"v_pk_mul_f32 v[{u+j}:{u+j+1}], v[{u+j}:{u+j+1}], v[{g+j}:{g+j+1}]")
        o = HO + 4*(t//2) + 2*(t & 1)
        k(f"v_cvt_pk_bf16_f32 v{o}, v{u}, v{u+1}")
        k(f"v_cvt_pk_bf16_f32 v{o+1}, v{u+2}, v{u+3}")
        if t & 1:
            j = t//2; o = HO+4*j
            k("s_nop 1")
            k(f"v_permlane16_swap_b32 v{o}, v{o+2}")
            k(f"v_permlane16_swap_b32 v{o+1}, v{o+3}")
            if j == 1:
                k(f"s_cmp_eq_u32 s4, 21")
                k(f"s_cbranch_scc1 {E}")
            k(f"buffer_store_dwordx4 v[{o}:{o+3}], v3, s[8:11], s15 offen")
            k(f"s_add_u32 s15, s15, {86*1024}")
    k.label(E)
    k("s_endpgm")
    return k
```

```python
from asmlib import *
from layout import *
import struct
def f32hex(x): return hex(struct.unpack('<I', struct.pack('<f', x))[0])
import math
LOG2E = 1.4426950408889634
LOG2E_HI = struct.unpack('<f', struct.pack('<f', LOG2E))[0]
LOG2E_LO = LOG2E - LOG2E_HI
LN2 = math.log(2.0)
INV2PI = 1.0/(2*math.pi)

NKG, NT, NWGU, NWD = 512, 64, 86, 43
K0_GRID = NKG + NT + NWGU + NWD
K0_LDS = 36*1024

def interleave(a, b):
    out = []; na, nb = len(a), len(b)
    if nb == 0: return list(a)
    j = 0
    for i, x in enumerate(a):
        out.append(x)
        while j < nb and (j+1)*na <= (i+1)*nb:
            out.append(b[j]); j += 1
    out += b[j:]
    return out

def exp_bf16(k, dst, x, t0, t1, sL, sLlo, sLn2):
    k(f"v_mul_f32 v{t0}, s{sL}, v{x}")
    k(f"v_fma_f32 v{t1}, v{x}, s{sL}, -v{t0}")
    k(f"v_fmac_f32 v{t1}, s{sLlo}, v{x}")
    k(f"v_exp_f32 v{t0}, v{t0}")
    k(f"v_mul_f32 v{t1}, s{sLn2}, v{t1}")
    k(f"v_fma_f32 v{t0}, v{t0}, v{t1}, v{t0}")
    k(f"v_cvt_pk_bf16_f32 v{t0}, v{t0}, v{t0}")
    k(f"v_lshlrev_b32 v{dst}, 16, v{t0}")

def gen_k0():
    k = Kernel('k0_kernel', vgpr=96, sgpr=64)
    k(f"""
    s_load_dwordx8 s[8:15], s[0:1], 8
    s_load_dwordx2 s[16:17], s[0:1], 40
    s_load_dwordx2 s[18:19], s[0:1], 104
    s_load_dwordx2 s[20:21], s[0:1], 0
    s_load_dwordx4 s[24:27], s[0:1], 64
    s_load_dwordx2 s[28:29], s[0:1], 80
    v_and_b32 v1, 63, v0
    v_lshrrev_b32 v2, 6, v0
    s_nop 0
    v_readfirstlane_b32 s3, v2
    s_cmp_ge_u32 s2, {NKG}
    s_cbranch_scc1 L_k0_other
    """)
    k.c("Kgen")
    PT = 2048; T16 = 2048 + 4*3072
    k(f"""
    v_and_b32 v3, 31, v1
    s_lshl_b32 s4, s2, 7
    s_lshl_b32 s5, s3, 5
    s_add_u32 s4, s4, s5
    v_add_u32 v4, s4, v3
    v_lshlrev_b32 v4, 1, v4
    s_lshl_b32 s5, s2, 1
    v_mov_b32 v5, s5
    s_waitcnt lgkmcnt(0)
    global_load_ushort v6, v4, s[8:9]
    global_load_ushort v7, v4, s[10:11]
    global_load_ushort v8, v4, s[12:13]
    global_load_ushort v9, v4, s[14:15]
    global_load_ushort v10, v5, s[16:17]
    s_mov_b32 s30, {f32hex(LOG2E_HI)}
    s_mov_b32 s31, {f32hex(LOG2E_LO)}
    s_mov_b32 s32, {f32hex(LN2)}
    s_mov_b32 s33, {f32hex(INV2PI)}
    """)
    k("""
    v_and_b32 v11, 15, v1
    v_lshrrev_b32 v12, 3, v11
    v_lshlrev_b32 v12, 7, v12
    v_and_b32 v13, 7, v11
    v_add_u32 v12, v12, v13
    v_cvt_f32_u32 v20, v12
    v_lshrrev_b32 v12, 2, v11
    v_lshlrev_b32 v12, 7, v12
    v_and_b32 v13, 3, v11
    v_lshl_add_u32 v12, v13, 1, v12
    v_add_u32 v12, 0x100, v12
    v_subrev_u32 v13, 8, v11
    v_lshrrev_b32 v13, 1, v13
    v_lshlrev_b32 v13, 7, v13
    v_and_b32 v14, 1, v11
    v_lshl_add_u32 v13, v14, 2, v13
    v_add_u32 v13, 0x200, v13
    v_cmp_gt_u32 vcc, 8, v11
    v_lshlrev_b32 v14, 7, v11
    v_add_u32 v14, 0x400, v14
    v_cndmask_b32 v12, v13, v12, vcc
    v_cvt_f32_u32 v21, v12
    v_cvt_f32_u32 v22, v14
    v_lshlrev_b32 v14, 3, v11
    v_cvt_f32_u32 v23, v14
    """)
    for r in range(12): k(f"v_mov_b32 v{24+r}, 0")
    k("s_waitcnt vmcnt(0)")
    for r in (6,7,8,9,10): k(f"v_lshlrev_b32 v{r}, 16, v{r}")
    exp_bf16(k, 10, 10, 12, 13, 30, 31, 32)
    exp_bf16(k, 6, 6, 12, 13, 30, 31, 32)
    k(f"""
    v_mul_f32 v6, v6, v10
    v_mul_f32 v7, v7, v10
    v_add_f32 v10, v10, v10
    v_mul_f32 v16, s30, v6
    v_mul_f32 v17, s33, v7
    v_mul_f32 v18, v8, v10
    v_mul_f32 v19, v9, v10
    v_sub_f32 v16, 0, v16
    s_lshl_b32 s5, s3, 9
    v_lshl_add_u32 v12, v3, 4, s5
    ds_write_b128 v12, v[16:19]
    v_lshrrev_b32 v13, 4, v1
    v_lshl_add_u32 v13, v13, 4, s5
    s_waitcnt lgkmcnt(0)
    """)
    for t in range(8): k(f"ds_read_b128 v[{36+4*t}:{39+4*t}], v13 offset:{64*t}")
    pend = []
    for t in range(8):
        zr, zi, cr, ci = 36+4*t, 37+4*t, 38+4*t, 39+4*t
        S = 80 + 8*(t & 1)
        va = []
        va.append(f"s_waitcnt lgkmcnt({7-t})")
        for c in range(4): va.append(f"v_mul_f32 v{68+c}, v{zr}, v{20+c}")
        for c in range(4): va.append(f"v_mul_f32 v{72+c}, v{zi}, v{20+c}")
        for c in range(4): va.append(f"v_exp_f32 v{68+c}, v{68+c}")
        for c in range(4): va.append(f"v_fract_f32 v{72+c}, v{72+c}")
        for c in range(4): va.append(f"v_cos_f32 v{76+c}, v{72+c}")
        for c in range(4): va.append(f"v_sin_f32 v{4+c}, v{72+c}")
        va.append(f"v_mul_f32 v8, v71, v{cr}")
        va.append(f"v_mul_f32 v9, v71, v{ci}")
        for c in range(3): va.append(f"v_mul_f32 v{S+c}, v{68+c}, v{76+c}")
        va.append(f"v_mul_f32 v{S+6}, v8, v79")
        va.append(f"v_mul_f32 v{S+7}, v8, v7")
        for c in range(3): va.append(f"v_mul_f32 v{S+3+c}, v{68+c}, v{4+c}")
        va.append(f"v_fma_f32 v{S+6}, -v9, v7, v{S+6}")
        va.append(f"v_fma_f32 v{S+7}, -v9, v79, -v{S+7}")
        merged = va[:3] + interleave(va[3:], pend)
        for l in merged: k(l)
        pend = []
        for c in range(3): pend.append(f"v_mfma_f32_16x16x4_f32 v[{24+4*c}:{27+4*c}], v{S+c}, v{S+6}, v[{24+4*c}:{27+4*c}]")
        for c in range(3): pend.append(f"v_mfma_f32_16x16x4_f32 v[{24+4*c}:{27+4*c}], v{S+3+c}, v{S+7}, v[{24+4*c}:{27+4*c}]")
    k("s_nop 1")
    for l in pend: k(l)
    k(f"""
    s_mul_i32 s5, s3, 3072
    s_add_u32 s5, s5, {PT}
    v_lshl_add_u32 v12, v1, 4, s5
    s_nop 7
    s_nop 1
    ds_write_b128 v12, v[24:27]
    ds_write_b128 v12, v[28:31] offset:1024
    ds_write_b128 v12, v[32:35] offset:2048
    s_waitcnt lgkmcnt(0)
    s_barrier
    s_cmp_eq_u32 s3, 3
    s_cbranch_scc1 L_kg_stage2
    """)
    k(f"""
    v_lshlrev_b32 v12, 4, v0
    ds_read_b128 v[24:27], v12 offset:{PT}
    ds_read_b128 v[28:31], v12 offset:{PT+3072}
    ds_read_b128 v[32:35], v12 offset:{PT+2*3072}
    ds_read_b128 v[36:39], v12 offset:{PT+3*3072}
    v_lshrrev_b32 v13, 4, v1
    v_and_b32 v14, 15, v1
    v_lshlrev_b32 v14, 4, v14
    """)
    k(f"""
    s_cmp_eq_u32 s3, 1
    s_cbranch_scc1 L_kg_t1
    s_cmp_eq_u32 s3, 2
    s_cbranch_scc1 L_kg_t2
    v_lshrrev_b32 v15, 1, v13
    v_lshlrev_b32 v15, 8, v15
    v_and_b32 v16, 1, v13
    v_lshl_add_u32 v15, v16, 3, v15
    v_add_u32 v16, v15, v14
    v_add_u32 v17, 2, v16
    v_add_u32 v18, 4, v16
    v_add_u32 v19, 6, v16
    s_branch L_kg_w
    """)
    k.label("L_kg_t1")
    k(f"""
    v_lshlrev_b32 v15, 8, v13
    v_add_u32 v15, 0x200, v15
    v_add_u32 v16, v15, v14
    v_add_u32 v17, 4, v16
    v_add_u32 v18, 8, v16
    v_add_u32 v19, 12, v16
    v_lshlrev_b32 v15, 9, v13
    v_add_u32 v15, v15, v14
    v_add_u32 v20, 8, v15
    v_add_u32 v21, 0x100, v15
    v_add_u32 v22, 0x108, v15
    v_cmp_gt_u32 vcc, 2, v13
    s_nop 1
    v_cndmask_b32 v16, v15, v16, vcc
    v_cndmask_b32 v17, v20, v17, vcc
    v_cndmask_b32 v18, v21, v18, vcc
    v_cndmask_b32 v19, v22, v19, vcc
    s_branch L_kg_w
    """)
    k.label("L_kg_t2")
    k(f"""
    v_lshlrev_b32 v15, 10, v13
    v_add_u32 v15, 0x800, v15
    v_add_u32 v16, v15, v14
    v_add_u32 v17, 0x100, v16
    v_add_u32 v18, 0x200, v16
    v_add_u32 v19, 0x300, v16
    """)
    k.label("L_kg_w")
    k("s_waitcnt lgkmcnt(0)")
    for r in range(4):
        k(f"v_add_f32 v{24+r}, v{24+r}, v{28+r}")
        k(f"v_add_f32 v{32+r}, v{32+r}, v{36+r}")
    for r in range(4): k(f"v_add_f32 v{24+r}, v{24+r}, v{32+r}")
    k(f"""
    v_cvt_pk_bf16_f32 v24, v24, v25
    v_cvt_pk_bf16_f32 v26, v26, v27
    ds_write_b16 v16, v24 offset:{T16}
    ds_write_b16_d16_hi v17, v24 offset:{T16}
    ds_write_b16 v18, v26 offset:{T16}
    ds_write_b16_d16_hi v19, v26 offset:{T16}
    s_waitcnt lgkmcnt(0)
    """)
    k.label("L_kg_stage2")
    k("s_barrier")
    k("""
    v_lshlrev_b32 v12, 4, v0
    v_sub_u32 v12, 4094, v12
    """)
    for e in range(8):
        k(f"v_subrev_u32 v{24+e}, {2*e}, v12")
    for e in range(8): k(f"v_cvt_f32_u32 v{24+e}, v{24+e}")
    for e in range(0, 8, 2): k(f"v_cvt_pk_bf16_f32 v{32+e}, v{24+e}, v{25+e}")
    for e in range(0, 8, 2):
        k(f"v_and_b32 v{33+e}, 0xffff0000, v{32+e}")
        k(f"v_lshlrev_b32 v{32+e}, 16, v{32+e}")
    for e in range(8): k(f"v_cvt_u32_f32 v{32+e}, v{32+e}")
    for e in range(8):
        k(f"ds_read_u16 v{24+e}, v{32+e} offset:{T16}")
    k(f"""
    s_mul_i32 s5, s2, {KGP}
    s_add_u32 s5, s5, {KG}
    s_add_u32 s18, s18, s5
    s_addc_u32 s19, s19, 0
    v_lshlrev_b32 v12, 4, v0
    v_mov_b32 v44, 0
    v_mov_b32 v45, 0
    v_mov_b32 v46, 0
    v_mov_b32 v47, 0
    s_waitcnt lgkmcnt(0)
    v_lshl_or_b32 v40, v25, 16, v24
    v_lshl_or_b32 v41, v27, 16, v26
    v_lshl_or_b32 v42, v29, 16, v28
    v_lshl_or_b32 v43, v31, 16, v30
    global_store_dwordx4 v12, v[40:43], s[18:19]
    v_cmp_gt_u32 vcc, 2, v0
    s_and_saveexec_b64 s[6:7], vcc
    s_cbranch_execz L_k0_end
    v_add_u32 v12, 4096, v12
    global_store_dwordx4 v12, v[44:47], s[18:19]
    s_branch L_k0_end
    """)
    k.label("L_k0_other")
    k(f"""
    s_sub_u32 s2, s2, {NKG}
    s_cmp_ge_u32 s2, {NT}
    s_cbranch_scc1 L_k0_w
    """)
    TP = 1088
    k.c("role T")
    k(f"""
    v_lshrrev_b32 v3, 3, v0
    v_and_b32 v4, 7, v0
    s_lshl_b32 s4, s2, 15
    v_lshlrev_b32 v5, 10, v3
    v_lshl_add_u32 v5, v4, 4, v5
    v_add_u32 v5, s4, v5
    s_waitcnt lgkmcnt(0)
    """)
    for c in range(8): k(f"global_load_dwordx4 v[{16+4*c}:{19+4*c}], v5, s[20:21] offset:{128*c}")
    k(f"""
    v_mul_u32_u24 v6, {TP}, v3
    v_lshl_add_u32 v6, v4, 4, v6
    v_mov_b32 v8, 0
    v_mov_b32 v9, 0
    v_mov_b32 v10, 0
    v_mov_b32 v11, 0
    v_mov_b32 v7, 0x3f803f80
    """)
    for c in range(8):
        k(f"s_waitcnt vmcnt({7-c})")
        k(f"ds_write_b128 v6, v[{16+4*c}:{19+4*c}] offset:{128*c}")
        for j in range(4):
            r = 16+4*c+j
            k(f"v_dot2_f32_bf16 v{8+(j&1)}, v{r}, v7, v{8+(j&1)}")
            k(f"v_dot2_f32_bf16 v{10+(j&1)}, v{r}, v{r}, v{10+(j&1)}")
    k("""
    s_nop 2
    v_add_f32 v8, v8, v9
    v_add_f32 v9, v10, v11
    s_nop 1
    v_add_f32 v8, v8, v8 quad_perm:[1,0,3,2] row_mask:0xf bank_mask:0xf
    v_add_f32 v9, v9, v9 quad_perm:[1,0,3,2] row_mask:0xf bank_mask:0xf
    s_nop 1
    v_add_f32 v8, v8, v8 quad_perm:[2,3,0,1] row_mask:0xf bank_mask:0xf
    v_add_f32 v9, v9, v9 quad_perm:[2,3,0,1] row_mask:0xf bank_mask:0xf
    s_nop 1
    v_add_f32 v8, v8, v8 row_half_mirror row_mask:0xf bank_mask:0xf
    v_add_f32 v9, v9, v9 row_half_mirror row_mask:0xf bank_mask:0xf
    """)
    k(f"""
    s_lshl_b32 s4, s2, 8
    s_add_u32 s4, s4, {ST1}
    v_lshlrev_b32 v12, 3, v3
    v_add_u32 v12, s4, v12
    v_mov_b32 v10, 0
    v_mov_b32 v11, 0
    v_cmp_eq_u32 vcc, 0, v4
    s_and_saveexec_b64 s[6:7], vcc
    global_store_dwordx2 v12, v[8:9], s[18:19]
    v_add_u32 v12, {ST3-ST1}, v12
    global_store_dwordx2 v12, v[10:11], s[18:19]
    s_mov_b64 exec, s[6:7]
    s_waitcnt lgkmcnt(0)
    s_barrier
    """)
    k(f"""
    v_lshrrev_b32 v3, 4, v1
    v_and_b32 v4, 15, v1
    v_lshrrev_b32 v5, 2, v4
    v_lshl_add_u32 v5, v3, 3, v5
    v_mul_u32_u24 v5, {TP}, v5
    v_and_b32 v6, 3, v4
    v_lshl_add_u32 v5, v6, 3, v5
    s_lshl_b32 s4, s3, 8
    v_add_u32 v5, s4, v5
    """)
    for b in range(8):
        if b == 7: k("s_waitcnt lgkmcnt(12)")
        k(f"ds_read_b64_tr_b16 v[{16+4*b}:{17+4*b}], v5 offset:{32*b}")
        k(f"ds_read_b64_tr_b16 v[{18+4*b}:{19+4*b}], v5 offset:{32*b+4*TP}")
    k(f"""
    s_lshl_b32 s4, s3, 19
    s_lshl_b32 s5, s2, 6
    s_add_u32 s4, s4, s5
    s_add_u32 s4, s4, {XT0}
    v_lshlrev_b32 v6, 12, v4
    v_lshl_add_u32 v6, v3, 4, v6
    v_add_u32 v6, s4, v6
    """)
    for b in range(8):
        k(f"s_waitcnt lgkmcnt({14-2*b})")
        k(f"global_store_dwordx4 v6, v[{16+4*b}:{19+4*b}], s[18:19]")
        if b < 7: k(f"v_add_u32 v6, 0x10000, v6")
    k("s_branch L_k0_end")
    k.label("L_k0_w")
    k(f"""
    s_sub_u32 s2, s2, {NT}
    s_cmp_ge_u32 s2, {NWGU}
    s_cbranch_scc1 L_k0_wd
    s_waitcnt lgkmcnt(0)
    s_and_b32 s4, s2, 1
    s_lshr_b32 s5, s2, 1
    s_cmp_eq_u32 s4, 0
    s_cselect_b32 s36, s24, s26
    s_cselect_b32 s37, s25, s27
    s_mov_b32 s38, {D*F*2}
    s_mov_b32 s39, 0x00020000
    """)
    k(f"""
    v_lshrrev_b32 v3, 2, v1
    v_and_b32 v4, 3, v1
    v_mul_u32_u24 v3, {F*2}, v3
    v_lshl_add_u32 v3, v4, 4, v3
    s_mul_i32 s6, s3, {128*F*2}
    s_lshl_b32 s7, s5, 6
    s_add_u32 s6, s6, s7
    s_lshl_b32 s7, s3, 13
    """)
    for t in range(8):
        k(f"s_mov_b32 m0, s7")
        k(f"s_add_u32 s7, s7, 1024")
        k(f"buffer_load_dwordx4 v3, s[36:39], s6 offen lds")
        k(f"s_add_u32 s6, s6, {16*F*2}")
    k(f"""
    v_lshrrev_b32 v3, 4, v1
    v_and_b32 v4, 15, v1
    v_lshrrev_b32 v5, 2, v4
    v_lshl_add_u32 v5, v3, 3, v5
    v_lshlrev_b32 v5, 6, v5
    v_and_b32 v6, 3, v4
    v_lshl_add_u32 v5, v6, 3, v5
    s_lshl_b32 s7, s3, 13
    v_add_u32 v5, s7, v5
    v_mov_b32 v8, 0
    v_mov_b32 v9, 0
    v_mov_b32 v7, 0x3f803f80
    s_lshl_b32 s6, s5, 16
    s_lshl_b32 s7, s3, 13
    s_add_u32 s6, s6, s7
    s_lshl_b32 s7, s4, 10
    s_add_u32 s6, s6, s7
    s_add_u32 s6, s6, {WGU}
    v_lshl_add_u32 v6, v1, 4, s6
    v_add_u32 v11, 0x8000, v6
    s_waitcnt vmcnt(0)
    """)
    for t in range(8):
        ks, hf = t >> 1, t & 1
        if t == 7: k("s_waitcnt lgkmcnt(12)")
        k(f"ds_read_b64_tr_b16 v[{16+4*t}:{17+4*t}], v5 offset:{2048*ks + 32*hf}")
        k(f"ds_read_b64_tr_b16 v[{18+4*t}:{19+4*t}], v5 offset:{2048*ks + 32*hf + 256}")
    for t in range(8):
        ks, hf = t >> 1, t & 1
        k(f"s_waitcnt lgkmcnt({14-2*t})")
        if ks == 2 and hf == 0:
            k("v_add_u32 v6, 4096, v6")
            k("v_add_u32 v11, 4096, v11")
        k(f"global_store_dwordx4 v{11 if hf else 6}, v[{16+4*t}:{19+4*t}], s[18:19] offset:{2048*(ks&1)}")
        for j in range(4):
            k(f"v_dot2_f32_bf16 v{8+hf}, v{16+4*t+j}, v7, v{8+hf}")
    k(f"""
    s_lshl_b32 s7, s3, 9
    v_lshl_add_u32 v10, v1, 2, s7
    s_nop 1
    ds_write_b32 v10, v8 offset:32768
    ds_write_b32 v10, v9 offset:33024
    s_waitcnt lgkmcnt(0)
    s_barrier
    v_cmp_gt_u32 vcc, 32, v0
    s_and_saveexec_b64 s[6:7], vcc
    s_cbranch_execz L_k0_end
    v_lshlrev_b32 v10, 8, v3
    v_lshl_add_u32 v10, v4, 2, v10
    """)
    for j in range(16):
        if j == 14: k("s_waitcnt lgkmcnt(12)")
        k(f"ds_read_b32 v{16+j}, v10 offset:{32768+512*(j>>2)+64*(j&3)}")
    k(f"""
    s_mul_i32 s6, s4, {CSP}
    s_lshl_b32 s7, s5, 7
    s_add_u32 s6, s6, s7
    s_add_u32 s6, s6, {CS}
    v_lshl_add_u32 v10, v0, 2, s6
    s_waitcnt lgkmcnt(0)
    """)
    for st in (1, 2, 4, 8):
        for j in range(0, 16, 2*st): k(f"v_add_f32 v{16+j}, v{16+j}, v{16+j+st}")
    k("""
    global_store_dword v10, v16, s[18:19]
    s_branch L_k0_end
    """)
    k.label("L_k0_wd")
    k(f"""
    s_sub_u32 s2, s2, {NWGU}
    s_cmp_ge_u32 s2, {NWD}
    s_cbranch_scc1 L_k0_end
    s_waitcnt lgkmcnt(0)
    s_mov_b32 s36, s28
    s_mov_b32 s37, s29
    s_mov_b32 s38, {D*F*2}
    s_mov_b32 s39, 0x00020000
    v_lshlrev_b32 v3, 4, v1
    s_lshl_b32 s6, s2, 15
    s_lshl_b32 s7, s3, 13
    s_add_u32 s6, s6, s7
    s_mul_i32 s7, s3, {8*TP}
    """)
    for t in range(8):
        k(f"s_mov_b32 m0, s7")
        k(f"s_add_u32 s7, s7, {TP}")
        k(f"buffer_load_dwordx4 v3, s[36:39], s6 offen lds")
        k(f"s_add_u32 s6, s6, 1024")
    k(f"""
    v_lshrrev_b32 v3, 5, v1
    v_and_b32 v4, 15, v1
    v_lshrrev_b32 v5, 2, v4
    v_lshl_add_u32 v5, v3, 3, v5
    v_mul_u32_u24 v5, {TP}, v5
    v_and_b32 v6, 3, v4
    v_lshl_add_u32 v5, v6, 3, v5
    v_and_b32 v6, 16, v1
    v_lshl_add_u32 v5, v6, 1, v5
    s_lshl_b32 s7, s3, 8
    v_add_u32 v5, s7, v5
    s_mul_i32 s6, s3, {4*86*1024}
    s_lshl_b32 s7, s2, 11
    s_add_u32 s6, s6, s7
    s_add_u32 s6, s6, {WD}
    v_lshl_add_u32 v6, v1, 4, s6
    s_waitcnt vmcnt(0)
    s_barrier
    """)
    for b in range(4):
        for s in range(2):
            t = 2*b+s
            if t == 7: k("s_waitcnt lgkmcnt(12)")
            k(f"ds_read_b64_tr_b16 v[{16+4*t}:{17+4*t}], v5 offset:{64*b + 16*s*TP}")
            k(f"ds_read_b64_tr_b16 v[{18+4*t}:{19+4*t}], v5 offset:{64*b + (16*s+4)*TP}")
    for b in range(4):
        for s in range(2):
            t = 2*b+s
            k(f"s_waitcnt lgkmcnt({14-2*t})")
            k(f"global_store_dwordx4 v6, v[{16+4*t}:{19+4*t}], s[18:19] offset:{1024*s}")
        if b < 3: k(f"v_add_u32 v6, {86*1024}, v6")
    k.label("L_k0_end")
    k("s_endpgm")
    return k

if __name__ == '__main__':
    p = Prog()
    p.add_kernel(gen_k0())
    p.launch('k0_kernel', K0_GRID, 256, K0_LDS)
    open('k0.s','w').write(p.text())
```

```python
HDR = open('interleave_layers__ssm_conv_s4d__glu_gated_glu__prompt.s.ref').read().split('; Override launch')[0]

class Prog:
    def __init__(self):
        self.launches = []
        self.kernels = []
    def add_kernel(self, k): self.kernels.append(k)
    def launch(self, name, grid, block, lds=0):
        self.launches.append((name, grid, block, lds))
    def text(self):
        o = HDR
        for (n, g, b, l) in self.launches:
            o += f"; @launch kernel={n} grid=({g},1,1) block=({b},1,1) lds={l}\n"
        o += '.amdgcn_target "amdgcn-amd-amdhsa--gfx950"\n.text\n'
        for k in self.kernels:
            o += f".globl {k.name}\n.p2align 8\n.type {k.name},@function\n{k.name}:\n"
            o += "\n".join(k.lines) + "\n"
        o += '.section .rodata,"a"\n'
        for k in self.kernels:
            if k.no_desc: continue
            o += f""".p2align 6
.amdhsa_kernel {k.name}
  .amdhsa_next_free_vgpr {k.nfv}
  .amdhsa_next_free_sgpr {k.nfs}
  .amdhsa_accum_offset {k.accum}
  .amdhsa_group_segment_fixed_size 0
  .amdhsa_kernarg_size 112
  .amdhsa_user_sgpr_count 2
  .amdhsa_user_sgpr_kernarg_segment_ptr 1
  .amdhsa_system_sgpr_workgroup_id_x 1
.end_amdhsa_kernel
"""
        return o

class Kernel:
    def __init__(self, name, vgpr=128, agpr=0, sgpr=96):
        self.name = name; self.lines = []; self.no_desc = False
        self.set_regs(vgpr, agpr, sgpr)
        self._lab = 0
    def set_regs(self, vgpr, agpr=0, sgpr=96):
        self.accum = (vgpr + 3)//4*4
        self.nfv = self.accum + agpr if agpr else vgpr
        self.nfs = sgpr
    def __call__(self, s):
        for l in s.strip('\n').split('\n'):
            l = l.strip()
            if l: self.lines.append('    ' + l)
    def label(self, l): self.lines.append(l + ':')
    def newlabel(self, p='L'):
        self._lab += 1
        return f"{p}_{self.name}_{self._lab}"
    def c(self, s): self.lines.append('    ; ' + s)
    def srd(self, d, b, size, off=0):
        if off:
            self(f"s_add_u32 s{d}, s{b}, {off}")
            self(f"s_addc_u32 s{d+1}, s{b+1}, 0")
        else:
            self(f"s_mov_b32 s{d}, s{b}")
            self(f"s_mov_b32 s{d+1}, s{b+1}")
        self(f"s_mov_b32 s{d+2}, {size}")
        self(f"s_mov_b32 s{d+3}, 0x00020000")

def vr(a, n=1): return f"v{a}" if n == 1 else f"v[{a}:{a+n-1}]"
def ar(a, n=1): return f"a{a}" if n == 1 else f"a[{a}:{a+n-1}]"
def sr(a, n=1): return f"s{a}" if n == 1 else f"s[{a}:{a+n-1}]"

class Q:
    def __init__(self, k, name, maxn):
        self.k = k; self.name = name; self.maxn = maxn
        self.n = 0
        self.tags = {}
        self.done = 0
    def issue(self, instr, *tags):
        if self.n - self.done >= self.maxn:
            self.wait_idx(self.n - self.maxn + 1)
        self.k(instr); self.n += 1
        for t in tags: self.tags[t] = self.n
    def wait_idx(self, idx):
        if idx <= self.done: return
        N = min(self.n - idx, self.maxn)
        self.k(f"s_waitcnt {self.name}({N})")
        self.done = self.n - N
    def need(self, *tags):
        idx = max(self.tags[t] for t in tags)
        self.wait_idx(idx)
    def drain(self): self.wait_idx(self.n)
    def reset(self):
        self.done = self.n

STAMPS = False
STAMP_BASE = 32 << 20
def stamp(k, i):
    if STAMPS:
        k(f"s_memtime s[{64+2*i}:{65+2*i}]")
        if i == 0: k("s_memrealtime s[62:63]")
def stamp_flush(k, slot, n, swave, ws_lo=18):
    if not STAMPS: return
    k(f"s_memrealtime s[{64+2*n}:{65+2*n}]")
    k("s_waitcnt lgkmcnt(0)")
    k("s_mov_b64 exec, -1")
    k("v_mov_b32 v1, 0")
    for i in range(n+1):
        k(f"v_writelane_b32 v1, s{64+2*i}, {i}")
    k(f"v_writelane_b32 v1, s62, {n+1}")
    k(f"s_lshl_b32 s60, s2, 3")
    k(f"s_add_u32 s60, s60, s{swave}")
    k(f"s_lshl_b32 s60, s60, 6")
    k(f"s_add_u32 s60, s60, {STAMP_BASE + slot*(1<<20)}")
    k(f"v_mbcnt_lo_u32_b32 v2, -1, 0")
    k(f"v_mbcnt_hi_u32_b32 v2, -1, v2")
    k(f"v_lshlrev_b32 v2, 2, v2")
    k(f"v_add_u32 v2, s60, v2")
    k(f"s_mov_b64 exec, 0xffff")
    k(f"global_store_dword v2, v1, s[{ws_lo}:{ws_lo+1}]")
```

```python
from asmlib import *
from layout import *
from gen_k0 import f32hex, interleave

CONV_GRID = 256
U0 = 0; UP = 4576; KC0 = 2*UP; KCP = 4160; KCH = 4*KCP; RED = KC0 + 2*KCH
CONV_LDS = RED + 65536

def unpack(k, lo, hi, src):
    k(f"v_lshlrev_b32 v{lo}, 16, v{src}")
    k(f"v_and_b32 v{hi}, 0xffff0000, v{src}")

def gen_conv(name, XIN, XOUT, ST, slot=0):
    k = Kernel(name, vgpr=192, sgpr=100)
    body_entry(k, {40: XIN, 41: XOUT, 42: ST, 44: slot})
    XIN, XOUT, ST, slot = 's40', 's41', 's42', 's44'
    stamp(k, 0)
    E = f"L_{name}_end"
    k(f"""
    s_cmp_ge_u32 s2, {CONV_GRID}
    s_cbranch_scc1 {E}
    s_load_dwordx2 s[18:19], s[0:1], 104
    s_load_dwordx2 s[16:17], s[0:1], 48
    v_and_b32 v1, 63, v0
    v_lshrrev_b32 v2, 6, v0
    v_lshlrev_b32 v3, 4, v1
    v_readfirstlane_b32 s3, v2
    s_lshl_b32 s4, s2, 1
    s_lshr_b32 s5, s3, 2
    s_and_b32 s6, s3, 3
    s_add_u32 s7, s4, s5
    s_waitcnt lgkmcnt(0)
    """)
    k.srd(8, 18, WS_USED)
    k(f"""
    s_mul_i32 s12, s7, {KGP}
    s_add_u32 s12, s12, {KG+6}
    s_lshl_b32 s13, s6, 1
    s_sub_u32 s12, s12, s13
    s_mul_i32 s13, s5, {KCH}
    s_mul_i32 s14, s6, {KCP}
    s_add_u32 s13, s13, s14
    s_add_u32 s13, s13, {KC0}
    """)
    for c in range(4):
        k(f"s_mov_b32 m0, s13")
        k(f"s_add_u32 s13, s13, 1024")
        k(f"buffer_load_dwordx4 v3, s[8:11], s12 offen lds")
        k(f"s_add_u32 s12, s12, 1024")
    k(f"""
    v_lshlrev_b32 v4, 3, v0
    v_lshlrev_b32 v5, 5, v0
    s_lshl_b32 s12, s4, 12
    s_add_u32 s12, s12, {XIN}
    s_mov_b32 s14, {ST}
    buffer_load_dwordx4 v[64:67], v5, s[8:11], s14 offen
    buffer_load_dwordx4 v[68:71], v5, s[8:11], s14 offen offset:16
    buffer_load_dwordx2 v[72:73], v4, s[8:11], s12 offen
    s_add_u32 s12, s12, 4096
    buffer_load_dwordx2 v[74:75], v4, s[8:11], s12 offen
    """)
    k(f"""
    v_and_b32 v7, 15, v1
    v_lshrrev_b32 v8, 4, v1
    v_lshlrev_b32 v6, 5, v7
    v_lshl_add_u32 v6, v8, 3, v6
    s_lshl_b32 s12, s7, 12
    s_lshl_b32 s13, s6, 10
    s_add_u32 s12, s12, s13
    s_add_u32 s20, s12, {XOUT}
    s_add_u32 s12, s12, {XIN}
    buffer_load_dwordx2 v[48:49], v6, s[8:11], s12 offen
    buffer_load_dwordx2 v[50:51], v6, s[8:11], s12 offen offset:512
    s_lshl_b32 s12, s7, 1
    v_mov_b32 v9, s12
    global_load_ushort v52, v9, s[16:17]
    """)
    k(f"""
    v_mov_b32 v12, 0
    v_mov_b32 v13, 0
    v_mov_b32 v14, 0
    v_mov_b32 v15, 0
    s_mul_i32 s13, s5, {KCH}
    s_mul_i32 s14, s6, {KCP}
    s_add_u32 s13, s13, s14
    s_add_u32 s13, s13, {KC0+4096}
    v_add_u32 v9, s13, v3
    s_mul_i32 s13, s5, {UP}
    v_add_u32 v10, s13, v3
    v_cmp_gt_u32 vcc, 2, v1
    s_and_saveexec_b64 s[22:23], vcc
    ds_write_b128 v9, v[12:15]
    s_mov_b64 exec, s[22:23]
    v_cmp_gt_u32 vcc, 30, v1
    s_and_saveexec_b64 s[22:23], vcc
    ds_write_b128 v10, v[12:15]
    s_mov_b64 exec, s[22:23]
    """)
    for r in range(32): k(f"v_mov_b32 v{16+r}, 0")
    k(f"""
    v_and_b32 v9, 3, v7
    v_mul_u32_u24 v9, {KCP}, v9
    v_lshrrev_b32 v10, 2, v7
    v_lshlrev_b32 v10, 3, v10
    v_sub_u32 v9, v9, v10
    v_lshl_add_u32 v9, v8, 4, v9
    s_mul_i32 s13, s5, {KCH}
    s_add_u32 s13, s13, {KC0+24}
    s_lshl_b32 s14, s6, 7
    s_sub_u32 s13, s13, s14
    v_add_u32 v10, s13, v9
    v_lshlrev_b32 v11, 5, v7
    v_lshl_add_u32 v11, v8, 4, v11
    s_mul_i32 s13, s5, {UP}
    s_add_u32 s13, s13, 384
    s_sub_u32 s13, s13, s14
    v_add_u32 v11, s13, v11
    s_mov_b32 s24, {f32hex(1.0/512)}
    s_mov_b32 s25, {f32hex(1e-5)}
    """)
    stamp(k, 1)
    k("s_waitcnt vmcnt(5)")
    stamp(k, 2)
    for r in range(4):
        k(f"v_mul_f32 v{64+2*r}, s24, v{64+2*r}")
        k(f"v_mul_f32 v{65+2*r}, s24, v{65+2*r}")
    for r in range(4): k(f"v_fma_f32 v{65+2*r}, -v{64+2*r}, v{64+2*r}, v{65+2*r}")
    for r in range(4): k(f"v_max_f32 v{65+2*r}, 0, v{65+2*r}")
    k("v_cvt_pk_bf16_f32 v76, v64, v66")
    k("v_cvt_pk_bf16_f32 v77, v68, v70")
    k("v_cvt_pk_bf16_f32 v78, v65, v67")
    k("v_cvt_pk_bf16_f32 v79, v69, v71")
    unpack(k, 80, 81, 76); unpack(k, 82, 83, 77); unpack(k, 84, 85, 78); unpack(k, 86, 87, 79)
    for r in range(4): k(f"v_add_f32 v{84+r}, s25, v{84+r}")
    k("v_cvt_pk_bf16_f32 v78, v84, v85")
    k("v_cvt_pk_bf16_f32 v79, v86, v87")
    unpack(k, 84, 85, 78); unpack(k, 86, 87, 79)
    for r in range(4): k(f"v_sqrt_f32 v{84+r}, v{84+r}")
    k("s_nop 0")
    k("v_cvt_pk_bf16_f32 v78, v84, v85")
    k("v_cvt_pk_bf16_f32 v79, v86, v87")
    unpack(k, 84, 85, 78); unpack(k, 86, 87, 79)
    for r in range(4): k(f"v_rcp_f32 v{84+r}, v{84+r}")
    k("s_waitcnt vmcnt(3)")
    for ch in range(2):
        x = 72 + 2*ch; T = 88 + 4*ch
        unpack(k, T, T+1, x); unpack(k, T+2, T+3, x+1)
        for r in range(4): k(f"v_sub_f32 v{T+r}, v{T+r}, v{80+r}")
        k(f"v_cvt_pk_bf16_f32 v{x}, v{T}, v{T+1}")
        k(f"v_cvt_pk_bf16_f32 v{x+1}, v{T+2}, v{T+3}")
        unpack(k, T, T+1, x); unpack(k, T+2, T+3, x+1)
        for r in range(4): k(f"v_mul_f32 v{T+r}, v{T+r}, v{84+r}")
        k(f"v_cvt_pk_bf16_f32 v{x}, v{T}, v{T+1}")
        k(f"v_cvt_pk_bf16_f32 v{x+1}, v{T+2}, v{T+3}")
        k(f"ds_write_b64 v4, v[{x}:{x+1}] offset:{480 + ch*UP}")
    stamp(k, 3)
    k("s_waitcnt vmcnt(0) lgkmcnt(0)")
    stamp(k, 4)
    k("s_barrier")
    stamp(k, 5)
    def loads(i0p, FA, FB):
        o = []
        for s in range(8):
            off = 64*(63 - i0p - 8*s)
            o.append(f"ds_read_b64 v[{FA+4*s}:{FA+4*s+1}], v10 offset:{off}")
            o.append(f"ds_read_b64 v[{FA+4*s+2}:{FA+4*s+3}], v10 offset:{off+8}")
            o.append(f"ds_read_b128 v[{FB+4*s}:{FB+4*s+3}], v11 offset:{512*s + 64*(1-i0p)}")
        return o
    def mf(FA, FB, m):
        o = []
        for s in range(8):
            for w in range(8):
                if s + w <= 7 and max(s, w) == m:
                    c = s + w
                    o.append(f"v_mfma_f32_16x16x32_bf16 v[{16+4*c}:{19+4*c}], v[{FA+4*s}:{FA+4*s+3}], v[{FB+4*w}:{FB+4*w+3}], v[{16+4*c}:{19+4*c}]")
        return o
    l0 = loads(0, 64, 96); l1 = loads(1, 128, 160)
    allloads = l0 + l1
    issued = 0
    def issue(n):
        nonlocal issued
        for x in allloads[issued:issued+n]: k(x)
        issued = min(len(allloads), issued+n)
    issue(12)
    for i0p, (FA, FB) in enumerate([(64, 96), (128, 160)]):
        for m in range(8):
            need = 24*i0p + 3*(m+1)
            issue(max(0, need - issued))
            k(f"s_waitcnt lgkmcnt({min(15, issued-need)})")
            ms = mf(FA, FB, m)
            nl = min(len(allloads)-issued, max(3, len(ms)//2), 12 - (issued-need))
            nl = max(nl, 0)
            extra = allloads[issued:issued+nl]; issued += nl
            for x in interleave(ms, extra): k(x)
    assert issued == len(allloads)
    stamp(k, 6)
    k(f"""
    s_lshl_b32 s13, s5, 15
    s_lshl_b32 s14, s6, 10
    s_add_u32 s13, s13, s14
    s_add_u32 s13, s13, {RED}
    v_add_u32 v9, s13, v3
    s_lshl_b32 s13, s5, 15
    s_lshl_b32 s14, s6, 13
    s_add_u32 s13, s13, s14
    s_add_u32 s13, s13, {RED}
    v_add_u32 v12, s13, v3
    s_mul_i32 s13, s5, {UP}
    s_lshl_b32 s14, s6, 10
    s_add_u32 s13, s13, s14
    s_add_u32 s13, s13, 480
    v_add_u32 v13, s13, v6
    v_lshlrev_b32 v52, 16, v52
    """)
    for p in range(4):
        if p < 3:
            k(f"s_cmp_lg_u32 s6, {p}")
            k(f"s_cbranch_scc1 L_{name}_rv{p+1}")
        else:
            k("s_nop 1")
        for c in range(8):
            if c in (2*p, 2*p+1): continue
            k(f"ds_write_b128 v9, v[{16+4*c}:{19+4*c}] offset:{4096*c}")
        for r in range(8): k(f"v_mov_b32 v{56+r}, v{16+8*p+r}")
        k("s_waitcnt lgkmcnt(0)")
        k("s_barrier")
        others = [q for q in range(4) if q != p]
        for t in range(2):
            for j, q in enumerate(others):
                k(f"ds_read_b128 v[{64+12*t+4*j}:{67+12*t+4*j}], v12 offset:{4096*t + 1024*q}")
        if p < 3:
            k(f"s_branch L_{name}_ep")
            k.label(f"L_{name}_rv{p+1}")
    k.label(f"L_{name}_ep")
    stamp(k, 7)
    k("ds_read_b64 v[88:89], v13")
    k("ds_read_b64 v[90:91], v13 offset:512")
    for t in range(2):
        k(f"s_waitcnt lgkmcnt({5-3*t})")
        for r in range(4):
            k(f"v_add_f32 v{56+4*t+r}, v{56+4*t+r}, v{64+12*t+r}")
            k(f"v_add_f32 v{68+12*t+r}, v{68+12*t+r}, v{72+12*t+r}")
        for r in range(4): k(f"v_add_f32 v{56+4*t+r}, v{56+4*t+r}, v{68+12*t+r}")
    k("s_waitcnt lgkmcnt(0)")
    for j in range(4): k(f"v_cvt_pk_bf16_f32 v{64+j}, v{56+2*j}, v{57+2*j}")
    for j in range(4): unpack(k, 72+2*j, 73+2*j, 88+j)
    for j in range(4): unpack(k, 56+2*j, 57+2*j, 64+j)
    for j in range(8): k(f"v_mul_f32 v{72+j}, v{72+j}, v52")
    for j in range(4): k(f"v_cvt_pk_bf16_f32 v{64+j}, v{72+2*j}, v{73+2*j}")
    for j in range(4): unpack(k, 72+2*j, 73+2*j, 64+j)
    for j in range(8): k(f"v_add_f32 v{56+j}, v{56+j}, v{72+j}")
    for j in range(4): k(f"v_cvt_pk_bf16_f32 v{64+j}, v{56+2*j}, v{57+2*j}")
    for j in range(4): unpack(k, 72+2*j, 73+2*j, 48+j)
    for j in range(4): unpack(k, 56+2*j, 57+2*j, 64+j)
    for j in range(8): k(f"v_add_f32 v{56+j}, v{56+j}, v{72+j}")
    for j in range(4): k(f"v_cvt_pk_bf16_f32 v{64+j}, v{56+2*j}, v{57+2*j}")
    k("buffer_store_dwordx2 v[64:65], v6, s[8:11], s20 offen")
    k("buffer_store_dwordx2 v[66:67], v6, s[8:11], s20 offen offset:512")
    stamp(k, 8)
    stamp(k, 9)
    stamp_flush(k, slot, 10, 3)
    k.label(E)
    k("s_endpgm")
    return k

if __name__ == '__main__':
    from gen_k0 import *
    p = Prog()
    p.add_kernel(gen_k0())
    p.add_kernel(gen_conv('conv1_kernel', XT0, XT1, ST1))
    p.launch('k0_kernel', K0_GRID, 256, K0_LDS)
    p.launch('conv1_kernel', CONV_GRID, 512, CONV_LDS)
    open('c1.s','w').write(p.text())
```

```python
from asmlib import *
from layout import *
from gen_k0 import f32hex
from gen_conv import unpack

DN_GRID = 256
DN_LDS = 49152

def gen_down(name, XIN, XOUT, final, slot=0):
    k = Kernel(name, vgpr=208, agpr=256, sgpr=100)
    stamp(k, 0)
    vm = Q(k, 'vmcnt', 63); lg = Q(k, 'lgkmcnt', 15)
    E = f"L_{name}_end"
    ACC = 16; FV = 80; RES = 176; T = 192
    k(f"""
    s_cmp_ge_u32 s2, {DN_GRID}
    s_cbranch_scc1 {E}
    s_load_dwordx2 s[18:19], s[0:1], 104
    s_load_dwordx2 s[16:17], s[0:1], 88
    v_and_b32 v1, 63, v0
    v_lshrrev_b32 v2, 6, v0
    v_lshlrev_b32 v3, 4, v1
    v_readfirstlane_b32 s3, v2
    s_and_b32 s4, s2, 7
    s_lshr_b32 s5, s2, 3
    s_lshl_b32 s4, s4, 2
    s_lshr_b32 s6, s5, 3
    s_add_u32 s4, s4, s6
    s_and_b32 s5, s5, 7
    s_lshr_b32 s6, s3, 1
    s_and_b32 s7, s3, 1
    """)
    k(f"""
    s_lshl_b32 s12, s5, 1
    s_add_u32 s13, s12, s6
    s_xor_b32 s14, s13, 1
    s_mul_i32 s20, s13, {86*1024}
    s_mul_i32 s21, s14, {86*1024}
    s_lshl_b32 s12, s4, 1
    s_add_u32 s15, s12, s7
    s_xor_b32 s14, s15, 1
    s_mul_i32 s22, s15, {86*1024}
    s_mul_i32 s23, s14, {86*1024}
    s_lshl_b32 s12, s3, 10
    s_add_u32 s14, s12, {WD}
    s_add_u32 s20, s20, s14
    s_add_u32 s21, s21, s14
    s_add_u32 s14, s12, {H}
    s_add_u32 s22, s22, s14
    s_add_u32 s23, s23, s14
    v_mov_b32 v4, v3
    s_waitcnt lgkmcnt(0)
    """)
    k.srd(8, 18, WS_USED)
    def freg(j, i):
        n = 4*j + i
        return f"a[{4*n}:{4*n+3}]" if n < 64 else f"v[{FV+4*(n-64)}:{FV+4*(n-64)+3}]"
    def loads(j, tracked=True):
        for i in range(4):
            ins = f"buffer_load_dwordx4 {freg(j,i)}, v4, s[8:11], s{20+i} offen"
            if tracked: vm.issue(ins, f"S{j}")
            else: k(ins)
        k("v_add_u32 v4, 4096, v4")
    def mfmas(j):
        for ad in range(2):
            for al in range(2):
                a = ACC + 16*(2*ad+al)
                k(f"v_mfma_f32_32x32x16_bf16 v[{a}:{a+15}], {freg(j,ad)}, {freg(j,2+al)}, v[{a}:{a+15}]")
    PRE = 4
    for j in range(PRE): loads(j)
    for r in range(64): k(f"v_mov_b32 v{ACC+r}, 0")
    k(f"""
    v_and_b32 v6, 31, v1
    v_lshrrev_b32 v7, 5, v1
    v_lshlrev_b32 v5, 14, v7
    v_lshl_add_u32 v5, v6, 1, v5
    s_lshl_b32 s24, s13, 17
    s_lshl_b32 s25, s15, 6
    s_add_u32 s24, s24, s25
    s_add_u32 s25, s24, {XOUT if not final else 0}
    s_add_u32 s24, s24, {XIN}
    """)
    def resload(n):
        q, r = n >> 2, n & 3
        k(f"s_add_u32 s26, s24, {(8*q+r)*4096}")
        vm.issue(f"buffer_load_ushort v{RES+n}, v5, s[8:11], s26 offen", f"R{n}")
    rn = 0
    for j in range(21):
        vm.need(f"S{j}")
        if j in (0, 1, 5, 10, 15, 20): stamp(k, {0:1,1:2,5:3,10:4,15:5,20:6}[j])
        mfmas(j)
        if j + PRE < 21: loads(j+PRE)
        elif j + PRE == 21:
            k("s_cmp_ge_u32 s3, 2")
            k(f"s_cbranch_scc1 L_{name}_sk1")
            loads(21, tracked=False)
            k.label(f"L_{name}_sk1")
            vm.tags["S21"] = vm.n
        if j >= 17:
            for _ in range(4):
                if rn < 16: resload(rn); rn += 1
    assert rn == 16
    k("s_cmp_ge_u32 s3, 2")
    k(f"s_cbranch_scc1 L_{name}_sk2")
    k(f"s_waitcnt vmcnt(16)")
    mfmas(21)
    k.label(f"L_{name}_sk2")
    for a in (1, 2, 3):
        k(f"""
        s_xor_b32 s26, s3, {a}
        s_mul_i32 s26, s26, 12288
        s_add_u32 s26, s26, {(a-1)*4096}
        v_add_u32 v{8+a}, s26, v3
        """)
    k(f"""
    s_mul_i32 s26, s3, 12288
    v_add_u32 v8, s26, v3
    s_nop 7
    """)
    for a in (1, 2, 3):
        for q in range(4):
            lg.issue(f"ds_write_b128 v{8+a}, v[{ACC+16*a+4*q}:{ACC+16*a+4*q+3}] offset:{1024*q}", "rw")
    lg.drain()
    stamp(k, 7)
    k("s_barrier")
    stamp(k, 8)
    for q in range(4):
        for a in range(3):
            lg.issue(f"ds_read_b128 v[{FV+16*a+4*q}:{FV+16*a+4*q+3}], v8 offset:{4096*a+1024*q}", f"rr{q}")
    vm.drain()
    for n in range(16): k(f"v_lshlrev_b32 v{RES+n}, 16, v{RES+n}")
    if not final:
        k("v_mov_b32 v12, 0")
        k("v_mov_b32 v13, 0")
        k("v_mov_b32 v14, 0x3f803f80")
    else:
        k.srd(28, 16, 2048*512*2)
        k(f"""
        v_lshlrev_b32 v5, 10, v6
        v_lshl_add_u32 v5, v7, 4, v5
        s_lshl_b32 s25, s15, 15
        s_lshl_b32 s26, s13, 6
        s_add_u32 s25, s25, s26
        """)
    for q in range(4):
        lg.need(f"rr{q}")
        a = ACC+4*q
        for j in (0, 2):
            k(f"v_pk_add_f32 v[{a+j}:{a+j+1}], v[{a+j}:{a+j+1}], v[{FV+4*q+j}:{FV+4*q+j+1}]")
            k(f"v_pk_add_f32 v[{FV+16+4*q+j}:{FV+16+4*q+j+1}], v[{FV+16+4*q+j}:{FV+16+4*q+j+1}], v[{FV+32+4*q+j}:{FV+32+4*q+j+1}]")
        for j in (0, 2):
            k(f"v_pk_add_f32 v[{a+j}:{a+j+1}], v[{a+j}:{a+j+1}], v[{FV+16+4*q+j}:{FV+16+4*q+j+1}]")
        k(f"v_cvt_pk_bf16_f32 v{T+2*q}, v{a}, v{a+1}")
        k(f"v_cvt_pk_bf16_f32 v{T+2*q+1}, v{a+2}, v{a+3}")
        unpack(k, a, a+1, T+2*q); unpack(k, a+2, a+3, T+2*q+1)
        for j in (0, 2):
            k(f"v_pk_add_f32 v[{a+j}:{a+j+1}], v[{a+j}:{a+j+1}], v[{RES+4*q+j}:{RES+4*q+j+1}]")
        k(f"v_cvt_pk_bf16_f32 v{T+2*q}, v{a}, v{a+1}")
        k(f"v_cvt_pk_bf16_f32 v{T+2*q+1}, v{a+2}, v{a+3}")
        if not final:
            for r in range(4):
                k(f"s_add_u32 s26, s25, {(8*q+r)*4096}")
                op = "buffer_store_short_d16_hi" if r & 1 else "buffer_store_short"
                k(f"{op} v{T+2*q+(r>>1)}, v5, s[8:11], s26 offen")
            for j in range(2):
                k(f"v_dot2_f32_bf16 v12, v{T+2*q+j}, v14, v12")
                k(f"v_dot2_f32_bf16 v13, v{T+2*q+j}, v{T+2*q+j}, v13")
        elif q & 1:
            o = T + 2*(q-1)
            k("s_nop 1")
            k(f"v_permlane32_swap_b32 v{o}, v{o+2}")
            k(f"v_permlane32_swap_b32 v{o+1}, v{o+3}")
            k(f"buffer_store_dwordx4 v[{o}:{o+3}], v5, s[28:31], s25 offen offset:{16*(q-1)}")
    if not final:
        k(f"""
        s_nop 2
        v_permlane32_swap_b32 v12, v13
        v_lshlrev_b32 v5, 3, v6
        v_lshl_add_u32 v5, v7, 2, v5
        s_lshl_b32 s26, s15, 8
        s_add_u32 s26, s26, {ST3}
        v_add_f32 v12, v12, v13
        buffer_atomic_add_f32 v12, v5, s[8:11], s26 offen
        """)
    stamp(k, 9)
    stamp_flush(k, slot, 10, 3)
    k.label(E)
    k("s_endpgm")
    return k
```

```python
import asmlib, os
from asmlib import *
from layout import *
from gen_k0 import f32hex, LOG2E
EXP = os.environ.get('GUEXP', '')

GU_GRID = 256
NPROD = 14; PCH = 19
XP = 192
FLG = 98304 + 3072
FCT = FLG + 64
GU_LDS = FCT + 3072
NPH = 8; UPP = 4
RING = 8

def gen_gu(name, XIN, FCG, slot=0):
    k = Kernel(name, vgpr=192, sgpr=100)
    stamp(k, 0)
    E = f"L_{name}_end"
    N = name
    ACC = 16; XF = 64; W = 88; CSV = 152; FC = 168
    k(f"""
    s_cmp_ge_u32 s2, {GU_GRID}
    s_cbranch_scc1 {E}
    s_load_dwordx4 s[16:19], s[0:1], 96
    v_and_b32 v1, 63, v0
    v_lshrrev_b32 v2, 6, v0
    v_lshlrev_b32 v3, 4, v1
    v_readfirstlane_b32 s3, v2
    s_cmp_lt_u32 s2, {NPROD}
    s_cbranch_scc1 L_{N}_prod
    s_and_b32 s4, s2, 7
    s_lshr_b32 s5, s2, 3
    s_mul_i32 s7, s4, 30
    s_add_u32 s7, s7, s5
    s_sub_u32 s7, s7, 2
    s_cmp_ge_u32 s4, 6
    s_cselect_b32 s5, 1, 0
    s_add_u32 s7, s7, s5
    s_cmp_eq_u32 s4, 7
    s_cselect_b32 s5, 1, 0
    s_add_u32 s7, s7, s5
    s_cmp_ge_u32 s7, 176
    s_cbranch_scc1 L_{N}_b2
    s_cmp_ge_u32 s7, 88
    s_cselect_b32 s6, 88, 0
    s_cselect_b32 s5, 4, 0
    s_sub_u32 s7, s7, s6
    s_lshr_b32 s4, s7, 2
    s_and_b32 s7, s7, 3
    s_add_u32 s5, s5, s7
    s_branch L_{N}_b3
    L_{N}_b2:
    s_sub_u32 s7, s7, 176
    s_mul_i32 s4, s7, 171
    s_lshr_b32 s4, s4, 9
    s_mul_i32 s5, s4, 3
    s_sub_u32 s5, s7, s5
    s_add_u32 s5, s5, 8
    L_{N}_b3:
    s_lshl_b32 s6, s5, 3
    s_add_u32 s6, s6, s3
    s_lshl_b32 s14, s6, 15
    s_add_u32 s14, s14, {WGU}
    s_mov_b32 s10, {WS_USED}
    s_mov_b32 s11, 0x00020000
    s_mov_b32 s22, {WS_USED}
    s_mov_b32 s23, 0x00020000
    v_mov_b32 v4, {FLG}
    v_mov_b32 v8, 0
    v_mov_b32 v9, 0
    v_mov_b32 v10, 0
    v_mov_b32 v11, 0
    ds_write_b128 v4, v[8:11]
    ds_write_b128 v4, v[8:11] offset:16
    v_lshrrev_b32 v7, 5, v1
    v_and_b32 v6, 15, v1
    v_lshrrev_b32 v5, 2, v6
    v_lshl_add_u32 v5, v7, 3, v5
    v_mul_u32_u24 v5, {XP}, v5
    v_and_b32 v8, 3, v6
    v_lshl_add_u32 v5, v8, 3, v5
    v_and_b32 v8, 16, v1
    v_lshl_add_u32 v5, v8, 1, v5
    s_mov_b32 s28, 0
    """)
    for i in range(3):
        k(f"""
        v_add_u32 v8, {64*i}, v1
        v_mul_u32_u24 v9, 0xaaab, v8
        v_lshrrev_b32 v9, 19, v9
        v_mul_u32_u24 v10, 12, v9
        v_sub_u32 v10, v8, v10
        v_lshlrev_b32 v10, 4, v10
        v_lshl_add_u32 v{12+i}, v9, 12, v10
        """)
    k(f"""
    s_and_b32 s15, s3, 3
    s_mul_i32 s12, s4, 192
    s_lshl_b32 s13, s15, 16
    s_add_u32 s12, s12, s13
    s_add_u32 s12, s12, {XIN}
    s_mul_i32 s13, s15, 3072
    s_lshl_b32 s15, s15, 2
    v_add_u32 v9, s15, v4
    s_waitcnt lgkmcnt(0)
    s_mov_b32 s8, s18
    s_mov_b32 s9, s19
    s_mov_b32 s20, s18
    s_mov_b32 s21, s19
    s_cmp_lt_u32 s3, 4
    s_cbranch_scc1 L_{N}_main
    """)
    def wring():
        for j in range(RING):
            k(f"buffer_load_dwordx4 v[{W+4*j}:{W+4*j+3}], v3, s[20:23], s14 offen offset:{1024*(j&3)}")
            if j & 3 == 3: k("s_add_u32 s14, s14, 4096")
    def unit(p):
        for i in range(3):
            k(f"s_add_u32 m0, s13, {p*12288 + i*1024}")
            if i == 0 and p > 0: k(f"s_add_u32 s12, s12, {4*65536}")
            else: k("s_nop 0")
            k(f"buffer_load_dwordx4 v{12+i}, s[8:11], s12 offen lds")
    DEP = 4
    for p in range(DEP): unit(p)
    k("s_barrier")
    issued = DEP; extra = 0
    for p in range(NPH):
        k(f"v_mov_b32 v8, {p+1}")
        k(f"s_waitcnt vmcnt({3*(issued-p-1) + extra})")
        k("ds_write_b32 v9, v8")
        if issued < NPH: unit(issued); issued += 1
        elif extra == 0: wring(); extra = RING
    k(f"s_branch L_{N}_main2")
    def poll(need, tag):
        k(f"""
        s_cmp_ge_u32 s28, {need}
        s_cbranch_scc1 L_{N}_pd{tag}
        L_{N}_pl{tag}:
        ds_read_b128 v[8:11], v4
        s_waitcnt lgkmcnt(0)
        v_min_u32 v8, v8, v9
        v_min3_u32 v8, v8, v10, v11
        s_nop 0
        v_readfirstlane_b32 s28, v8
        s_cmp_ge_u32 s28, {need}
        s_cbranch_scc0 L_{N}_pl{tag}
        L_{N}_pd{tag}:
        """)
    k.label(f"L_{N}_main")
    wring()
    k("s_barrier")
    k.label(f"L_{N}_main2")
    stamp(k, 1)
    for r in range(48): k(f"v_mov_b32 v{ACC+r}, 0")
    k("v_mov_b32 v12, v5")
    k("s_mov_b32 s13, 1")
    poll("s13", "a")
    stamp(k, 2)
    def xr(buf, lb, h, off): k(f"ds_read_b64_tr_b16 v[{XF+12*buf+4*lb+2*h}:{XF+12*buf+4*lb+2*h+1}], v12 offset:{off+64*lb+768*h}")
    for lb in range(3): xr(0, lb, 0, 0); xr(0, lb, 1, 0)
    k("s_mov_b32 s15, 0")
    k.lines.append(".p2align 3")
    k.label(f"L_{N}_loop")
    for j in range(RING):
        if j % UPP == UPP-1:
            k("s_add_u32 s13, s13, 1")
            k(f"s_min_u32 s13, s13, {NPH}")
            poll("s13", f"m{j}")
        k(f"s_waitcnt vmcnt({RING-1})")
        for lb in range(3):
            k(f"s_waitcnt lgkmcnt(4)")
            a = ACC+16*lb; x = XF+12*(j&1)+4*lb
            k(f"v_mfma_f32_32x32x16_bf16 v[{a}:{a+15}], v[{W+4*j}:{W+4*j+3}], v[{x}:{x+3}], v[{a}:{a+15}]")
            xr((j+1)&1, lb, 0, 3072*(j+1)); xr((j+1)&1, lb, 1, 3072*(j+1))
        k(f"buffer_load_dwordx4 v[{W+4*j}:{W+4*j+3}], v3, s[20:23], s14 offen offset:{1024*(j&3)}")
        if j & 3 == 3: k("s_add_u32 s14, s14, 4096")
    k(f"""
    v_add_u32 v12, {3072*RING}, v12
    s_add_u32 s15, s15, 1
    s_cmp_eq_u32 s15, {32//RING-1}
    s_cselect_b32 s22, 0, s22
    s_cmp_lt_u32 s15, {32//RING}
    s_cbranch_scc1 L_{N}_loop
    """)
    stamp(k, 3)
    k(f"""
    s_cmp_ge_u32 s6, 86
    s_cbranch_scc1 {E}
    v_lshlrev_b32 v10, 4, v7
    s_lshl_b32 s12, s6, 6
    s_add_u32 s12, s12, {CS}
    """)
    for m in range(2):
        for q in range(2):
            j = 2*m + q
            k(f"buffer_load_dwordx4 v[{CSV+4*j}:{CSV+4*j+3}], v10, s[8:11], s12 offen offset:{32*q}")
        k(f"s_add_u32 s12, s12, {CSP}")
    k(f"""
    v_and_b32 v9, 31, v1
    s_cmp_ge_u32 s3, 3
    s_cbranch_scc1 L_{N}_fl
    s_mul_i32 s15, s4, 3
    s_add_u32 s15, s15, s3
    s_min_u32 s15, s15, 63
    s_lshl_b32 s15, s15, 8
    s_add_u32 s15, s15, {FCG}
    v_lshlrev_b32 v8, 3, v9
    s_mov_b32 s26, {f32hex(-LOG2E)}
    L_{N}_gp:
    buffer_load_dwordx2 v[12:13], v8, s[8:11], s15 offen sc1
    s_waitcnt vmcnt(0)
    v_cmp_ne_u32 vcc, 1, v13
    s_cmp_eq_u64 vcc, 0
    s_cbranch_scc1 L_{N}_gd
    s_sleep 6
    s_branch L_{N}_gp
    L_{N}_gd:
    v_and_b32 v14, 0xffff0000, v12
    v_lshlrev_b32 v12, 16, v12
    v_rcp_f32 v13, v14
    s_lshl_b32 s15, s3, 10
    s_add_u32 s15, s15, {FCT}
    v_lshl_add_u32 v8, v9, 5, s15
    s_lshl_b32 s15, s3, 2
    v_add_u32 v11, s15, v4
    v_sub_f32 v{FC}, 0, v12
    v_sub_f32 v{FC+1}, 0, v12
    v_mul_f32 v{FC+2}, s26, v13
    v_mul_f32 v{FC+3}, s26, v13
    v_mov_b32 v15, v14
    v_mov_b32 v12, 1
    ds_write_b128 v8, v[{FC}:{FC+3}]
    ds_write_b64 v8, v[14:15] offset:16
    ds_write_b32 v11, v12 offset:16
    L_{N}_fl:
    ds_read_b128 v[12:15], v4 offset:16
    s_waitcnt lgkmcnt(0)
    v_and_b32 v13, v13, v14
    v_and_b32 v13, v13, v12
    s_nop 0
    v_readfirstlane_b32 s15, v13
    s_cmp_eq_u32 s15, 1
    s_cbranch_scc1 L_{N}_fd
    s_sleep 4
    s_branch L_{N}_fl
    L_{N}_fd:
    v_lshlrev_b32 v9, 5, v9
    v_add_u32 v9, {FCT}, v9
    """)
    for lb in range(3):
        k(f"ds_read_b128 v[{FC+6*lb}:{FC+6*lb+3}], v9 offset:{1024*lb}")
        k(f"ds_read_b64 v[{FC+6*lb+4}:{FC+6*lb+5}], v9 offset:{1024*lb+16}")
    k(f"""
    s_mul_i32 s15, s4, {3*86*1024}
    s_lshl_b32 s16, s6, 10
    s_add_u32 s15, s15, s16
    s_add_u32 s15, s15, {H}
    s_waitcnt vmcnt(0)
    """)
    stamp(k, 4)
    for lb in range(3):
        k(f"s_waitcnt lgkmcnt({4-2*lb})")
        g = ACC+16*lb; u = g+8; c = FC+6*lb; o = XF+4*lb
        P = lambda r: f"v[{r}:{r+1}]"
        for j in range(0, 8, 2): k(f"v_pk_fma_f32 {P(g+j)}, {P(CSV+j)}, {P(c)}, {P(g+j)}")
        for j in range(0, 8, 2): k(f"v_pk_mul_f32 {P(g+j)}, {P(g+j)}, {P(c+2)}")
        for j in range(8): k(f"v_exp_f32 v{g+j}, v{g+j}")
        for j in range(0, 8, 2): k(f"v_pk_fma_f32 {P(u+j)}, {P(CSV+8+j)}, {P(c)}, {P(u+j)}")
        for j in range(0, 8, 2): k(f"v_pk_fma_f32 {P(g+j)}, {P(g+j)}, {P(c+4)}, {P(c+4)}")
        for j in range(8): k(f"v_rcp_f32 v{g+j}, v{g+j}")
        k("s_nop 0")
        for j in range(0, 8, 2): k(f"v_pk_mul_f32 {P(u+j)}, {P(u+j)}, {P(g+j)}")
        for j in range(4): k(f"v_cvt_pk_bf16_f32 v{o+j}, v{u+2*j}, v{u+2*j+1}")
        k(f"buffer_store_dwordx4 v[{o}:{o+3}], v3, s[8:11], s15 offen")
        if lb == 0:
            k(f"s_cmp_eq_u32 s4, 21")
            k(f"s_cbranch_scc1 {E}")
        k(f"s_add_u32 s15, s15, {86*1024}")
    for i in range(5, 10): stamp(k, i)
    stamp_flush(k, slot, 10, 3)
    k(f"s_branch {E}")
    k.label(f"L_{N}_prod")
    NIT = 22; PD = 14
    S = 16; QQ = 24; LB = 32; U = 96
    k(f"""
    v_mul_u32_u24 v4, 3450, v1
    v_lshrrev_b32 v4, 16, v4
    v_mul_u32_u24 v5, {PCH}, v4
    v_sub_u32 v5, v1, v5
    s_mul_i32 s4, s2, {PCH}
    v_add_u32 v6, s4, v5
    v_lshlrev_b32 v7, 4, v6
    v_lshl_add_u32 v7, v4, 12, v7
    v_cmp_gt_u32 vcc, 3, v4
    s_movk_i32 s5, 0x100
    v_cmp_gt_u32 s[6:7], s5, v6
    s_and_b64 vcc, vcc, s[6:7]
    v_mov_b32 v8, 0x7ffffff0
    v_cndmask_b32 v7, v8, v7, vcc
    s_mul_i32 s12, s3, 12288
    s_mov_b32 s10, {2*MB}
    s_mov_b32 s11, 0x00020000
    s_mov_b32 s22, {WS_USED}
    s_mov_b32 s23, 0x00020000
    """)
    for r in range(16): k(f"v_mov_b32 v{S+r}, 0")
    k(f"""
    s_waitcnt lgkmcnt(0)
    s_add_u32 s8, s18, {XIN}
    s_addc_u32 s9, s19, 0
    s_mov_b32 s20, s18
    s_mov_b32 s21, s19
    """)
    def pl(i):
        r = LB + 4*(i % PD)
        k(f"buffer_load_dwordx4 v[{r}:{r+3}], v7, s[8:11], s12 offen")
        k(f"s_add_u32 s12, s12, {8*12288}")
    stamp(k, 1)
    for i in range(PD): pl(i)
    for i in range(NIT):
        k(f"s_waitcnt vmcnt({min(PD-1, NIT-1-i)})")
        r = LB + 4*(i % PD)
        for e in range(4):
            k(f"v_lshlrev_b32 v{U+2*e}, 16, v{r+e}")
            k(f"v_and_b32 v{U+2*e+1}, 0xffff0000, v{r+e}")
        if i + PD < NIT: pl(i+PD)
        if i in (0, 7, 14): stamp(k, {0:2, 7:3, 14:4}[i])
        for e in range(0, 8, 2):
            k(f"v_pk_add_f32 v[{S+e}:{S+e+1}], v[{S+e}:{S+e+1}], v[{U+e}:{U+e+1}]")
            k(f"v_pk_fma_f32 v[{QQ+e}:{QQ+e+1}], v[{U+e}:{U+e+1}], v[{U+e}:{U+e+1}], v[{QQ+e}:{QQ+e+1}]")
    stamp(k, 5)
    SP = PCH*64 + 16
    k(f"""
    s_mul_i32 s4, s3, 3
    v_add_u32 v8, s4, v4
    v_mul_u32_u24 v8, {SP}, v8
    v_lshl_add_u32 v8, v5, 6, v8
    v_cmp_gt_u32 vcc, 3, v4
    s_and_saveexec_b64 s[6:7], vcc
    """)
    for j in range(4): k(f"ds_write_b128 v8, v[{S+4*j}:{S+4*j+3}] offset:{16*j}")
    k(f"""
    s_mov_b64 exec, s[6:7]
    s_waitcnt lgkmcnt(0)
    """)
    stamp(k, 7)
    k("s_barrier")
    stamp(k, 8)
    k(f"""
    s_cmp_ge_u32 s3, 3
    s_cbranch_scc1 {E}
    v_lshrrev_b32 v8, 3, v0
    v_and_b32 v9, 7, v0
    v_lshlrev_b32 v8, 6, v8
    v_lshl_add_u32 v8, v9, 2, v8
    v_mov_b32 v12, 0
    v_mov_b32 v13, 0
    """)
    for b in range(4):
        for j in range(6):
            sl = 6*b + j
            k(f"ds_read_b32 v{32+2*j}, v8 offset:{sl*SP}")
            k(f"ds_read_b32 v{33+2*j}, v8 offset:{sl*SP+32}")
        for j in range(6):
            k(f"s_waitcnt lgkmcnt({10-2*j})")
            k(f"v_pk_add_f32 v[12:13], v[12:13], v[{32+2*j}:{33+2*j}]")
    stamp(k, 9)
    k(f"""
    s_mov_b32 s24, {f32hex(1.0/512)}
    s_mov_b32 s25, {f32hex(1e-5)}
    v_mul_f32 v14, s24, v12
    v_mul_f32 v16, s24, v13
    v_fma_f32 v16, -v14, v14, v16
    v_max_f32 v16, 0, v16
    v_cvt_pk_bf16_f32 v14, v14, v16
    v_and_b32 v16, 0xffff0000, v14
    v_lshlrev_b32 v14, 16, v14
    v_add_f32 v16, s25, v16
    v_cvt_pk_bf16_f32 v16, v16, v16
    v_lshlrev_b32 v16, 16, v16
    v_sqrt_f32 v16, v16
    s_mul_i32 s4, s2, {PCH*8*8}
    s_add_u32 s4, s4, {FCG}
    v_cvt_pk_bf16_f32 v20, v14, v16
    v_mov_b32 v21, 1
    v_lshlrev_b32 v8, 3, v0
    v_cmp_gt_u32 vcc, {PCH*8}, v0
    s_and_saveexec_b64 s[6:7], vcc
    buffer_store_dwordx2 v[20:21], v8, s[20:23], s4 offen sc1
    """)
    stamp(k, 6)
    stamp_flush(k, 7, 10, 3)
    k.label(E)
    k("s_endpgm")
    return k
```

```python
import asmlib
from asmlib import *
from layout import *
import struct, math
def f32hex(x): return hex(struct.unpack('<I', struct.pack('<f', x))[0])
LOG2E = 1.4426950408889634
LOG2E_HI = struct.unpack('<f', struct.pack('<f', LOG2E))[0]
LOG2E_LO = LOG2E - LOG2E_HI
LN2 = math.log(2.0)
INV2PI = 1.0/(2*math.pi)

NT, NWGU, NWD, NKG = 32, 43, 22, 256
NOTH = NT + NWGU + NWD
K0_GRID = NOTH + NKG
K0_LDS = 70*1024
TP = 1088

def interleave(a, b):
    out = []; na, nb = len(a), len(b)
    if nb == 0: return list(a)
    j = 0
    for i, x in enumerate(a):
        out.append(x)
        while j < nb and (j+1)*na <= (i+1)*nb:
            out.append(b[j]); j += 1
    out += b[j:]
    return out

def exp_bf16_pair(k, xs, t, sL, sLlo, sLn2):
    for j, x in enumerate(xs): k(f"v_mul_f32 v{t+2*j}, s{sL}, v{x}")
    for j, x in enumerate(xs): k(f"v_fma_f32 v{t+2*j+1}, v{x}, s{sL}, -v{t+2*j}")
    for j, x in enumerate(xs): k(f"v_fmac_f32 v{t+2*j+1}, s{sLlo}, v{x}")
    for j, x in enumerate(xs): k(f"v_exp_f32 v{t+2*j}, v{t+2*j}")
    for j, x in enumerate(xs): k(f"v_mul_f32 v{t+2*j+1}, s{sLn2}, v{t+2*j+1}")
    for j, x in enumerate(xs): k(f"v_fma_f32 v{t+2*j}, v{t+2*j}, v{t+2*j+1}, v{t+2*j}")
    k(f"v_cvt_pk_bf16_f32 v{t}, v{t}, v{t+2}")
    k(f"v_lshlrev_b32 v{xs[0]}, 16, v{t}")
    k(f"v_and_b32 v{xs[1]}, 0xffff0000, v{t}")

def gen_k0():
    k = Kernel('k0_kernel', vgpr=112, sgpr=100)
    stamp(k, 0)
    if asmlib.STAMPS: k('s_mov_b32 s59, s2')
    k(f"""
    s_load_dwordx8 s[8:15], s[0:1], 8
    s_load_dwordx2 s[16:17], s[0:1], 40
    s_load_dwordx2 s[18:19], s[0:1], 104
    v_and_b32 v1, 63, v0
    v_lshrrev_b32 v2, 6, v0
    s_cmp_lt_u32 s2, {NOTH}
    v_readfirstlane_b32 s3, v2
    s_cbranch_scc1 L_k0_other
    s_sub_u32 s2, s2, {NOTH}
    s_cmp_ge_u32 s2, {NKG}
    s_cbranch_scc1 L_k0_end
    """)
    CHB = 20480; PT = 2048; T16 = 2048 + 4*3072
    k(f"""
    s_lshr_b32 s4, s3, 2
    s_and_b32 s3, s3, 3
    s_lshl_b32 s2, s2, 1
    s_add_u32 s2, s2, s4
    s_mul_i32 s34, s4, {CHB}
    v_and_b32 v3, 31, v1
    s_lshl_b32 s4, s2, 7
    s_lshl_b32 s5, s3, 5
    s_add_u32 s4, s4, s5
    v_add_u32 v4, s4, v3
    v_lshlrev_b32 v4, 1, v4
    s_lshl_b32 s5, s2, 1
    v_mov_b32 v5, s5
    s_waitcnt lgkmcnt(0)
    global_load_ushort v6, v4, s[8:9]
    global_load_ushort v10, v5, s[16:17]
    global_load_ushort v7, v4, s[10:11]
    global_load_ushort v8, v4, s[12:13]
    global_load_ushort v9, v4, s[14:15]
    s_mov_b32 s30, {f32hex(LOG2E_HI)}
    s_mov_b32 s31, {f32hex(LOG2E_LO)}
    s_mov_b32 s32, {f32hex(LN2)}
    s_mov_b32 s33, {f32hex(INV2PI)}
    v_and_b32 v0, 255, v0
    v_and_b32 v11, 15, v1
    v_lshrrev_b32 v12, 3, v11
    v_lshlrev_b32 v12, 7, v12
    v_and_b32 v13, 7, v11
    v_add_u32 v12, v12, v13
    v_cvt_f32_u32 v20, v12
    v_lshrrev_b32 v12, 2, v11
    v_lshlrev_b32 v12, 7, v12
    v_and_b32 v13, 3, v11
    v_lshl_add_u32 v12, v13, 1, v12
    v_add_u32 v12, 0x100, v12
    v_subrev_u32 v13, 8, v11
    v_lshrrev_b32 v13, 1, v13
    v_lshlrev_b32 v13, 7, v13
    v_and_b32 v14, 1, v11
    v_lshl_add_u32 v13, v14, 2, v13
    v_add_u32 v13, 0x200, v13
    v_cmp_gt_u32 vcc, 8, v11
    v_lshlrev_b32 v14, 7, v11
    v_add_u32 v14, 0x400, v14
    v_cndmask_b32 v12, v13, v12, vcc
    v_cvt_f32_u32 v21, v12
    v_cvt_f32_u32 v22, v14
    v_lshlrev_b32 v14, 3, v11
    v_cvt_f32_u32 v23, v14
    s_lshl_b32 s5, s3, 9
    s_add_u32 s5, s5, s34
    v_lshl_add_u32 v2, v3, 4, s5
    v_lshrrev_b32 v3, 4, v1
    v_lshl_add_u32 v3, v3, 6, s5
    """)
    for r in range(12): k(f"v_mov_b32 v{24+r}, 0")
    stamp(k, 1)
    k("s_waitcnt vmcnt(3)")
    stamp(k, 2)
    k("v_lshlrev_b32 v6, 16, v6")
    k("v_lshlrev_b32 v10, 16, v10")
    exp_bf16_pair(k, [6, 10], 12, 30, 31, 32)
    k(f"""
    s_waitcnt vmcnt(0)
    v_lshlrev_b32 v7, 16, v7
    v_lshlrev_b32 v8, 16, v8
    v_lshlrev_b32 v9, 16, v9
    v_mul_f32 v6, v6, v10
    v_mul_f32 v7, v7, v10
    v_add_f32 v10, v10, v10
    v_mul_f32 v18, v8, v10
    v_mul_f32 v19, v9, v10
    v_mul_f32 v16, s30, v6
    v_max_f32 v12, |v18|, |v19|
    v_mul_f32 v17, s33, v7
    v_sub_f32 v16, 0, v16
    v_max_f32_dpp v12, v12, v12 row_ror:8 row_mask:0xf bank_mask:0xf
    s_nop 1
    v_max_f32_dpp v12, v12, v12 row_ror:4 row_mask:0xf bank_mask:0xf
    s_nop 1
    v_max_f32_dpp v12, v12, v12 row_ror:2 row_mask:0xf bank_mask:0xf
    s_nop 1
    v_max_f32_dpp v12, v12, v12 row_ror:1 row_mask:0xf bank_mask:0xf
    s_nop 1
    v_readlane_b32 s6, v12, 0
    v_readlane_b32 s7, v12, 16
    s_max_u32 s6, s6, s7
    s_lshr_b32 s6, s6, 23
    s_max_u32 s6, s6, 1
    s_min_u32 s6, s6, 252
    s_sub_u32 s7, 253, s6
    s_lshl_b32 s7, s7, 23
    s_add_u32 s35, s6, 1
    s_lshl_b32 s35, s35, 23
    v_mul_f32 v18, s7, v18
    v_mul_f32 v19, s7, v19
    ds_write_b128 v2, v[16:19]
    s_waitcnt lgkmcnt(0)
    """)
    for st in range(8): k(f"ds_read_b128 v[{36+4*st}:{39+4*st}], v3 offset:{256*(st>>2) + 16*(st&3)}")
    stamp(k, 3)
    for st in range(8):
        s_, t = st >> 2, st & 3
        zr, zi, cr, ci = 36+4*st, 37+4*st, 38+4*st, 39+4*st
        Fb = 80 + 16*s_ + t
        k(f"s_waitcnt lgkmcnt({7-st})")
        for c in range(4): k(f"v_mul_f32 v{68+c}, v{zr}, v{20+c}")
        for c in range(4): k(f"v_mul_f32 v{72+c}, v{zi}, v{20+c}")
        for c in range(4): k(f"v_exp_f32 v{68+c}, v{68+c}")
        for c in range(4): k(f"v_fract_f32 v{72+c}, v{72+c}")
        for c in range(4): k(f"v_cos_f32 v{76+c}, v{72+c}")
        for c in range(4): k(f"v_sin_f32 v{4+c}, v{72+c}")
        k(f"v_mul_f32 v8, v71, v{cr}")
        k(f"v_mul_f32 v9, v71, v{ci}")
        for c in range(3): k(f"v_fma_mixlo_f16 v{Fb+4*c}, v{68+c}, v{76+c}, 0")
        k(f"v_mul_f32 v10, v8, v79")
        k(f"v_mul_f32 v11, v8, v7")
        for c in range(3): k(f"v_fma_mixhi_f16 v{Fb+4*c}, v{68+c}, v{4+c}, 0")
        k(f"v_fma_mixlo_f16 v{Fb+12}, -v9, v7, v10")
        if st == 4:
            for c in range(3): k(f"v_mfma_f32_16x16x32_f16 v[{24+4*c}:{27+4*c}], v[{80+4*c}:{83+4*c}], v[92:95], v[{24+4*c}:{27+4*c}]")
        else: k("s_nop 0")
        k(f"v_fma_mixhi_f16 v{Fb+12}, -v9, v79, -v11")
    k(f"""
    s_mul_i32 s5, s3, 3072
    s_add_u32 s5, s5, s34
    s_add_u32 s5, s5, {PT}
    v_lshl_add_u32 v12, v1, 4, s5
    """)
    for c in range(3): k(f"v_mfma_f32_16x16x32_f16 v[{24+4*c}:{27+4*c}], v[{96+4*c}:{99+4*c}], v[108:111], v[{24+4*c}:{27+4*c}]")
    stamp(k, 4)
    k("s_nop 7")
    for r in range(12): k(f"v_mul_f32 v{24+r}, s35, v{24+r}")
    k(f"""
    ds_write_b128 v12, v[24:27]
    ds_write_b128 v12, v[28:31] offset:1024
    ds_write_b128 v12, v[32:35] offset:2048
    v_lshl_add_u32 v12, v0, 4, s34
    v_lshrrev_b32 v13, 4, v1
    v_and_b32 v14, 15, v1
    v_lshl_add_u32 v14, v14, 4, s34
    s_waitcnt lgkmcnt(0)
    s_barrier
    s_cmp_eq_u32 s3, 3
    s_cbranch_scc1 L_kg_stage2
    ds_read_b128 v[24:27], v12 offset:{PT}
    ds_read_b128 v[28:31], v12 offset:{PT+3072}
    ds_read_b128 v[32:35], v12 offset:{PT+2*3072}
    ds_read_b128 v[36:39], v12 offset:{PT+3*3072}
    s_cmp_eq_u32 s3, 1
    s_cbranch_scc1 L_kg_t1
    s_cmp_eq_u32 s3, 2
    s_cbranch_scc1 L_kg_t2
    v_lshrrev_b32 v15, 1, v13
    v_lshlrev_b32 v15, 8, v15
    v_and_b32 v16, 1, v13
    v_lshl_add_u32 v15, v16, 3, v15
    v_add_u32 v16, v15, v14
    v_add_u32 v17, 2, v16
    v_add_u32 v18, 4, v16
    v_add_u32 v19, 6, v16
    s_branch L_kg_w
    L_kg_t1:
    v_lshlrev_b32 v15, 8, v13
    v_add_u32 v15, 0x200, v15
    v_add_u32 v16, v15, v14
    v_add_u32 v17, 4, v16
    v_add_u32 v18, 8, v16
    v_add_u32 v19, 12, v16
    v_lshlrev_b32 v15, 9, v13
    v_add_u32 v15, v15, v14
    v_add_u32 v20, 8, v15
    v_add_u32 v21, 0x100, v15
    v_add_u32 v22, 0x108, v15
    v_cmp_gt_u32 vcc, 2, v13
    s_nop 1
    v_cndmask_b32 v16, v15, v16, vcc
    v_cndmask_b32 v17, v20, v17, vcc
    v_cndmask_b32 v18, v21, v18, vcc
    v_cndmask_b32 v19, v22, v19, vcc
    s_branch L_kg_w
    L_kg_t2:
    v_lshlrev_b32 v15, 10, v13
    v_add_u32 v15, 0x800, v15
    v_add_u32 v16, v15, v14
    v_add_u32 v17, 0x100, v16
    v_add_u32 v18, 0x200, v16
    v_add_u32 v19, 0x300, v16
    L_kg_w:
    s_waitcnt lgkmcnt(0)
    v_pk_add_f32 v[24:25], v[24:25], v[28:29]
    v_pk_add_f32 v[26:27], v[26:27], v[30:31]
    v_pk_add_f32 v[32:33], v[32:33], v[36:37]
    v_pk_add_f32 v[34:35], v[34:35], v[38:39]
    v_pk_add_f32 v[24:25], v[24:25], v[32:33]
    v_pk_add_f32 v[26:27], v[26:27], v[34:35]
    v_cvt_pk_bf16_f32 v24, v24, v25
    v_cvt_pk_bf16_f32 v26, v26, v27
    ds_write_b16 v16, v24 offset:{T16}
    ds_write_b16_d16_hi v17, v24 offset:{T16}
    ds_write_b16 v18, v26 offset:{T16}
    ds_write_b16_d16_hi v19, v26 offset:{T16}
    L_kg_stage2:
    v_lshlrev_b32 v12, 4, v0
    v_sub_u32 v13, 4094, v12
    """)
    for e in range(8): k(f"v_subrev_u32 v{40+e}, {2*e}, v13")
    for e in range(8): k(f"v_cvt_f32_u32 v{40+e}, v{40+e}")
    for e in range(0, 8, 2): k(f"v_cvt_pk_bf16_f32 v{48+e}, v{40+e}, v{41+e}")
    for e in range(0, 8, 2):
        k(f"v_and_b32 v{49+e}, 0xffff0000, v{48+e}")
        k(f"v_lshlrev_b32 v{48+e}, 16, v{48+e}")
    for e in range(8): k(f"v_cvt_u32_f32 v{48+e}, v{48+e}")
    for e in range(8): k(f"v_add_u32 v{48+e}, s34, v{48+e}")
    k("s_waitcnt lgkmcnt(0)")
    stamp(k, 5)
    k("s_barrier")
    stamp(k, 6)
    for e in range(8): k(f"ds_read_u16 v{24+e}, v{48+e} offset:{T16}")
    k(f"""
    s_mul_i32 s5, s2, {KGP}
    s_add_u32 s5, s5, {KG}
    s_add_u32 s18, s18, s5
    s_addc_u32 s19, s19, 0
    v_mov_b32 v44, 0
    v_mov_b32 v45, 0
    v_mov_b32 v46, 0
    v_mov_b32 v47, 0
    s_waitcnt lgkmcnt(0)
    v_lshl_or_b32 v40, v25, 16, v24
    v_lshl_or_b32 v41, v27, 16, v26
    v_lshl_or_b32 v42, v29, 16, v28
    v_lshl_or_b32 v43, v31, 16, v30
    global_store_dwordx4 v12, v[40:43], s[18:19]
    v_cmp_gt_u32 vcc, 2, v0
    s_and_saveexec_b64 s[6:7], vcc
    s_cbranch_execz L_k0_end
    v_add_u32 v12, 4096, v12
    global_store_dwordx4 v12, v[44:47], s[18:19]
    s_branch L_k0_end
    """)
    k.label("L_k0_other")
    k(f"""
    s_load_dwordx2 s[20:21], s[0:1], 0
    s_load_dwordx4 s[24:27], s[0:1], 64
    s_load_dwordx2 s[28:29], s[0:1], 80
    s_setprio 3
    s_cmp_ge_u32 s2, {NT}
    s_cbranch_scc1 L_k0_w
    """)
    k(f"""
    v_lshrrev_b32 v3, 3, v0
    v_and_b32 v4, 7, v0
    s_lshl_b32 s4, s2, 16
    v_lshlrev_b32 v5, 10, v3
    v_lshl_add_u32 v5, v4, 4, v5
    v_add_u32 v5, s4, v5
    s_waitcnt lgkmcnt(0)
    """)
    for c in range(8): k(f"global_load_dwordx4 v[{16+4*c}:{19+4*c}], v5, s[20:21] offset:{128*c}")
    k(f"""
    v_mul_u32_u24 v6, {TP}, v3
    v_lshl_add_u32 v6, v4, 4, v6
    v_mov_b32 v8, 0
    v_mov_b32 v9, 0
    v_mov_b32 v10, 0
    v_mov_b32 v11, 0
    v_mov_b32 v7, 0x3f803f80
    """)
    for c in range(8):
        k(f"s_waitcnt vmcnt({7-c})")
        k(f"ds_write_b128 v6, v[{16+4*c}:{19+4*c}] offset:{128*c}")
    k("s_waitcnt lgkmcnt(0)")
    k("s_barrier")
    k(f"""
    v_lshrrev_b32 v12, 4, v1
    v_and_b32 v13, 15, v1
    v_lshrrev_b32 v5, 2, v13
    v_lshl_add_u32 v5, v12, 3, v5
    v_mul_u32_u24 v5, {TP}, v5
    v_and_b32 v6, 3, v13
    v_lshl_add_u32 v5, v6, 3, v5
    s_lshl_b32 s4, s3, 7
    v_add_u32 v5, s4, v5
    """)
    for t in range(8):
        b, h = t >> 1, t & 1
        if t == 7: k("s_waitcnt lgkmcnt(12)")
        k(f"ds_read_b64_tr_b16 v[{48+4*t}:{49+4*t}], v5 offset:{32*b + 32*h*TP}")
        k(f"ds_read_b64_tr_b16 v[{50+4*t}:{51+4*t}], v5 offset:{32*b + (32*h+4)*TP}")
    k(f"""
    s_lshl_b32 s4, s3, 18
    s_lshl_b32 s5, s2, 7
    s_add_u32 s4, s4, s5
    s_add_u32 s4, s4, {XT0}
    v_lshlrev_b32 v6, 12, v13
    v_lshl_add_u32 v6, v12, 4, v6
    v_add_u32 v6, s4, v6
    """)
    for t in range(8):
        b, h = t >> 1, t & 1
        k(f"s_waitcnt lgkmcnt({14-2*t})")
        k(f"global_store_dwordx4 v6, v[{48+4*t}:{51+4*t}], s[18:19] offset:{64*h}")
        if h and b < 3: k(f"v_add_u32 v6, 0x10000, v6")
    for c in range(8):
        for j in range(4):
            r = 16+4*c+j
            k(f"v_dot2_f32_bf16 v{8+(j&1)}, v{r}, v7, v{8+(j&1)}")
            k(f"v_dot2_f32_bf16 v{10+(j&1)}, v{r}, v{r}, v{10+(j&1)}")
    k(f"""
    s_nop 2
    v_add_f32 v8, v8, v9
    v_add_f32 v9, v10, v11
    s_nop 1
    v_add_f32 v8, v8, v8 quad_perm:[1,0,3,2] row_mask:0xf bank_mask:0xf
    v_add_f32 v9, v9, v9 quad_perm:[1,0,3,2] row_mask:0xf bank_mask:0xf
    s_nop 1
    v_add_f32 v8, v8, v8 quad_perm:[2,3,0,1] row_mask:0xf bank_mask:0xf
    v_add_f32 v9, v9, v9 quad_perm:[2,3,0,1] row_mask:0xf bank_mask:0xf
    s_nop 1
    v_add_f32 v8, v8, v8 row_half_mirror row_mask:0xf bank_mask:0xf
    v_add_f32 v9, v9, v9 row_half_mirror row_mask:0xf bank_mask:0xf
    s_lshl_b32 s4, s2, 9
    s_add_u32 s4, s4, {ST1}
    v_lshlrev_b32 v12, 3, v3
    v_add_u32 v12, s4, v12
    v_mov_b32 v10, 0
    v_mov_b32 v11, 0
    v_cmp_eq_u32 vcc, 0, v4
    s_and_saveexec_b64 s[6:7], vcc
    global_store_dwordx2 v12, v[8:9], s[18:19]
    v_add_u32 v12, {ST3-ST1}, v12
    global_store_dwordx2 v12, v[10:11], s[18:19]
    v_add_u32 v12, {FCG1-ST3}, v12
    global_store_dwordx2 v12, v[10:11], s[18:19]
    v_add_u32 v12, {FCG2-FCG1}, v12
    global_store_dwordx2 v12, v[10:11], s[18:19]
    s_branch L_k0_end
    """)
    k.label("L_k0_w")
    k(f"""
    s_sub_u32 s2, s2, {NT}
    s_cmp_ge_u32 s2, {NWGU}
    s_cbranch_scc1 L_k0_wd
    s_mov_b32 s38, {D*F*2}
    s_mov_b32 s39, 0x00020000
    s_mov_b32 s42, {D*F*2}
    s_mov_b32 s43, 0x00020000
    v_lshrrev_b32 v3, 2, v1
    v_and_b32 v4, 3, v1
    v_mul_u32_u24 v3, {F*2}, v3
    v_lshl_add_u32 v3, v4, 4, v3
    s_mul_i32 s6, s3, {64*F*2}
    s_lshl_b32 s7, s2, 6
    s_add_u32 s6, s6, s7
    s_lshl_b32 s7, s3, 13
    s_waitcnt lgkmcnt(0)
    s_mov_b32 s36, s24
    s_mov_b32 s37, s25
    s_mov_b32 s40, s26
    s_mov_b32 s41, s27
    """)
    for t in range(4):
        k(f"s_mov_b32 m0, s7")
        k(f"s_add_u32 s7, s7, 1024")
        k(f"buffer_load_dwordx4 v3, s[36:39], s6 offen lds")
        k(f"s_mov_b32 m0, s7")
        k(f"s_add_u32 s7, s7, 1024")
        k(f"buffer_load_dwordx4 v3, s[40:43], s6 offen lds")
        k(f"s_add_u32 s6, s6, {16*F*2}")
    k(f"""
    v_lshrrev_b32 v3, 5, v1
    v_and_b32 v4, 15, v1
    v_lshrrev_b32 v5, 2, v4
    v_lshl_add_u32 v5, v3, 3, v5
    v_lshlrev_b32 v5, 6, v5
    v_and_b32 v6, 3, v4
    v_lshl_add_u32 v5, v6, 3, v5
    v_and_b32 v6, 16, v1
    v_lshl_add_u32 v5, v6, 6, v5
    s_lshl_b32 s7, s3, 13
    v_add_u32 v5, s7, v5
    v_mov_b32 v8, 0
    v_mov_b32 v9, 0
    v_mov_b32 v7, 0x3f803f80
    s_lshl_b32 s6, s2, 16
    s_lshl_b32 s7, s3, 12
    s_add_u32 s6, s6, s7
    s_add_u32 s6, s6, {WGU}
    v_lshl_add_u32 v6, v1, 4, s6
    v_add_u32 v11, 0x8000, v6
    s_waitcnt vmcnt(0)
    """)
    for t in range(8):
        ks, hf = t >> 1, t & 1
        if t == 7: k("s_waitcnt lgkmcnt(12)")
        k(f"ds_read_b64_tr_b16 v[{16+4*t}:{17+4*t}], v5 offset:{2048*ks + 32*hf}")
        k(f"ds_read_b64_tr_b16 v[{18+4*t}:{19+4*t}], v5 offset:{2048*ks + 32*hf + 256}")
    for t in range(8):
        ks, hf = t >> 1, t & 1
        k(f"s_waitcnt lgkmcnt({14-2*t})")
        k(f"global_store_dwordx4 v{11 if hf else 6}, v[{16+4*t}:{19+4*t}], s[18:19] offset:{1024*ks}")
    for t in range(8):
        for j in range(4): k(f"v_dot2_f32_bf16 v{8+(t&1)}, v{16+4*t+j}, v7, v{8+(t&1)}")
    k(f"""
    s_lshl_b32 s7, s3, 9
    s_add_u32 s7, s7, 65536
    v_lshl_add_u32 v10, v1, 2, s7
    s_nop 1
    ds_write_b32 v10, v8
    ds_write_b32 v10, v9 offset:256
    s_waitcnt lgkmcnt(0)
    s_barrier
    s_cmp_lg_u32 s3, 0
    s_cbranch_scc1 L_k0_end
    v_and_b32 v10, 16, v1
    v_lshlrev_b32 v10, 4, v10
    v_lshl_add_u32 v10, v3, 6, v10
    v_lshl_add_u32 v10, v4, 2, v10
    v_add_u32 v10, 65536, v10
    """)
    for j in range(16):
        if j == 14: k("s_waitcnt lgkmcnt(12)")
        k(f"ds_read_b32 v{16+j}, v10 offset:{512*(j>>1)+128*(j&1)}")
    k(f"""
    s_lshl_b32 s6, s2, 7
    s_add_u32 s6, s6, {CS}
    v_mul_u32_u24 v10, {CSP}, v3
    v_and_b32 v11, 31, v1
    v_lshl_add_u32 v10, v11, 2, v10
    v_add_u32 v10, s6, v10
    s_waitcnt lgkmcnt(0)
    """)
    for st in (1, 2, 4, 8):
        for j in range(0, 16, 2*st): k(f"v_add_f32 v{16+j}, v{16+j}, v{16+j+st}")
    k("""
    global_store_dword v10, v16, s[18:19]
    s_branch L_k0_end
    """)
    k.label("L_k0_wd")
    k(f"""
    s_sub_u32 s2, s2, {NWGU}
    s_mov_b32 s38, {D*F*2}
    s_mov_b32 s39, 0x00020000
    v_lshlrev_b32 v3, 4, v1
    s_lshl_b32 s6, s2, 16
    s_lshl_b32 s7, s3, 13
    s_add_u32 s6, s6, s7
    s_mul_i32 s7, s3, {8*TP}
    s_waitcnt lgkmcnt(0)
    s_mov_b32 s36, s28
    s_mov_b32 s37, s29
    """)
    for t in range(8):
        k(f"s_mov_b32 m0, s7")
        k(f"s_add_u32 s7, s7, {TP}")
        k(f"buffer_load_dwordx4 v3, s[36:39], s6 offen lds")
        k(f"s_add_u32 s6, s6, 1024")
    k(f"""
    v_lshrrev_b32 v3, 5, v1
    v_and_b32 v4, 15, v1
    v_lshrrev_b32 v5, 2, v4
    v_lshl_add_u32 v5, v3, 2, v5
    v_mul_u32_u24 v5, {TP}, v5
    v_and_b32 v6, 3, v4
    v_lshl_add_u32 v5, v6, 3, v5
    v_and_b32 v6, 16, v1
    v_lshl_add_u32 v5, v6, 1, v5
    s_lshl_b32 s7, s3, 7
    v_add_u32 v5, s7, v5
    s_mul_i32 s6, s3, {2*86*1024}
    s_lshl_b32 s7, s2, 12
    s_add_u32 s6, s6, s7
    s_add_u32 s6, s6, {WD}
    v_lshl_add_u32 v6, v1, 4, s6
    v_add_u32 v7, {86*1024}, v6
    s_waitcnt vmcnt(0)
    s_barrier
    """)
    for t in range(8):
        s_, b = t >> 1, t & 1
        if t == 7: k("s_waitcnt lgkmcnt(12)")
        k(f"ds_read_b64_tr_b16 v[{16+4*t}:{17+4*t}], v5 offset:{64*b + 16*s_*TP}")
        k(f"ds_read_b64_tr_b16 v[{18+4*t}:{19+4*t}], v5 offset:{64*b + (16*s_+8)*TP}")
    for t in range(8):
        s_, b = t >> 1, t & 1
        if t == 4:
            k(f"s_cmp_eq_u32 s2, {NWD-1}")
            k("s_cbranch_scc1 L_k0_end")
        k(f"s_waitcnt lgkmcnt({14-2*t})")
        k(f"global_store_dwordx4 v{6+b}, v[{16+4*t}:{19+4*t}], s[18:19] offset:{1024*s_}")
    k.label("L_k0_end")
    if asmlib.STAMPS:
        for i in range(7, 10): stamp(k, i)
        k("s_mov_b32 s2, s59")
        k("s_load_dwordx2 s[18:19], s[0:1], 104")
        k("s_mov_b64 exec, -1")
        k("s_getreg_b32 s3, hwreg(HW_REG_HW_ID, 0, 3)")
        stamp_flush(k, 0, 10, 3)
    k("s_endpgm")
    return k
```

```python
import sys, os
import asmlib
asmlib.STAMPS = bool(os.environ.get('STAMPS'))
from gen_k0 import *
from gen_conv import *
from gen_gu import *
from gen_down import *
def build(extra_empty=0):
    p = Prog()
    p.add_kernel(gen_k0())
    p.add_kernel(gen_conv('conv1_kernel', XT0, XT1, ST1, 1))
    p.add_kernel(gen_gu('gu1_kernel', XT1, FCG1, 2))
    p.add_kernel(gen_down('dn1_kernel', XT1, XT2, False, 3))
    p.add_kernel(gen_conv('conv2_kernel', XT2, XT3, ST3, 4))
    p.add_kernel(gen_gu('gu2_kernel', XT3, FCG2, 5))
    p.add_kernel(gen_down('dn2_kernel', XT3, 0, True, 6))
    p.launch('k0_kernel', K0_GRID, 512, K0_LDS)
    p.launch('conv1_kernel', CONV_GRID, 512, CONV_LDS)
    p.launch('gu1_kernel', GU_GRID, 512, GU_LDS)
    p.launch('dn1_kernel', DN_GRID, 256, DN_LDS)
    p.launch('conv2_kernel', CONV_GRID, 512, CONV_LDS)
    p.launch('gu2_kernel', GU_GRID, 512, GU_LDS)
    p.launch('dn2_kernel', DN_GRID, 256, DN_LDS)
    if extra_empty:
        e = Kernel('empty_kernel', vgpr=8, sgpr=16); e("s_endpgm"); p.add_kernel(e)
        for i in range(extra_empty): p.launch('empty_kernel', 256, 64, 0)
    return p.text()
if __name__ == '__main__':
    out = sys.argv[1] if len(sys.argv) > 1 else 'all.s'
    ne = int(sys.argv[2]) if len(sys.argv) > 2 else 0
    open(out,'w').write(build(ne))
```

```python
HDR = open('interleave_layers__ssm_conv_s4d__glu_gated_glu__prompt.s.ref').read().split('; Override launch')[0]

class Prog:
    def __init__(self):
        self.launches = []
        self.kernels = []
    def add_kernel(self, k): self.kernels.append(k)
    def launch(self, name, grid, block, lds=0):
        self.launches.append((name, grid, block, lds))
    def text(self):
        o = HDR
        for (n, g, b, l) in self.launches:
            o += f"; @launch kernel={n} grid=({g},1,1) block=({b},1,1) lds={l}\n"
        o += '.amdgcn_target "amdgcn-amd-amdhsa--gfx950"\n.text\n'
        for k in self.kernels:
            o += f".globl {k.name}\n.p2align 8\n.type {k.name},@function\n{k.name}:\n"
            o += "\n".join(k.lines) + "\n"
        o += '.section .rodata,"a"\n'
        for k in self.kernels:
            if k.no_desc: continue
            o += f""".p2align 6
.amdhsa_kernel {k.name}
  .amdhsa_next_free_vgpr {k.nfv}
  .amdhsa_next_free_sgpr {k.nfs}
  .amdhsa_accum_offset {k.accum}
  .amdhsa_group_segment_fixed_size 0
  .amdhsa_kernarg_size 112
  .amdhsa_user_sgpr_count 2
  .amdhsa_user_sgpr_kernarg_segment_ptr 1
  .amdhsa_system_sgpr_workgroup_id_x 1
.end_amdhsa_kernel
"""
        return o

class Kernel:
    def __init__(self, name, vgpr=128, agpr=0, sgpr=96):
        self.name = name; self.lines = []; self.no_desc = False
        self.set_regs(vgpr, agpr, sgpr)
        self._lab = 0
    def set_regs(self, vgpr, agpr=0, sgpr=96):
        self.accum = (vgpr + 3)//4*4
        self.nfv = self.accum + agpr if agpr else vgpr
        self.nfs = sgpr
    def __call__(self, s):
        for l in s.strip('\n').split('\n'):
            l = l.strip()
            if l: self.lines.append('    ' + l)
    def label(self, l): self.lines.append(l + ':')
    def newlabel(self, p='L'):
        self._lab += 1
        return f"{p}_{self.name}_{self._lab}"
    def c(self, s): self.lines.append('    ; ' + s)
    def srd(self, d, b, size, off=0):
        if off:
            self(f"s_add_u32 s{d}, s{b}, {off}")
            self(f"s_addc_u32 s{d+1}, s{b+1}, 0")
        else:
            self(f"s_mov_b32 s{d}, s{b}")
            self(f"s_mov_b32 s{d+1}, s{b+1}")
        self(f"s_mov_b32 s{d+2}, {size}")
        self(f"s_mov_b32 s{d+3}, 0x00020000")

def vr(a, n=1): return f"v{a}" if n == 1 else f"v[{a}:{a+n-1}]"
def ar(a, n=1): return f"a{a}" if n == 1 else f"a[{a}:{a+n-1}]"
def sr(a, n=1): return f"s{a}" if n == 1 else f"s[{a}:{a+n-1}]"

class Q:
    def __init__(self, k, name, maxn):
        self.k = k; self.name = name; self.maxn = maxn
        self.n = 0
        self.tags = {}
        self.done = 0
    def issue(self, instr, *tags):
        if self.n - self.done >= self.maxn:
            self.wait_idx(self.n - self.maxn + 1)
        self.k(instr); self.n += 1
        for t in tags: self.tags[t] = self.n
    def wait_idx(self, idx):
        if idx <= self.done: return
        N = min(self.n - idx, self.maxn)
        self.k(f"s_waitcnt {self.name}({N})")
        self.done = self.n - N
    def need(self, *tags):
        idx = max(self.tags[t] for t in tags)
        self.wait_idx(idx)
    def drain(self): self.wait_idx(self.n)
    def reset(self):
        self.done = self.n

STAMPS = False
STAMP_BASE = 32 << 20
def stamp(k, i):
    if STAMPS:
        k(f"s_memtime s[{64+2*i}:{65+2*i}]")
        if i == 0: k("s_memrealtime s[62:63]")
def stamp_flush(k, slot, n, swave, ws_lo=18):
    if not STAMPS: return
    k(f"s_memrealtime s[{64+2*n}:{65+2*n}]")
    k("s_waitcnt lgkmcnt(0)")
    k("s_mov_b64 exec, -1")
    k("v_mov_b32 v1, 0")
    for i in range(n+1):
        k(f"v_writelane_b32 v1, s{64+2*i}, {i}")
    k(f"v_writelane_b32 v1, s62, {n+1}")
    k(f"s_lshl_b32 s60, s2, 3")
    k(f"s_add_u32 s60, s60, s{swave}")
    k(f"s_lshl_b32 s60, s60, 6")
    if isinstance(slot, str):
        k(f"s_lshl_b32 s61, {slot}, 20")
        k(f"s_add_u32 s60, s60, s61")
        k(f"s_add_u32 s60, s60, {STAMP_BASE}")
    else: k(f"s_add_u32 s60, s60, {STAMP_BASE + slot*(1<<20)}")
    k(f"v_mbcnt_lo_u32_b32 v2, -1, 0")
    k(f"v_mbcnt_hi_u32_b32 v2, -1, v2")
    k(f"v_lshlrev_b32 v2, 2, v2")
    k(f"v_add_u32 v2, s60, v2")
    k(f"s_mov_b64 exec, 0xffff")
    k(f"global_store_dword v2, v1, s[{ws_lo}:{ws_lo+1}]")


def make_stub(name, body_kernel, sets):
    k = Kernel(name)
    k.accum, k.nfv, k.nfs = body_kernel.accum, body_kernel.nfv, body_kernel.nfs
    for r, v in sets.items(): k(f"s_mov_b32 s{r}, {v}")
    k(f"s_branch L_{body_kernel.name}_body")
    return k
def body_entry(k, sets):
    for r, v in sets.items(): k(f"s_mov_b32 s{r}, {v}")
    k.label(f"L_{k.name}_body")
```

```python
import asmlib, os
from asmlib import *
from layout import *
from gen_k0 import f32hex, LOG2E
EXP = os.environ.get('GUEXP', '')

GU_GRID = 256
NPROD = 14; PCH = 19
XP = 192
FLG = 98304 + 6144
FCT = FLG + 64
GU_LDS = FCT + 3072
NPH = 8; UPP = 4
RING = 8

def gen_gu(name, XIN, FCG, slot=0):
    k = Kernel(name, vgpr=192, sgpr=100)
    body_entry(k, {40: XIN, 41: FCG, 44: slot})
    XIN, FCG, slot = 's40', 's41', 's44'
    stamp(k, 0)
    E = f"L_{name}_end"
    N = name
    ACC = 16; XF = 64; W = 112; CSV = 144; FC = 160
    k(f"""
    s_cmp_ge_u32 s2, {GU_GRID}
    s_cbranch_scc1 {E}
    s_load_dwordx4 s[16:19], s[0:1], 96
    v_and_b32 v1, 63, v0
    v_lshrrev_b32 v2, 6, v0
    v_lshlrev_b32 v3, 4, v1
    v_readfirstlane_b32 s3, v2
    s_cmp_lt_u32 s2, {NPROD}
    s_cbranch_scc1 L_{N}_prod
    s_and_b32 s4, s2, 7
    s_lshr_b32 s5, s2, 3
    s_mul_i32 s7, s4, 30
    s_add_u32 s7, s7, s5
    s_sub_u32 s7, s7, 2
    s_cmp_ge_u32 s4, 6
    s_cselect_b32 s5, 1, 0
    s_add_u32 s7, s7, s5
    s_cmp_eq_u32 s4, 7
    s_cselect_b32 s5, 1, 0
    s_add_u32 s7, s7, s5
    s_cmp_ge_u32 s7, 176
    s_cbranch_scc1 L_{N}_b2
    s_cmp_ge_u32 s7, 88
    s_cselect_b32 s6, 88, 0
    s_cselect_b32 s5, 4, 0
    s_sub_u32 s7, s7, s6
    s_lshr_b32 s4, s7, 2
    s_and_b32 s7, s7, 3
    s_add_u32 s5, s5, s7
    s_branch L_{N}_b3
    L_{N}_b2:
    s_sub_u32 s7, s7, 176
    s_mul_i32 s4, s7, 171
    s_lshr_b32 s4, s4, 9
    s_mul_i32 s5, s4, 3
    s_sub_u32 s5, s7, s5
    s_add_u32 s5, s5, 8
    L_{N}_b3:
    s_lshl_b32 s6, s5, 3
    s_add_u32 s6, s6, s3
    s_lshl_b32 s14, s6, 15
    s_add_u32 s14, s14, {WGU}
    s_mov_b32 s10, {WS_USED}
    s_mov_b32 s11, 0x00020000
    s_mov_b32 s22, {WS_USED}
    s_mov_b32 s23, 0x00020000
    v_mov_b32 v4, {FLG}
    v_mov_b32 v8, 0
    v_mov_b32 v9, 0
    v_mov_b32 v10, 0
    v_mov_b32 v11, 0
    ds_write_b128 v4, v[8:11]
    ds_write_b128 v4, v[8:11] offset:16
    v_lshrrev_b32 v7, 5, v1
    v_and_b32 v6, 15, v1
    v_lshrrev_b32 v5, 2, v6
    v_lshl_add_u32 v5, v7, 3, v5
    v_mul_u32_u24 v5, {XP}, v5
    v_and_b32 v8, 3, v6
    v_lshl_add_u32 v5, v8, 3, v5
    v_and_b32 v8, 16, v1
    v_lshl_add_u32 v5, v8, 1, v5
    s_mov_b32 s28, 0
    """)
    for i in range(3):
        k(f"""
        v_add_u32 v8, {64*i}, v1
        v_mul_u32_u24 v9, 0xaaab, v8
        v_lshrrev_b32 v9, 19, v9
        v_mul_u32_u24 v10, 12, v9
        v_sub_u32 v10, v8, v10
        v_lshlrev_b32 v10, 4, v10
        v_lshl_add_u32 v{12+i}, v9, 12, v10
        """)
    k(f"""
    s_and_b32 s15, s3, 3
    s_mul_i32 s12, s4, 192
    s_lshl_b32 s13, s15, 16
    s_add_u32 s12, s12, s13
    s_add_u32 s12, s12, {XIN}
    s_mul_i32 s13, s15, 3072
    s_lshl_b32 s15, s15, 2
    v_add_u32 v9, s15, v4
    s_waitcnt lgkmcnt(0)
    s_mov_b32 s8, s18
    s_mov_b32 s9, s19
    s_mov_b32 s20, s18
    s_mov_b32 s21, s19
    s_cmp_lt_u32 s3, 4
    s_cbranch_scc1 L_{N}_main
    """)
    def wring():
        k(f"""
        v_lshlrev_b32 v10, 4, v7
        s_lshl_b32 s24, s6, 6
        s_add_u32 s24, s24, {CS}
        """)
        for m in range(2):
            for q in range(2):
                j = 2*m + q
                k(f"buffer_load_dwordx4 v[{CSV+4*j}:{CSV+4*j+3}], v10, s[8:11], s24 offen offset:{32*q}")
            k(f"s_add_u32 s24, s24, {CSP}")
        for j in range(RING-1):
            k(f"buffer_load_dwordx4 v[{W+4*j}:{W+4*j+3}], v3, s[20:23], s14 offen offset:{1024*(j&3)}")
            if j & 3 == 3: k("s_add_u32 s14, s14, 4096")
    def unit(p):
        for i in range(3):
            k(f"s_add_u32 m0, s13, {p*12288 + i*1024}")
            if i == 0 and p > 0: k(f"s_add_u32 s12, s12, {4*65536}")
            else: k("s_nop 0")
            k(f"buffer_load_dwordx4 v{12+i}, s[8:11], s12 offen lds")
    DEP = 4
    for p in range(DEP): unit(p)
    k("s_barrier")
    issued = DEP; extra = 0
    for p in range(NPH):
        k(f"v_mov_b32 v8, {p+1}")
        k(f"s_waitcnt vmcnt({3*(issued-p-1) + extra})")
        k("ds_write_b32 v9, v8")
        if issued < NPH: unit(issued); issued += 1
        elif extra == 0: wring(); extra = RING + 3
    k(f"s_branch L_{N}_main2")
    def poll(need, tag):
        k(f"""
        s_cmp_ge_u32 s28, {need}
        s_cbranch_scc1 L_{N}_pd{tag}
        L_{N}_pl{tag}:
        ds_read_b128 v[8:11], v4
        s_waitcnt lgkmcnt(0)
        v_min_u32 v8, v8, v9
        v_min3_u32 v8, v8, v10, v11
        s_nop 0
        v_readfirstlane_b32 s28, v8
        s_cmp_ge_u32 s28, {need}
        s_cbranch_scc0 L_{N}_pl{tag}
        L_{N}_pd{tag}:
        """)
    k.label(f"L_{N}_main")
    wring()
    k("s_barrier")
    k.label(f"L_{N}_main2")
    stamp(k, 1)
    for r in range(48): k(f"v_mov_b32 v{ACC+r}, 0")
    k("v_mov_b32 v12, v5")
    k("s_mov_b32 s13, 1")
    poll("s13", "a")
    stamp(k, 2)
    def xr(buf, lb, h, off): k(f"ds_read_b64_tr_b16 v[{XF+12*buf+4*lb+2*h}:{XF+12*buf+4*lb+2*h+1}], v12 offset:{off+64*lb+768*h}")
    for st in range(2):
        for lb in range(3): xr(st, lb, 0, 3072*st); xr(st, lb, 1, 3072*st)
    k("s_mov_b32 s15, 0")
    k.lines.append(".p2align 3")
    k.label(f"L_{N}_loop")
    for j in range(RING):
        if j % UPP == UPP-2:
            k("s_add_u32 s13, s13, 1")
            k(f"s_min_u32 s13, s13, {NPH}")
            poll("s13", f"m{j}")
        k(f"s_waitcnt vmcnt({RING-2})")
        for lb in range(3):
            k(f"s_waitcnt lgkmcnt(10)")
            a = ACC+16*lb; x = XF+12*(j&3)+4*lb
            k(f"v_mfma_f32_32x32x16_bf16 v[{a}:{a+15}], v[{W+4*j}:{W+4*j+3}], v[{x}:{x+3}], v[{a}:{a+15}]")
            xr((j+2)&3, lb, 0, 3072*(j+2)); xr((j+2)&3, lb, 1, 3072*(j+2))
        jj = (j-1) % RING
        k(f"buffer_load_dwordx4 v[{W+4*jj}:{W+4*jj+3}], v3, s[20:23], s14 offen offset:{1024*(jj&3)}")
        if jj & 3 == 3: k("s_add_u32 s14, s14, 4096")
        if j == 0:
            k(f"s_cmp_eq_u32 s15, {32//RING-1}")
            k("s_cselect_b32 s22, 0, s22")
    if asmlib.STAMPS:
        for i in range(3):
            k(f"s_cmp_lg_u32 s15, {i}")
            k(f"s_cbranch_scc1 L_{N}_st{i}")
            stamp(k, 6+i)
            k.label(f"L_{N}_st{i}")
    k(f"""
    v_add_u32 v12, {3072*RING}, v12
    s_add_u32 s15, s15, 1
    s_cmp_lt_u32 s15, {32//RING}
    s_cbranch_scc1 L_{N}_loop
    """)
    stamp(k, 3)
    k(f"""
    s_cmp_ge_u32 s6, 86
    s_cbranch_scc1 {E}
    """)
    k(f"""
    v_and_b32 v9, 31, v1
    s_cmp_ge_u32 s3, 3
    s_cbranch_scc1 L_{N}_fl
    s_mul_i32 s15, s4, 3
    s_add_u32 s15, s15, s3
    s_min_u32 s15, s15, 63
    s_lshl_b32 s15, s15, 8
    s_add_u32 s15, s15, {FCG}
    v_lshlrev_b32 v8, 3, v9
    s_mov_b32 s26, {f32hex(-LOG2E)}
    L_{N}_gp:
    buffer_load_dwordx2 v[12:13], v8, s[8:11], s15 offen sc1
    s_waitcnt vmcnt(0)
    v_cmp_ne_u32 vcc, 1, v13
    s_cmp_eq_u64 vcc, 0
    s_cbranch_scc1 L_{N}_gd
    s_sleep 6
    s_branch L_{N}_gp
    L_{N}_gd:
    v_and_b32 v14, 0xffff0000, v12
    v_lshlrev_b32 v12, 16, v12
    v_rcp_f32 v13, v14
    s_lshl_b32 s15, s3, 10
    s_add_u32 s15, s15, {FCT}
    v_lshl_add_u32 v8, v9, 5, s15
    s_lshl_b32 s15, s3, 2
    v_add_u32 v11, s15, v4
    v_sub_f32 v{FC}, 0, v12
    v_sub_f32 v{FC+1}, 0, v12
    v_mul_f32 v{FC+2}, s26, v13
    v_mul_f32 v{FC+3}, s26, v13
    v_mov_b32 v15, v14
    v_mov_b32 v12, 1
    ds_write_b128 v8, v[{FC}:{FC+3}]
    ds_write_b64 v8, v[14:15] offset:16
    ds_write_b32 v11, v12 offset:16
    L_{N}_fl:
    ds_read_b128 v[12:15], v4 offset:16
    s_waitcnt lgkmcnt(0)
    v_and_b32 v13, v13, v14
    v_and_b32 v13, v13, v12
    s_nop 0
    v_readfirstlane_b32 s15, v13
    s_cmp_eq_u32 s15, 1
    s_cbranch_scc1 L_{N}_fd
    s_sleep 4
    s_branch L_{N}_fl
    L_{N}_fd:
    v_lshlrev_b32 v9, 5, v9
    v_add_u32 v9, {FCT}, v9
    """)
    for lb in range(3):
        k(f"ds_read_b128 v[{FC+6*lb}:{FC+6*lb+3}], v9 offset:{1024*lb}")
        k(f"ds_read_b64 v[{FC+6*lb+4}:{FC+6*lb+5}], v9 offset:{1024*lb+16}")
    k(f"""
    s_mul_i32 s15, s4, {3*86*1024}
    s_lshl_b32 s16, s6, 10
    s_add_u32 s15, s15, s16
    s_add_u32 s15, s15, {H}
    s_waitcnt vmcnt(0)
    """)
    stamp(k, 4)
    for lb in range(3):
        k(f"s_waitcnt lgkmcnt({4-2*lb})")
        g = ACC+16*lb; u = g+8; c = FC+6*lb; o = XF+4*lb
        P = lambda r: f"v[{r}:{r+1}]"
        for j in range(0, 8, 2): k(f"v_pk_fma_f32 {P(g+j)}, {P(CSV+j)}, {P(c)}, {P(g+j)}")
        for j in range(0, 8, 2): k(f"v_pk_mul_f32 {P(g+j)}, {P(g+j)}, {P(c+2)}")
        for j in range(8): k(f"v_exp_f32 v{g+j}, v{g+j}")
        for j in range(0, 8, 2): k(f"v_pk_fma_f32 {P(u+j)}, {P(CSV+8+j)}, {P(c)}, {P(u+j)}")
        for j in range(0, 8, 2): k(f"v_pk_fma_f32 {P(g+j)}, {P(g+j)}, {P(c+4)}, {P(c+4)}")
        for j in range(8): k(f"v_rcp_f32 v{g+j}, v{g+j}")
        k("s_nop 0")
        for j in range(0, 8, 2): k(f"v_pk_mul_f32 {P(u+j)}, {P(u+j)}, {P(g+j)}")
        for j in range(4): k(f"v_cvt_pk_bf16_f32 v{o+j}, v{u+2*j}, v{u+2*j+1}")
        k(f"buffer_store_dwordx4 v[{o}:{o+3}], v3, s[8:11], s15 offen")
        if lb == 0:
            k(f"s_cmp_eq_u32 s4, 21")
            k(f"s_cbranch_scc1 {E}")
        k(f"s_add_u32 s15, s15, {86*1024}")
    for i in (5, 9): stamp(k, i)
    stamp_flush(k, slot, 10, 3)
    k(f"s_branch {E}")
    k.label(f"L_{N}_prod")
    NIT = 22; PD = 14
    S = 16; QQ = 24; LB = 32; U = 96
    k(f"""
    v_mul_u32_u24 v4, 3450, v1
    v_lshrrev_b32 v4, 16, v4
    v_mul_u32_u24 v5, {PCH}, v4
    v_sub_u32 v5, v1, v5
    s_mul_i32 s4, s2, {PCH}
    v_add_u32 v6, s4, v5
    v_lshlrev_b32 v7, 4, v6
    v_lshl_add_u32 v7, v4, 12, v7
    v_cmp_gt_u32 vcc, 3, v4
    s_movk_i32 s5, 0x100
    v_cmp_gt_u32 s[6:7], s5, v6
    s_and_b64 vcc, vcc, s[6:7]
    v_mov_b32 v8, 0x7ffffff0
    v_cndmask_b32 v7, v8, v7, vcc
    s_mul_i32 s12, s3, 12288
    s_mov_b32 s10, {2*MB}
    s_mov_b32 s11, 0x00020000
    s_mov_b32 s22, {WS_USED}
    s_mov_b32 s23, 0x00020000
    """)
    for r in range(16): k(f"v_mov_b32 v{S+r}, 0")
    k(f"""
    s_waitcnt lgkmcnt(0)
    s_add_u32 s8, s18, {XIN}
    s_addc_u32 s9, s19, 0
    s_mov_b32 s20, s18
    s_mov_b32 s21, s19
    """)
    def pl(i):
        r = LB + 4*(i % PD)
        k(f"buffer_load_dwordx4 v[{r}:{r+3}], v7, s[8:11], s12 offen")
        k(f"s_add_u32 s12, s12, {8*12288}")
    stamp(k, 1)
    for i in range(PD): pl(i)
    for i in range(NIT):
        k(f"s_waitcnt vmcnt({min(PD-1, NIT-1-i)})")
        r = LB + 4*(i % PD)
        for e in range(4):
            k(f"v_lshlrev_b32 v{U+2*e}, 16, v{r+e}")
            k(f"v_and_b32 v{U+2*e+1}, 0xffff0000, v{r+e}")
        if i + PD < NIT: pl(i+PD)
        if i in (0, 7, 14): stamp(k, {0:2, 7:3, 14:4}[i])
        for e in range(0, 8, 2):
            k(f"v_pk_add_f32 v[{S+e}:{S+e+1}], v[{S+e}:{S+e+1}], v[{U+e}:{U+e+1}]")
            k(f"v_pk_fma_f32 v[{QQ+e}:{QQ+e+1}], v[{U+e}:{U+e+1}], v[{U+e}:{U+e+1}], v[{QQ+e}:{QQ+e+1}]")
    stamp(k, 5)
    SP = PCH*64 + 16
    k(f"""
    s_mul_i32 s4, s3, 3
    v_add_u32 v8, s4, v4
    v_mul_u32_u24 v8, {SP}, v8
    v_lshl_add_u32 v8, v5, 6, v8
    v_cmp_gt_u32 vcc, 3, v4
    s_and_saveexec_b64 s[6:7], vcc
    """)
    for j in range(4): k(f"ds_write_b128 v8, v[{S+4*j}:{S+4*j+3}] offset:{16*j}")
    k(f"""
    s_mov_b64 exec, s[6:7]
    s_waitcnt lgkmcnt(0)
    """)
    stamp(k, 7)
    k("s_barrier")
    stamp(k, 8)
    k(f"""
    s_cmp_ge_u32 s3, 3
    s_cbranch_scc1 {E}
    v_lshrrev_b32 v8, 3, v0
    v_and_b32 v9, 7, v0
    v_lshlrev_b32 v8, 6, v8
    v_lshl_add_u32 v8, v9, 2, v8
    v_mov_b32 v12, 0
    v_mov_b32 v13, 0
    """)
    for b in range(4):
        for j in range(6):
            sl = 6*b + j
            k(f"ds_read_b32 v{32+2*j}, v8 offset:{sl*SP}")
            k(f"ds_read_b32 v{33+2*j}, v8 offset:{sl*SP+32}")
        for j in range(6):
            k(f"s_waitcnt lgkmcnt({10-2*j})")
            k(f"v_pk_add_f32 v[12:13], v[12:13], v[{32+2*j}:{33+2*j}]")
    stamp(k, 9)
    k(f"""
    s_mov_b32 s24, {f32hex(1.0/512)}
    s_mov_b32 s25, {f32hex(1e-5)}
    v_mul_f32 v14, s24, v12
    v_mul_f32 v16, s24, v13
    v_fma_f32 v16, -v14, v14, v16
    v_max_f32 v16, 0, v16
    v_cvt_pk_bf16_f32 v14, v14, v16
    v_and_b32 v16, 0xffff0000, v14
    v_lshlrev_b32 v14, 16, v14
    v_add_f32 v16, s25, v16
    v_cvt_pk_bf16_f32 v16, v16, v16
    v_lshlrev_b32 v16, 16, v16
    v_sqrt_f32 v16, v16
    s_mul_i32 s4, s2, {PCH*8*8}
    s_add_u32 s4, s4, {FCG}
    v_cvt_pk_bf16_f32 v20, v14, v16
    v_mov_b32 v21, 1
    v_lshlrev_b32 v8, 3, v0
    v_cmp_gt_u32 vcc, {PCH*8}, v0
    s_and_saveexec_b64 s[6:7], vcc
    buffer_store_dwordx2 v[20:21], v8, s[20:23], s4 offen sc1
    """)
    stamp(k, 6)
    stamp_flush(k, 7, 10, 3)
    k.label(E)
    k("s_endpgm")
    return k
```

```python
import asmlib
from asmlib import *
from layout import *
import struct, math
def f32hex(x): return hex(struct.unpack('<I', struct.pack('<f', x))[0])
LOG2E = 1.4426950408889634
LOG2E_HI = struct.unpack('<f', struct.pack('<f', LOG2E))[0]
LOG2E_LO = LOG2E - LOG2E_HI
LN2 = math.log(2.0)
INV2PI = 1.0/(2*math.pi)

NT, NWGU, NWD, NKG = 32, 43, 22, 256
NOTH = NT + NWGU + NWD
K0_GRID = NOTH + NKG
K0_LDS = 70*1024
TP = 1088

def interleave(a, b):
    out = []; na, nb = len(a), len(b)
    if nb == 0: return list(a)
    j = 0
    for i, x in enumerate(a):
        out.append(x)
        while j < nb and (j+1)*na <= (i+1)*nb:
            out.append(b[j]); j += 1
    out += b[j:]
    return out

def exp_bf16_pair(k, xs, t, sL, sLlo, sLn2):
    for j, x in enumerate(xs): k(f"v_mul_f32 v{t+2*j}, s{sL}, v{x}")
    for j, x in enumerate(xs): k(f"v_fma_f32 v{t+2*j+1}, v{x}, s{sL}, -v{t+2*j}")
    for j, x in enumerate(xs): k(f"v_fmac_f32 v{t+2*j+1}, s{sLlo}, v{x}")
    for j, x in enumerate(xs): k(f"v_exp_f32 v{t+2*j}, v{t+2*j}")
    for j, x in enumerate(xs): k(f"v_mul_f32 v{t+2*j+1}, s{sLn2}, v{t+2*j+1}")
    for j, x in enumerate(xs): k(f"v_fma_f32 v{t+2*j}, v{t+2*j}, v{t+2*j+1}, v{t+2*j}")
    k(f"v_cvt_pk_bf16_f32 v{t}, v{t}, v{t+2}")
    k(f"v_lshlrev_b32 v{xs[0]}, 16, v{t}")
    k(f"v_and_b32 v{xs[1]}, 0xffff0000, v{t}")

def gen_k0():
    k = Kernel('k0_kernel', vgpr=112, sgpr=100)
    stamp(k, 0)
    if asmlib.STAMPS: k('s_mov_b32 s59, s2')
    k(f"""
    s_load_dwordx8 s[8:15], s[0:1], 8
    s_load_dwordx2 s[16:17], s[0:1], 40
    s_load_dwordx2 s[18:19], s[0:1], 104
    v_and_b32 v1, 63, v0
    v_lshrrev_b32 v2, 6, v0
    s_cmp_lt_u32 s2, {NOTH}
    v_readfirstlane_b32 s3, v2
    s_cbranch_scc1 L_k0_other
    s_sub_u32 s2, s2, {NOTH}
    s_cmp_ge_u32 s2, {NKG}
    s_cbranch_scc1 L_k0_end
    """)
    CHB = 20480; PT = 2048; T16 = 2048 + 4*3072
    k(f"""
    s_lshr_b32 s4, s3, 2
    s_and_b32 s3, s3, 3
    s_lshl_b32 s2, s2, 1
    s_add_u32 s2, s2, s4
    s_mul_i32 s34, s4, {CHB}
    v_and_b32 v3, 31, v1
    s_lshl_b32 s4, s2, 7
    s_lshl_b32 s5, s3, 5
    s_add_u32 s4, s4, s5
    v_add_u32 v4, s4, v3
    v_lshlrev_b32 v4, 1, v4
    s_lshl_b32 s5, s2, 1
    v_mov_b32 v5, s5
    s_waitcnt lgkmcnt(0)
    global_load_ushort v6, v4, s[8:9]
    global_load_ushort v10, v5, s[16:17]
    global_load_ushort v7, v4, s[10:11]
    global_load_ushort v8, v4, s[12:13]
    global_load_ushort v9, v4, s[14:15]
    s_mov_b32 s30, {f32hex(LOG2E_HI)}
    s_mov_b32 s31, {f32hex(LOG2E_LO)}
    s_mov_b32 s32, {f32hex(LN2)}
    s_mov_b32 s33, {f32hex(INV2PI)}
    v_and_b32 v0, 255, v0
    v_and_b32 v11, 15, v1
    v_lshrrev_b32 v12, 3, v11
    v_lshlrev_b32 v12, 7, v12
    v_and_b32 v13, 7, v11
    v_add_u32 v12, v12, v13
    v_cvt_f32_u32 v20, v12
    v_lshrrev_b32 v12, 2, v11
    v_lshlrev_b32 v12, 7, v12
    v_and_b32 v13, 3, v11
    v_lshl_add_u32 v12, v13, 1, v12
    v_add_u32 v12, 0x100, v12
    v_subrev_u32 v13, 8, v11
    v_lshrrev_b32 v13, 1, v13
    v_lshlrev_b32 v13, 7, v13
    v_and_b32 v14, 1, v11
    v_lshl_add_u32 v13, v14, 2, v13
    v_add_u32 v13, 0x200, v13
    v_cmp_gt_u32 vcc, 8, v11
    v_lshlrev_b32 v14, 7, v11
    v_add_u32 v14, 0x400, v14
    v_cndmask_b32 v12, v13, v12, vcc
    v_cvt_f32_u32 v21, v12
    v_cvt_f32_u32 v22, v14
    v_lshlrev_b32 v14, 3, v11
    v_cvt_f32_u32 v23, v14
    s_lshl_b32 s5, s3, 9
    s_add_u32 s5, s5, s34
    v_lshl_add_u32 v2, v3, 4, s5
    v_lshrrev_b32 v3, 4, v1
    v_lshl_add_u32 v3, v3, 6, s5
    """)
    for r in range(12): k(f"v_mov_b32 v{24+r}, 0")
    stamp(k, 1)
    k("s_waitcnt vmcnt(3)")
    stamp(k, 2)
    k("v_lshlrev_b32 v6, 16, v6")
    k("v_lshlrev_b32 v10, 16, v10")
    exp_bf16_pair(k, [6, 10], 12, 30, 31, 32)
    k(f"""
    s_waitcnt vmcnt(0)
    v_lshlrev_b32 v7, 16, v7
    v_lshlrev_b32 v8, 16, v8
    v_lshlrev_b32 v9, 16, v9
    v_mul_f32 v6, v6, v10
    v_mul_f32 v7, v7, v10
    v_add_f32 v10, v10, v10
    v_mul_f32 v18, v8, v10
    v_mul_f32 v19, v9, v10
    v_mul_f32 v16, s30, v6
    v_max_f32 v12, |v18|, |v19|
    v_mul_f32 v17, s33, v7
    v_sub_f32 v16, 0, v16
    v_max_f32_dpp v12, v12, v12 row_ror:8 row_mask:0xf bank_mask:0xf
    s_nop 1
    v_max_f32_dpp v12, v12, v12 row_ror:4 row_mask:0xf bank_mask:0xf
    s_nop 1
    v_max_f32_dpp v12, v12, v12 row_ror:2 row_mask:0xf bank_mask:0xf
    s_nop 1
    v_max_f32_dpp v12, v12, v12 row_ror:1 row_mask:0xf bank_mask:0xf
    s_nop 1
    v_readlane_b32 s6, v12, 0
    v_readlane_b32 s7, v12, 16
    s_max_u32 s6, s6, s7
    s_lshr_b32 s6, s6, 23
    s_max_u32 s6, s6, 1
    s_min_u32 s6, s6, 252
    s_sub_u32 s7, 253, s6
    s_lshl_b32 s7, s7, 23
    s_add_u32 s35, s6, 1
    s_lshl_b32 s35, s35, 23
    v_mul_f32 v18, s7, v18
    v_mul_f32 v19, s7, v19
    ds_write_b128 v2, v[16:19]
    s_waitcnt lgkmcnt(0)
    """)
    for st in range(8): k(f"ds_read_b128 v[{36+4*st}:{39+4*st}], v3 offset:{256*(st>>2) + 16*(st&3)}")
    stamp(k, 3)
    for st in range(8):
        s_, t = st >> 2, st & 3
        zr, zi, cr, ci = 36+4*st, 37+4*st, 38+4*st, 39+4*st
        Fb = 80 + 16*s_ + t
        k(f"s_waitcnt lgkmcnt({7-st})")
        for c in range(4): k(f"v_mul_f32 v{68+c}, v{zr}, v{20+c}")
        for c in range(4): k(f"v_mul_f32 v{72+c}, v{zi}, v{20+c}")
        for c in range(4): k(f"v_exp_f32 v{68+c}, v{68+c}")
        for c in range(4): k(f"v_fract_f32 v{72+c}, v{72+c}")
        for c in range(4): k(f"v_cos_f32 v{76+c}, v{72+c}")
        for c in range(4): k(f"v_sin_f32 v{4+c}, v{72+c}")
        k(f"v_mul_f32 v8, v71, v{cr}")
        k(f"v_mul_f32 v9, v71, v{ci}")
        for c in range(3): k(f"v_fma_mixlo_f16 v{Fb+4*c}, v{68+c}, v{76+c}, 0")
        k(f"v_mul_f32 v10, v8, v79")
        k(f"v_mul_f32 v11, v8, v7")
        for c in range(3): k(f"v_fma_mixhi_f16 v{Fb+4*c}, v{68+c}, v{4+c}, 0")
        k(f"v_fma_mixlo_f16 v{Fb+12}, -v9, v7, v10")
        if st == 4:
            for c in range(3): k(f"v_mfma_f32_16x16x32_f16 v[{24+4*c}:{27+4*c}], v[{80+4*c}:{83+4*c}], v[92:95], v[{24+4*c}:{27+4*c}]")
        else: k("s_nop 0")
        k(f"v_fma_mixhi_f16 v{Fb+12}, -v9, v79, -v11")
    k(f"""
    s_mul_i32 s5, s3, 3072
    s_add_u32 s5, s5, s34
    s_add_u32 s5, s5, {PT}
    v_lshl_add_u32 v12, v1, 4, s5
    """)
    for c in range(3): k(f"v_mfma_f32_16x16x32_f16 v[{24+4*c}:{27+4*c}], v[{96+4*c}:{99+4*c}], v[108:111], v[{24+4*c}:{27+4*c}]")
    stamp(k, 4)
    k("s_nop 7")
    for r in range(12): k(f"v_mul_f32 v{24+r}, s35, v{24+r}")
    k(f"""
    ds_write_b128 v12, v[24:27]
    ds_write_b128 v12, v[28:31] offset:1024
    ds_write_b128 v12, v[32:35] offset:2048
    v_lshl_add_u32 v12, v0, 4, s34
    v_lshrrev_b32 v13, 4, v1
    v_and_b32 v14, 15, v1
    v_lshl_add_u32 v14, v14, 4, s34
    s_waitcnt lgkmcnt(0)
    s_barrier
    s_cmp_eq_u32 s3, 3
    s_cbranch_scc1 L_kg_stage2
    ds_read_b128 v[24:27], v12 offset:{PT}
    ds_read_b128 v[28:31], v12 offset:{PT+3072}
    ds_read_b128 v[32:35], v12 offset:{PT+2*3072}
    ds_read_b128 v[36:39], v12 offset:{PT+3*3072}
    s_cmp_eq_u32 s3, 1
    s_cbranch_scc1 L_kg_t1
    s_cmp_eq_u32 s3, 2
    s_cbranch_scc1 L_kg_t2
    v_lshrrev_b32 v15, 1, v13
    v_lshlrev_b32 v15, 8, v15
    v_and_b32 v16, 1, v13
    v_lshl_add_u32 v15, v16, 3, v15
    v_add_u32 v16, v15, v14
    v_add_u32 v17, 2, v16
    v_add_u32 v18, 4, v16
    v_add_u32 v19, 6, v16
    s_branch L_kg_w
    L_kg_t1:
    v_lshlrev_b32 v15, 8, v13
    v_add_u32 v15, 0x200, v15
    v_add_u32 v16, v15, v14
    v_add_u32 v17, 4, v16
    v_add_u32 v18, 8, v16
    v_add_u32 v19, 12, v16
    v_lshlrev_b32 v15, 9, v13
    v_add_u32 v15, v15, v14
    v_add_u32 v20, 8, v15
    v_add_u32 v21, 0x100, v15
    v_add_u32 v22, 0x108, v15
    v_cmp_gt_u32 vcc, 2, v13
    s_nop 1
    v_cndmask_b32 v16, v15, v16, vcc
    v_cndmask_b32 v17, v20, v17, vcc
    v_cndmask_b32 v18, v21, v18, vcc
    v_cndmask_b32 v19, v22, v19, vcc
    s_branch L_kg_w
    L_kg_t2:
    v_lshlrev_b32 v15, 10, v13
    v_add_u32 v15, 0x800, v15
    v_add_u32 v16, v15, v14
    v_add_u32 v17, 0x100, v16
    v_add_u32 v18, 0x200, v16
    v_add_u32 v19, 0x300, v16
    L_kg_w:
    s_waitcnt lgkmcnt(0)
    v_pk_add_f32 v[24:25], v[24:25], v[28:29]
    v_pk_add_f32 v[26:27], v[26:27], v[30:31]
    v_pk_add_f32 v[32:33], v[32:33], v[36:37]
    v_pk_add_f32 v[34:35], v[34:35], v[38:39]
    v_pk_add_f32 v[24:25], v[24:25], v[32:33]
    v_pk_add_f32 v[26:27], v[26:27], v[34:35]
    v_cvt_pk_bf16_f32 v24, v24, v25
    v_cvt_pk_bf16_f32 v26, v26, v27
    ds_write_b16 v16, v24 offset:{T16}
    ds_write_b16_d16_hi v17, v24 offset:{T16}
    ds_write_b16 v18, v26 offset:{T16}
    ds_write_b16_d16_hi v19, v26 offset:{T16}
    L_kg_stage2:
    v_lshlrev_b32 v12, 4, v0
    v_sub_u32 v13, 4094, v12
    """)
    for e in range(8): k(f"v_subrev_u32 v{40+e}, {2*e}, v13")
    for e in range(8): k(f"v_cvt_f32_u32 v{40+e}, v{40+e}")
    for e in range(0, 8, 2): k(f"v_cvt_pk_bf16_f32 v{48+e}, v{40+e}, v{41+e}")
    for e in range(0, 8, 2):
        k(f"v_and_b32 v{49+e}, 0xffff0000, v{48+e}")
        k(f"v_lshlrev_b32 v{48+e}, 16, v{48+e}")
    for e in range(8): k(f"v_cvt_u32_f32 v{48+e}, v{48+e}")
    for e in range(8): k(f"v_add_u32 v{48+e}, s34, v{48+e}")
    k("s_waitcnt lgkmcnt(0)")
    stamp(k, 5)
    k("s_barrier")
    stamp(k, 6)
    for e in range(8): k(f"ds_read_u16 v{24+e}, v{48+e} offset:{T16}")
    k(f"""
    s_mul_i32 s5, s2, {KGP}
    s_add_u32 s5, s5, {KG}
    s_add_u32 s18, s18, s5
    s_addc_u32 s19, s19, 0
    v_mov_b32 v44, 0
    v_mov_b32 v45, 0
    v_mov_b32 v46, 0
    v_mov_b32 v47, 0
    s_waitcnt lgkmcnt(0)
    v_lshl_or_b32 v40, v25, 16, v24
    v_lshl_or_b32 v41, v27, 16, v26
    v_lshl_or_b32 v42, v29, 16, v28
    v_lshl_or_b32 v43, v31, 16, v30
    global_store_dwordx4 v12, v[40:43], s[18:19]
    v_cmp_gt_u32 vcc, 2, v0
    s_and_saveexec_b64 s[6:7], vcc
    s_cbranch_execz L_k0_end
    v_add_u32 v12, 4096, v12
    global_store_dwordx4 v12, v[44:47], s[18:19]
    s_branch L_k0_end
    """)
    k.label("L_k0_other")
    k(f"""
    s_load_dwordx2 s[20:21], s[0:1], 0
    s_load_dwordx4 s[24:27], s[0:1], 64
    s_load_dwordx2 s[28:29], s[0:1], 80
    s_setprio 3
    s_cmp_ge_u32 s2, {NT}
    s_cbranch_scc1 L_k0_w
    """)
    k(f"""
    v_lshrrev_b32 v3, 3, v0
    v_and_b32 v4, 7, v0
    s_lshl_b32 s4, s2, 16
    v_lshlrev_b32 v5, 10, v3
    v_lshl_add_u32 v5, v4, 4, v5
    v_add_u32 v5, s4, v5
    s_waitcnt lgkmcnt(0)
    """)
    for c in range(8): k(f"global_load_dwordx4 v[{16+4*c}:{19+4*c}], v5, s[20:21] offset:{128*c}")
    k(f"""
    v_mul_u32_u24 v6, {TP}, v3
    v_lshl_add_u32 v6, v4, 4, v6
    v_mov_b32 v8, 0
    v_mov_b32 v9, 0
    v_mov_b32 v10, 0
    v_mov_b32 v11, 0
    v_mov_b32 v7, 0x3f803f80
    """)
    for c in range(8):
        k(f"s_waitcnt vmcnt({7-c})")
        k(f"ds_write_b128 v6, v[{16+4*c}:{19+4*c}] offset:{128*c}")
    k("s_waitcnt lgkmcnt(0)")
    k("s_barrier")
    k(f"""
    v_lshrrev_b32 v12, 4, v1
    v_and_b32 v13, 15, v1
    v_lshrrev_b32 v5, 2, v13
    v_lshl_add_u32 v5, v12, 3, v5
    v_mul_u32_u24 v5, {TP}, v5
    v_and_b32 v6, 3, v13
    v_lshl_add_u32 v5, v6, 3, v5
    s_lshl_b32 s4, s3, 7
    v_add_u32 v5, s4, v5
    """)
    for t in range(8):
        b, h = t >> 1, t & 1
        if t == 7: k("s_waitcnt lgkmcnt(12)")
        k(f"ds_read_b64_tr_b16 v[{48+4*t}:{49+4*t}], v5 offset:{32*b + 32*h*TP}")
        k(f"ds_read_b64_tr_b16 v[{50+4*t}:{51+4*t}], v5 offset:{32*b + (32*h+4)*TP}")
    k(f"""
    s_lshl_b32 s4, s3, 18
    s_lshl_b32 s5, s2, 7
    s_add_u32 s4, s4, s5
    s_add_u32 s4, s4, {XT0}
    v_lshlrev_b32 v6, 12, v13
    v_lshl_add_u32 v6, v12, 4, v6
    v_add_u32 v6, s4, v6
    """)
    for t in range(8):
        b, h = t >> 1, t & 1
        k(f"s_waitcnt lgkmcnt({14-2*t})")
        k(f"global_store_dwordx4 v6, v[{48+4*t}:{51+4*t}], s[18:19] offset:{64*h}")
        if h and b < 3: k(f"v_add_u32 v6, 0x10000, v6")
    for c in range(8):
        for j in range(4):
            r = 16+4*c+j
            k(f"v_dot2_f32_bf16 v{8+(j&1)}, v{r}, v7, v{8+(j&1)}")
            k(f"v_dot2_f32_bf16 v{10+(j&1)}, v{r}, v{r}, v{10+(j&1)}")
    k(f"""
    s_nop 2
    v_add_f32 v8, v8, v9
    v_add_f32 v9, v10, v11
    s_nop 1
    v_add_f32 v8, v8, v8 quad_perm:[1,0,3,2] row_mask:0xf bank_mask:0xf
    v_add_f32 v9, v9, v9 quad_perm:[1,0,3,2] row_mask:0xf bank_mask:0xf
    s_nop 1
    v_add_f32 v8, v8, v8 quad_perm:[2,3,0,1] row_mask:0xf bank_mask:0xf
    v_add_f32 v9, v9, v9 quad_perm:[2,3,0,1] row_mask:0xf bank_mask:0xf
    s_nop 1
    v_add_f32 v8, v8, v8 row_half_mirror row_mask:0xf bank_mask:0xf
    v_add_f32 v9, v9, v9 row_half_mirror row_mask:0xf bank_mask:0xf
    s_lshl_b32 s4, s2, 9
    s_add_u32 s4, s4, {ST1}
    v_lshlrev_b32 v12, 3, v3
    v_add_u32 v12, s4, v12
    v_mov_b32 v10, 0
    v_mov_b32 v11, 0
    v_cmp_eq_u32 vcc, 0, v4
    s_and_saveexec_b64 s[6:7], vcc
    global_store_dwordx2 v12, v[8:9], s[18:19]
    v_add_u32 v12, {ST3-ST1}, v12
    global_store_dwordx2 v12, v[10:11], s[18:19]
    v_add_u32 v12, {FCG1-ST3}, v12
    global_store_dwordx2 v12, v[10:11], s[18:19]
    v_add_u32 v12, {FCG2-FCG1}, v12
    global_store_dwordx2 v12, v[10:11], s[18:19]
    v_add_u32 v12, {HF1-FCG2}, v12
    global_store_dwordx2 v12, v[10:11], s[18:19]
    v_add_u32 v12, {HF2-HF1}, v12
    global_store_dwordx2 v12, v[10:11], s[18:19]
    s_branch L_k0_end
    """)
    k.label("L_k0_w")
    k(f"""
    s_sub_u32 s2, s2, {NT}
    s_cmp_ge_u32 s2, {NWGU}
    s_cbranch_scc1 L_k0_wd
    s_mov_b32 s38, {D*F*2}
    s_mov_b32 s39, 0x00020000
    s_mov_b32 s42, {D*F*2}
    s_mov_b32 s43, 0x00020000
    v_lshrrev_b32 v3, 2, v1
    v_and_b32 v4, 3, v1
    v_mul_u32_u24 v3, {F*2}, v3
    v_lshl_add_u32 v3, v4, 4, v3
    s_mul_i32 s6, s3, {64*F*2}
    s_lshl_b32 s7, s2, 6
    s_add_u32 s6, s6, s7
    s_lshl_b32 s7, s3, 13
    s_waitcnt lgkmcnt(0)
    s_mov_b32 s36, s24
    s_mov_b32 s37, s25
    s_mov_b32 s40, s26
    s_mov_b32 s41, s27
    """)
    for t in range(4):
        k(f"s_mov_b32 m0, s7")
        k(f"s_add_u32 s7, s7, 1024")
        k(f"buffer_load_dwordx4 v3, s[36:39], s6 offen lds")
        k(f"s_mov_b32 m0, s7")
        k(f"s_add_u32 s7, s7, 1024")
        k(f"buffer_load_dwordx4 v3, s[40:43], s6 offen lds")
        k(f"s_add_u32 s6, s6, {16*F*2}")
    k(f"""
    v_lshrrev_b32 v3, 5, v1
    v_and_b32 v4, 15, v1
    v_lshrrev_b32 v5, 2, v4
    v_lshl_add_u32 v5, v3, 3, v5
    v_lshlrev_b32 v5, 6, v5
    v_and_b32 v6, 3, v4
    v_lshl_add_u32 v5, v6, 3, v5
    v_and_b32 v6, 16, v1
    v_lshl_add_u32 v5, v6, 6, v5
    s_lshl_b32 s7, s3, 13
    v_add_u32 v5, s7, v5
    v_mov_b32 v8, 0
    v_mov_b32 v9, 0
    v_mov_b32 v7, 0x3f803f80
    s_lshl_b32 s6, s2, 16
    s_lshl_b32 s7, s3, 12
    s_add_u32 s6, s6, s7
    s_add_u32 s6, s6, {WGU}
    v_lshl_add_u32 v6, v1, 4, s6
    v_add_u32 v11, 0x8000, v6
    s_waitcnt vmcnt(0)
    """)
    for t in range(8):
        ks, hf = t >> 1, t & 1
        if t == 7: k("s_waitcnt lgkmcnt(12)")
        k(f"ds_read_b64_tr_b16 v[{16+4*t}:{17+4*t}], v5 offset:{2048*ks + 32*hf}")
        k(f"ds_read_b64_tr_b16 v[{18+4*t}:{19+4*t}], v5 offset:{2048*ks + 32*hf + 256}")
    for t in range(8):
        ks, hf = t >> 1, t & 1
        k(f"s_waitcnt lgkmcnt({14-2*t})")
        k(f"global_store_dwordx4 v{11 if hf else 6}, v[{16+4*t}:{19+4*t}], s[18:19] offset:{1024*ks}")
    for t in range(8):
        for j in range(4): k(f"v_dot2_f32_bf16 v{8+(t&1)}, v{16+4*t+j}, v7, v{8+(t&1)}")
    k(f"""
    s_lshl_b32 s7, s3, 9
    s_add_u32 s7, s7, 65536
    v_lshl_add_u32 v10, v1, 2, s7
    s_nop 1
    ds_write_b32 v10, v8
    ds_write_b32 v10, v9 offset:256
    s_waitcnt lgkmcnt(0)
    s_barrier
    s_cmp_lg_u32 s3, 0
    s_cbranch_scc1 L_k0_end
    v_and_b32 v10, 16, v1
    v_lshlrev_b32 v10, 4, v10
    v_lshl_add_u32 v10, v3, 6, v10
    v_lshl_add_u32 v10, v4, 2, v10
    v_add_u32 v10, 65536, v10
    """)
    for j in range(16):
        if j == 14: k("s_waitcnt lgkmcnt(12)")
        k(f"ds_read_b32 v{16+j}, v10 offset:{512*(j>>1)+128*(j&1)}")
    k(f"""
    s_lshl_b32 s6, s2, 7
    s_add_u32 s6, s6, {CS}
    v_mul_u32_u24 v10, {CSP}, v3
    v_and_b32 v11, 31, v1
    v_lshl_add_u32 v10, v11, 2, v10
    v_add_u32 v10, s6, v10
    s_waitcnt lgkmcnt(0)
    """)
    for st in (1, 2, 4, 8):
        for j in range(0, 16, 2*st): k(f"v_add_f32 v{16+j}, v{16+j}, v{16+j+st}")
    k("""
    global_store_dword v10, v16, s[18:19]
    s_branch L_k0_end
    """)
    k.label("L_k0_wd")
    k(f"""
    s_sub_u32 s2, s2, {NWGU}
    s_mov_b32 s38, {D*F*2}
    s_mov_b32 s39, 0x00020000
    v_lshlrev_b32 v3, 4, v1
    s_lshl_b32 s6, s2, 16
    s_lshl_b32 s7, s3, 13
    s_add_u32 s6, s6, s7
    s_mul_i32 s7, s3, {8*TP}
    s_waitcnt lgkmcnt(0)
    s_mov_b32 s36, s28
    s_mov_b32 s37, s29
    """)
    for t in range(8):
        k(f"s_mov_b32 m0, s7")
        k(f"s_add_u32 s7, s7, {TP}")
        k(f"buffer_load_dwordx4 v3, s[36:39], s6 offen lds")
        k(f"s_add_u32 s6, s6, 1024")
    k(f"""
    v_lshrrev_b32 v3, 5, v1
    v_and_b32 v4, 15, v1
    v_lshrrev_b32 v5, 2, v4
    v_lshl_add_u32 v5, v3, 2, v5
    v_mul_u32_u24 v5, {TP}, v5
    v_and_b32 v6, 3, v4
    v_lshl_add_u32 v5, v6, 3, v5
    v_and_b32 v6, 16, v1
    v_lshl_add_u32 v5, v6, 1, v5
    s_lshl_b32 s7, s3, 7
    v_add_u32 v5, s7, v5
    s_mul_i32 s6, s3, {2*86*1024}
    s_lshl_b32 s7, s2, 12
    s_add_u32 s6, s6, s7
    s_add_u32 s6, s6, {WD}
    v_lshl_add_u32 v6, v1, 4, s6
    v_add_u32 v7, {86*1024}, v6
    s_waitcnt vmcnt(0)
    s_barrier
    """)
    for t in range(8):
        s_, b = t >> 1, t & 1
        if t == 7: k("s_waitcnt lgkmcnt(12)")
        k(f"ds_read_b64_tr_b16 v[{16+4*t}:{17+4*t}], v5 offset:{64*b + 16*s_*TP}")
        k(f"ds_read_b64_tr_b16 v[{18+4*t}:{19+4*t}], v5 offset:{64*b + (16*s_+8)*TP}")
    for t in range(8):
        s_, b = t >> 1, t & 1
        if t == 4:
            k(f"s_cmp_eq_u32 s2, {NWD-1}")
            k("s_cbranch_scc1 L_k0_end")
        k(f"s_waitcnt lgkmcnt({14-2*t})")
        k(f"global_store_dwordx4 v{6+b}, v[{16+4*t}:{19+4*t}], s[18:19] offset:{1024*s_}")
    k.label("L_k0_end")
    if asmlib.STAMPS:
        for i in range(7, 10): stamp(k, i)
        k("s_mov_b32 s2, s59")
        k("s_load_dwordx2 s[18:19], s[0:1], 104")
        k("s_mov_b64 exec, -1")
        k("s_getreg_b32 s3, hwreg(HW_REG_HW_ID, 0, 3)")
        stamp_flush(k, 0, 10, 3)
    k("s_endpgm")
    return k
```

```python
import asmlib, os
from asmlib import *
from layout import *
from gen_k0 import f32hex, LOG2E
from gen_conv import unpack

MLP_GRID = 256
NPROD = 14; PCH = 19
XP = 192
SCR = 98304 + 6144
FLG = 131072
FCT = FLG + 128
MLP_LDS = FCT + 3072
RING = 8
SPIN = 400000
THR = int(os.environ.get('THR', '6'))

def gen_mlp(name, sets):
    k = Kernel(name, vgpr=256, sgpr=100)
    body_entry(k, sets)
    XIN, FCG, HB, HF, XOUT, slot = 's40', 's41', 's42', 's43', 's45', 's44'
    stamp(k, 0)
    E = f"L_{name}_end"; N = name
    ACC = 16; XF = 64; W = 112; CSV = 144; FCR = 112
    A2 = 16; HR = 80; WD0 = 168; RES = 128; T = 144
    P = lambda r: f"v[{r}:{r+1}]"
    k(f"""
    s_cmp_ge_u32 s2, {MLP_GRID}
    s_cbranch_scc1 {E}
    s_load_dwordx2 s[18:19], s[0:1], 104
    s_load_dwordx2 s[16:17], s[0:1], 88
    v_and_b32 v1, 63, v0
    v_lshrrev_b32 v2, 6, v0
    v_lshlrev_b32 v3, 4, v1
    v_readfirstlane_b32 s3, v2
    v_mov_b32 v4, {FLG}
    v_mov_b32 v8, 0
    v_mov_b32 v9, 0
    v_mov_b32 v10, 0
    v_mov_b32 v11, 0
    ds_write_b128 v4, v[8:11]
    ds_write_b128 v4, v[8:11] offset:16
    ds_write_b128 v4, v[8:11] offset:32
    ds_write_b128 v4, v[8:11] offset:48
    s_mov_b32 s10, {WS_USED}
    s_mov_b32 s11, 0x00020000
    s_mov_b32 s22, {WS_USED}
    s_mov_b32 s23, 0x00020000
    v_lshrrev_b32 v7, 5, v1
    s_cmp_lt_u32 s2, {NPROD}
    s_cbranch_scc1 L_{N}_prod
    s_and_b32 s4, s2, 7
    s_lshr_b32 s5, s2, 3
    s_mul_i32 s7, s4, 30
    s_add_u32 s7, s7, s5
    s_sub_u32 s7, s7, 2
    s_cmp_ge_u32 s4, 6
    s_cselect_b32 s5, 1, 0
    s_add_u32 s7, s7, s5
    s_cmp_eq_u32 s4, 7
    s_cselect_b32 s5, 1, 0
    s_add_u32 s7, s7, s5
    s_cmp_ge_u32 s7, 88
    s_cselect_b32 s6, 88, 0
    s_cselect_b32 s5, 4, 0
    s_sub_u32 s12, s7, s6
    s_lshr_b32 s4, s12, 2
    s_and_b32 s12, s12, 3
    s_add_u32 s5, s5, s12
    s_sub_u32 s12, s7, 176
    s_mul_i32 s13, s12, 171
    s_lshr_b32 s13, s13, 9
    s_mul_i32 s6, s13, 3
    s_sub_u32 s6, s12, s6
    s_add_u32 s6, s6, 8
    s_cmp_ge_u32 s7, 176
    s_cselect_b32 s4, s13, s4
    s_cselect_b32 s5, s6, s5
    s_lshl_b32 s6, s5, 3
    s_add_u32 s6, s6, s3
    s_lshl_b32 s14, s6, 15
    s_add_u32 s14, s14, {WGU}
    s_mul_i32 s12, s4, 192
    s_lshl_b32 s13, s3, 16
    s_add_u32 s12, s12, s13
    s_add_u32 s12, s12, {XIN}
    s_mul_i32 s25, s3, 3072
    v_lshrrev_b32 v13, 2, v1
    v_and_b32 v8, 3, v1
    v_lshlrev_b32 v13, 12, v13
    v_lshl_add_u32 v13, v8, 4, v13
    """)
    def srds():
        k("""
        s_waitcnt lgkmcnt(0)
        s_mov_b32 s8, s18
        s_mov_b32 s9, s19
        s_mov_b32 s20, s18
        s_mov_b32 s21, s19
        """)
    srds()
    vm = Q(k, 'vmcnt', 63); lg = Q(k, 'lgkmcnt', 15)
    def unit(p):
        for i in range(3):
            k(f"s_add_u32 m0, s25, {p*24576 + i*(1024-64)}")
            if i == 0 and p > 0: k(f"s_add_u32 s12, s12, {8*65536}")
            else: k("s_nop 0")
            vm.issue(f"buffer_load_dwordx4 v13, s[8:11], s12 offen offset:{64*i} lds", f"U{p}")
    def wl(ks):
        j = ks % RING
        if ks % 4 == 0 and ks > 0: k("s_add_u32 s14, s14, 4096")
        vm.issue(f"buffer_load_dwordx4 v[{W+4*j}:{W+4*j+3}], v3, s[8:11], s14 offen offset:{1024*(ks&3)}", f"W{ks}")
    def csl():
        k(f"""
        v_lshlrev_b32 v10, 4, v7
        s_lshl_b32 s24, s6, 6
        s_add_u32 s24, s24, {CS}
        """)
        for m in range(2):
            for q in range(2):
                j = 2*m + q
                vm.issue(f"buffer_load_dwordx4 v[{CSV+4*j}:{CSV+4*j+3}], v10, s[8:11], s24 offen offset:{32*q}", "CS")
            k(f"s_add_u32 s24, s24, {CSP}")
    def signal(p):
        k(f"v_mov_b32 v6, {p+1}")
        vm.need(f"U{p}")
        lg.issue("ds_write_b32 v2, v6", "sig")
    k("s_barrier")
    unit(0)
    wl(0); wl(1); wl(2)
    k(f"""
    v_and_b32 v6, 15, v1
    v_lshrrev_b32 v12, 2, v6
    v_lshl_add_u32 v12, v7, 3, v12
    v_lshlrev_b32 v12, 6, v12
    v_and_b32 v8, 3, v6
    v_lshl_add_u32 v12, v8, 3, v12
    v_and_b32 v8, 16, v1
    v_lshl_add_u32 v12, v8, 1, v12
    v_add_u32 v14, 49152, v12
    s_lshl_b32 s15, s3, 2
    v_add_u32 v2, s15, v4
    s_mov_b32 s28, 0
    s_mov_b32 s29, 0
    """)
    for r in range(48): k(f"v_mov_b32 v{ACC+r}, 0")
    signal(0)
    unit(1)
    for j in range(3, RING-1): wl(j)
    def poll(half, need, tag):
        c = 28 + half
        k(f"""
        s_cmp_ge_u32 s{c}, {need}
        s_cbranch_scc1 L_{N}_pd{tag}
        L_{N}_pl{tag}:
        ds_read_b128 v[8:11], v4 offset:{16*half}
        s_waitcnt lgkmcnt(0)
        v_min_u32 v8, v8, v9
        v_min3_u32 v8, v8, v10, v11
        s_nop 0
        v_readfirstlane_b32 s{c}, v8
        s_cmp_ge_u32 s{c}, {need}
        s_cbranch_scc0 L_{N}_pl{tag}
        L_{N}_pd{tag}:
        """)
    def xr(ks, lb, h):
        b = 12 if ks < 16 else 14
        r = XF+12*(ks&3)+4*lb+2*h
        lg.issue(f"ds_read_b64_tr_b16 v[{r}:{r+1}], v{b} offset:{3072*(ks%16)+1024*lb+256*h}", f"x{ks}_{lb}")
    def dsetup():
        k(f"""
    s_and_b32 s30, s2, 7
    s_lshr_b32 s31, s2, 3
    s_lshl_b32 s30, s30, 2
    s_lshr_b32 s12, s31, 3
    s_add_u32 s30, s30, s12
    s_and_b32 s31, s31, 7
    s_bfe_u32 s12, s3, 0x10001
    s_lshl_b32 s32, s31, 1
    s_add_u32 s32, s32, s12
    s_and_b32 s12, s3, 1
    s_lshl_b32 s33, s30, 1
    s_add_u32 s33, s33, s12
    s_xor_b32 s12, s32, 1
    s_mul_i32 s34, s32, {86*1024}
    s_mul_i32 s35, s12, {86*1024}
    s_xor_b32 s12, s33, 1
    s_mul_i32 s36, s33, {86*1024}
    s_mul_i32 s37, s12, {86*1024}
    s_lshl_b32 s12, s3, 10
    s_add_u32 s13, s12, {WD}
    s_add_u32 s34, s34, s13
    s_add_u32 s35, s35, s13
    s_add_u32 s13, s12, {HB}
    s_add_u32 s36, s36, s13
    s_add_u32 s37, s37, s13
    s_mov_b32 s22, {WS_USED}
    v_mov_b32 v5, v3
        """)
    def wdl(n, i, vm=None):
        if n == 10 and i == 0:
            k("s_cmp_ge_u32 s3, 6")
            k("s_cselect_b32 s22, 0, s22")
        r = WD0 + 8*n + 4*i
        ins = f"buffer_load_dwordx4 v[{r}:{r+3}], v5, s[20:23], s{34+i} offen"
        if vm: vm.issue(ins, "WD")
        else: k(ins)
        if i == 1: k("v_add_u32 v5, 8192, v5")
    wdq = [(n, i) for n in range(11) for i in range(2)]
    stamp(k, 1)
    poll(0, 1, "a")
    stamp(k, 2)
    for st in range(2):
        for lb in range(3): xr(st, lb, 0); xr(st, lb, 1)
    NIN = int(os.environ.get('NIN', '12'))
    wi = 0
    for ks in range(32):
        j = ks % RING
        if ks+2 < 32 and (ks+2) % 4 == 0: poll(((ks+2)//4) & 1, (ks+2)//8 + 1, f"m{ks}")
        vm.need(f"W{ks}")
        if ks in (3, 9, 17): signal({3:1, 9:2, 17:3}[ks])
        for lb in range(3):
            lg.need(f"x{ks}_{lb}")
            a = ACC+16*lb; x = XF+12*(ks&3)+4*lb
            k(f"v_mfma_f32_32x32x16_bf16 v[{a}:{a+15}], v[{W+4*j}:{W+4*j+3}], v[{x}:{x+3}], v[{a}:{a+15}]")
            if ks+2 < 32: xr(ks+2, lb, 0); xr(ks+2, lb, 1)
            if lb == 1 and ks >= 32-NIN-2 and wi < NIN:
                if wi == 0: dsetup()
                wdl(*wdq[wi], vm=vm); wi += 1
        if ks+7 < 32: wl(ks+7)
        if ks == 1: unit(2)
        if ks == 9: unit(3)
        if ks == 14: csl()
    assert wi == NIN
    stamp(k, 3)
    k(f"""
    s_cmp_ge_u32 s6, 86
    s_cbranch_scc1 L_{N}_drest
    v_and_b32 v9, 31, v1
    s_cmp_ge_u32 s3, 3
    s_cbranch_scc1 L_{N}_fl
    s_mul_i32 s15, s4, 3
    s_add_u32 s15, s15, s3
    s_min_u32 s15, s15, 63
    s_lshl_b32 s15, s15, 8
    s_add_u32 s15, s15, {FCG}
    v_lshlrev_b32 v8, 3, v9
    s_mov_b32 s26, {f32hex(-LOG2E)}
    s_mov_b32 s27, 0
    L_{N}_gp:
    buffer_load_dwordx2 v[12:13], v8, s[8:11], s15 offen sc1
    s_add_u32 s27, s27, 1
    s_waitcnt vmcnt(0)
    v_cmp_ne_u32 vcc, 1, v13
    s_cmp_eq_u64 vcc, 0
    s_cbranch_scc1 L_{N}_gd
    s_cmp_ge_u32 s27, {SPIN}
    s_cbranch_scc1 L_{N}_gd
    s_sleep 4
    s_branch L_{N}_gp
    L_{N}_gd:
    v_and_b32 v14, 0xffff0000, v12
    v_lshlrev_b32 v12, 16, v12
    v_rcp_f32 v13, v14
    s_lshl_b32 s15, s3, 10
    s_add_u32 s15, s15, {FCT}
    v_lshl_add_u32 v8, v9, 5, s15
    v_sub_f32 v{XF}, 0, v12
    v_sub_f32 v{XF+1}, 0, v12
    v_mul_f32 v{XF+2}, s26, v13
    v_mul_f32 v{XF+3}, s26, v13
    v_mov_b32 v15, v14
    v_mov_b32 v12, 1
    ds_write_b128 v8, v[{XF}:{XF+3}]
    ds_write_b64 v8, v[14:15] offset:16
    ds_write_b32 v2, v12 offset:32
    L_{N}_fl:
    ds_read_b128 v[12:15], v4 offset:32
    s_waitcnt lgkmcnt(0)
    v_and_b32 v13, v13, v14
    v_and_b32 v13, v13, v12
    s_nop 0
    v_readfirstlane_b32 s15, v13
    s_cmp_eq_u32 s15, 1
    s_cbranch_scc1 L_{N}_fd
    s_sleep 1
    s_branch L_{N}_fl
    L_{N}_fd:
    v_lshlrev_b32 v9, 5, v9
    v_add_u32 v9, {FCT}, v9
    """)
    for lb in range(3):
        k(f"ds_read_b128 v[{FCR+6*lb}:{FCR+6*lb+3}], v9 offset:{1024*lb}")
        k(f"ds_read_b64 v[{FCR+6*lb+4}:{FCR+6*lb+5}], v9 offset:{1024*lb+16}")
    k(f"""
    s_mul_i32 s15, s4, {3*86*1024}
    s_lshl_b32 s12, s6, 10
    s_add_u32 s15, s15, s12
    s_add_u32 s15, s15, {HB}
    """)
    stamp(k, 4)
    for lb in range(3):
        k(f"s_waitcnt lgkmcnt({4-2*lb})")
        g = ACC+16*lb; u = g+8; c = FCR+6*lb; o = XF+4*lb
        for j in range(0, 8, 2): k(f"v_pk_fma_f32 {P(g+j)}, {P(CSV+j)}, {P(c)}, {P(g+j)}")
        for j in range(0, 8, 2): k(f"v_pk_mul_f32 {P(g+j)}, {P(g+j)}, {P(c+2)}")
        for j in range(8):
            k(f"v_exp_f32 v{g+j}, v{g+j}")
        for j in range(0, 8, 2): k(f"v_pk_fma_f32 {P(u+j)}, {P(CSV+8+j)}, {P(c)}, {P(u+j)}")
        for j in range(0, 8, 2): k(f"v_pk_fma_f32 {P(g+j)}, {P(g+j)}, {P(c+4)}, {P(c+4)}")
        for j in range(8):
            k(f"v_rcp_f32 v{g+j}, v{g+j}")
        k("s_nop 0")
        for j in range(0, 8, 2): k(f"v_pk_mul_f32 {P(u+j)}, {P(u+j)}, {P(g+j)}")
        for j in range(4): k(f"v_cvt_pk_bf16_f32 v{o+j}, v{u+2*j}, v{u+2*j+1}")
        k(f"buffer_store_dwordx4 v[{o}:{o+3}], v3, s[8:11], s15 offen sc1")
        if lb == 0:
            k(f"s_cmp_eq_u32 s4, 21")
            k(f"s_cbranch_scc1 L_{N}_pub")
        k(f"s_add_u32 s15, s15, {86*1024}")
    k(f"""
    L_{N}_pub:
    s_lshl_b32 s15, s4, 9
    s_lshl_b32 s12, s3, 6
    s_add_u32 s15, s15, s12
    s_lshl_b32 s12, s5, 2
    s_add_u32 s15, s15, s12
    s_add_u32 s15, s15, {HF}
    v_mov_b32 v8, 0
    v_mov_b32 v9, 1
    s_waitcnt vmcnt(0)
    s_mov_b64 exec, 1
    buffer_store_dword v9, v8, s[8:11], s15 offen sc1
    s_mov_b64 exec, -1
    """)
    stamp(k, 5)
    k(f"s_branch L_{N}_drest")
    k.label(f"L_{N}_dall")
    dsetup()
    for (n, i) in wdq[:NIN]: wdl(n, i)
    k.label(f"L_{N}_drest")
    k("s_waitcnt lgkmcnt(0)")
    k("s_barrier")
    for (n, i) in wdq[NIN:]: wdl(n, i)
    for r in range(64): k(f"v_mov_b32 v{A2+r}, 0")
    k(f"""
    s_lshl_b32 s12, s30, 1
    s_mul_i32 s13, s12, 171
    s_lshr_b32 s13, s13, 9
    s_add_u32 s12, s12, 1
    s_mul_i32 s12, s12, 171
    s_lshr_b32 s12, s12, 9
    s_lshl_b32 s13, s13, 9
    s_lshl_b32 s12, s12, 9
    s_add_u32 s38, s13, {HF}
    s_add_u32 s39, s12, {HF}
    v_lshlrev_b32 v10, 2, v1
    v_and_b32 v8, 15, v1
    v_cmp_gt_u32 s[26:27], 11, v8
    v_sub_u32 v9, 11, v7
    v_cmp_gt_u32 s[52:53], v9, v8
    v_and_b32 v6, 31, v1
    v_lshlrev_b32 v5, 14, v7
    v_lshl_add_u32 v5, v6, 1, v5
    s_lshl_b32 s24, s32, 17
    s_lshl_b32 s25, s33, 6
    s_add_u32 s24, s24, s25
    s_lshr_b32 s12, s3, 2
    s_lshl_b32 s12, s12, 16
    s_add_u32 s24, s24, s12
    s_add_u32 s25, s24, {XOUT}
    s_add_u32 s24, s24, {XIN}
    """)
    for n in range(8):
        q, r = n >> 2, n & 3
        k(f"s_add_u32 s12, s24, {(8*q+r)*4096}")
        k(f"buffer_load_ushort v{RES+n}, v5, s[8:11], s12 offen")
    k(f"""
    s_mov_b32 s13, 0
    s_cmp_eq_u32 s3, 0
    s_cbranch_scc0 L_{N}_hw
    L_{N}_hq:
    buffer_load_dword v12, v10, s[8:11], s38 offen sc1
    buffer_load_dword v13, v10, s[8:11], s39 offen sc1
    buffer_load_dword v14, v10, s[8:11], s38 offen offset:256 sc1
    buffer_load_dword v15, v10, s[8:11], s39 offen offset:256 sc1
    s_add_u32 s13, s13, 1
    s_waitcnt vmcnt(0)
    v_and_b32 v12, v12, v13
    v_and_b32 v14, v14, v15
    v_cmp_ne_u32 vcc, 1, v12
    v_cmp_ne_u32 s[54:55], 1, v14
    s_and_b64 vcc, vcc, s[26:27]
    s_and_b64 s[54:55], s[54:55], s[52:53]
    s_or_b64 vcc, vcc, s[54:55]
    s_cbranch_scc0 L_{N}_hr
    s_cmp_ge_u32 s13, {SPIN}
    s_cbranch_scc1 L_{N}_hr
    s_sleep 3
    s_branch L_{N}_hq
    L_{N}_hr:
    v_mov_b32 v12, 1
    ds_write_b32 v4, v12 offset:48
    s_branch L_{N}_hd
    L_{N}_hw:
    ds_read_b32 v12, v4 offset:48
    s_waitcnt lgkmcnt(0)
    v_readfirstlane_b32 s12, v12
    s_cmp_eq_u32 s12, 1
    s_cbranch_scc1 L_{N}_hd
    s_sleep 1
    s_branch L_{N}_hw
    L_{N}_hd:
    s_mov_b32 s22, {WS_USED}
    v_mov_b32 v12, v3
    """)
    stamp(k, 6)
    vm = Q(k, 'vmcnt', 63)
    HD = 6
    def hload(n):
        if n == 10:
            k("s_cmp_ge_u32 s3, 6")
            k("s_cselect_b32 s22, 0, s22")
        for i in range(2):
            r = HR + 8*(n % HD) + 4*i
            vm.issue(f"buffer_load_dwordx4 v[{r}:{r+3}], v12, s[20:23], s{36+i} offen sc1", f"S{n}")
        k("v_add_u32 v12, 8192, v12")
    for n in range(HD): hload(n)
    k("s_and_b32 s13, s3, 3")
    for a in range(4):
        k(f"""
        s_xor_b32 s12, s13, {a}
        s_lshl_b32 s12, s12, 14
        s_lshl_b32 s15, s3, 11
        s_add_u32 s12, s12, s15
        v_add_u32 v{8+a}, s12, v3
        """)
    k(f"""
    s_lshl_b32 s12, s3, 14
    v_add_u32 v13, s12, v3
    v_add_u32 v14, 0x10000, v8
    v_add_u32 v15, 0x10000, v9
    v_add_u32 v0, 0x10000, v10
    v_add_u32 v2, 0x10000, v11
    """)
    for n in range(11):
        vm.need(f"S{n}")
        for ad in range(2):
            for al in range(2):
                a = A2 + 16*(2*ad+al); w = WD0+8*n+4*ad; h = HR+8*(n % HD)+4*al
                k(f"v_mfma_f32_32x32x16_bf16 v[{a}:{a+15}], v[{w}:{w+3}], v[{h}:{h+3}], v[{a}:{a+15}]")
        if n >= 1 and n-1+HD < 11: hload(n-1+HD)
    stamp(k, 7)
    k("s_nop 3")
    lg = Q(k, 'lgkmcnt', 15)
    hi = [14, 15, 0, 2]
    for n in range(8): k(f"v_lshlrev_b32 v{RES+n}, 16, v{RES+n}")
    for a in range(4):
        for q in range(4):
            ad = (8+a) if q < 2 else hi[a]
            lg.issue(f"ds_write_b128 v{ad}, v[{A2+16*a+4*q}:{A2+16*a+4*q+3}] offset:{1024*(q&1)}", "rw")
    lg.drain()
    k("s_barrier")
    stamp(k, 8)
    FV = 16
    for q in range(2):
        for s_ in range(8):
            lg.issue(f"ds_read_b128 v[{FV+32*q+4*s_}:{FV+32*q+4*s_+3}], v13 offset:{2048*s_+1024*q}", f"rr{q}_{s_}")
    for q in range(2):
        b = FV+32*q
        for st in (1, 2, 4):
            for s_ in range(0, 8, 2*st):
                lg.need(f"rr{q}_{min(7, s_+2*st-1)}")
                for j in (0, 2): k(f"v_pk_add_f32 {P(b+4*s_+j)}, {P(b+4*s_+j)}, {P(b+4*(s_+st)+j)}")
        k(f"v_cvt_pk_bf16_f32 v{T+2*q}, v{b}, v{b+1}")
        k(f"v_cvt_pk_bf16_f32 v{T+2*q+1}, v{b+2}, v{b+3}")
        unpack(k, b, b+1, T+2*q); unpack(k, b+2, b+3, T+2*q+1)
        for j in (0, 2): k(f"v_pk_add_f32 {P(b+j)}, {P(b+j)}, {P(RES+4*q+j)}")
        k(f"v_cvt_pk_bf16_f32 v{T+2*q}, v{b}, v{b+1}")
        k(f"v_cvt_pk_bf16_f32 v{T+2*q+1}, v{b+2}, v{b+3}")
    k("s_cmp_eq_u32 s46, 1")
    k(f"s_cbranch_scc1 L_{N}_out")
    k("v_mov_b32 v12, 0")
    k("v_mov_b32 v13, 0")
    k("v_mov_b32 v14, 0x3f803f80")
    for q in range(2):
        for r in range(4):
            k(f"s_add_u32 s12, s25, {(8*q+r)*4096}")
            op = "buffer_store_short_d16_hi" if r & 1 else "buffer_store_short"
            k(f"{op} v{T+2*q+(r>>1)}, v5, s[8:11], s12 offen")
        for j in range(2):
            k(f"v_dot2_f32_bf16 v12, v{T+2*q+j}, v14, v12")
            k(f"v_dot2_f32_bf16 v13, v{T+2*q+j}, v{T+2*q+j}, v13")
    k(f"""
    s_nop 2
    v_permlane32_swap_b32 v12, v13
    v_lshlrev_b32 v5, 3, v6
    v_lshl_add_u32 v5, v7, 2, v5
    s_lshl_b32 s12, s33, 8
    s_add_u32 s12, s12, {ST3}
    v_add_f32 v12, v12, v13
    buffer_atomic_add_f32 v12, v5, s[8:11], s12 offen
    s_branch L_{N}_e2
    L_{N}_out:
    s_mov_b32 s28, s16
    s_mov_b32 s29, s17
    s_mov_b32 s30, {2048*512*2}
    s_mov_b32 s31, 0x00020000
    v_lshlrev_b32 v5, 10, v6
    v_lshl_add_u32 v5, v7, 4, v5
    s_lshl_b32 s25, s33, 15
    s_lshl_b32 s12, s32, 6
    s_add_u32 s25, s25, s12
    s_lshr_b32 s12, s3, 2
    s_lshl_b32 s12, s12, 5
    s_add_u32 s25, s25, s12
    v_permlane32_swap_b32 v{T}, v{T+2}
    v_permlane32_swap_b32 v{T+1}, v{T+3}
    buffer_store_dwordx4 v[{T}:{T+3}], v5, s[28:31], s25 offen
    L_{N}_e2:
    """)
    stamp(k, 9)
    stamp_flush(k, slot, 10, 3)
    k(f"s_branch {E}")
    k.label(f"L_{N}_prod")
    NIT = 22; PD = 14
    S = 16; QQ = 24; LB = 32; U = 96
    k(f"""
    v_mul_u32_u24 v12, 3450, v1
    v_lshrrev_b32 v12, 16, v12
    v_mul_u32_u24 v5, {PCH}, v12
    v_sub_u32 v5, v1, v5
    s_mul_i32 s4, s2, {PCH}
    v_add_u32 v6, s4, v5
    v_lshlrev_b32 v13, 4, v6
    v_lshl_add_u32 v13, v12, 12, v13
    v_cmp_gt_u32 vcc, 3, v12
    s_movk_i32 s5, 0x100
    v_cmp_gt_u32 s[6:7], s5, v6
    s_and_b64 vcc, vcc, s[6:7]
    v_mov_b32 v8, 0x7ffffff0
    v_cndmask_b32 v13, v8, v13, vcc
    s_mul_i32 s12, s3, 12288
    s_mov_b32 s26, {2*MB}
    s_mov_b32 s27, 0x00020000
    """)
    for r in range(16): k(f"v_mov_b32 v{S+r}, 0")
    srds()
    k(f"""
    s_add_u32 s24, s18, {XIN}
    s_addc_u32 s25, s19, 0
    """)
    def pl(i):
        r = LB + 4*(i % PD)
        k(f"buffer_load_dwordx4 v[{r}:{r+3}], v13, s[24:27], s12 offen")
        k(f"s_add_u32 s12, s12, {8*12288}")
    for i in range(PD): pl(i)
    for i in range(NIT):
        k(f"s_waitcnt vmcnt({min(PD-1, NIT-1-i)})")
        r = LB + 4*(i % PD)
        for e in range(4):
            k(f"v_lshlrev_b32 v{U+2*e}, 16, v{r+e}")
            k(f"v_and_b32 v{U+2*e+1}, 0xffff0000, v{r+e}")
        if i + PD < NIT: pl(i+PD)
        for e in range(0, 8, 2):
            k(f"v_pk_add_f32 v[{S+e}:{S+e+1}], v[{S+e}:{S+e+1}], v[{U+e}:{U+e+1}]")
            k(f"v_pk_fma_f32 v[{QQ+e}:{QQ+e+1}], v[{U+e}:{U+e+1}], v[{U+e}:{U+e+1}], v[{QQ+e}:{QQ+e+1}]")
    SP = PCH*64 + 16
    k(f"""
    s_mul_i32 s4, s3, 3
    v_add_u32 v8, s4, v12
    v_mul_u32_u24 v8, {SP}, v8
    v_lshl_add_u32 v8, v5, 6, v8
    v_cmp_gt_u32 vcc, 3, v12
    s_and_saveexec_b64 s[6:7], vcc
    """)
    for j in range(4): k(f"ds_write_b128 v8, v[{S+4*j}:{S+4*j+3}] offset:{16*j}")
    k(f"""
    s_mov_b64 exec, s[6:7]
    s_waitcnt lgkmcnt(0)
    s_barrier
    s_cmp_ge_u32 s3, 3
    s_cbranch_scc1 L_{N}_pe
    v_lshrrev_b32 v8, 3, v0
    v_and_b32 v9, 7, v0
    v_lshlrev_b32 v8, 6, v8
    v_lshl_add_u32 v8, v9, 2, v8
    v_mov_b32 v12, 0
    v_mov_b32 v13, 0
    """)
    for b in range(4):
        for j in range(6):
            sl = 6*b + j
            k(f"ds_read_b32 v{32+2*j}, v8 offset:{sl*SP}")
            k(f"ds_read_b32 v{33+2*j}, v8 offset:{sl*SP+32}")
        for j in range(6):
            k(f"s_waitcnt lgkmcnt({10-2*j})")
            k(f"v_pk_add_f32 v[12:13], v[12:13], v[{32+2*j}:{33+2*j}]")
    k(f"""
    s_mov_b32 s24, {f32hex(1.0/512)}
    s_mov_b32 s25, {f32hex(1e-5)}
    v_mul_f32 v14, s24, v12
    v_mul_f32 v16, s24, v13
    v_fma_f32 v16, -v14, v14, v16
    v_max_f32 v16, 0, v16
    v_cvt_pk_bf16_f32 v14, v14, v16
    v_and_b32 v16, 0xffff0000, v14
    v_lshlrev_b32 v14, 16, v14
    v_add_f32 v16, s25, v16
    v_cvt_pk_bf16_f32 v16, v16, v16
    v_lshlrev_b32 v16, 16, v16
    v_sqrt_f32 v16, v16
    s_mul_i32 s4, s2, {PCH*8*8}
    s_add_u32 s4, s4, {FCG}
    v_cvt_pk_bf16_f32 v20, v14, v16
    v_mov_b32 v21, 1
    v_lshlrev_b32 v8, 3, v0
    v_cmp_gt_u32 vcc, {PCH*8}, v0
    s_and_saveexec_b64 s[6:7], vcc
    buffer_store_dwordx2 v[20:21], v8, s[20:23], s4 offen sc1
    s_mov_b64 exec, s[6:7]
    s_nop 1
    L_{N}_pe:
    """)
    for i in range(1, 6): stamp(k, i)
    k(f"s_branch L_{N}_dall")
    k.label(E)
    k("s_endpgm")
    return k
```

```python
MB = 1 << 20
L, D, NS, F = 2048, 512, 128, 1376
XT0, XT1, XT2, XT3 = 0, 2*MB, 4*MB, 6*MB
KG = 8*MB; KGP = 4128
ST1 = 10*MB + 512*1024
ST3 = ST1 + 16384
CS  = ST3 + 16384
CSP = 1408*4
WGU = 11*MB
WD  = 14*MB
H   = 16*MB
WS_USED = 24*MB
FCG1 = CS + 32768
FCG2 = FCG1 + 32768
HF1 = FCG2 + 32768
HF2 = HF1 + 16384
H2  = H + 6*MB
WS_USED = 30*MB
```

```python
import sys, os
import asmlib
asmlib.STAMPS = bool(os.environ.get('STAMPS'))
from gen_k0 import *
from gen_conv import *
from gen_gu import *
from gen_down import *
from gen_mlp import *
def build(extra_empty=0):
    p = Prog()
    p.add_kernel(gen_k0())
    kc = gen_conv('conv1_kernel', XT0, XT1, ST1, 1); p.add_kernel(kc)
    km = gen_mlp('mlp1_kernel', {40: XT1, 41: FCG1, 42: H, 43: HF1, 45: XT2, 46: 0, 44: 2}); p.add_kernel(km)
    p.add_kernel(make_stub('conv2_kernel', kc, {40: XT2, 41: XT3, 42: ST3, 44: 4}))
    p.add_kernel(make_stub('mlp2_kernel', km, {40: XT3, 41: FCG2, 42: H2, 43: HF2, 45: 0, 46: 1, 44: 6}))
    if asmlib.STAMPS or os.environ.get('DELAY'):
        d = Kernel('delay_kernel', vgpr=8, sgpr=16)
        d('''
        s_mov_b32 s4, 0
        L_delay:
        s_sleep 16
        s_add_u32 s4, s4, 1
        s_cmp_lt_u32 s4, 200
        s_cbranch_scc1 L_delay
        s_endpgm''')
        p.add_kernel(d)
        p.launch('delay_kernel', 1, 64, 0)
    p.launch('k0_kernel', K0_GRID, 512, K0_LDS)
    p.launch('conv1_kernel', CONV_GRID, 512, CONV_LDS)
    p.launch('mlp1_kernel', MLP_GRID, 512, MLP_LDS)
    p.launch('conv2_kernel', CONV_GRID, 512, CONV_LDS)
    p.launch('mlp2_kernel', MLP_GRID, 512, MLP_LDS)
    if extra_empty:
        e = Kernel('empty_kernel', vgpr=8, sgpr=16); e("s_endpgm"); p.add_kernel(e)
        for i in range(extra_empty): p.launch('empty_kernel', 256, 64, 0)
    return p.text()
if __name__ == '__main__':
    out = sys.argv[1] if len(sys.argv) > 1 else 'all.s'
    ne = int(sys.argv[2]) if len(sys.argv) > 2 else 0
    open(out,'w').write(build(ne))
```

```python
import asmlib, os
from asmlib import *
from layout import *
from gen_k0 import f32hex, interleave

CONV_GRID = 256
U0 = 0; UP = 4576; KC0 = 2*UP; KCP = 4160; KCH = 4*KCP; RED = KC0 + 2*KCH
PKL = RED + 65536
CONV_LDS = PKL + 3*4096
NPK = 688

def unpack(k, lo, hi, src):
    k(f"v_lshlrev_b32 v{lo}, 16, v{src}")
    k(f"v_and_b32 v{hi}, 0xffff0000, v{src}")

def gen_conv(name, XIN, XOUT, ST, slot=0):
    k = Kernel(name, vgpr=168, sgpr=100)
    body_entry(k, {40: XIN, 41: XOUT, 42: ST, 44: slot})
    XIN, XOUT, ST, slot = 's40', 's41', 's42', 's44'
    stamp(k, 0)
    E = f"L_{name}_end"; N = name
    P = lambda r: f"v[{r}:{r+1}]"
    k(f"""
    s_cmp_ge_u32 s2, {CONV_GRID}
    s_cbranch_scc1 {E}
    s_load_dwordx2 s[18:19], s[0:1], 104
    s_load_dwordx2 s[16:17], s[0:1], 48
    v_and_b32 v1, 63, v0
    v_lshrrev_b32 v2, 6, v0
    v_lshlrev_b32 v3, 4, v1
    v_readfirstlane_b32 s3, v2
    s_mov_b32 s10, {WS_USED}
    s_mov_b32 s11, 0x00020000
    s_cmp_ge_u32 s3, 8
    s_cbranch_scc1 L_{N}_pack
    s_lshl_b32 s4, s2, 1
    s_lshr_b32 s5, s3, 2
    s_and_b32 s6, s3, 3
    s_add_u32 s7, s4, s5
    v_lshlrev_b32 v4, 3, v0
    v_lshlrev_b32 v5, 5, v0
    s_lshl_b32 s12, s4, 12
    s_add_u32 s12, s12, {XIN}
    s_add_u32 s21, s12, 4096
    s_mul_i32 s22, s7, {KGP}
    s_add_u32 s22, s22, {KG}
    s_bitcmp1_b32 s6, 0
    s_cselect_b32 s13, 0, {KGH}
    s_add_u32 s22, s22, s13
    s_cmp_lt_u32 s6, 2
    s_cselect_b32 s13, 4, 0
    s_add_u32 s22, s22, s13
    s_mul_i32 s13, s5, {KCH}
    s_mul_i32 s14, s6, {KCP}
    s_add_u32 s13, s13, s14
    s_add_u32 s13, s13, {KC0}
    s_waitcnt lgkmcnt(0)
    """)
    stamp(k, 4)
    k(f"""
    s_mov_b32 s8, s18
    s_mov_b32 s9, s19
    buffer_load_dwordx4 v[64:67], v5, s[8:11], {ST} offen
    buffer_load_dwordx4 v[68:71], v5, s[8:11], {ST} offen offset:16
    buffer_load_dwordx2 v[72:73], v4, s[8:11], s12 offen
    buffer_load_dwordx2 v[74:75], v4, s[8:11], s21 offen
    s_mov_b32 m0, s13
    s_barrier
    """)
    stamp(k, 8)
    for c in range(4): k(f"buffer_load_dwordx4 v3, s[8:11], s22 offen offset:{1024*c} lds")
    stamp(k, 2)
    k(f"""
    v_and_b32 v7, 15, v1
    v_lshrrev_b32 v8, 4, v1
    v_lshlrev_b32 v6, 5, v7
    v_lshl_add_u32 v6, v8, 3, v6
    s_lshl_b32 s12, s7, 12
    s_lshl_b32 s14, s6, 10
    s_add_u32 s12, s12, s14
    s_add_u32 s20, s12, {XOUT}
    s_add_u32 s12, s12, {XIN}
    buffer_load_dwordx2 v[48:49], v6, s[8:11], s12 offen
    buffer_load_dwordx2 v[50:51], v6, s[8:11], s12 offen offset:512
    s_lshl_b32 s12, s7, 1
    v_mov_b32 v9, s12
    global_load_ushort v52, v9, s[16:17]
    v_mov_b32 v12, 0
    v_mov_b32 v13, 0
    v_mov_b32 v14, 0
    v_mov_b32 v15, 0
    s_add_u32 s13, s13, 4096
    v_add_u32 v9, s13, v3
    s_mul_i32 s13, s5, {UP}
    v_add_u32 v10, s13, v3
    v_cmp_gt_u32 vcc, 2, v1
    s_and_saveexec_b64 s[22:23], vcc
    ds_write_b128 v9, v[12:15]
    s_mov_b64 exec, s[22:23]
    v_cmp_gt_u32 vcc, 30, v1
    s_and_saveexec_b64 s[22:23], vcc
    ds_write_b128 v10, v[12:15]
    s_mov_b64 exec, s[22:23]
    v_and_b32 v9, 3, v7
    v_mul_u32_u24 v9, {KCP}, v9
    v_lshrrev_b32 v10, 2, v7
    v_lshlrev_b32 v10, 3, v10
    v_sub_u32 v9, v9, v10
    v_lshl_add_u32 v9, v8, 4, v9
    s_mul_i32 s13, s5, {KCH}
    s_add_u32 s13, s13, {KC0+24}
    s_lshl_b32 s14, s6, 7
    s_sub_u32 s13, s13, s14
    v_add_u32 v10, s13, v9
    v_lshlrev_b32 v11, 5, v7
    v_lshl_add_u32 v11, v8, 4, v11
    s_mul_i32 s13, s5, {UP}
    s_add_u32 s13, s13, 384
    s_sub_u32 s13, s13, s14
    v_add_u32 v11, s13, v11
    s_mov_b32 s24, {f32hex(1.0/512)}
    s_mov_b32 s25, {f32hex(1e-5)}
    """)
    for r in range(32): k(f"v_mov_b32 v{16+r}, 0")
    stamp(k, 1)
    k("s_waitcnt vmcnt(9)")
    for r in range(4):
        k(f"v_mul_f32 v{64+2*r}, s24, v{64+2*r}")
        k(f"v_mul_f32 v{65+2*r}, s24, v{65+2*r}")
    for r in range(4): k(f"v_fma_f32 v{65+2*r}, -v{64+2*r}, v{64+2*r}, v{65+2*r}")
    for r in range(4): k(f"v_max_f32 v{65+2*r}, 0, v{65+2*r}")
    k("v_cvt_pk_bf16_f32 v76, v64, v66")
    k("v_cvt_pk_bf16_f32 v77, v68, v70")
    k("v_cvt_pk_bf16_f32 v78, v65, v67")
    k("v_cvt_pk_bf16_f32 v79, v69, v71")
    unpack(k, 84, 85, 78); unpack(k, 86, 87, 79); unpack(k, 80, 81, 76); unpack(k, 82, 83, 77)
    for r in range(4): k(f"v_add_f32 v{84+r}, s25, v{84+r}")
    k("v_cvt_pk_bf16_f32 v78, v84, v85")
    k("v_cvt_pk_bf16_f32 v79, v86, v87")
    unpack(k, 84, 85, 78); unpack(k, 86, 87, 79)
    for r in range(4): k(f"v_sqrt_f32 v{84+r}, v{84+r}")
    k("s_waitcnt vmcnt(7)")
    for ch in range(2): unpack(k, 88+4*ch, 89+4*ch, 72+2*ch); unpack(k, 90+4*ch, 91+4*ch, 73+2*ch)
    k("v_cvt_pk_bf16_f32 v78, v84, v85")
    k("v_cvt_pk_bf16_f32 v79, v86, v87")
    for ch in range(2):
        for j in (0, 2): k(f"v_pk_add_f32 {P(88+4*ch+j)}, {P(88+4*ch+j)}, {P(80+j)} neg_lo:[0,1] neg_hi:[0,1]")
    unpack(k, 84, 85, 78); unpack(k, 86, 87, 79)
    for ch in range(2):
        k(f"v_cvt_pk_bf16_f32 v{72+2*ch}, v{88+4*ch}, v{89+4*ch}")
        k(f"v_cvt_pk_bf16_f32 v{73+2*ch}, v{90+4*ch}, v{91+4*ch}")
    for r in range(4): k(f"v_rcp_f32 v{84+r}, v{84+r}")
    for ch in range(2): unpack(k, 88+4*ch, 89+4*ch, 72+2*ch); unpack(k, 90+4*ch, 91+4*ch, 73+2*ch)
    for ch in range(2):
        for j in (0, 2): k(f"v_pk_mul_f32 {P(88+4*ch+j)}, {P(88+4*ch+j)}, {P(84+j)}")
    for ch in range(2):
        k(f"v_cvt_pk_bf16_f32 v{72+2*ch}, v{88+4*ch}, v{89+4*ch}")
        k(f"v_cvt_pk_bf16_f32 v{73+2*ch}, v{90+4*ch}, v{91+4*ch}")
        k(f"ds_write_b64 v4, v[{72+2*ch}:{73+2*ch}] offset:{480 + ch*UP}")
    stamp(k, 3)
    k("s_waitcnt vmcnt(3) lgkmcnt(0)")
    k("s_barrier")
    stamp(k, 5)
    lg = Q(k, 'lgkmcnt', 15)
    pool = [56+4*i for i in range(28)]
    reg = {}
    def ld(i0p, kind, s):
        r = pool.pop(0); reg[(i0p, kind, s)] = r
        if kind == 'A':
            off = 64*(63 - i0p - 8*s)
            lg.issue(f"ds_read_b64 v[{r}:{r+1}], v10 offset:{off}", (i0p, kind, s))
            lg.issue(f"ds_read_b64 v[{r+2}:{r+3}], v10 offset:{off+8}", (i0p, kind, s))
        else:
            lg.issue(f"ds_read_b128 v[{r}:{r+3}], v11 offset:{512*s + 64*(1-i0p)}", (i0p, kind, s))
    order = [(i, kd, s) for i in range(2) for s in range(8) for kd in 'AB']
    mf = []
    for i in range(2):
        for m in range(8):
            for s in range(8):
                for w in range(8):
                    if s + w <= 7 and max(s, w) == m: mf.append((i, s, w))
    last_use = {}
    for n, (i, s, w) in enumerate(mf):
        last_use[(i, 'A', s)] = n; last_use[(i, 'B', w)] = n
    li = 0
    for _ in range(8): ld(*order[li]); li += 1
    freed = []
    for n, (i, s, w) in enumerate(mf):
        while (i, 'A', s) not in reg or (i, 'B', w) not in reg:
            ld(*order[li]); li += 1
        lg.need((i, 'A', s), (i, 'B', w))
        c = s + w; a = reg[(i, 'A', s)]; b = reg[(i, 'B', w)]
        k(f"v_mfma_f32_16x16x32_bf16 v[{16+4*c}:{19+4*c}], v[{a}:{a+3}], v[{b}:{b+3}], v[{16+4*c}:{19+4*c}]")
        for key in [(i, 'A', s), (i, 'B', w)]:
            if last_use[key] == n: freed.append((n+3, reg[key]))
        while freed and freed[0][0] <= n: pool.append(freed.pop(0)[1])
        if li < len(order) and pool and (lg.n - lg.done) <= 12:
            ld(*order[li]); li += 1
    assert li == len(order)
    stamp(k, 6)
    k(f"""
    s_lshl_b32 s13, s5, 15
    s_lshl_b32 s14, s6, 10
    s_add_u32 s13, s13, s14
    s_add_u32 s13, s13, {RED}
    v_add_u32 v9, s13, v3
    s_lshl_b32 s13, s5, 15
    s_lshl_b32 s14, s6, 13
    s_add_u32 s13, s13, s14
    s_add_u32 s13, s13, {RED}
    v_add_u32 v12, s13, v3
    s_mul_i32 s13, s5, {UP}
    s_lshl_b32 s14, s6, 10
    s_add_u32 s13, s13, s14
    s_add_u32 s13, s13, 480
    v_add_u32 v13, s13, v6
    ds_read_b64 v[88:89], v13
    ds_read_b64 v[90:91], v13 offset:512
    """)
    for p in range(4):
        if p < 3:
            k(f"s_cmp_lg_u32 s6, {p}")
            k(f"s_cbranch_scc1 L_{N}_rv{p+1}")
        for c in range(8):
            if c in (2*p, 2*p+1): continue
            k(f"ds_write_b128 v9, v[{16+4*c}:{19+4*c}] offset:{4096*c}")
        for r in range(8): k(f"v_mov_b32 v{56+r}, v{16+8*p+r}")
        others = [q for q in range(4) if q != p]
        for j, q in enumerate(others): k(f"v_add_u32 v{92+j}, {1024*q}, v12")
        if p < 3:
            k(f"s_branch L_{N}_ep")
            k.label(f"L_{N}_rv{p+1}")
    k.label(f"L_{N}_ep")
    k("s_waitcnt vmcnt(0) lgkmcnt(6)")
    k("v_lshlrev_b32 v52, 16, v52")
    k("v_mov_b32 v53, v52")
    for j in range(4): unpack(k, 96+2*j, 97+2*j, 88+j)
    for j in range(4): k(f"v_pk_mul_f32 {P(96+2*j)}, {P(96+2*j)}, v[52:53]")
    for j in range(4): k(f"v_cvt_pk_bf16_f32 v{88+j}, v{96+2*j}, v{97+2*j}")
    k("s_waitcnt lgkmcnt(0)")
    k("s_barrier")
    stamp(k, 7)
    for t in range(2):
        for j in range(3): k(f"ds_read_b128 v[{64+12*t+4*j}:{67+12*t+4*j}], v{92+j} offset:{4096*t}")
    for j in range(4): unpack(k, 96+2*j, 97+2*j, 88+j)
    for j in range(4): unpack(k, 104+2*j, 105+2*j, 48+j)
    for t in range(2):
        k(f"s_waitcnt lgkmcnt({3-3*t})")
        for j in (0, 2):
            k(f"v_pk_add_f32 {P(56+4*t+j)}, {P(56+4*t+j)}, {P(64+12*t+j)}")
            k(f"v_pk_add_f32 {P(68+12*t+j)}, {P(68+12*t+j)}, {P(72+12*t+j)}")
        for j in (0, 2): k(f"v_pk_add_f32 {P(56+4*t+j)}, {P(56+4*t+j)}, {P(68+12*t+j)}")
    for j in range(4): k(f"v_cvt_pk_bf16_f32 v{64+j}, v{56+2*j}, v{57+2*j}")
    for j in range(4): unpack(k, 56+2*j, 57+2*j, 64+j)
    for j in range(4): k(f"v_pk_add_f32 {P(56+2*j)}, {P(56+2*j)}, {P(96+2*j)}")
    for j in range(4): k(f"v_cvt_pk_bf16_f32 v{64+j}, v{56+2*j}, v{57+2*j}")
    for j in range(4): unpack(k, 56+2*j, 57+2*j, 64+j)
    for j in range(4): k(f"v_pk_add_f32 {P(56+2*j)}, {P(56+2*j)}, {P(104+2*j)}")
    for j in range(4): k(f"v_cvt_pk_bf16_f32 v{64+j}, v{56+2*j}, v{57+2*j}")
    k("buffer_store_dwordx2 v[64:65], v6, s[8:11], s20 offen")
    k("buffer_store_dwordx2 v[66:67], v6, s[8:11], s20 offen offset:512")
    stamp(k, 9)
    stamp_flush(k, slot, 10, 3)
    k(f"s_branch {E}")
    k.label(f"L_{N}_pack")
    k(f"""
    s_load_dwordx4 s[24:27], s[0:1], 64
    s_sub_u32 s3, s3, 8
    s_mul_i32 s4, s2, 3
    s_add_u32 s4, s4, s3
    s_cmp_ge_u32 s4, {NPK}
    s_cbranch_scc1 {E}
    s_lshr_b32 s5, s4, 4
    s_and_b32 s6, s4, 15
    s_mov_b32 s38, {D*F*2}
    s_mov_b32 s39, 0x00020000
    s_mov_b32 s34, {D*F*2}
    s_mov_b32 s35, 0x00020000
    v_lshrrev_b32 v4, 2, v1
    v_and_b32 v5, 3, v1
    v_mul_u32_u24 v4, {F*2}, v4
    v_lshl_add_u32 v4, v5, 4, v4
    s_mul_i32 s12, s6, {32*F*2}
    s_lshl_b32 s13, s5, 6
    s_add_u32 s12, s12, s13
    s_lshl_b32 s7, s3, 12
    s_add_u32 s7, s7, {PKL}
    s_waitcnt lgkmcnt(0)
    s_mov_b32 s8, s18
    s_mov_b32 s9, s19
    s_mov_b32 s36, s24
    s_mov_b32 s37, s25
    s_mov_b32 s32, s26
    s_mov_b32 s33, s27
    s_barrier
    """)
    for t in range(2):
        k(f"s_add_u32 m0, s7, {2048*t}")
        k("s_nop 0")
        k(f"buffer_load_dwordx4 v4, s[36:39], s12 offen lds")
        k(f"s_add_u32 m0, s7, {2048*t+1024}")
        k("s_nop 0")
        k(f"buffer_load_dwordx4 v4, s[32:35], s12 offen lds")
        k(f"s_add_u32 s12, s12, {16*F*2}")
    k(f"""
    v_lshrrev_b32 v7, 5, v1
    v_and_b32 v4, 15, v1
    v_lshrrev_b32 v5, 2, v4
    v_lshl_add_u32 v5, v7, 3, v5
    v_lshlrev_b32 v5, 6, v5
    v_and_b32 v6, 3, v4
    v_lshl_add_u32 v5, v6, 3, v5
    v_and_b32 v6, 16, v1
    v_lshl_add_u32 v5, v6, 6, v5
    v_add_u32 v5, s7, v5
    v_mov_b32 v8, 0
    v_mov_b32 v9, 0
    v_mov_b32 v10, 0x3f803f80
    s_lshl_b32 s12, s5, 16
    s_lshl_b32 s13, s6, 11
    s_add_u32 s12, s12, s13
    s_add_u32 s12, s12, {WGU}
    s_add_u32 s13, s12, 0x8000
    v_bfe_u32 v6, v1, 4, 1
    v_mul_u32_u24 v6, {CSP}, v6
    v_lshl_add_u32 v6, v7, 6, v6
    v_lshl_add_u32 v6, v4, 2, v6
    s_lshl_b32 s14, s5, 7
    s_add_u32 s14, s14, {CS}
    s_barrier
    s_barrier
    s_waitcnt vmcnt(0)
    """)
    for t in range(4):
        ks, hf = t >> 1, t & 1
        k(f"ds_read_b64_tr_b16 v[{16+4*t}:{17+4*t}], v5 offset:{2048*ks + 32*hf}")
        k(f"ds_read_b64_tr_b16 v[{18+4*t}:{19+4*t}], v5 offset:{2048*ks + 32*hf + 256}")
    for t in range(4):
        ks, hf = t >> 1, t & 1
        k(f"s_waitcnt lgkmcnt({6-2*t})")
        k(f"buffer_store_dwordx4 v[{16+4*t}:{19+4*t}], v3, s[8:11], s{12+hf} offen offset:{1024*ks}")
    for t in range(4):
        for j in range(4): k(f"v_dot2_f32_bf16 v{8+(t&1)}, v{16+4*t+j}, v10, v{8+(t&1)}")
    k(f"""
    s_nop 2
    v_permlane32_swap_b32 v8, v9
    s_nop 0
    v_add_f32 v8, v8, v9
    buffer_atomic_add_f32 v8, v6, s[8:11], s14 offen
    """)
    k.label(E)
    k("s_endpgm")
    return k
```

```python
import asmlib
from asmlib import *
from layout import *
import struct, math, os
SC = os.environ.get('K0SC', '')
def f32hex(x): return hex(struct.unpack('<I', struct.pack('<f', x))[0])
LOG2E = 1.4426950408889634
LOG2E_HI = struct.unpack('<f', struct.pack('<f', LOG2E))[0]
LOG2E_LO = LOG2E - LOG2E_HI
LN2 = math.log(2.0)
INV2PI = 1.0/(2*math.pi)

NT, NWGU, NWD, NKG = 64, 86, 22, 256
NOTH = NT + NWGU + NWD
K0_GRID = NOTH + NKG
K0_LDS = 70*1024
TP = 1088

def interleave(a, b):
    out = []; na, nb = len(a), len(b)
    if nb == 0: return list(a)
    j = 0
    for i, x in enumerate(a):
        out.append(x)
        while j < nb and (j+1)*na <= (i+1)*nb:
            out.append(b[j]); j += 1
    out += b[j:]
    return out

def exp_bf16_pair(k, xs, t, sL, sLlo, sLn2):
    for j, x in enumerate(xs): k(f"v_mul_f32 v{t+2*j}, s{sL}, v{x}")
    for j, x in enumerate(xs): k(f"v_fma_f32 v{t+2*j+1}, v{x}, s{sL}, -v{t+2*j}")
    for j, x in enumerate(xs): k(f"v_fmac_f32 v{t+2*j+1}, s{sLlo}, v{x}")
    for j, x in enumerate(xs): k(f"v_exp_f32 v{t+2*j}, v{t+2*j}")
    for j, x in enumerate(xs): k(f"v_mul_f32 v{t+2*j+1}, s{sLn2}, v{t+2*j+1}")
    for j, x in enumerate(xs): k(f"v_fma_f32 v{t+2*j}, v{t+2*j}, v{t+2*j+1}, v{t+2*j}")
    k(f"v_cvt_pk_bf16_f32 v{t}, v{t}, v{t+2}")
    k(f"v_lshlrev_b32 v{xs[0]}, 16, v{t}")
    k(f"v_and_b32 v{xs[1]}, 0xffff0000, v{t}")

def gen_k0():
    k = Kernel('k0_kernel', vgpr=112, sgpr=100)
    stamp(k, 0)
    if asmlib.STAMPS: k('s_mov_b32 s59, s2')
    k(f"""
    s_load_dwordx8 s[8:15], s[0:1], 8
    s_load_dwordx2 s[16:17], s[0:1], 40
    s_load_dwordx2 s[18:19], s[0:1], 104
    v_and_b32 v1, 63, v0
    v_lshrrev_b32 v2, 6, v0
    s_cmp_lt_u32 s2, {NOTH}
    v_readfirstlane_b32 s3, v2
    s_cbranch_scc1 L_k0_other
    s_sub_u32 s2, s2, {NOTH}
    s_cmp_ge_u32 s2, {NKG}
    s_cbranch_scc1 L_k0_end
    """)
    CHB = 20480; PT = 2048; T16 = 2048 + 4*3072
    k(f"""
    s_lshr_b32 s4, s3, 2
    s_and_b32 s3, s3, 3
    s_lshl_b32 s2, s2, 1
    s_add_u32 s2, s2, s4
    s_mul_i32 s34, s4, {CHB}
    v_and_b32 v3, 31, v1
    s_lshl_b32 s4, s2, 7
    s_lshl_b32 s5, s3, 5
    s_add_u32 s4, s4, s5
    v_add_u32 v4, s4, v3
    v_lshlrev_b32 v4, 1, v4
    s_lshl_b32 s5, s2, 1
    v_mov_b32 v5, s5
    s_waitcnt lgkmcnt(0)
    global_load_ushort v6, v4, s[8:9]
    global_load_ushort v10, v5, s[16:17]
    global_load_ushort v7, v4, s[10:11]
    global_load_ushort v8, v4, s[12:13]
    global_load_ushort v9, v4, s[14:15]
    s_mov_b32 s30, {f32hex(LOG2E_HI)}
    s_mov_b32 s31, {f32hex(LOG2E_LO)}
    s_mov_b32 s32, {f32hex(LN2)}
    s_mov_b32 s33, {f32hex(INV2PI)}
    v_and_b32 v0, 255, v0
    v_and_b32 v11, 15, v1
    v_lshrrev_b32 v12, 3, v11
    v_lshlrev_b32 v12, 7, v12
    v_and_b32 v13, 7, v11
    v_add_u32 v12, v12, v13
    v_cvt_f32_u32 v20, v12
    v_lshrrev_b32 v12, 2, v11
    v_lshlrev_b32 v12, 7, v12
    v_and_b32 v13, 3, v11
    v_lshl_add_u32 v12, v13, 1, v12
    v_add_u32 v12, 0x100, v12
    v_subrev_u32 v13, 8, v11
    v_lshrrev_b32 v13, 1, v13
    v_lshlrev_b32 v13, 7, v13
    v_and_b32 v14, 1, v11
    v_lshl_add_u32 v13, v14, 2, v13
    v_add_u32 v13, 0x200, v13
    v_cmp_gt_u32 vcc, 8, v11
    v_lshlrev_b32 v14, 7, v11
    v_add_u32 v14, 0x400, v14
    v_cndmask_b32 v12, v13, v12, vcc
    v_cvt_f32_u32 v21, v12
    v_cvt_f32_u32 v22, v14
    v_lshlrev_b32 v14, 3, v11
    v_cvt_f32_u32 v23, v14
    s_lshl_b32 s5, s3, 9
    s_add_u32 s5, s5, s34
    v_lshl_add_u32 v2, v3, 4, s5
    v_lshrrev_b32 v3, 4, v1
    v_lshl_add_u32 v3, v3, 6, s5
    """)
    for r in range(12): k(f"v_mov_b32 v{24+r}, 0")
    stamp(k, 1)
    k("s_waitcnt vmcnt(3)")
    stamp(k, 2)
    k("v_lshlrev_b32 v6, 16, v6")
    k("v_lshlrev_b32 v10, 16, v10")
    exp_bf16_pair(k, [6, 10], 12, 30, 31, 32)
    k(f"""
    s_waitcnt vmcnt(0)
    v_lshlrev_b32 v7, 16, v7
    v_lshlrev_b32 v8, 16, v8
    v_lshlrev_b32 v9, 16, v9
    v_mul_f32 v6, v6, v10
    v_mul_f32 v7, v7, v10
    v_add_f32 v10, v10, v10
    v_mul_f32 v18, v8, v10
    v_mul_f32 v19, v9, v10
    v_mul_f32 v16, s30, v6
    v_max_f32 v12, |v18|, |v19|
    v_mul_f32 v17, s33, v7
    v_sub_f32 v16, 0, v16
    v_max_f32_dpp v12, v12, v12 row_ror:8 row_mask:0xf bank_mask:0xf
    s_nop 1
    v_max_f32_dpp v12, v12, v12 row_ror:4 row_mask:0xf bank_mask:0xf
    s_nop 1
    v_max_f32_dpp v12, v12, v12 row_ror:2 row_mask:0xf bank_mask:0xf
    s_nop 1
    v_max_f32_dpp v12, v12, v12 row_ror:1 row_mask:0xf bank_mask:0xf
    s_nop 1
    v_readlane_b32 s6, v12, 0
    v_readlane_b32 s7, v12, 16
    s_max_u32 s6, s6, s7
    s_lshr_b32 s6, s6, 23
    s_max_u32 s6, s6, 1
    s_min_u32 s6, s6, 252
    s_sub_u32 s7, 253, s6
    s_lshl_b32 s7, s7, 23
    s_add_u32 s35, s6, 1
    s_lshl_b32 s35, s35, 23
    v_mul_f32 v18, s7, v18
    v_mul_f32 v19, s7, v19
    ds_write_b128 v2, v[16:19]
    s_waitcnt lgkmcnt(0)
    """)
    for st in range(8): k(f"ds_read_b128 v[{36+4*st}:{39+4*st}], v3 offset:{256*(st>>2) + 16*(st&3)}")
    stamp(k, 3)
    for st in range(8):
        s_, t = st >> 2, st & 3
        zr, zi, cr, ci = 36+4*st, 37+4*st, 38+4*st, 39+4*st
        Fb = 80 + 16*s_ + t
        k(f"s_waitcnt lgkmcnt({7-st})")
        for c in range(4): k(f"v_mul_f32 v{68+c}, v{zr}, v{20+c}")
        for c in range(4): k(f"v_mul_f32 v{72+c}, v{zi}, v{20+c}")
        for c in range(4): k(f"v_exp_f32 v{68+c}, v{68+c}")
        for c in range(4): k(f"v_fract_f32 v{72+c}, v{72+c}")
        for c in range(4): k(f"v_cos_f32 v{76+c}, v{72+c}")
        for c in range(4): k(f"v_sin_f32 v{4+c}, v{72+c}")
        k(f"v_mul_f32 v8, v71, v{cr}")
        k(f"v_mul_f32 v9, v71, v{ci}")
        for c in range(3): k(f"v_fma_mixlo_f16 v{Fb+4*c}, v{68+c}, v{76+c}, 0")
        k(f"v_mul_f32 v10, v8, v79")
        k(f"v_mul_f32 v11, v8, v7")
        for c in range(3): k(f"v_fma_mixhi_f16 v{Fb+4*c}, v{68+c}, v{4+c}, 0")
        k(f"v_fma_mixlo_f16 v{Fb+12}, -v9, v7, v10")
        if st == 4:
            for c in range(3): k(f"v_mfma_f32_16x16x32_f16 v[{24+4*c}:{27+4*c}], v[{80+4*c}:{83+4*c}], v[92:95], v[{24+4*c}:{27+4*c}]")
        else: k("s_nop 0")
        k(f"v_fma_mixhi_f16 v{Fb+12}, -v9, v79, -v11")
    k(f"""
    s_mul_i32 s5, s3, 3072
    s_add_u32 s5, s5, s34
    s_add_u32 s5, s5, {PT}
    v_lshl_add_u32 v12, v1, 4, s5
    """)
    for c in range(3): k(f"v_mfma_f32_16x16x32_f16 v[{24+4*c}:{27+4*c}], v[{96+4*c}:{99+4*c}], v[108:111], v[{24+4*c}:{27+4*c}]")
    stamp(k, 4)
    k("s_nop 7")
    for r in range(12): k(f"v_mul_f32 v{24+r}, s35, v{24+r}")
    k(f"""
    ds_write_b128 v12, v[24:27]
    ds_write_b128 v12, v[28:31] offset:1024
    ds_write_b128 v12, v[32:35] offset:2048
    v_lshl_add_u32 v12, v0, 4, s34
    v_lshrrev_b32 v13, 4, v1
    v_and_b32 v14, 15, v1
    v_lshl_add_u32 v14, v14, 4, s34
    s_waitcnt lgkmcnt(0)
    s_barrier
    s_cmp_eq_u32 s3, 3
    s_cbranch_scc1 L_kg_stage2
    ds_read_b128 v[24:27], v12 offset:{PT}
    ds_read_b128 v[28:31], v12 offset:{PT+3072}
    ds_read_b128 v[32:35], v12 offset:{PT+2*3072}
    ds_read_b128 v[36:39], v12 offset:{PT+3*3072}
    s_cmp_eq_u32 s3, 1
    s_cbranch_scc1 L_kg_t1
    s_cmp_eq_u32 s3, 2
    s_cbranch_scc1 L_kg_t2
    v_lshrrev_b32 v15, 1, v13
    v_lshlrev_b32 v15, 8, v15
    v_and_b32 v16, 1, v13
    v_lshl_add_u32 v15, v16, 3, v15
    v_add_u32 v16, v15, v14
    v_add_u32 v17, 2, v16
    v_add_u32 v18, 4, v16
    v_add_u32 v19, 6, v16
    s_branch L_kg_w
    L_kg_t1:
    v_lshlrev_b32 v15, 8, v13
    v_add_u32 v15, 0x200, v15
    v_add_u32 v16, v15, v14
    v_add_u32 v17, 4, v16
    v_add_u32 v18, 8, v16
    v_add_u32 v19, 12, v16
    v_lshlrev_b32 v15, 9, v13
    v_add_u32 v15, v15, v14
    v_add_u32 v20, 8, v15
    v_add_u32 v21, 0x100, v15
    v_add_u32 v22, 0x108, v15
    v_cmp_gt_u32 vcc, 2, v13
    s_nop 1
    v_cndmask_b32 v16, v15, v16, vcc
    v_cndmask_b32 v17, v20, v17, vcc
    v_cndmask_b32 v18, v21, v18, vcc
    v_cndmask_b32 v19, v22, v19, vcc
    s_branch L_kg_w
    L_kg_t2:
    v_lshlrev_b32 v15, 10, v13
    v_add_u32 v15, 0x800, v15
    v_add_u32 v16, v15, v14
    v_add_u32 v17, 0x100, v16
    v_add_u32 v18, 0x200, v16
    v_add_u32 v19, 0x300, v16
    L_kg_w:
    s_waitcnt lgkmcnt(0)
    v_pk_add_f32 v[24:25], v[24:25], v[28:29]
    v_pk_add_f32 v[26:27], v[26:27], v[30:31]
    v_pk_add_f32 v[32:33], v[32:33], v[36:37]
    v_pk_add_f32 v[34:35], v[34:35], v[38:39]
    v_pk_add_f32 v[24:25], v[24:25], v[32:33]
    v_pk_add_f32 v[26:27], v[26:27], v[34:35]
    v_cvt_pk_bf16_f32 v24, v24, v25
    v_cvt_pk_bf16_f32 v26, v26, v27
    ds_write_b16 v16, v24 offset:{T16}
    ds_write_b16_d16_hi v17, v24 offset:{T16}
    ds_write_b16 v18, v26 offset:{T16}
    ds_write_b16_d16_hi v19, v26 offset:{T16}
    L_kg_stage2:
    v_lshlrev_b32 v12, 4, v0
    v_sub_u32 v13, 4094, v12
    """)
    for e in range(10): k(f"v_subrev_u32 v{40+e}, {2*e}, v13")
    k("v_max_i32 v48, 0, v48")
    k("v_max_i32 v49, 0, v49")
    for e in range(10): k(f"v_cvt_f32_u32 v{40+e}, v{40+e}")
    for e in range(0, 10, 2): k(f"v_cvt_pk_bf16_f32 v{52+e}, v{40+e}, v{41+e}")
    for e in range(0, 10, 2):
        if e < 8: k(f"v_and_b32 v{53+e}, 0xffff0000, v{52+e}")
        k(f"v_lshlrev_b32 v{52+e}, 16, v{52+e}")
    for e in range(9): k(f"v_cvt_u32_f32 v{52+e}, v{52+e}")
    for e in range(9): k(f"v_add_u32 v{52+e}, s34, v{52+e}")
    k("s_waitcnt lgkmcnt(0)")
    stamp(k, 5)
    k("s_barrier")
    stamp(k, 6)
    for e in range(9): k(f"ds_read_u16 v{24+e}, v{52+e} offset:{T16}")
    k(f"""
    s_mul_i32 s5, s2, {KGP}
    s_add_u32 s5, s5, {KG}
    s_add_u32 s18, s18, s5
    s_addc_u32 s19, s19, 0
    v_mov_b32 v48, 0
    v_mov_b32 v49, 0
    v_mov_b32 v50, 0
    v_mov_b32 v51, 0
    v_add_u32 v13, {KGH}, v12
    v_cmp_ne_u32 vcc, 0xff, v0
    s_waitcnt lgkmcnt(0)
    v_cndmask_b32 v32, 0, v32, vcc
    v_lshl_or_b32 v40, v25, 16, v24
    v_lshl_or_b32 v41, v27, 16, v26
    v_lshl_or_b32 v42, v29, 16, v28
    v_lshl_or_b32 v43, v31, 16, v30
    v_lshl_or_b32 v44, v26, 16, v25
    v_lshl_or_b32 v45, v28, 16, v27
    v_lshl_or_b32 v46, v30, 16, v29
    v_lshl_or_b32 v47, v32, 16, v31
    global_store_dwordx4 v12, v[40:43], s[18:19]
    global_store_dwordx4 v13, v[44:47], s[18:19]
    v_cmp_gt_u32 vcc, 2, v0
    s_and_saveexec_b64 s[6:7], vcc
    s_cbranch_execz L_k0_end
    v_add_u32 v12, 4096, v12
    v_add_u32 v13, 4096, v13
    global_store_dwordx4 v12, v[48:51], s[18:19]
    global_store_dwordx4 v13, v[48:51], s[18:19]
    s_branch L_k0_end
    """)
    k.label("L_k0_other")
    k(f"""
    s_load_dwordx2 s[20:21], s[0:1], 0
    s_load_dwordx4 s[24:27], s[0:1], 64
    s_load_dwordx2 s[28:29], s[0:1], 80
    s_setprio 3
    s_cmp_ge_u32 s2, {NT}
    s_cbranch_scc1 L_k0_w
    """)
    k(f"""
    v_lshrrev_b32 v3, 4, v0
    v_and_b32 v4, 15, v0
    s_lshl_b32 s4, s2, 15
    v_lshlrev_b32 v5, 10, v3
    v_lshl_add_u32 v5, v4, 4, v5
    v_add_u32 v5, s4, v5
    s_waitcnt lgkmcnt(0)
    """)
    for c in range(4): k(f"global_load_dwordx4 v[{16+4*c}:{19+4*c}], v5, s[20:21] offset:{256*c}")
    k(f"""
    v_mul_u32_u24 v6, {TP}, v3
    v_lshl_add_u32 v6, v4, 4, v6
    v_mov_b32 v8, 0
    v_mov_b32 v9, 0
    v_mov_b32 v10, 0
    v_mov_b32 v11, 0
    v_mov_b32 v7, 0x3f803f80
    v_lshrrev_b32 v12, 4, v1
    v_lshrrev_b32 v5, 2, v4
    v_lshl_add_u32 v5, v12, 3, v5
    v_mul_u32_u24 v5, {TP}, v5
    v_and_b32 v13, 3, v4
    v_lshl_add_u32 v5, v13, 3, v5
    s_lshl_b32 s4, s3, 7
    v_add_u32 v5, s4, v5
    s_lshl_b32 s4, s3, 12
    s_lshl_b32 s5, s2, 15
    s_add_u32 s4, s4, s5
    s_add_u32 s4, s4, {XT0}
    v_lshlrev_b32 v13, 6, v4
    v_lshl_add_u32 v13, v12, 4, v13
    v_add_u32 v13, s4, v13
    """)
    for c in range(4):
        k(f"s_waitcnt vmcnt({3-c})")
        k(f"ds_write_b128 v6, v[{16+4*c}:{19+4*c}] offset:{256*c}")
    k("s_waitcnt lgkmcnt(0)")
    k("s_barrier")
    for b_ in range(4):
        k(f"ds_read_b64_tr_b16 v[{48+4*b_}:{49+4*b_}], v5 offset:{32*b_}")
        k(f"ds_read_b64_tr_b16 v[{50+4*b_}:{51+4*b_}], v5 offset:{32*b_ + 4*TP}")
    for b_ in range(4):
        k(f"s_waitcnt lgkmcnt({6-2*b_})")
        k(f"global_store_dwordx4 v13, v[{48+4*b_}:{51+4*b_}], s[18:19] offset:{1024*b_}")
    for c in range(4):
        for j in range(4):
            r = 16+4*c+j
            k(f"v_dot2_f32_bf16 v{8+(j&1)}, v{r}, v7, v{8+(j&1)}")
            k(f"v_dot2_f32_bf16 v{10+(j&1)}, v{r}, v{r}, v{10+(j&1)}")
    k(f"""
    s_nop 2
    v_add_f32 v8, v8, v9
    v_add_f32 v9, v10, v11
    s_nop 1
    v_add_f32 v8, v8, v8 quad_perm:[1,0,3,2] row_mask:0xf bank_mask:0xf
    v_add_f32 v9, v9, v9 quad_perm:[1,0,3,2] row_mask:0xf bank_mask:0xf
    s_nop 1
    v_add_f32 v8, v8, v8 quad_perm:[2,3,0,1] row_mask:0xf bank_mask:0xf
    v_add_f32 v9, v9, v9 quad_perm:[2,3,0,1] row_mask:0xf bank_mask:0xf
    s_nop 1
    v_add_f32 v8, v8, v8 row_half_mirror row_mask:0xf bank_mask:0xf
    v_add_f32 v9, v9, v9 row_half_mirror row_mask:0xf bank_mask:0xf
    s_nop 1
    v_add_f32 v8, v8, v8 row_mirror row_mask:0xf bank_mask:0xf
    v_add_f32 v9, v9, v9 row_mirror row_mask:0xf bank_mask:0xf
    s_lshl_b32 s4, s2, 8
    s_add_u32 s4, s4, {ST1}
    v_lshlrev_b32 v12, 3, v3
    v_add_u32 v12, s4, v12
    v_mov_b32 v10, 0
    v_mov_b32 v11, 0
    v_cmp_eq_u32 vcc, 0, v4
    s_and_saveexec_b64 s[6:7], vcc
    global_store_dwordx2 v12, v[8:9], s[18:19]
    v_add_u32 v12, {ST3-ST1}, v12
    global_store_dwordx2 v12, v[10:11], s[18:19]
    v_add_u32 v12, {FCG1-ST3}, v12
    global_store_dwordx2 v12, v[10:11], s[18:19]
    v_add_u32 v12, {FCG2-FCG1}, v12
    global_store_dwordx2 v12, v[10:11], s[18:19]
    v_add_u32 v12, {HF1-FCG2}, v12
    global_store_dwordx2 v12, v[10:11], s[18:19]
    v_add_u32 v12, {HF2-HF1}, v12
    global_store_dwordx2 v12, v[10:11], s[18:19]
    v_add_u32 v12, {CF1-HF2}, v12
    global_store_dwordx2 v12, v[10:11], s[18:19]
    v_add_u32 v12, {CF2-CF1}, v12
    global_store_dwordx2 v12, v[10:11], s[18:19]
    s_branch L_k0_end
    """)
    k.label("L_k0_w")
    k(f"""
    s_sub_u32 s2, s2, {NT}
    s_cmp_ge_u32 s2, {NWGU}
    s_cbranch_scc1 L_k0_wd
    s_and_b32 s4, s2, 1
    s_lshr_b32 s5, s2, 1
    s_mov_b32 s38, {D*F*2}
    s_mov_b32 s39, 0x00020000
    s_mov_b32 s42, {D*F*2}
    s_mov_b32 s43, 0x00020000
    v_lshrrev_b32 v3, 2, v1
    v_and_b32 v4, 3, v1
    v_mul_u32_u24 v3, {F*2}, v3
    v_lshl_add_u32 v3, v4, 4, v3
    s_lshl_b32 s30, s4, 3
    s_add_u32 s30, s30, s3
    s_mul_i32 s6, s30, {32*F*2}
    s_lshl_b32 s7, s5, 6
    s_add_u32 s6, s6, s7
    s_lshl_b32 s7, s3, 12
    s_waitcnt lgkmcnt(0)
    s_mov_b32 s36, s24
    s_mov_b32 s37, s25
    s_mov_b32 s40, s26
    s_mov_b32 s41, s27
    """)
    for t in range(2):
        k(f"s_mov_b32 m0, s7")
        k(f"s_add_u32 s7, s7, 1024")
        k(f"buffer_load_dwordx4 v3, s[36:39], s6 offen lds")
        k(f"s_mov_b32 m0, s7")
        k(f"s_add_u32 s7, s7, 1024")
        k(f"buffer_load_dwordx4 v3, s[40:43], s6 offen lds")
        k(f"s_add_u32 s6, s6, {16*F*2}")
    k(f"""
    v_lshrrev_b32 v3, 5, v1
    v_and_b32 v4, 15, v1
    v_lshrrev_b32 v5, 2, v4
    v_lshl_add_u32 v5, v3, 3, v5
    v_lshlrev_b32 v5, 6, v5
    v_and_b32 v6, 3, v4
    v_lshl_add_u32 v5, v6, 3, v5
    v_and_b32 v6, 16, v1
    v_lshl_add_u32 v5, v6, 6, v5
    s_lshl_b32 s7, s3, 12
    v_add_u32 v5, s7, v5
    v_mov_b32 v8, 0
    v_mov_b32 v9, 0
    v_mov_b32 v7, 0x3f803f80
    s_lshl_b32 s6, s5, 16
    s_lshl_b32 s7, s30, 11
    s_add_u32 s6, s6, s7
    s_add_u32 s6, s6, {WGU}
    v_lshl_add_u32 v6, v1, 4, s6
    v_add_u32 v11, 0x8000, v6
    s_waitcnt vmcnt(0)
    """)
    for t in range(4):
        ks, hf = t >> 1, t & 1
        k(f"ds_read_b64_tr_b16 v[{16+4*t}:{17+4*t}], v5 offset:{2048*ks + 32*hf}")
        k(f"ds_read_b64_tr_b16 v[{18+4*t}:{19+4*t}], v5 offset:{2048*ks + 32*hf + 256}")
    for t in range(4):
        ks, hf = t >> 1, t & 1
        k(f"s_waitcnt lgkmcnt({6-2*t})")
        k(f"global_store_dwordx4 v{11 if hf else 6}, v[{16+4*t}:{19+4*t}], s[18:19] offset:{1024*ks}")
    for t in range(4):
        for j in range(4): k(f"v_dot2_f32_bf16 v{8+(t&1)}, v{16+4*t+j}, v7, v{8+(t&1)}")
    k(f"""
    s_lshl_b32 s7, s3, 8
    s_add_u32 s7, s7, 32768
    v_lshl_add_u32 v10, v1, 2, s7
    v_permlane32_swap_b32 v8, v9
    s_nop 0
    v_add_f32 v8, v8, v9
    ds_write_b32 v10, v8
    s_waitcnt lgkmcnt(0)
    s_barrier
    s_cmp_lg_u32 s3, 0
    s_cbranch_scc1 L_k0_end
    """)
    for j in range(8): k(f"ds_read_b32 v{16+j}, v10 offset:{256*j}")
    k(f"""
    s_mul_i32 s6, s4, {2*CSP}
    s_lshl_b32 s7, s5, 7
    s_add_u32 s6, s6, s7
    s_add_u32 s6, s6, {CS}
    v_bfe_u32 v10, v1, 4, 1
    v_mul_u32_u24 v10, {CSP}, v10
    v_lshl_add_u32 v10, v3, 6, v10
    v_lshl_add_u32 v10, v4, 2, v10
    v_add_u32 v10, s6, v10
    s_waitcnt lgkmcnt(0)
    """)
    for st in (1, 2, 4):
        for j in range(0, 8, 2*st): k(f"v_add_f32 v{16+j}, v{16+j}, v{16+j+st}")
    k("""
    global_store_dword v10, v16, s[18:19]
    s_branch L_k0_end
    """)
    k.label("L_k0_wd")
    k(f"""
    s_sub_u32 s2, s2, {NWGU}
    s_mov_b32 s38, {D*F*2}
    s_mov_b32 s39, 0x00020000
    v_lshlrev_b32 v3, 4, v1
    s_lshl_b32 s6, s2, 16
    s_lshl_b32 s7, s3, 13
    s_add_u32 s6, s6, s7
    s_mul_i32 s7, s3, {8*TP}
    s_waitcnt lgkmcnt(0)
    s_mov_b32 s36, s28
    s_mov_b32 s37, s29
    """)
    for t in range(8):
        k(f"s_mov_b32 m0, s7")
        k(f"s_add_u32 s7, s7, {TP}")
        k(f"buffer_load_dwordx4 v3, s[36:39], s6 offen lds")
        k(f"s_add_u32 s6, s6, 1024")
    k(f"""
    v_lshrrev_b32 v3, 5, v1
    v_and_b32 v4, 15, v1
    v_lshrrev_b32 v5, 2, v4
    v_lshl_add_u32 v5, v3, 2, v5
    v_mul_u32_u24 v5, {TP}, v5
    v_and_b32 v6, 3, v4
    v_lshl_add_u32 v5, v6, 3, v5
    v_and_b32 v6, 16, v1
    v_lshl_add_u32 v5, v6, 1, v5
    s_lshl_b32 s7, s3, 7
    v_add_u32 v5, s7, v5
    s_mul_i32 s6, s3, {2*86*1024}
    s_lshl_b32 s7, s2, 12
    s_add_u32 s6, s6, s7
    s_add_u32 s6, s6, {WD}
    v_lshl_add_u32 v6, v1, 4, s6
    v_add_u32 v7, {86*1024}, v6
    s_waitcnt vmcnt(0)
    s_barrier
    """)
    for t in range(8):
        s_, b = t >> 1, t & 1
        if t == 7: k("s_waitcnt lgkmcnt(12)")
        k(f"ds_read_b64_tr_b16 v[{16+4*t}:{17+4*t}], v5 offset:{64*b + 16*s_*TP}")
        k(f"ds_read_b64_tr_b16 v[{18+4*t}:{19+4*t}], v5 offset:{64*b + (16*s_+8)*TP}")
    for t in range(8):
        s_, b = t >> 1, t & 1
        if t == 4:
            k(f"s_cmp_eq_u32 s2, {NWD-1}")
            k("s_cbranch_scc1 L_k0_end")
        k(f"s_waitcnt lgkmcnt({14-2*t})")
        k(f"global_store_dwordx4 v{6+b}, v[{16+4*t}:{19+4*t}], s[18:19] offset:{1024*s_} {SC}")
    k.label("L_k0_end")
    if asmlib.STAMPS:
        for i in range(7, 10): stamp(k, i)
        k("s_mov_b32 s2, s59")
        k("s_load_dwordx2 s[18:19], s[0:1], 104")
        k("s_mov_b64 exec, -1")
        k("s_getreg_b32 s3, hwreg(HW_REG_HW_ID, 0, 3)")
        stamp_flush(k, 0, 10, 3)
    k("s_endpgm")
    return k
```

```python
import asmlib, os
from asmlib import *
from layout import *
from gen_k0 import f32hex, LOG2E
from gen_conv import unpack, U0, UP, KC0, KCP, KCH, RED
NPROD = 14; PCH = 19
FLG = 131072
LAYER_LDS = FLG + 256
SPIN = 400000
CFD = int(os.environ.get('CFD', '0')); CFS = int(os.environ.get('CFS', '2')); CFR = int(os.environ.get('CFR', '1'))
XSC = os.environ.get('XSC', 'sc1')
NWP = int(os.environ.get('NWP', '20'))
NWP2 = int(os.environ.get('NWP2', '26'))
WDLAG = int(os.environ.get('WDLAG', '6'))
NDI = int(os.environ.get('NDI', '22'))

def gen_layer(name, sets):
    k = Kernel(name, vgpr=256, sgpr=100)
    body_entry(k, sets)
    XA, XB, ST, FCG, HB, HF, XC, CF, slot = 's86', 's87', 's88', 's89', 's90', 's91', 's92', 's94', 's95'
    stamp(k, 0)
    E = f"L_{name}_end"; N = name
    ACC = 16; XF = 64; CSV = 144; FCR = 112
    A2 = 16; HR = 80; WD0 = 168; RES = 128; T = 144; FG = 160
    P = lambda r: f"v[{r}:{r+1}]"
    def wreg(ks):
        if ks < 22: return 168 + 4*ks
        if ks < 30: return 112 + 4*(ks-22)
        return 168 + 4*(ks-30)
    late_w = {}
    for j in range(NWP2, 32): late_w.setdefault(max(3, j - 14) if j < 30 else 12 + j - 30, []).append(j)
    def wpre(ks):
        r = wreg(ks)
        k(f"s_add_u32 s14, s55, {4096*(ks//4)}")
        k(f"buffer_load_dwordx4 v[{r}:{r+3}], v3, s[20:23], s14 offen offset:{1024*(ks&3)}")
    k(f"""
    s_cmp_ge_u32 s2, 256
    s_cbranch_scc1 {E}
    s_load_dwordx2 s[18:19], s[0:1], 104
    s_load_dwordx2 s[16:17], s[0:1], 48
    s_load_dwordx2 s[96:97], s[0:1], 88
    v_and_b32 v1, 63, v0
    v_lshrrev_b32 v2, 6, v0
    v_lshlrev_b32 v3, 4, v1
    v_readfirstlane_b32 s3, v2
    s_mov_b32 s10, {WS_USED}
    s_mov_b32 s11, 0x00020000
    s_lshl_b32 s4, s2, 1
    s_lshr_b32 s5, s3, 2
    s_and_b32 s6, s3, 3
    s_add_u32 s7, s4, s5
    v_lshlrev_b32 v4, 3, v0
    v_lshlrev_b32 v5, 5, v0
    s_lshl_b32 s12, s4, 6
    s_add_u32 s12, s12, {XA}
    v_lshrrev_b32 v6, 3, v0
    v_and_b32 v7, 7, v0
    v_lshlrev_b32 v6, 15, v6
    v_lshl_add_u32 v6, v7, 3, v6
    s_mul_i32 s28, s7, {KGP}
    s_add_u32 s28, s28, {KG}
    s_bitcmp1_b32 s6, 0
    s_cselect_b32 s13, 0, {KGH}
    s_add_u32 s28, s28, s13
    s_cmp_lt_u32 s6, 2
    s_cselect_b32 s13, 4, 0
    s_add_u32 s28, s28, s13
    s_mul_i32 s13, s5, {KCH}
    s_mul_i32 s14, s6, {KCP}
    s_add_u32 s13, s13, s14
    s_add_u32 s13, s13, {KC0}
    s_waitcnt lgkmcnt(0)
    """)
    k(f"""
    s_mov_b32 s8, s18
    s_mov_b32 s9, s19
    buffer_load_dwordx4 v[64:67], v5, s[8:11], {ST} offen
    buffer_load_dwordx4 v[68:71], v5, s[8:11], {ST} offen offset:16
    buffer_load_dwordx2 v[72:73], v6, s[8:11], s12 offen
    buffer_load_dwordx2 v[74:75], v6, s[8:11], s12 offen offset:64
    s_mov_b32 m0, s13
    s_barrier
    """)
    for c in range(4): k(f"buffer_load_dwordx4 v3, s[8:11], s28 offen offset:{1024*c} lds")
    k(f"""
    v_and_b32 v7, 15, v1
    v_lshrrev_b32 v8, 4, v1
    v_lshlrev_b32 v6, 5, v7
    v_lshl_add_u32 v6, v8, 3, v6
    v_lshrrev_b32 v5, 1, v7
    v_lshlrev_b32 v5, 15, v5
    v_and_b32 v9, 1, v7
    v_lshl_add_u32 v5, v9, 5, v5
    v_lshl_add_u32 v5, v8, 3, v5
    s_lshl_b32 s12, s7, 6
    s_lshl_b32 s14, s6, 19
    s_add_u32 s12, s12, s14
    s_add_u32 s26, s12, {XB}
    s_add_u32 s27, s26, 0x40000
    s_add_u32 s12, s12, {XA}
    buffer_load_dwordx2 v[48:49], v5, s[8:11], s12 offen
    s_add_u32 s12, s12, 0x40000
    buffer_load_dwordx2 v[50:51], v5, s[8:11], s12 offen
    s_lshl_b32 s12, s7, 1
    v_mov_b32 v9, s12
    global_load_ushort v52, v9, s[16:17]
    v_mov_b32 v12, 0
    v_mov_b32 v13, 0
    v_mov_b32 v14, 0
    v_mov_b32 v15, 0
    s_add_u32 s13, s13, 4096
    v_add_u32 v9, s13, v3
    s_mul_i32 s13, s5, {UP}
    v_add_u32 v10, s13, v3
    v_cmp_gt_u32 vcc, 2, v1
    s_and_saveexec_b64 s[28:29], vcc
    ds_write_b128 v9, v[12:15]
    s_mov_b64 exec, s[28:29]
    v_cmp_gt_u32 vcc, 30, v1
    s_and_saveexec_b64 s[28:29], vcc
    ds_write_b128 v10, v[12:15]
    s_mov_b64 exec, s[28:29]
    v_and_b32 v9, 3, v7
    v_mul_u32_u24 v9, {KCP}, v9
    v_lshrrev_b32 v10, 2, v7
    v_lshlrev_b32 v10, 3, v10
    v_sub_u32 v9, v9, v10
    v_lshl_add_u32 v9, v8, 4, v9
    s_mul_i32 s13, s5, {KCH}
    s_add_u32 s13, s13, {KC0+24}
    s_lshl_b32 s14, s6, 7
    s_sub_u32 s13, s13, s14
    v_add_u32 v10, s13, v9
    v_lshlrev_b32 v11, 5, v7
    v_lshl_add_u32 v11, v8, 4, v11
    s_mul_i32 s13, s5, {UP}
    s_add_u32 s13, s13, 384
    s_sub_u32 s13, s13, s14
    v_add_u32 v11, s13, v11
    s_mov_b32 s24, {f32hex(1.0/512)}
    s_mov_b32 s25, {f32hex(1e-5)}
    """)
    for r in range(32): k(f"v_mov_b32 v{16+r}, 0")
    k("s_waitcnt vmcnt(9)")
    for r in range(4):
        k(f"v_mul_f32 v{64+2*r}, s24, v{64+2*r}")
        k(f"v_mul_f32 v{65+2*r}, s24, v{65+2*r}")
    for r in range(4): k(f"v_fma_f32 v{65+2*r}, -v{64+2*r}, v{64+2*r}, v{65+2*r}")
    for r in range(4): k(f"v_max_f32 v{65+2*r}, 0, v{65+2*r}")
    k("v_cvt_pk_bf16_f32 v76, v64, v66")
    k("v_cvt_pk_bf16_f32 v77, v68, v70")
    k("v_cvt_pk_bf16_f32 v78, v65, v67")
    k("v_cvt_pk_bf16_f32 v79, v69, v71")
    unpack(k, 84, 85, 78); unpack(k, 86, 87, 79); unpack(k, 80, 81, 76); unpack(k, 82, 83, 77)
    for r in range(4): k(f"v_add_f32 v{84+r}, s25, v{84+r}")
    k("v_cvt_pk_bf16_f32 v78, v84, v85")
    k("v_cvt_pk_bf16_f32 v79, v86, v87")
    unpack(k, 84, 85, 78); unpack(k, 86, 87, 79)
    for r in range(4): k(f"v_sqrt_f32 v{84+r}, v{84+r}")
    k("s_waitcnt vmcnt(7)")
    for ch in range(2): unpack(k, 88+4*ch, 89+4*ch, 72+2*ch); unpack(k, 90+4*ch, 91+4*ch, 73+2*ch)
    k("v_cvt_pk_bf16_f32 v78, v84, v85")
    k("v_cvt_pk_bf16_f32 v79, v86, v87")
    for ch in range(2):
        for j in (0, 2): k(f"v_pk_add_f32 {P(88+4*ch+j)}, {P(88+4*ch+j)}, {P(80+j)} neg_lo:[0,1] neg_hi:[0,1]")
    unpack(k, 84, 85, 78); unpack(k, 86, 87, 79)
    for ch in range(2):
        k(f"v_cvt_pk_bf16_f32 v{72+2*ch}, v{88+4*ch}, v{89+4*ch}")
        k(f"v_cvt_pk_bf16_f32 v{73+2*ch}, v{90+4*ch}, v{91+4*ch}")
    for r in range(4): k(f"v_rcp_f32 v{84+r}, v{84+r}")
    for ch in range(2): unpack(k, 88+4*ch, 89+4*ch, 72+2*ch); unpack(k, 90+4*ch, 91+4*ch, 73+2*ch)
    for ch in range(2):
        for j in (0, 2): k(f"v_pk_mul_f32 {P(88+4*ch+j)}, {P(88+4*ch+j)}, {P(84+j)}")
    for ch in range(2):
        k(f"v_cvt_pk_bf16_f32 v{72+2*ch}, v{88+4*ch}, v{89+4*ch}")
        k(f"v_cvt_pk_bf16_f32 v{73+2*ch}, v{90+4*ch}, v{91+4*ch}")
        k(f"ds_write_b64 v4, v[{72+2*ch}:{73+2*ch}] offset:{480 + ch*UP}")
    k(f"""
    s_and_b32 s52, s2, 7
    s_lshr_b32 s53, s2, 3
    s_mul_i32 s55, s52, 30
    s_add_u32 s55, s55, s53
    s_sub_u32 s55, s55, 2
    s_cmp_ge_u32 s52, 6
    s_cselect_b32 s53, 1, 0
    s_add_u32 s55, s55, s53
    s_cmp_eq_u32 s52, 7
    s_cselect_b32 s53, 1, 0
    s_add_u32 s55, s55, s53
    s_cmp_ge_u32 s55, 88
    s_cselect_b32 s54, 88, 0
    s_cselect_b32 s53, 4, 0
    s_sub_u32 s12, s55, s54
    s_lshr_b32 s52, s12, 2
    s_and_b32 s12, s12, 3
    s_add_u32 s53, s53, s12
    s_sub_u32 s12, s55, 176
    s_mul_i32 s13, s12, 171
    s_lshr_b32 s13, s13, 9
    s_mul_i32 s54, s13, 3
    s_sub_u32 s54, s12, s54
    s_add_u32 s54, s54, 8
    s_cmp_ge_u32 s55, 176
    s_cselect_b32 s52, s13, s52
    s_cselect_b32 s53, s54, s53
    s_lshl_b32 s54, s53, 3
    s_add_u32 s54, s54, s3
    s_lshl_b32 s55, s54, 15
    s_add_u32 s55, s55, {WGU}
    s_mov_b32 s20, s18
    s_mov_b32 s21, s19
    s_mov_b32 s23, 0x00020000
    s_cmp_lt_u32 s2, {NPROD}
    s_cselect_b32 s22, 0, s10
    s_cselect_b32 s55, 0, s55
    v_mov_b32 v9, {FLG}
    ds_write_b128 v9, v[12:15]
    ds_write_b128 v9, v[12:15] offset:16
    ds_write_b128 v9, v[12:15] offset:32
    ds_write_b128 v9, v[12:15] offset:48
    """)
    k("s_waitcnt vmcnt(0) lgkmcnt(0)")
    k("s_barrier")
    lg = Q(k, 'lgkmcnt', 15)
    pool = [56+4*i for i in range(28)]
    reg = {}
    def ld(i0p, kind, s):
        r = pool.pop(0); reg[(i0p, kind, s)] = r
        if kind == 'A':
            off = 64*(63 - i0p - 8*s)
            lg.issue(f"ds_read_b64 v[{r}:{r+1}], v10 offset:{off}", (i0p, kind, s))
            lg.issue(f"ds_read_b64 v[{r+2}:{r+3}], v10 offset:{off+8}", (i0p, kind, s))
        else:
            lg.issue(f"ds_read_b128 v[{r}:{r+3}], v11 offset:{512*s + 64*(1-i0p)}", (i0p, kind, s))
    order = [(i, kd, s) for i in range(2) for s in range(8) for kd in 'AB']
    mf = []
    for i in range(2):
        for m in range(8):
            for s in range(8):
                for w in range(8):
                    if s + w <= 7 and max(s, w) == m: mf.append((i, s, w))
    last_use = {}
    for n, (i, s, w) in enumerate(mf):
        last_use[(i, 'A', s)] = n; last_use[(i, 'B', w)] = n
    li = 0; npre = 0
    for _ in range(8): ld(*order[li]); li += 1
    freed = []
    for n, (i, s, w) in enumerate(mf):
        while (i, 'A', s) not in reg or (i, 'B', w) not in reg:
            ld(*order[li]); li += 1
        lg.need((i, 'A', s), (i, 'B', w))
        c = s + w; a = reg[(i, 'A', s)]; b = reg[(i, 'B', w)]
        k(f"v_mfma_f32_16x16x32_bf16 v[{16+4*c}:{19+4*c}], v[{a}:{a+3}], v[{b}:{b+3}], v[{16+4*c}:{19+4*c}]")
        for key in [(i, 'A', s), (i, 'B', w)]:
            if last_use[key] == n: freed.append((n+3, reg[key]))
        while freed and freed[0][0] <= n: pool.append(freed.pop(0)[1])
        if n % 3 == 1 and npre < NWP: wpre(npre); npre += 1
        if li < len(order) and pool and (lg.n - lg.done) <= 12:
            ld(*order[li]); li += 1
    assert li == len(order) and npre == NWP
    k(f"""
    s_lshl_b32 s13, s5, 15
    s_lshl_b32 s14, s6, 10
    s_add_u32 s13, s13, s14
    s_add_u32 s13, s13, {RED}
    v_add_u32 v9, s13, v3
    s_lshl_b32 s13, s5, 15
    s_lshl_b32 s14, s6, 13
    s_add_u32 s13, s13, s14
    s_add_u32 s13, s13, {RED}
    v_add_u32 v12, s13, v3
    s_mul_i32 s13, s5, {UP}
    s_lshl_b32 s14, s6, 10
    s_add_u32 s13, s13, s14
    s_add_u32 s13, s13, 480
    v_add_u32 v13, s13, v6
    ds_read_b64 v[88:89], v13
    ds_read_b64 v[90:91], v13 offset:512
    """)
    for p in range(4):
        if p < 3:
            k(f"s_cmp_lg_u32 s6, {p}")
            k(f"s_cbranch_scc1 L_{N}_rv{p+1}")
        for c in range(8):
            if c in (2*p, 2*p+1): continue
            k(f"ds_write_b128 v9, v[{16+4*c}:{19+4*c}] offset:{4096*c}")
        for r in range(8): k(f"v_mov_b32 v{56+r}, v{16+8*p+r}")
        others = [q for q in range(4) if q != p]
        for j, q in enumerate(others): k(f"v_add_u32 v{92+j}, {1024*q}, v12")
        if p < 3:
            k(f"s_branch L_{N}_ep")
            k.label(f"L_{N}_rv{p+1}")
    k.label(f"L_{N}_ep")
    k("s_waitcnt lgkmcnt(6)")
    k("v_lshlrev_b32 v52, 16, v52")
    k("v_mov_b32 v53, v52")
    for j in range(4): unpack(k, 96+2*j, 97+2*j, 88+j)
    for j in range(4): k(f"v_pk_mul_f32 {P(96+2*j)}, {P(96+2*j)}, v[52:53]")
    for j in range(4): k(f"v_cvt_pk_bf16_f32 v{88+j}, v{96+2*j}, v{97+2*j}")
    k("s_waitcnt lgkmcnt(0)")
    k("s_barrier")
    for t in range(2):
        for j in range(3): k(f"ds_read_b128 v[{64+12*t+4*j}:{67+12*t+4*j}], v{92+j} offset:{4096*t}")
    for j in range(4): unpack(k, 96+2*j, 97+2*j, 88+j)
    for j in range(4): unpack(k, 104+2*j, 105+2*j, 48+j)
    for t in range(2):
        k(f"s_waitcnt lgkmcnt({3-3*t})")
        for j in (0, 2):
            k(f"v_pk_add_f32 {P(56+4*t+j)}, {P(56+4*t+j)}, {P(64+12*t+j)}")
            k(f"v_pk_add_f32 {P(68+12*t+j)}, {P(68+12*t+j)}, {P(72+12*t+j)}")
        for j in (0, 2): k(f"v_pk_add_f32 {P(56+4*t+j)}, {P(56+4*t+j)}, {P(68+12*t+j)}")
    for j in range(4): k(f"v_cvt_pk_bf16_f32 v{64+j}, v{56+2*j}, v{57+2*j}")
    for j in range(4): unpack(k, 56+2*j, 57+2*j, 64+j)
    for j in range(4): k(f"v_pk_add_f32 {P(56+2*j)}, {P(56+2*j)}, {P(96+2*j)}")
    for j in range(4): k(f"v_cvt_pk_bf16_f32 v{64+j}, v{56+2*j}, v{57+2*j}")
    for j in range(4): unpack(k, 56+2*j, 57+2*j, 64+j)
    for j in range(4): k(f"v_pk_add_f32 {P(56+2*j)}, {P(56+2*j)}, {P(104+2*j)}")
    for j in range(4): k(f"v_cvt_pk_bf16_f32 v{64+j}, v{56+2*j}, v{57+2*j}")
    k("buffer_store_dwordx2 v[64:65], v5, s[8:11], s26 offen sc1")
    k("buffer_store_dwordx2 v[66:67], v5, s[8:11], s27 offen sc1")
    vm = Q(k, 'vmcnt', 63); lg = Q(k, 'lgkmcnt', 15)
    def unit(p):
        for i in range(3):
            k(f"s_add_u32 m0, s25, {p*24576 + i*1024}")
            k(f"s_add_u32 s14, s12, {i*32768 + p*8192}")
            vm.issue(f"buffer_load_dwordx4 v3, s[8:11], s14 offen {XSC} lds", f"U{p}")
    def wl(ks):
        r = wreg(ks)
        k(f"s_add_u32 s14, s55, {4096*(ks//4)}")
        vm.issue(f"buffer_load_dwordx4 v[{r}:{r+3}], v3, s[8:11], s14 offen offset:{1024*(ks&3)}", f"W{ks}")
    for ks in range(NWP): vm.tags[f"W{ks}"] = 0
    def csl():
        k(f"""
        v_lshlrev_b32 v10, 4, v7
        s_lshl_b32 s24, s6, 6
        s_add_u32 s24, s24, {CS}
        """)
        for kh in range(2):
            for m in range(2):
                for q in range(2):
                    r = (CSV if kh == 0 else XF+32) + 4*(2*m + q)
                    vm.issue(f"buffer_load_dwordx4 v[{r}:{r+3}], v10, s[8:11], s24 offen offset:{32*q}", "CS")
                k(f"s_add_u32 s24, s24, {CSP}")
    def signal(p):
        k(f"v_mov_b32 v6, {p+1}")
        vm.need(f"U{p}")
        lg.issue("ds_write_b32 v2, v6", "sig")
    def dsetup():
        k(f"""
    s_and_b32 s30, s2, 7
    s_lshr_b32 s31, s2, 3
    s_lshl_b32 s30, s30, 2
    s_lshr_b32 s12, s31, 3
    s_add_u32 s30, s30, s12
    s_and_b32 s31, s31, 7
    s_bfe_u32 s12, s3, 0x10001
    s_lshl_b32 s32, s31, 1
    s_add_u32 s32, s32, s12
    s_and_b32 s12, s3, 1
    s_lshl_b32 s33, s30, 1
    s_add_u32 s33, s33, s12
    s_xor_b32 s12, s32, 1
    s_mul_i32 s34, s32, {86*1024}
    s_mul_i32 s35, s12, {86*1024}
    s_xor_b32 s12, s33, 1
    s_mul_i32 s36, s33, {86*1024}
    s_mul_i32 s37, s12, {86*1024}
    s_lshl_b32 s12, s3, 10
    s_add_u32 s13, s12, {WD}
    s_add_u32 s34, s34, s13
    s_add_u32 s35, s35, s13
    s_add_u32 s13, s12, {HB}
    s_add_u32 s36, s36, s13
    s_add_u32 s37, s37, s13
    s_cmp_ge_u32 s3, 6
    s_cselect_b32 s22, 0, s10
        """)
    def wdl(n, i, vm=None):
        r = WD0 + 8*n + 4*i
        k(f"s_add_u32 s14, s{34+i}, {8192*n}")
        srd = "s[20:23]" if n == 10 else "s[8:11]"
        ins = f"buffer_load_dwordx4 v[{r}:{r+3}], v3, {srd}, s14 offen"
        if vm: vm.issue(ins, "WD")
        else: k(ins)
    wdq = [(n, i) for n in range(11) for i in range(2)]
    k("s_waitcnt vmcnt(0)")
    k("s_barrier")
    k(f"""
    v_mov_b32 v4, {FLG}
    v_lshrrev_b32 v7, 5, v1
    s_lshl_b32 s12, s2, 2
    s_add_u32 s12, s12, {CF}
    v_lshlrev_b32 v8, 10, v1
    v_mov_b32 v9, 1
    s_cmp_lg_u32 s3, 0
    s_cbranch_scc1 L_{N}_np
    s_mov_b64 exec, {(1<<CFR)-1}
    buffer_store_dword v9, v8, s[8:11], s12 offen sc1
    s_mov_b64 exec, -1
    L_{N}_np:
    s_cmp_lt_u32 s2, {NPROD}
    s_cbranch_scc1 L_{N}_prod
    """)
    dsetup()
    k(f"""
    s_mov_b32 s4, s52
    s_mov_b32 s5, s53
    s_mov_b32 s6, s54
    s_mul_i32 s12, s4, 98304
    s_lshl_b32 s13, s3, 10
    s_add_u32 s12, s12, s13
    s_add_u32 s12, s12, {XB}
    s_mul_i32 s25, s3, 3072
    """)
    vm.n += 1
    for ks in range(NWP, NWP2): wl(ks)
    csl()
    k(f"""
    v_and_b32 v6, 15, v1
    v_lshrrev_b32 v12, 2, v6
    v_lshl_add_u32 v12, v7, 3, v12
    v_lshlrev_b32 v12, 6, v12
    v_and_b32 v8, 3, v6
    v_lshl_add_u32 v12, v8, 3, v12
    v_and_b32 v8, 16, v1
    v_lshl_add_u32 v12, v8, 1, v12
    v_add_u32 v14, 49152, v12
    s_lshl_b32 s15, s3, 2
    v_add_u32 v2, s15, v4
    s_mov_b32 s28, 0
    s_mov_b32 s29, 0
    """)
    for r in range(48): k(f"v_mov_b32 v{ACC+r}, 0")
    vm.need("CS")
    for j in range(0, 16, 2): k(f"v_pk_add_f32 {P(CSV+j)}, {P(CSV+j)}, {P(XF+32+j)}")
    k(f"""
    s_mov_b32 s13, 0
    s_cmp_eq_u32 s3, 0
    s_cbranch_scc0 L_{N}_cwg
    s_sleep {CFD}
    s_and_b32 s15, s2, {CFR-1}
    s_lshl_b32 s15, s15, 10
    s_add_u32 s15, s15, {CF}
    L_{N}_cqg:
    buffer_load_dwordx4 v[8:11], v3, s[8:11], s15 offen sc1
    s_add_u32 s13, s13, 1
    s_waitcnt vmcnt(0)
    v_and_b32 v8, v8, v9
    v_and_b32 v10, v10, v11
    v_and_b32 v8, v8, v10
    v_cmp_ne_u32 vcc, 1, v8
    s_cmp_eq_u64 vcc, 0
    s_cbranch_scc1 L_{N}_crg
    s_cmp_ge_u32 s13, {SPIN}
    s_cbranch_scc1 L_{N}_crg
    s_sleep {CFS}
    s_branch L_{N}_cqg
    L_{N}_crg:
    v_mov_b32 v8, 1
    ds_write_b32 v4, v8 offset:52
    s_branch L_{N}_cdg
    L_{N}_cwg:
    ds_read_b32 v8, v4 offset:52
    s_waitcnt lgkmcnt(0)
    v_readfirstlane_b32 s13, v8
    s_cmp_eq_u32 s13, 1
    s_cbranch_scc1 L_{N}_cdg
    s_sleep 1
    s_branch L_{N}_cwg
    L_{N}_cdg:
    """)
    stamp(k, 2)
    unit(0); unit(1)
    signal(0)
    unit(2); unit(3)
    def poll(half, need, tag):
        c = 28 + half
        k(f"""
        s_cmp_ge_u32 s{c}, {need}
        s_cbranch_scc1 L_{N}_pd{tag}
        L_{N}_pl{tag}:
        ds_read_b128 v[8:11], v4 offset:{16*half}
        s_waitcnt lgkmcnt(0)
        v_min_u32 v8, v8, v9
        v_min3_u32 v8, v8, v10, v11
        s_nop 0
        v_readfirstlane_b32 s{c}, v8
        s_cmp_ge_u32 s{c}, {need}
        s_cbranch_scc0 L_{N}_pl{tag}
        L_{N}_pd{tag}:
        """)
    def xr(ks, lb, h):
        b = 12 if ks < 16 else 14
        r = XF+12*(ks&3)+4*lb+2*h
        lg.issue(f"ds_read_b64_tr_b16 v[{r}:{r+1}], v{b} offset:{3072*(ks%16)+1024*lb+256*h}", f"x{ks}_{lb}")
    poll(0, 1, "a")
    for st in range(2):
        for lb in range(3): xr(st, lb, 0); xr(st, lb, 1)
    FCK = int(os.environ.get('FCK', '27'))
    for ks in range(32):
        if ks+2 < 32 and (ks+2) % 4 == 0: poll(((ks+2)//4) & 1, (ks+2)//8 + 1, f"m{ks}")
        vm.need(f"W{ks}")
        if ks in (0, 8, 16, 24): stamp(k, {0:1, 8:4, 16:7, 24:8}[ks])
        if ks in (2, 5, 8): signal({2:1, 5:2, 8:3}[ks])
        w = wreg(ks)
        for lb in range(3):
            lg.need(f"x{ks}_{lb}")
            a = ACC+16*lb; x = XF+12*(ks&3)+4*lb
            k(f"v_mfma_f32_32x32x16_bf16 v[{a}:{a+15}], v[{w}:{w+3}], v[{x}:{x+3}], v[{a}:{a+15}]")
            if ks+2 < 32: xr(ks+2, lb, 0); xr(ks+2, lb, 1)
        for j in late_w.get(ks, []): wl(j)
        j = ks - WDLAG
        if 2 <= j < NDI: wdl(j >> 1, j & 1, vm=vm)
        if ks == FCK:
            k(f"""
            v_and_b32 v15, 31, v1
            v_lshlrev_b32 v15, 3, v15
            s_mul_i32 s15, s4, 768
            s_add_u32 s15, s15, {FCG}
            s_cmp_eq_u32 s4, 21
            s_cselect_b32 s47, 0, 256
            s_add_u32 s48, s15, s47
            s_add_u32 s49, s48, s47
            s_mov_b32 s47, s15
            """)
            for lb in range(3): vm.issue(f"buffer_load_dwordx2 v[{FG+2*lb}:{FG+2*lb+1}], v15, s[8:11], s{47+lb} offen sc1", "FG")
    stamp(k, 3)
    k(f"""
    s_cmp_ge_u32 s6, 86
    s_cbranch_scc1 L_{N}_drest
    s_mov_b32 s26, {f32hex(-LOG2E)}
    s_mov_b32 s27, 0
    """)
    vm.need("FG")
    k(f"""
    s_branch L_{N}_gc
    L_{N}_gp:
    s_sleep 4
    """)
    for lb in range(3): k(f"buffer_load_dwordx2 v[{FG+2*lb}:{FG+2*lb+1}], v15, s[8:11], s{47+lb} offen sc1")
    k(f"""
    s_add_u32 s27, s27, 1
    s_waitcnt vmcnt(0)
    L_{N}_gc:
    v_and_b32 v8, v{FG+1}, v{FG+3}
    v_and_b32 v8, v8, v{FG+5}
    v_cmp_ne_u32 vcc, 1, v8
    s_cmp_eq_u64 vcc, 0
    s_cbranch_scc1 L_{N}_gd
    s_cmp_lt_u32 s27, {SPIN}
    s_cbranch_scc1 L_{N}_gp
    L_{N}_gd:
    """)
    for lb in range(3):
        c = FCR+6*lb
        k(f"v_and_b32 v{c+4}, 0xffff0000, v{FG+2*lb}")
        k(f"v_lshlrev_b32 v{c}, 16, v{FG+2*lb}")
    for lb in range(3): k(f"v_rcp_f32 v{FCR+6*lb+2}, v{FCR+6*lb+4}")
    for lb in range(3):
        c = FCR+6*lb
        k(f"v_sub_f32 v{c+1}, 0, v{c}")
        k(f"v_sub_f32 v{c}, 0, v{c}")
        k(f"v_mov_b32 v{c+5}, v{c+4}")
        k(f"v_mul_f32 v{c+3}, s26, v{c+2}")
        k(f"v_mul_f32 v{c+2}, s26, v{c+2}")
    k(f"""
    s_mul_i32 s15, s4, {3*86*1024}
    s_lshl_b32 s12, s6, 10
    s_add_u32 s15, s15, s12
    s_add_u32 s15, s15, {HB}
    """)
    for lb in range(3):
        g = ACC+16*lb; u = g+8; c = FCR+6*lb; o = XF+4*lb
        for j in range(0, 8, 2): k(f"v_pk_fma_f32 {P(g+j)}, {P(CSV+j)}, {P(c)}, {P(g+j)}")
        for j in range(0, 8, 2): k(f"v_pk_mul_f32 {P(g+j)}, {P(g+j)}, {P(c+2)}")
        for j in range(8):
            k(f"v_exp_f32 v{g+j}, v{g+j}")
        for j in range(0, 8, 2): k(f"v_pk_fma_f32 {P(u+j)}, {P(CSV+8+j)}, {P(c)}, {P(u+j)}")
        for j in range(0, 8, 2): k(f"v_pk_fma_f32 {P(g+j)}, {P(g+j)}, {P(c+4)}, {P(c+4)}")
        for j in range(8):
            k(f"v_rcp_f32 v{g+j}, v{g+j}")
        k("s_nop 0")
        for j in range(0, 8, 2): k(f"v_pk_mul_f32 {P(u+j)}, {P(u+j)}, {P(g+j)}")
        for j in range(4): k(f"v_cvt_pk_bf16_f32 v{o+j}, v{u+2*j}, v{u+2*j+1}")
        k(f"buffer_store_dwordx4 v[{o}:{o+3}], v3, s[8:11], s15 offen sc1")
        if lb == 0:
            k(f"s_cmp_eq_u32 s4, 21")
            k(f"s_cbranch_scc1 L_{N}_pub")
        k(f"s_add_u32 s15, s15, {86*1024}")
    k(f"""
    L_{N}_pub:
    s_lshl_b32 s15, s4, 9
    s_lshl_b32 s12, s3, 6
    s_add_u32 s15, s15, s12
    s_lshl_b32 s12, s5, 2
    s_add_u32 s15, s15, s12
    s_add_u32 s15, s15, {HF}
    v_mov_b32 v8, 0
    v_mov_b32 v9, 1
    s_waitcnt vmcnt(0)
    s_mov_b64 exec, 1
    buffer_store_dword v9, v8, s[8:11], s15 offen sc1
    s_mov_b64 exec, -1
    """)
    stamp(k, 5)
    k(f"s_branch L_{N}_drest")
    k.label(f"L_{N}_dall")
    dsetup()
    for (n, i) in wdq[2:NDI]: wdl(n, i)
    k.label(f"L_{N}_drest")
    k("s_waitcnt lgkmcnt(0)")
    k("s_barrier")
    for (n, i) in wdq[:2] + wdq[NDI:]: wdl(n, i)
    for r in range(64): k(f"v_mov_b32 v{A2+r}, 0")
    k(f"""
    s_lshl_b32 s12, s30, 1
    s_mul_i32 s13, s12, 171
    s_lshr_b32 s13, s13, 9
    s_add_u32 s12, s12, 1
    s_mul_i32 s12, s12, 171
    s_lshr_b32 s12, s12, 9
    s_lshl_b32 s13, s13, 9
    s_lshl_b32 s12, s12, 9
    s_add_u32 s38, s13, {HF}
    s_add_u32 s39, s12, {HF}
    v_lshlrev_b32 v10, 2, v1
    v_and_b32 v8, 15, v1
    v_cmp_gt_u32 s[26:27], 11, v8
    v_sub_u32 v9, 11, v7
    v_cmp_gt_u32 s[52:53], v9, v8
    v_and_b32 v6, 31, v1
    v_lshlrev_b32 v5, 8, v7
    v_lshl_add_u32 v5, v6, 1, v5
    s_lshl_b32 s24, s32, 11
    s_lshl_b32 s25, s33, 15
    s_add_u32 s24, s24, s25
    s_lshr_b32 s12, s3, 2
    s_lshl_b32 s12, s12, 10
    s_add_u32 s24, s24, s12
    s_add_u32 s25, s24, {XC}
    s_add_u32 s24, s24, {XB}
    """)
    for n in range(8):
        q, r = n >> 2, n & 3
        k(f"buffer_load_ushort v{RES+n}, v5, s[8:11], s24 offen offset:{(8*q+r)*64} sc1")
    k(f"""
    s_mov_b32 s13, 0
    s_cmp_eq_u32 s3, 0
    s_cbranch_scc0 L_{N}_hw
    L_{N}_hq:
    buffer_load_dword v12, v10, s[8:11], s38 offen sc1
    buffer_load_dword v13, v10, s[8:11], s39 offen sc1
    buffer_load_dword v14, v10, s[8:11], s38 offen offset:256 sc1
    buffer_load_dword v15, v10, s[8:11], s39 offen offset:256 sc1
    s_add_u32 s13, s13, 1
    s_waitcnt vmcnt(0)
    v_and_b32 v12, v12, v13
    v_and_b32 v14, v14, v15
    v_cmp_ne_u32 vcc, 1, v12
    v_cmp_ne_u32 s[54:55], 1, v14
    s_and_b64 vcc, vcc, s[26:27]
    s_and_b64 s[54:55], s[54:55], s[52:53]
    s_or_b64 vcc, vcc, s[54:55]
    s_cbranch_scc0 L_{N}_hr
    s_cmp_ge_u32 s13, {SPIN}
    s_cbranch_scc1 L_{N}_hr
    s_sleep 3
    s_branch L_{N}_hq
    L_{N}_hr:
    v_mov_b32 v12, 1
    ds_write_b32 v4, v12 offset:48
    s_branch L_{N}_hd
    L_{N}_hw:
    ds_read_b32 v12, v4 offset:48
    s_waitcnt lgkmcnt(0)
    v_readfirstlane_b32 s12, v12
    s_cmp_eq_u32 s12, 1
    s_cbranch_scc1 L_{N}_hd
    s_sleep 1
    s_branch L_{N}_hw
    L_{N}_hd:
    s_mov_b32 s22, {WS_USED}
    v_mov_b32 v12, v3
    """)
    stamp(k, 6)
    vm = Q(k, 'vmcnt', 63)
    HD = 6
    def hload(n):
        if n == 10:
            k("s_cmp_ge_u32 s3, 6")
            k("s_cselect_b32 s22, 0, s22")
        for i in range(2):
            r = HR + 8*(n % HD) + 4*i
            vm.issue(f"buffer_load_dwordx4 v[{r}:{r+3}], v12, s[20:23], s{36+i} offen sc1", f"S{n}")
        k("v_add_u32 v12, 8192, v12")
    for n in range(HD): hload(n)
    k("s_and_b32 s13, s3, 3")
    for a in range(4):
        k(f"""
        s_xor_b32 s12, s13, {a}
        s_lshl_b32 s12, s12, 14
        s_lshl_b32 s15, s3, 11
        s_add_u32 s12, s12, s15
        v_add_u32 v{8+a}, s12, v3
        """)
    k(f"""
    s_lshl_b32 s12, s3, 14
    v_add_u32 v13, s12, v3
    v_add_u32 v14, 0x10000, v8
    v_add_u32 v15, 0x10000, v9
    v_add_u32 v0, 0x10000, v10
    v_add_u32 v2, 0x10000, v11
    """)
    for n in range(11):
        vm.need(f"S{n}")
        for ad in range(2):
            for al in range(2):
                a = A2 + 16*(2*ad+al); w = WD0+8*n+4*ad; h = HR+8*(n % HD)+4*al
                k(f"v_mfma_f32_32x32x16_bf16 v[{a}:{a+15}], v[{w}:{w+3}], v[{h}:{h+3}], v[{a}:{a+15}]")
        if n >= 1 and n-1+HD < 11: hload(n-1+HD)
    k("s_nop 3")
    lg = Q(k, 'lgkmcnt', 15)
    hi = [14, 15, 0, 2]
    for n in range(8): k(f"v_lshlrev_b32 v{RES+n}, 16, v{RES+n}")
    for a in range(4):
        for q in range(4):
            ad = (8+a) if q < 2 else hi[a]
            lg.issue(f"ds_write_b128 v{ad}, v[{A2+16*a+4*q}:{A2+16*a+4*q+3}] offset:{1024*(q&1)}", "rw")
    lg.drain()
    k("s_barrier")
    FV = 16
    for q in range(2):
        for s_ in range(8):
            lg.issue(f"ds_read_b128 v[{FV+32*q+4*s_}:{FV+32*q+4*s_+3}], v13 offset:{2048*s_+1024*q}", f"rr{q}_{s_}")
    for q in range(2):
        b = FV+32*q
        for st in (1, 2, 4):
            for s_ in range(0, 8, 2*st):
                lg.need(f"rr{q}_{min(7, s_+2*st-1)}")
                for j in (0, 2): k(f"v_pk_add_f32 {P(b+4*s_+j)}, {P(b+4*s_+j)}, {P(b+4*(s_+st)+j)}")
        k(f"v_cvt_pk_bf16_f32 v{T+2*q}, v{b}, v{b+1}")
        k(f"v_cvt_pk_bf16_f32 v{T+2*q+1}, v{b+2}, v{b+3}")
        unpack(k, b, b+1, T+2*q); unpack(k, b+2, b+3, T+2*q+1)
        for j in (0, 2): k(f"v_pk_add_f32 {P(b+j)}, {P(b+j)}, {P(RES+4*q+j)}")
        k(f"v_cvt_pk_bf16_f32 v{T+2*q}, v{b}, v{b+1}")
        k(f"v_cvt_pk_bf16_f32 v{T+2*q+1}, v{b+2}, v{b+3}")
    k("s_cmp_eq_u32 s93, 1")
    k(f"s_cbranch_scc1 L_{N}_out")
    k("v_mov_b32 v12, 0")
    k("v_mov_b32 v13, 0")
    k("v_mov_b32 v14, 0x3f803f80")
    for q in range(2):
        for r in range(4):
            op = "buffer_store_short_d16_hi" if r & 1 else "buffer_store_short"
            k(f"{op} v{T+2*q+(r>>1)}, v5, s[8:11], s25 offen offset:{(8*q+r)*64}")
        for j in range(2):
            k(f"v_dot2_f32_bf16 v12, v{T+2*q+j}, v14, v12")
            k(f"v_dot2_f32_bf16 v13, v{T+2*q+j}, v{T+2*q+j}, v13")
    k(f"""
    s_nop 2
    v_permlane32_swap_b32 v12, v13
    v_lshlrev_b32 v5, 3, v6
    v_lshl_add_u32 v5, v7, 2, v5
    s_lshl_b32 s12, s33, 8
    s_add_u32 s12, s12, {ST3}
    v_add_f32 v12, v12, v13
    buffer_atomic_add_f32 v12, v5, s[8:11], s12 offen
    s_branch L_{N}_e2
    L_{N}_out:
    s_mov_b32 s28, s96
    s_mov_b32 s29, s97
    s_mov_b32 s30, {2048*512*2}
    s_mov_b32 s31, 0x00020000
    v_lshlrev_b32 v5, 10, v6
    v_lshl_add_u32 v5, v7, 4, v5
    s_lshl_b32 s25, s33, 15
    s_lshl_b32 s12, s32, 6
    s_add_u32 s25, s25, s12
    s_lshr_b32 s12, s3, 2
    s_lshl_b32 s12, s12, 5
    s_add_u32 s25, s25, s12
    v_permlane32_swap_b32 v{T}, v{T+2}
    v_permlane32_swap_b32 v{T+1}, v{T+3}
    buffer_store_dwordx4 v[{T}:{T+3}], v5, s[28:31], s25 offen
    L_{N}_e2:
    """)
    stamp(k, 9)
    stamp_flush(k, slot, 10, 3)
    k(f"s_branch {E}")
    k.label(f"L_{N}_prod")
    k(f"""
    s_mul_i32 s4, s2, 5
    s_lshl_b32 s12, s4, 15
    s_lshl_b32 s13, s3, 10
    s_add_u32 s12, s12, s13
    s_mov_b32 s26, {2*MB}
    s_mov_b32 s27, 0x00020000
    s_add_u32 s24, s18, {XB}
    s_addc_u32 s25, s19, 0
    s_lshl_b32 s5, s3, 14
    v_and_b32 v6, 15, v1
    v_lshrrev_b32 v12, 2, v6
    v_lshl_add_u32 v12, v7, 3, v12
    v_lshlrev_b32 v12, 6, v12
    v_and_b32 v8, 3, v6
    v_lshl_add_u32 v12, v8, 3, v12
    v_and_b32 v8, 16, v1
    v_lshl_add_u32 v12, v8, 1, v12
    v_add_u32 v12, s5, v12
    v_mov_b32 v13, 0x3f803f80
    """)
    for r in range(10): k(f"v_mov_b32 v{16+r}, 0")
    k(f"""
    s_mov_b32 s13, 0
    s_cmp_eq_u32 s3, 0
    s_cbranch_scc0 L_{N}_cwp
    s_sleep {CFD}
    s_and_b32 s15, s2, {CFR-1}
    s_lshl_b32 s15, s15, 10
    s_add_u32 s15, s15, {CF}
    L_{N}_cqp:
    buffer_load_dwordx4 v[8:11], v3, s[8:11], s15 offen sc1
    s_add_u32 s13, s13, 1
    s_waitcnt vmcnt(0)
    v_and_b32 v8, v8, v9
    v_and_b32 v10, v10, v11
    v_and_b32 v8, v8, v10
    v_cmp_ne_u32 vcc, 1, v8
    s_cmp_eq_u64 vcc, 0
    s_cbranch_scc1 L_{N}_crp
    s_cmp_ge_u32 s13, {SPIN}
    s_cbranch_scc1 L_{N}_crp
    s_sleep {CFS}
    s_branch L_{N}_cqp
    L_{N}_crp:
    v_mov_b32 v8, 1
    ds_write_b32 v4, v8 offset:52
    s_branch L_{N}_cdp
    L_{N}_cwp:
    ds_read_b32 v8, v4 offset:52
    s_waitcnt lgkmcnt(0)
    v_readfirstlane_b32 s13, v8
    s_cmp_eq_u32 s13, 1
    s_cbranch_scc1 L_{N}_cdp
    s_sleep 1
    s_branch L_{N}_cwp
    L_{N}_cdp:
    """)
    stamp(k, 2)
    pv = Q(k, 'vmcnt', 63); pl = Q(k, 'lgkmcnt', 15)
    def pdma(n):
        k(f"s_add_u32 m0, s5, {1024*(n % 16)}")
        k(f"s_add_u32 s14, s12, {(n >> 2)*32768 + (n & 3)*8192}")
        pv.issue(f"buffer_load_dwordx4 v3, s[24:27], s14 offen sc1 lds", f"d{n}")
    def prd(n):
        pv.need(f"d{n}")
        r = 32 + 4*(n % 4)
        pl.issue(f"ds_read_b64_tr_b16 v[{r}:{r+1}], v12 offset:{1024*(n%16)}", f"r{n}")
        pl.issue(f"ds_read_b64_tr_b16 v[{r+2}:{r+3}], v12 offset:{1024*(n%16)+256}", f"r{n}")
    for n in range(16): pdma(n)
    prd(0); prd(1)
    for n in range(20):
        if n+2 < 20: prd(n+2)
        pl.need(f"r{n}")
        if n < 4: pdma(16+n)
        r = 32 + 4*(n % 4); lb = n >> 2
        for e in range(4):
            k(f"v_dot2_f32_bf16 v{16+2*lb}, v{r+e}, v13, v{16+2*lb}")
            k(f"v_dot2_f32_bf16 v{17+2*lb}, v{r+e}, v{r+e}, v{17+2*lb}")
    k("s_nop 2")
    for lb in range(5): k(f"v_permlane32_swap_b32 v{16+2*lb}, v{17+2*lb}")
    for lb in range(5): k(f"v_add_f32 v{16+2*lb}, v{16+2*lb}, v{17+2*lb}")
    k(f"""
    v_and_b32 v8, 31, v1
    v_lshlrev_b32 v8, 3, v8
    v_lshl_add_u32 v8, v7, 2, v8
    v_add_u32 v8, s5, v8
    """)
    for lb in range(5): k(f"ds_write_b32 v8, v{16+2*lb} offset:{256*lb}")
    k(f"""
    s_waitcnt lgkmcnt(0)
    s_barrier
    s_cmp_ge_u32 s3, 3
    s_cbranch_scc1 L_{N}_pe
    v_lshlrev_b32 v8, 3, v0
    v_add_u32 v9, 0x10000, v8
    """)
    for w in range(8): k(f"ds_read_b64 v[{32+2*w}:{33+2*w}], v{8 + (w >> 2)} offset:{16384*(w & 3)}")
    k("s_waitcnt lgkmcnt(0)")
    for st in (1, 2, 4):
        for w in range(0, 8, 2*st): k(f"v_pk_add_f32 {P(32+2*w)}, {P(32+2*w)}, {P(32+2*(w+st))}")
    k(f"""
    s_mov_b32 s24, {f32hex(1.0/512)}
    s_mov_b32 s25, {f32hex(1e-5)}
    v_mul_f32 v14, s24, v32
    v_mul_f32 v16, s24, v33
    v_fma_f32 v16, -v14, v14, v16
    v_max_f32 v16, 0, v16
    v_cvt_pk_bf16_f32 v14, v14, v16
    v_and_b32 v16, 0xffff0000, v14
    v_lshlrev_b32 v14, 16, v14
    v_add_f32 v16, s25, v16
    v_cvt_pk_bf16_f32 v16, v16, v16
    v_lshlrev_b32 v16, 16, v16
    v_sqrt_f32 v16, v16
    s_mul_i32 s4, s2, 1280
    s_add_u32 s4, s4, {FCG}
    v_cvt_pk_bf16_f32 v20, v14, v16
    v_mov_b32 v21, 1
    s_movk_i32 s6, 160
    v_cmp_gt_u32 vcc, s6, v0
    s_and_saveexec_b64 s[6:7], vcc
    buffer_store_dwordx2 v[20:21], v8, s[8:11], s4 offen sc1
    s_mov_b64 exec, s[6:7]
    s_nop 1
    L_{N}_pe:
    """)
    for i in (3, 5): stamp(k, i)
    k(f"s_branch L_{N}_dall")
    k.label(E)
    k("s_endpgm")
    return k
```

```python
import asmlib, os
from asmlib import *
from layout import *
from gen_k0 import f32hex, LOG2E
from gen_conv import unpack

MLP_GRID = 256
NPROD = 14; PCH = 19
XP = 192
SCR = 98304 + 6144
FLG = 131072
FCT = FLG + 128
MLP_LDS = FCT + 3072
RING = 8
SPIN = 400000
THR = int(os.environ.get('THR', '6'))

def gen_mlp(name, sets):
    k = Kernel(name, vgpr=256, sgpr=100)
    body_entry(k, sets)
    XIN, FCG, HB, HF, XOUT, slot = 's40', 's41', 's42', 's43', 's45', 's44'
    stamp(k, 0)
    E = f"L_{name}_end"; N = name
    ACC = 16; XF = 64; W = 112; CSV = 144; FCR = 112
    A2 = 16; HR = 80; WD0 = 168; RES = 128; T = 144; FG = 160
    P = lambda r: f"v[{r}:{r+1}]"
    k(f"""
    s_cmp_ge_u32 s2, {MLP_GRID}
    s_cbranch_scc1 {E}
    s_load_dwordx2 s[18:19], s[0:1], 104
    s_load_dwordx2 s[16:17], s[0:1], 88
    v_and_b32 v1, 63, v0
    v_lshrrev_b32 v2, 6, v0
    v_lshlrev_b32 v3, 4, v1
    v_readfirstlane_b32 s3, v2
    v_mov_b32 v4, {FLG}
    v_mov_b32 v8, 0
    v_mov_b32 v9, 0
    v_mov_b32 v10, 0
    v_mov_b32 v11, 0
    ds_write_b128 v4, v[8:11]
    ds_write_b128 v4, v[8:11] offset:16
    ds_write_b128 v4, v[8:11] offset:32
    ds_write_b128 v4, v[8:11] offset:48
    s_mov_b32 s10, {WS_USED}
    s_mov_b32 s11, 0x00020000
    s_mov_b32 s22, {WS_USED}
    s_mov_b32 s23, 0x00020000
    v_lshrrev_b32 v7, 5, v1
    s_cmp_lt_u32 s2, {NPROD}
    s_cbranch_scc1 L_{N}_prod
    s_and_b32 s4, s2, 7
    s_lshr_b32 s5, s2, 3
    s_mul_i32 s7, s4, 30
    s_add_u32 s7, s7, s5
    s_sub_u32 s7, s7, 2
    s_cmp_ge_u32 s4, 6
    s_cselect_b32 s5, 1, 0
    s_add_u32 s7, s7, s5
    s_cmp_eq_u32 s4, 7
    s_cselect_b32 s5, 1, 0
    s_add_u32 s7, s7, s5
    s_cmp_ge_u32 s7, 88
    s_cselect_b32 s6, 88, 0
    s_cselect_b32 s5, 4, 0
    s_sub_u32 s12, s7, s6
    s_lshr_b32 s4, s12, 2
    s_and_b32 s12, s12, 3
    s_add_u32 s5, s5, s12
    s_sub_u32 s12, s7, 176
    s_mul_i32 s13, s12, 171
    s_lshr_b32 s13, s13, 9
    s_mul_i32 s6, s13, 3
    s_sub_u32 s6, s12, s6
    s_add_u32 s6, s6, 8
    s_cmp_ge_u32 s7, 176
    s_cselect_b32 s4, s13, s4
    s_cselect_b32 s5, s6, s5
    s_lshl_b32 s6, s5, 3
    s_add_u32 s6, s6, s3
    s_lshl_b32 s14, s6, 15
    s_add_u32 s14, s14, {WGU}
    s_mul_i32 s12, s4, 192
    s_lshl_b32 s13, s3, 16
    s_add_u32 s12, s12, s13
    s_add_u32 s12, s12, {XIN}
    s_mul_i32 s25, s3, 3072
    v_lshrrev_b32 v13, 2, v1
    v_and_b32 v8, 3, v1
    v_lshlrev_b32 v13, 12, v13
    v_lshl_add_u32 v13, v8, 4, v13
    """)
    def srds():
        k("""
        s_waitcnt lgkmcnt(0)
        s_mov_b32 s8, s18
        s_mov_b32 s9, s19
        s_mov_b32 s20, s18
        s_mov_b32 s21, s19
        """)
    srds()
    vm = Q(k, 'vmcnt', 63); lg = Q(k, 'lgkmcnt', 15)
    def unit(p):
        for i in range(3):
            k(f"s_add_u32 m0, s25, {p*24576 + i*(1024-64)}")
            if i == 0 and p > 0: k(f"s_add_u32 s12, s12, {8*65536}")
            else: k("s_nop 0")
            vm.issue(f"buffer_load_dwordx4 v13, s[8:11], s12 offen offset:{64*i} lds", f"U{p}")
    def wl(ks):
        j = ks % RING
        if ks % 4 == 0 and ks > 0: k("s_add_u32 s14, s14, 4096")
        vm.issue(f"buffer_load_dwordx4 v[{W+4*j}:{W+4*j+3}], v3, s[8:11], s14 offen offset:{1024*(ks&3)}", f"W{ks}")
    def csl():
        k(f"""
        v_lshlrev_b32 v10, 4, v7
        s_lshl_b32 s24, s6, 6
        s_add_u32 s24, s24, {CS}
        """)
        for m in range(2):
            for q in range(2):
                j = 2*m + q
                vm.issue(f"buffer_load_dwordx4 v[{CSV+4*j}:{CSV+4*j+3}], v10, s[8:11], s24 offen offset:{32*q}", "CS")
            k(f"s_add_u32 s24, s24, {CSP}")
    def signal(p):
        k(f"v_mov_b32 v6, {p+1}")
        vm.need(f"U{p}")
        lg.issue("ds_write_b32 v2, v6", "sig")
    k("s_barrier")
    unit(0)
    wl(0); wl(1); wl(2)
    k(f"""
    v_and_b32 v6, 15, v1
    v_lshrrev_b32 v12, 2, v6
    v_lshl_add_u32 v12, v7, 3, v12
    v_lshlrev_b32 v12, 6, v12
    v_and_b32 v8, 3, v6
    v_lshl_add_u32 v12, v8, 3, v12
    v_and_b32 v8, 16, v1
    v_lshl_add_u32 v12, v8, 1, v12
    v_add_u32 v14, 49152, v12
    s_lshl_b32 s15, s3, 2
    v_add_u32 v2, s15, v4
    s_mov_b32 s28, 0
    s_mov_b32 s29, 0
    """)
    for r in range(48): k(f"v_mov_b32 v{ACC+r}, 0")
    signal(0)
    unit(1)
    for j in range(3, RING-1): wl(j)
    def poll(half, need, tag):
        c = 28 + half
        k(f"""
        s_cmp_ge_u32 s{c}, {need}
        s_cbranch_scc1 L_{N}_pd{tag}
        L_{N}_pl{tag}:
        ds_read_b128 v[8:11], v4 offset:{16*half}
        s_waitcnt lgkmcnt(0)
        v_min_u32 v8, v8, v9
        v_min3_u32 v8, v8, v10, v11
        s_nop 0
        v_readfirstlane_b32 s{c}, v8
        s_cmp_ge_u32 s{c}, {need}
        s_cbranch_scc0 L_{N}_pl{tag}
        L_{N}_pd{tag}:
        """)
    def xr(ks, lb, h):
        b = 12 if ks < 16 else 14
        r = XF+12*(ks&3)+4*lb+2*h
        lg.issue(f"ds_read_b64_tr_b16 v[{r}:{r+1}], v{b} offset:{3072*(ks%16)+1024*lb+256*h}", f"x{ks}_{lb}")
    def dsetup():
        k(f"""
    s_and_b32 s30, s2, 7
    s_lshr_b32 s31, s2, 3
    s_lshl_b32 s30, s30, 2
    s_lshr_b32 s12, s31, 3
    s_add_u32 s30, s30, s12
    s_and_b32 s31, s31, 7
    s_bfe_u32 s12, s3, 0x10001
    s_lshl_b32 s32, s31, 1
    s_add_u32 s32, s32, s12
    s_and_b32 s12, s3, 1
    s_lshl_b32 s33, s30, 1
    s_add_u32 s33, s33, s12
    s_xor_b32 s12, s32, 1
    s_mul_i32 s34, s32, {86*1024}
    s_mul_i32 s35, s12, {86*1024}
    s_xor_b32 s12, s33, 1
    s_mul_i32 s36, s33, {86*1024}
    s_mul_i32 s37, s12, {86*1024}
    s_lshl_b32 s12, s3, 10
    s_add_u32 s13, s12, {WD}
    s_add_u32 s34, s34, s13
    s_add_u32 s35, s35, s13
    s_add_u32 s13, s12, {HB}
    s_add_u32 s36, s36, s13
    s_add_u32 s37, s37, s13
    s_mov_b32 s22, {WS_USED}
    v_mov_b32 v5, v3
        """)
    def wdl(n, i, vm=None):
        if n == 10 and i == 0:
            k("s_cmp_ge_u32 s3, 6")
            k("s_cselect_b32 s22, 0, s22")
        r = WD0 + 8*n + 4*i
        ins = f"buffer_load_dwordx4 v[{r}:{r+3}], v5, s[20:23], s{34+i} offen"
        if vm: vm.issue(ins, "WD")
        else: k(ins)
        if i == 1: k("v_add_u32 v5, 8192, v5")
    wdq = [(n, i) for n in range(11) for i in range(2)]
    stamp(k, 1)
    poll(0, 1, "a")
    stamp(k, 2)
    for st in range(2):
        for lb in range(3): xr(st, lb, 0); xr(st, lb, 1)
    NIN = int(os.environ.get('NIN', '12'))
    wi = 0
    FCK = int(os.environ.get('FCK', '27'))
    for ks in range(32):
        j = ks % RING
        if ks+2 < 32 and (ks+2) % 4 == 0: poll(((ks+2)//4) & 1, (ks+2)//8 + 1, f"m{ks}")
        vm.need(f"W{ks}")
        if ks in (3, 9, 17): signal({3:1, 9:2, 17:3}[ks])
        for lb in range(3):
            lg.need(f"x{ks}_{lb}")
            a = ACC+16*lb; x = XF+12*(ks&3)+4*lb
            k(f"v_mfma_f32_32x32x16_bf16 v[{a}:{a+15}], v[{W+4*j}:{W+4*j+3}], v[{x}:{x+3}], v[{a}:{a+15}]")
            if ks+2 < 32: xr(ks+2, lb, 0); xr(ks+2, lb, 1)
            if lb == 1 and ks >= 32-NIN-2 and wi < NIN:
                if wi == 0: dsetup()
                wdl(*wdq[wi], vm=vm); wi += 1
        if ks+7 < 32: wl(ks+7)
        if ks == 1: unit(2)
        if ks == 9: unit(3)
        if ks == 14: csl()
        if ks == FCK:
            k(f"""
            v_and_b32 v15, 31, v1
            v_lshlrev_b32 v15, 3, v15
            s_mul_i32 s15, s4, 768
            s_add_u32 s15, s15, {FCG}
            s_cmp_eq_u32 s4, 21
            s_cselect_b32 s47, 0, 256
            s_add_u32 s48, s15, s47
            s_add_u32 s49, s48, s47
            s_mov_b32 s47, s15
            """)
            for lb in range(3): vm.issue(f"buffer_load_dwordx2 v[{FG+2*lb}:{FG+2*lb+1}], v15, s[8:11], s{47+lb} offen sc1", "FG")
    assert wi == NIN
    stamp(k, 3)
    k(f"""
    s_cmp_ge_u32 s6, 86
    s_cbranch_scc1 L_{N}_drest
    s_mov_b32 s26, {f32hex(-LOG2E)}
    s_mov_b32 s27, 0
    """)
    vm.need("FG")
    k(f"""
    s_branch L_{N}_gc
    L_{N}_gp:
    s_sleep 4
    """)
    for lb in range(3): k(f"buffer_load_dwordx2 v[{FG+2*lb}:{FG+2*lb+1}], v15, s[8:11], s{47+lb} offen sc1")
    k(f"""
    s_add_u32 s27, s27, 1
    s_waitcnt vmcnt(0)
    L_{N}_gc:
    v_and_b32 v8, v{FG+1}, v{FG+3}
    v_and_b32 v8, v8, v{FG+5}
    v_cmp_ne_u32 vcc, 1, v8
    s_cmp_eq_u64 vcc, 0
    s_cbranch_scc1 L_{N}_gd
    s_cmp_lt_u32 s27, {SPIN}
    s_cbranch_scc1 L_{N}_gp
    L_{N}_gd:
    """)
    for lb in range(3):
        c = FCR+6*lb
        k(f"v_and_b32 v{c+4}, 0xffff0000, v{FG+2*lb}")
        k(f"v_lshlrev_b32 v{c}, 16, v{FG+2*lb}")
    for lb in range(3): k(f"v_rcp_f32 v{FCR+6*lb+2}, v{FCR+6*lb+4}")
    for lb in range(3):
        c = FCR+6*lb
        k(f"v_sub_f32 v{c+1}, 0, v{c}")
        k(f"v_sub_f32 v{c}, 0, v{c}")
        k(f"v_mov_b32 v{c+5}, v{c+4}")
        k(f"v_mul_f32 v{c+3}, s26, v{c+2}")
        k(f"v_mul_f32 v{c+2}, s26, v{c+2}")
    k(f"""
    s_mul_i32 s15, s4, {3*86*1024}
    s_lshl_b32 s12, s6, 10
    s_add_u32 s15, s15, s12
    s_add_u32 s15, s15, {HB}
    """)
    stamp(k, 4)
    for lb in range(3):
        g = ACC+16*lb; u = g+8; c = FCR+6*lb; o = XF+4*lb
        for j in range(0, 8, 2): k(f"v_pk_fma_f32 {P(g+j)}, {P(CSV+j)}, {P(c)}, {P(g+j)}")
        for j in range(0, 8, 2): k(f"v_pk_mul_f32 {P(g+j)}, {P(g+j)}, {P(c+2)}")
        for j in range(8):
            k(f"v_exp_f32 v{g+j}, v{g+j}")
        for j in range(0, 8, 2): k(f"v_pk_fma_f32 {P(u+j)}, {P(CSV+8+j)}, {P(c)}, {P(u+j)}")
        for j in range(0, 8, 2): k(f"v_pk_fma_f32 {P(g+j)}, {P(g+j)}, {P(c+4)}, {P(c+4)}")
        for j in range(8):
            k(f"v_rcp_f32 v{g+j}, v{g+j}")
        k("s_nop 0")
        for j in range(0, 8, 2): k(f"v_pk_mul_f32 {P(u+j)}, {P(u+j)}, {P(g+j)}")
        for j in range(4): k(f"v_cvt_pk_bf16_f32 v{o+j}, v{u+2*j}, v{u+2*j+1}")
        k(f"buffer_store_dwordx4 v[{o}:{o+3}], v3, s[8:11], s15 offen sc1")
        if lb == 0:
            k(f"s_cmp_eq_u32 s4, 21")
            k(f"s_cbranch_scc1 L_{N}_pub")
        k(f"s_add_u32 s15, s15, {86*1024}")
    k(f"""
    L_{N}_pub:
    s_lshl_b32 s15, s4, 9
    s_lshl_b32 s12, s3, 6
    s_add_u32 s15, s15, s12
    s_lshl_b32 s12, s5, 2
    s_add_u32 s15, s15, s12
    s_add_u32 s15, s15, {HF}
    v_mov_b32 v8, 0
    v_mov_b32 v9, 1
    s_waitcnt vmcnt(0)
    s_mov_b64 exec, 1
    buffer_store_dword v9, v8, s[8:11], s15 offen sc1
    s_mov_b64 exec, -1
    """)
    stamp(k, 5)
    k(f"s_branch L_{N}_drest")
    k.label(f"L_{N}_dall")
    dsetup()
    for (n, i) in wdq[:NIN]: wdl(n, i)
    k.label(f"L_{N}_drest")
    k("s_waitcnt lgkmcnt(0)")
    k("s_barrier")
    for (n, i) in wdq[NIN:]: wdl(n, i)
    for r in range(64): k(f"v_mov_b32 v{A2+r}, 0")
    k(f"""
    s_lshl_b32 s12, s30, 1
    s_mul_i32 s13, s12, 171
    s_lshr_b32 s13, s13, 9
    s_add_u32 s12, s12, 1
    s_mul_i32 s12, s12, 171
    s_lshr_b32 s12, s12, 9
    s_lshl_b32 s13, s13, 9
    s_lshl_b32 s12, s12, 9
    s_add_u32 s38, s13, {HF}
    s_add_u32 s39, s12, {HF}
    v_lshlrev_b32 v10, 2, v1
    v_and_b32 v8, 15, v1
    v_cmp_gt_u32 s[26:27], 11, v8
    v_sub_u32 v9, 11, v7
    v_cmp_gt_u32 s[52:53], v9, v8
    v_and_b32 v6, 31, v1
    v_lshlrev_b32 v5, 14, v7
    v_lshl_add_u32 v5, v6, 1, v5
    s_lshl_b32 s24, s32, 17
    s_lshl_b32 s25, s33, 6
    s_add_u32 s24, s24, s25
    s_lshr_b32 s12, s3, 2
    s_lshl_b32 s12, s12, 16
    s_add_u32 s24, s24, s12
    s_add_u32 s25, s24, {XOUT}
    s_add_u32 s24, s24, {XIN}
    """)
    for n in range(8):
        q, r = n >> 2, n & 3
        k(f"s_add_u32 s12, s24, {(8*q+r)*4096}")
        k(f"buffer_load_ushort v{RES+n}, v5, s[8:11], s12 offen")
    k(f"""
    s_mov_b32 s13, 0
    s_cmp_eq_u32 s3, 0
    s_cbranch_scc0 L_{N}_hw
    L_{N}_hq:
    buffer_load_dword v12, v10, s[8:11], s38 offen sc1
    buffer_load_dword v13, v10, s[8:11], s39 offen sc1
    buffer_load_dword v14, v10, s[8:11], s38 offen offset:256 sc1
    buffer_load_dword v15, v10, s[8:11], s39 offen offset:256 sc1
    s_add_u32 s13, s13, 1
    s_waitcnt vmcnt(0)
    v_and_b32 v12, v12, v13
    v_and_b32 v14, v14, v15
    v_cmp_ne_u32 vcc, 1, v12
    v_cmp_ne_u32 s[54:55], 1, v14
    s_and_b64 vcc, vcc, s[26:27]
    s_and_b64 s[54:55], s[54:55], s[52:53]
    s_or_b64 vcc, vcc, s[54:55]
    s_cbranch_scc0 L_{N}_hr
    s_cmp_ge_u32 s13, {SPIN}
    s_cbranch_scc1 L_{N}_hr
    s_sleep 3
    s_branch L_{N}_hq
    L_{N}_hr:
    v_mov_b32 v12, 1
    ds_write_b32 v4, v12 offset:48
    s_branch L_{N}_hd
    L_{N}_hw:
    ds_read_b32 v12, v4 offset:48
    s_waitcnt lgkmcnt(0)
    v_readfirstlane_b32 s12, v12
    s_cmp_eq_u32 s12, 1
    s_cbranch_scc1 L_{N}_hd
    s_sleep 1
    s_branch L_{N}_hw
    L_{N}_hd:
    s_mov_b32 s22, {WS_USED}
    v_mov_b32 v12, v3
    """)
    stamp(k, 6)
    vm = Q(k, 'vmcnt', 63)
    HD = 6
    def hload(n):
        if n == 10:
            k("s_cmp_ge_u32 s3, 6")
            k("s_cselect_b32 s22, 0, s22")
        for i in range(2):
            r = HR + 8*(n % HD) + 4*i
            vm.issue(f"buffer_load_dwordx4 v[{r}:{r+3}], v12, s[20:23], s{36+i} offen sc1", f"S{n}")
        k("v_add_u32 v12, 8192, v12")
    for n in range(HD): hload(n)
    k("s_and_b32 s13, s3, 3")
    for a in range(4):
        k(f"""
        s_xor_b32 s12, s13, {a}
        s_lshl_b32 s12, s12, 14
        s_lshl_b32 s15, s3, 11
        s_add_u32 s12, s12, s15
        v_add_u32 v{8+a}, s12, v3
        """)
    k(f"""
    s_lshl_b32 s12, s3, 14
    v_add_u32 v13, s12, v3
    v_add_u32 v14, 0x10000, v8
    v_add_u32 v15, 0x10000, v9
    v_add_u32 v0, 0x10000, v10
    v_add_u32 v2, 0x10000, v11
    """)
    for n in range(11):
        vm.need(f"S{n}")
        for ad in range(2):
            for al in range(2):
                a = A2 + 16*(2*ad+al); w = WD0+8*n+4*ad; h = HR+8*(n % HD)+4*al
                k(f"v_mfma_f32_32x32x16_bf16 v[{a}:{a+15}], v[{w}:{w+3}], v[{h}:{h+3}], v[{a}:{a+15}]")
        if n >= 1 and n-1+HD < 11: hload(n-1+HD)
    stamp(k, 7)
    k("s_nop 3")
    lg = Q(k, 'lgkmcnt', 15)
    hi = [14, 15, 0, 2]
    for n in range(8): k(f"v_lshlrev_b32 v{RES+n}, 16, v{RES+n}")
    for a in range(4):
        for q in range(4):
            ad = (8+a) if q < 2 else hi[a]
            lg.issue(f"ds_write_b128 v{ad}, v[{A2+16*a+4*q}:{A2+16*a+4*q+3}] offset:{1024*(q&1)}", "rw")
    lg.drain()
    k("s_barrier")
    stamp(k, 8)
    FV = 16
    for q in range(2):
        for s_ in range(8):
            lg.issue(f"ds_read_b128 v[{FV+32*q+4*s_}:{FV+32*q+4*s_+3}], v13 offset:{2048*s_+1024*q}", f"rr{q}_{s_}")
    for q in range(2):
        b = FV+32*q
        for st in (1, 2, 4):
            for s_ in range(0, 8, 2*st):
                lg.need(f"rr{q}_{min(7, s_+2*st-1)}")
                for j in (0, 2): k(f"v_pk_add_f32 {P(b+4*s_+j)}, {P(b+4*s_+j)}, {P(b+4*(s_+st)+j)}")
        k(f"v_cvt_pk_bf16_f32 v{T+2*q}, v{b}, v{b+1}")
        k(f"v_cvt_pk_bf16_f32 v{T+2*q+1}, v{b+2}, v{b+3}")
        unpack(k, b, b+1, T+2*q); unpack(k, b+2, b+3, T+2*q+1)
        for j in (0, 2): k(f"v_pk_add_f32 {P(b+j)}, {P(b+j)}, {P(RES+4*q+j)}")
        k(f"v_cvt_pk_bf16_f32 v{T+2*q}, v{b}, v{b+1}")
        k(f"v_cvt_pk_bf16_f32 v{T+2*q+1}, v{b+2}, v{b+3}")
    k("s_cmp_eq_u32 s46, 1")
    k(f"s_cbranch_scc1 L_{N}_out")
    k("v_mov_b32 v12, 0")
    k("v_mov_b32 v13, 0")
    k("v_mov_b32 v14, 0x3f803f80")
    for q in range(2):
        for r in range(4):
            k(f"s_add_u32 s12, s25, {(8*q+r)*4096}")
            op = "buffer_store_short_d16_hi" if r & 1 else "buffer_store_short"
            k(f"{op} v{T+2*q+(r>>1)}, v5, s[8:11], s12 offen")
        for j in range(2):
            k(f"v_dot2_f32_bf16 v12, v{T+2*q+j}, v14, v12")
            k(f"v_dot2_f32_bf16 v13, v{T+2*q+j}, v{T+2*q+j}, v13")
    k(f"""
    s_nop 2
    v_permlane32_swap_b32 v12, v13
    v_lshlrev_b32 v5, 3, v6
    v_lshl_add_u32 v5, v7, 2, v5
    s_lshl_b32 s12, s33, 8
    s_add_u32 s12, s12, {ST3}
    v_add_f32 v12, v12, v13
    buffer_atomic_add_f32 v12, v5, s[8:11], s12 offen
    s_branch L_{N}_e2
    L_{N}_out:
    s_mov_b32 s28, s16
    s_mov_b32 s29, s17
    s_mov_b32 s30, {2048*512*2}
    s_mov_b32 s31, 0x00020000
    v_lshlrev_b32 v5, 10, v6
    v_lshl_add_u32 v5, v7, 4, v5
    s_lshl_b32 s25, s33, 15
    s_lshl_b32 s12, s32, 6
    s_add_u32 s25, s25, s12
    s_lshr_b32 s12, s3, 2
    s_lshl_b32 s12, s12, 5
    s_add_u32 s25, s25, s12
    v_permlane32_swap_b32 v{T}, v{T+2}
    v_permlane32_swap_b32 v{T+1}, v{T+3}
    buffer_store_dwordx4 v[{T}:{T+3}], v5, s[28:31], s25 offen
    L_{N}_e2:
    """)
    stamp(k, 9)
    stamp_flush(k, slot, 10, 3)
    k(f"s_branch {E}")
    k.label(f"L_{N}_prod")
    NIT = 22; PD = 14
    S = 16; QQ = 24; LB = 32; U = 96
    k(f"""
    v_mul_u32_u24 v12, 3450, v1
    v_lshrrev_b32 v12, 16, v12
    v_mul_u32_u24 v5, {PCH}, v12
    v_sub_u32 v5, v1, v5
    s_mul_i32 s4, s2, {PCH}
    v_add_u32 v6, s4, v5
    v_lshlrev_b32 v13, 4, v6
    v_lshl_add_u32 v13, v12, 12, v13
    v_cmp_gt_u32 vcc, 3, v12
    s_movk_i32 s5, 0x100
    v_cmp_gt_u32 s[6:7], s5, v6
    s_and_b64 vcc, vcc, s[6:7]
    v_mov_b32 v8, 0x7ffffff0
    v_cndmask_b32 v13, v8, v13, vcc
    s_mul_i32 s12, s3, 12288
    s_mov_b32 s26, {2*MB}
    s_mov_b32 s27, 0x00020000
    """)
    for r in range(16): k(f"v_mov_b32 v{S+r}, 0")
    srds()
    k(f"""
    s_add_u32 s24, s18, {XIN}
    s_addc_u32 s25, s19, 0
    """)
    def pl(i):
        r = LB + 4*(i % PD)
        k(f"buffer_load_dwordx4 v[{r}:{r+3}], v13, s[24:27], s12 offen")
        k(f"s_add_u32 s12, s12, {8*12288}")
    for i in range(PD): pl(i)
    for i in range(NIT):
        k(f"s_waitcnt vmcnt({min(PD-1, NIT-1-i)})")
        r = LB + 4*(i % PD)
        for e in range(4):
            k(f"v_lshlrev_b32 v{U+2*e}, 16, v{r+e}")
            k(f"v_and_b32 v{U+2*e+1}, 0xffff0000, v{r+e}")
        if i + PD < NIT: pl(i+PD)
        for e in range(0, 8, 2):
            k(f"v_pk_add_f32 v[{S+e}:{S+e+1}], v[{S+e}:{S+e+1}], v[{U+e}:{U+e+1}]")
            k(f"v_pk_fma_f32 v[{QQ+e}:{QQ+e+1}], v[{U+e}:{U+e+1}], v[{U+e}:{U+e+1}], v[{QQ+e}:{QQ+e+1}]")
    SP = PCH*64 + 16
    k(f"""
    s_mul_i32 s4, s3, 3
    v_add_u32 v8, s4, v12
    v_mul_u32_u24 v8, {SP}, v8
    v_lshl_add_u32 v8, v5, 6, v8
    v_cmp_gt_u32 vcc, 3, v12
    s_and_saveexec_b64 s[6:7], vcc
    """)
    for j in range(4): k(f"ds_write_b128 v8, v[{S+4*j}:{S+4*j+3}] offset:{16*j}")
    k(f"""
    s_mov_b64 exec, s[6:7]
    s_waitcnt lgkmcnt(0)
    s_barrier
    s_cmp_ge_u32 s3, 3
    s_cbranch_scc1 L_{N}_pe
    v_lshrrev_b32 v8, 3, v0
    v_and_b32 v9, 7, v0
    v_lshlrev_b32 v8, 6, v8
    v_lshl_add_u32 v8, v9, 2, v8
    v_mov_b32 v12, 0
    v_mov_b32 v13, 0
    """)
    for b in range(4):
        for j in range(6):
            sl = 6*b + j
            k(f"ds_read_b32 v{32+2*j}, v8 offset:{sl*SP}")
            k(f"ds_read_b32 v{33+2*j}, v8 offset:{sl*SP+32}")
        for j in range(6):
            k(f"s_waitcnt lgkmcnt({10-2*j})")
            k(f"v_pk_add_f32 v[12:13], v[12:13], v[{32+2*j}:{33+2*j}]")
    k(f"""
    s_mov_b32 s24, {f32hex(1.0/512)}
    s_mov_b32 s25, {f32hex(1e-5)}
    v_mul_f32 v14, s24, v12
    v_mul_f32 v16, s24, v13
    v_fma_f32 v16, -v14, v14, v16
    v_max_f32 v16, 0, v16
    v_cvt_pk_bf16_f32 v14, v14, v16
    v_and_b32 v16, 0xffff0000, v14
    v_lshlrev_b32 v14, 16, v14
    v_add_f32 v16, s25, v16
    v_cvt_pk_bf16_f32 v16, v16, v16
    v_lshlrev_b32 v16, 16, v16
    v_sqrt_f32 v16, v16
    s_mul_i32 s4, s2, {PCH*8*8}
    s_add_u32 s4, s4, {FCG}
    v_cvt_pk_bf16_f32 v20, v14, v16
    v_mov_b32 v21, 1
    v_lshlrev_b32 v8, 3, v0
    v_cmp_gt_u32 vcc, {PCH*8}, v0
    s_and_saveexec_b64 s[6:7], vcc
    buffer_store_dwordx2 v[20:21], v8, s[20:23], s4 offen sc1
    s_mov_b64 exec, s[6:7]
    s_nop 1
    L_{N}_pe:
    """)
    for i in range(1, 6): stamp(k, i)
    k(f"s_branch L_{N}_dall")
    k.label(E)
    k("s_endpgm")
    return k
```

```python
MB = 1 << 20
L, D, NS, F = 2048, 512, 128, 1376
XT0, XT1, XT2, XT3 = 0, 2*MB, 4*MB, 6*MB
ST1 = 8*MB
ST3 = ST1 + 16384
CS  = ST3 + 16384
CSP = 1408*4
FCG1 = CS + 32768
FCG2 = FCG1 + 32768
HF1 = FCG2 + 32768
HF2 = HF1 + 16384
WGU = 8*MB + 256*1024
WD  = 11*MB
KG  = 12*MB + 512*1024; KGH = 4128; KGP = 2*KGH
H   = 17*MB
H2  = H + 6*MB
WS_USED = 30*MB
assert WGU + 88*32768 <= WD and WD + 16*86*1024 <= KG and KG + 512*KGP <= H and HF2 + 16384 <= WGU
CF1 = HF2 + 16384
CF2 = CF1 + 16384
assert CF2 + 16384 <= WGU
```

```python
import sys, os
import asmlib
asmlib.STAMPS = bool(os.environ.get('STAMPS'))
from gen_k0 import *
from gen_conv import *
from gen_gu import *
from gen_down import *
from gen_mlp import *
from gen_layer import *
def build(extra_empty=0):
    p = Prog()
    p.add_kernel(gen_k0())
    kl = gen_layer('lay1_kernel', {86: XT0, 87: XT1, 88: ST1, 89: FCG1, 90: H, 91: HF1, 92: XT2, 93: 0, 94: CF1, 95: 2}); p.add_kernel(kl)
    p.add_kernel(make_stub('lay2_kernel', kl, {86: XT2, 87: XT3, 88: ST3, 89: FCG2, 90: H2, 91: HF2, 92: 0, 93: 1, 94: CF2, 95: 6}))
    if asmlib.STAMPS or os.environ.get('DELAY'):
        d = Kernel('delay_kernel', vgpr=8, sgpr=16)
        d('''
        s_mov_b32 s4, 0
        L_delay:
        s_sleep 16
        s_add_u32 s4, s4, 1
        s_cmp_lt_u32 s4, 200
        s_cbranch_scc1 L_delay
        s_endpgm''')
        p.add_kernel(d)
        p.launch('delay_kernel', 1, 64, 0)
    p.launch('k0_kernel', K0_GRID, 512, K0_LDS)
    p.launch('lay1_kernel', 256, 512, LAYER_LDS)
    p.launch('lay2_kernel', 256, 512, LAYER_LDS)
    if extra_empty:
        e = Kernel('empty_kernel', vgpr=8, sgpr=16); e("s_endpgm"); p.add_kernel(e)
        for i in range(extra_empty): p.launch('empty_kernel', 256, 64, 0)
    return p.text()
if __name__ == '__main__':
    out = sys.argv[1] if len(sys.argv) > 1 else 'all.s'
    ne = int(sys.argv[2]) if len(sys.argv) > 2 else 0
    open(out,'w').write(build(ne))
```

```python
import asmlib, os
from asmlib import *
from layout import *
from gen_k0 import f32hex, LOG2E
from gen_conv import unpack, U0, UP, KC0, KCP, KCH, RED
NPROD = 14; PCH = 19
FLG = 131072
LAYER_LDS = FLG + 256
SPIN = 400000
CFD = int(os.environ.get('CFD', '0')); CFS = int(os.environ.get('CFS', '4')); CFR = int(os.environ.get('CFR', '8'))
XSC = os.environ.get('XSC', 'sc1')
NWP = int(os.environ.get('NWP', '18'))
NWP2 = int(os.environ.get('NWP2', '24'))
WDLAG = int(os.environ.get('WDLAG', '12'))
NDI = int(os.environ.get('NDI', '14'))

def gen_layer(name, sets):
    k = Kernel(name, vgpr=256, sgpr=100)
    body_entry(k, sets)
    XA, XB, ST, FCG, HB, HF, XC, CF, slot = 's86', 's87', 's88', 's89', 's90', 's91', 's92', 's94', 's95'
    stamp(k, 0)
    E = f"L_{name}_end"; N = name
    ACC = 16; XF = 64; CSV = 144; FCR = 112
    A2 = 16; HR = 80; WD0 = 168; RES = 128; T = 144; FG = 160
    P = lambda r: f"v[{r}:{r+1}]"
    def wreg(ks):
        if ks < 22: return 168 + 4*ks
        if ks < 30: return 112 + 4*(ks-22)
        return 168 + 4*(ks-30)
    late_w = {}
    for j in range(NWP2, 32): late_w.setdefault(max(3, j - 14) if j < 30 else 12 + j - 30, []).append(j)
    def wpre(ks):
        r = wreg(ks)
        k(f"s_add_u32 s14, s55, {4096*(ks//4)}")
        k(f"buffer_load_dwordx4 v[{r}:{r+3}], v3, s[20:23], s14 offen offset:{1024*(ks&3)}")
    k(f"""
    s_cmp_ge_u32 s2, 256
    s_cbranch_scc1 {E}
    s_load_dwordx2 s[18:19], s[0:1], 104
    s_load_dwordx2 s[16:17], s[0:1], 48
    s_load_dwordx2 s[96:97], s[0:1], 88
    v_and_b32 v1, 63, v0
    v_lshrrev_b32 v2, 6, v0
    v_lshlrev_b32 v3, 4, v1
    v_readfirstlane_b32 s3, v2
    s_mov_b32 s10, {WS_USED}
    s_mov_b32 s11, 0x00020000
    s_lshl_b32 s4, s2, 1
    s_lshr_b32 s5, s3, 2
    s_and_b32 s6, s3, 3
    s_add_u32 s7, s4, s5
    v_lshlrev_b32 v4, 3, v0
    v_lshlrev_b32 v5, 5, v0
    s_lshl_b32 s12, s4, 6
    s_add_u32 s12, s12, {XA}
    v_lshrrev_b32 v6, 3, v0
    v_and_b32 v7, 7, v0
    v_lshlrev_b32 v6, 15, v6
    v_lshl_add_u32 v6, v7, 3, v6
    s_mul_i32 s28, s7, {KGP}
    s_add_u32 s28, s28, {KG}
    s_bitcmp1_b32 s6, 0
    s_cselect_b32 s13, 0, {KGH}
    s_add_u32 s28, s28, s13
    s_cmp_lt_u32 s6, 2
    s_cselect_b32 s13, 4, 0
    s_add_u32 s28, s28, s13
    s_mul_i32 s13, s5, {KCH}
    s_mul_i32 s14, s6, {KCP}
    s_add_u32 s13, s13, s14
    s_add_u32 s13, s13, {KC0}
    s_waitcnt lgkmcnt(0)
    """)
    k(f"""
    s_mov_b32 s8, s18
    s_mov_b32 s9, s19
    buffer_load_dwordx4 v[64:67], v5, s[8:11], {ST} offen
    buffer_load_dwordx4 v[68:71], v5, s[8:11], {ST} offen offset:16
    buffer_load_dwordx2 v[72:73], v6, s[8:11], s12 offen
    buffer_load_dwordx2 v[74:75], v6, s[8:11], s12 offen offset:64
    s_mov_b32 m0, s13
    s_barrier
    """)
    for c in range(4): k(f"buffer_load_dwordx4 v3, s[8:11], s28 offen offset:{1024*c} lds")
    k(f"""
    v_and_b32 v7, 15, v1
    v_lshrrev_b32 v8, 4, v1
    v_lshlrev_b32 v6, 5, v7
    v_lshl_add_u32 v6, v8, 3, v6
    v_lshrrev_b32 v5, 1, v7
    v_lshlrev_b32 v5, 15, v5
    v_and_b32 v9, 1, v7
    v_lshl_add_u32 v5, v9, 5, v5
    v_lshl_add_u32 v5, v8, 3, v5
    s_lshl_b32 s12, s7, 6
    s_lshl_b32 s14, s6, 19
    s_add_u32 s12, s12, s14
    s_add_u32 s26, s12, {XB}
    s_add_u32 s27, s26, 0x40000
    s_add_u32 s12, s12, {XA}
    buffer_load_dwordx2 v[48:49], v5, s[8:11], s12 offen
    s_add_u32 s12, s12, 0x40000
    buffer_load_dwordx2 v[50:51], v5, s[8:11], s12 offen
    s_lshl_b32 s12, s7, 1
    v_mov_b32 v9, s12
    global_load_ushort v52, v9, s[16:17]
    v_mov_b32 v12, 0
    v_mov_b32 v13, 0
    v_mov_b32 v14, 0
    v_mov_b32 v15, 0
    s_add_u32 s13, s13, 4096
    v_add_u32 v9, s13, v3
    s_mul_i32 s13, s5, {UP}
    v_add_u32 v10, s13, v3
    v_cmp_gt_u32 vcc, 2, v1
    s_and_saveexec_b64 s[28:29], vcc
    ds_write_b128 v9, v[12:15]
    s_mov_b64 exec, s[28:29]
    v_cmp_gt_u32 vcc, 30, v1
    s_and_saveexec_b64 s[28:29], vcc
    ds_write_b128 v10, v[12:15]
    s_mov_b64 exec, s[28:29]
    v_and_b32 v9, 3, v7
    v_mul_u32_u24 v9, {KCP}, v9
    v_lshrrev_b32 v10, 2, v7
    v_lshlrev_b32 v10, 3, v10
    v_sub_u32 v9, v9, v10
    v_lshl_add_u32 v9, v8, 4, v9
    s_mul_i32 s13, s5, {KCH}
    s_add_u32 s13, s13, {KC0+24}
    s_lshl_b32 s14, s6, 7
    s_sub_u32 s13, s13, s14
    v_add_u32 v10, s13, v9
    v_lshlrev_b32 v11, 5, v7
    v_lshl_add_u32 v11, v8, 4, v11
    s_mul_i32 s13, s5, {UP}
    s_add_u32 s13, s13, 384
    s_sub_u32 s13, s13, s14
    v_add_u32 v11, s13, v11
    s_mov_b32 s24, {f32hex(1.0/512)}
    s_mov_b32 s25, {f32hex(1e-5)}
    """)
    for r in range(32): k(f"v_mov_b32 v{16+r}, 0")
    k("s_waitcnt vmcnt(9)")
    for r in range(4):
        k(f"v_mul_f32 v{64+2*r}, s24, v{64+2*r}")
        k(f"v_mul_f32 v{65+2*r}, s24, v{65+2*r}")
    for r in range(4): k(f"v_fma_f32 v{65+2*r}, -v{64+2*r}, v{64+2*r}, v{65+2*r}")
    for r in range(4): k(f"v_max_f32 v{65+2*r}, 0, v{65+2*r}")
    k("v_cvt_pk_bf16_f32 v76, v64, v66")
    k("v_cvt_pk_bf16_f32 v77, v68, v70")
    k("v_cvt_pk_bf16_f32 v78, v65, v67")
    k("v_cvt_pk_bf16_f32 v79, v69, v71")
    unpack(k, 84, 85, 78); unpack(k, 86, 87, 79); unpack(k, 80, 81, 76); unpack(k, 82, 83, 77)
    for r in range(4): k(f"v_add_f32 v{84+r}, s25, v{84+r}")
    k("v_cvt_pk_bf16_f32 v78, v84, v85")
    k("v_cvt_pk_bf16_f32 v79, v86, v87")
    unpack(k, 84, 85, 78); unpack(k, 86, 87, 79)
    for r in range(4): k(f"v_sqrt_f32 v{84+r}, v{84+r}")
    k("s_waitcnt vmcnt(7)")
    for ch in range(2): unpack(k, 88+4*ch, 89+4*ch, 72+2*ch); unpack(k, 90+4*ch, 91+4*ch, 73+2*ch)
    k("v_cvt_pk_bf16_f32 v78, v84, v85")
    k("v_cvt_pk_bf16_f32 v79, v86, v87")
    for ch in range(2):
        for j in (0, 2): k(f"v_pk_add_f32 {P(88+4*ch+j)}, {P(88+4*ch+j)}, {P(80+j)} neg_lo:[0,1] neg_hi:[0,1]")
    unpack(k, 84, 85, 78); unpack(k, 86, 87, 79)
    for ch in range(2):
        k(f"v_cvt_pk_bf16_f32 v{72+2*ch}, v{88+4*ch}, v{89+4*ch}")
        k(f"v_cvt_pk_bf16_f32 v{73+2*ch}, v{90+4*ch}, v{91+4*ch}")
    for r in range(4): k(f"v_rcp_f32 v{84+r}, v{84+r}")
    for ch in range(2): unpack(k, 88+4*ch, 89+4*ch, 72+2*ch); unpack(k, 90+4*ch, 91+4*ch, 73+2*ch)
    for ch in range(2):
        for j in (0, 2): k(f"v_pk_mul_f32 {P(88+4*ch+j)}, {P(88+4*ch+j)}, {P(84+j)}")
    for ch in range(2):
        k(f"v_cvt_pk_bf16_f32 v{72+2*ch}, v{88+4*ch}, v{89+4*ch}")
        k(f"v_cvt_pk_bf16_f32 v{73+2*ch}, v{90+4*ch}, v{91+4*ch}")
        k(f"ds_write_b64 v4, v[{72+2*ch}:{73+2*ch}] offset:{480 + ch*UP}")
    k(f"""
    s_and_b32 s52, s2, 7
    s_lshr_b32 s53, s2, 3
    s_mul_i32 s55, s52, 30
    s_add_u32 s55, s55, s53
    s_sub_u32 s55, s55, 2
    s_cmp_ge_u32 s52, 6
    s_cselect_b32 s53, 1, 0
    s_add_u32 s55, s55, s53
    s_cmp_eq_u32 s52, 7
    s_cselect_b32 s53, 1, 0
    s_add_u32 s55, s55, s53
    s_cmp_ge_u32 s55, 88
    s_cselect_b32 s54, 88, 0
    s_cselect_b32 s53, 4, 0
    s_sub_u32 s12, s55, s54
    s_lshr_b32 s52, s12, 2
    s_and_b32 s12, s12, 3
    s_add_u32 s53, s53, s12
    s_sub_u32 s12, s55, 176
    s_mul_i32 s13, s12, 171
    s_lshr_b32 s13, s13, 9
    s_mul_i32 s54, s13, 3
    s_sub_u32 s54, s12, s54
    s_add_u32 s54, s54, 8
    s_cmp_ge_u32 s55, 176
    s_cselect_b32 s52, s13, s52
    s_cselect_b32 s53, s54, s53
    s_lshl_b32 s54, s53, 3
    s_add_u32 s54, s54, s3
    s_lshl_b32 s55, s54, 15
    s_add_u32 s55, s55, {WGU}
    s_mov_b32 s20, s18
    s_mov_b32 s21, s19
    s_mov_b32 s23, 0x00020000
    s_cmp_lt_u32 s2, {NPROD}
    s_cselect_b32 s22, 0, s10
    s_cselect_b32 s55, 0, s55
    v_mov_b32 v9, {FLG}
    ds_write_b128 v9, v[12:15]
    ds_write_b128 v9, v[12:15] offset:16
    ds_write_b128 v9, v[12:15] offset:32
    ds_write_b128 v9, v[12:15] offset:48
    """)
    k("s_waitcnt vmcnt(0) lgkmcnt(0)")
    k("s_barrier")
    lg = Q(k, 'lgkmcnt', 15)
    pool = [56+4*i for i in range(28)]
    reg = {}
    def ld(i0p, kind, s):
        r = pool.pop(0); reg[(i0p, kind, s)] = r
        if kind == 'A':
            off = 64*(63 - i0p - 8*s)
            lg.issue(f"ds_read_b64 v[{r}:{r+1}], v10 offset:{off}", (i0p, kind, s))
            lg.issue(f"ds_read_b64 v[{r+2}:{r+3}], v10 offset:{off+8}", (i0p, kind, s))
        else:
            lg.issue(f"ds_read_b128 v[{r}:{r+3}], v11 offset:{512*s + 64*(1-i0p)}", (i0p, kind, s))
    order = [(i, kd, s) for i in range(2) for s in range(8) for kd in 'AB']
    mf = []
    for i in range(2):
        for m in range(8):
            for s in range(8):
                for w in range(8):
                    if s + w <= 7 and max(s, w) == m: mf.append((i, s, w))
    last_use = {}
    for n, (i, s, w) in enumerate(mf):
        last_use[(i, 'A', s)] = n; last_use[(i, 'B', w)] = n
    li = 0; npre = 0
    for _ in range(8): ld(*order[li]); li += 1
    freed = []
    for n, (i, s, w) in enumerate(mf):
        while (i, 'A', s) not in reg or (i, 'B', w) not in reg:
            ld(*order[li]); li += 1
        lg.need((i, 'A', s), (i, 'B', w))
        c = s + w; a = reg[(i, 'A', s)]; b = reg[(i, 'B', w)]
        k(f"v_mfma_f32_16x16x32_bf16 v[{16+4*c}:{19+4*c}], v[{a}:{a+3}], v[{b}:{b+3}], v[{16+4*c}:{19+4*c}]")
        for key in [(i, 'A', s), (i, 'B', w)]:
            if last_use[key] == n: freed.append((n+3, reg[key]))
        while freed and freed[0][0] <= n: pool.append(freed.pop(0)[1])
        if n % 3 == 1 and npre < NWP: wpre(npre); npre += 1
        if li < len(order) and pool and (lg.n - lg.done) <= 12:
            ld(*order[li]); li += 1
    assert li == len(order) and npre == NWP
    k(f"""
    s_lshl_b32 s13, s5, 15
    s_lshl_b32 s14, s6, 10
    s_add_u32 s13, s13, s14
    s_add_u32 s13, s13, {RED}
    v_add_u32 v9, s13, v3
    s_lshl_b32 s13, s5, 15
    s_lshl_b32 s14, s6, 13
    s_add_u32 s13, s13, s14
    s_add_u32 s13, s13, {RED}
    v_add_u32 v12, s13, v3
    s_mul_i32 s13, s5, {UP}
    s_lshl_b32 s14, s6, 10
    s_add_u32 s13, s13, s14
    s_add_u32 s13, s13, 480
    v_add_u32 v13, s13, v6
    ds_read_b64 v[88:89], v13
    ds_read_b64 v[90:91], v13 offset:512
    """)
    for p in range(4):
        if p < 3:
            k(f"s_cmp_lg_u32 s6, {p}")
            k(f"s_cbranch_scc1 L_{N}_rv{p+1}")
        for c in range(8):
            if c in (2*p, 2*p+1): continue
            k(f"ds_write_b128 v9, v[{16+4*c}:{19+4*c}] offset:{4096*c}")
        for r in range(8): k(f"v_mov_b32 v{56+r}, v{16+8*p+r}")
        others = [q for q in range(4) if q != p]
        for j, q in enumerate(others): k(f"v_add_u32 v{92+j}, {1024*q}, v12")
        if p < 3:
            k(f"s_branch L_{N}_ep")
            k.label(f"L_{N}_rv{p+1}")
    k.label(f"L_{N}_ep")
    k("s_waitcnt lgkmcnt(6)")
    k("v_lshlrev_b32 v52, 16, v52")
    k("v_mov_b32 v53, v52")
    for j in range(4): unpack(k, 96+2*j, 97+2*j, 88+j)
    for j in range(4): k(f"v_pk_mul_f32 {P(96+2*j)}, {P(96+2*j)}, v[52:53]")
    for j in range(4): k(f"v_cvt_pk_bf16_f32 v{88+j}, v{96+2*j}, v{97+2*j}")
    k("s_waitcnt lgkmcnt(0)")
    k("s_barrier")
    for t in range(2):
        for j in range(3): k(f"ds_read_b128 v[{64+12*t+4*j}:{67+12*t+4*j}], v{92+j} offset:{4096*t}")
    for j in range(4): unpack(k, 96+2*j, 97+2*j, 88+j)
    for j in range(4): unpack(k, 104+2*j, 105+2*j, 48+j)
    for t in range(2):
        k(f"s_waitcnt lgkmcnt({3-3*t})")
        for j in (0, 2):
            k(f"v_pk_add_f32 {P(56+4*t+j)}, {P(56+4*t+j)}, {P(64+12*t+j)}")
            k(f"v_pk_add_f32 {P(68+12*t+j)}, {P(68+12*t+j)}, {P(72+12*t+j)}")
        for j in (0, 2): k(f"v_pk_add_f32 {P(56+4*t+j)}, {P(56+4*t+j)}, {P(68+12*t+j)}")
    for j in range(4): k(f"v_cvt_pk_bf16_f32 v{64+j}, v{56+2*j}, v{57+2*j}")
    for j in range(4): unpack(k, 56+2*j, 57+2*j, 64+j)
    for j in range(4): k(f"v_pk_add_f32 {P(56+2*j)}, {P(56+2*j)}, {P(96+2*j)}")
    for j in range(4): k(f"v_cvt_pk_bf16_f32 v{64+j}, v{56+2*j}, v{57+2*j}")
    for j in range(4): unpack(k, 56+2*j, 57+2*j, 64+j)
    for j in range(4): k(f"v_pk_add_f32 {P(56+2*j)}, {P(56+2*j)}, {P(104+2*j)}")
    for j in range(4): k(f"v_cvt_pk_bf16_f32 v{64+j}, v{56+2*j}, v{57+2*j}")
    k("buffer_store_dwordx2 v[64:65], v5, s[8:11], s26 offen sc1")
    k("buffer_store_dwordx2 v[66:67], v5, s[8:11], s27 offen sc1")
    vm = Q(k, 'vmcnt', 63); lg = Q(k, 'lgkmcnt', 15)
    def unit(p):
        for i in range(3):
            k(f"s_add_u32 m0, s25, {p*24576 + i*1024}")
            k(f"s_add_u32 s14, s12, {i*32768 + p*8192}")
            vm.issue(f"buffer_load_dwordx4 v3, s[8:11], s14 offen {XSC} lds", f"U{p}")
    def wl(ks):
        r = wreg(ks)
        k(f"s_add_u32 s14, s55, {4096*(ks//4)}")
        vm.issue(f"buffer_load_dwordx4 v[{r}:{r+3}], v3, s[8:11], s14 offen offset:{1024*(ks&3)}", f"W{ks}")
    for ks in range(NWP): vm.tags[f"W{ks}"] = 0
    def csl():
        k(f"""
        v_lshlrev_b32 v10, 4, v7
        s_lshl_b32 s24, s6, 6
        s_add_u32 s24, s24, {CS}
        """)
        for kh in range(2):
            for m in range(2):
                for q in range(2):
                    r = (CSV if kh == 0 else XF+32) + 4*(2*m + q)
                    vm.issue(f"buffer_load_dwordx4 v[{r}:{r+3}], v10, s[8:11], s24 offen offset:{32*q}", "CS")
                k(f"s_add_u32 s24, s24, {CSP}")
    def signal(p):
        k(f"v_mov_b32 v6, {p+1}")
        vm.need(f"U{p}")
        lg.issue("ds_write_b32 v2, v6", "sig")
    def dsetup():
        k(f"""
    s_and_b32 s30, s2, 7
    s_lshr_b32 s31, s2, 3
    s_lshl_b32 s30, s30, 2
    s_lshr_b32 s12, s31, 3
    s_add_u32 s30, s30, s12
    s_and_b32 s31, s31, 7
    s_bfe_u32 s12, s3, 0x10001
    s_lshl_b32 s32, s31, 1
    s_add_u32 s32, s32, s12
    s_and_b32 s12, s3, 1
    s_lshl_b32 s33, s30, 1
    s_add_u32 s33, s33, s12
    s_xor_b32 s12, s32, 1
    s_mul_i32 s34, s32, {86*1024}
    s_mul_i32 s35, s12, {86*1024}
    s_xor_b32 s12, s33, 1
    s_mul_i32 s36, s33, {86*1024}
    s_mul_i32 s37, s12, {86*1024}
    s_lshl_b32 s12, s3, 10
    s_add_u32 s13, s12, {WD}
    s_add_u32 s34, s34, s13
    s_add_u32 s35, s35, s13
    s_add_u32 s13, s12, {HB}
    s_add_u32 s36, s36, s13
    s_add_u32 s37, s37, s13
    s_cmp_ge_u32 s3, 6
    s_cselect_b32 s22, 0, s10
        """)
    def wdl(n, i, vm=None):
        r = WD0 + 8*n + 4*i
        k(f"s_add_u32 s14, s{34+i}, {8192*n}")
        srd = "s[20:23]" if n == 10 else "s[8:11]"
        ins = f"buffer_load_dwordx4 v[{r}:{r+3}], v3, {srd}, s14 offen"
        if vm: vm.issue(ins, "WD")
        else: k(ins)
    wdq = [(n, i) for n in range(11) for i in range(2)]
    k("s_waitcnt vmcnt(0)")
    k("s_barrier")
    k(f"""
    v_mov_b32 v4, {FLG}
    v_lshrrev_b32 v7, 5, v1
    s_lshl_b32 s12, s2, 2
    s_add_u32 s12, s12, {CF}
    v_lshlrev_b32 v8, 10, v1
    v_mov_b32 v9, 1
    s_cmp_lg_u32 s3, 0
    s_cbranch_scc1 L_{N}_np
    s_mov_b64 exec, {(1<<CFR)-1}
    buffer_store_dword v9, v8, s[8:11], s12 offen sc1
    s_mov_b64 exec, -1
    L_{N}_np:
    s_cmp_lt_u32 s2, {NPROD}
    s_cbranch_scc1 L_{N}_prod
    """)
    dsetup()
    k(f"""
    s_mov_b32 s4, s52
    s_mov_b32 s5, s53
    s_mov_b32 s6, s54
    s_mul_i32 s12, s4, 98304
    s_lshl_b32 s13, s3, 10
    s_add_u32 s12, s12, s13
    s_add_u32 s12, s12, {XB}
    s_mul_i32 s25, s3, 3072
    """)
    vm.n += 1
    for ks in range(NWP, NWP2): wl(ks)
    csl()
    k(f"""
    v_and_b32 v6, 15, v1
    v_lshrrev_b32 v12, 2, v6
    v_lshl_add_u32 v12, v7, 3, v12
    v_lshlrev_b32 v12, 6, v12
    v_and_b32 v8, 3, v6
    v_lshl_add_u32 v12, v8, 3, v12
    v_and_b32 v8, 16, v1
    v_lshl_add_u32 v12, v8, 1, v12
    v_add_u32 v14, 49152, v12
    s_lshl_b32 s15, s3, 2
    v_add_u32 v2, s15, v4
    s_mov_b32 s28, 0
    s_mov_b32 s29, 0
    """)
    for r in range(48): k(f"v_mov_b32 v{ACC+r}, 0")
    vm.need("CS")
    for j in range(0, 16, 2): k(f"v_pk_add_f32 {P(CSV+j)}, {P(CSV+j)}, {P(XF+32+j)}")
    k(f"""
    s_mov_b32 s13, 0
    s_cmp_eq_u32 s3, 0
    s_cbranch_scc0 L_{N}_cwg
    s_sleep {CFD}
    s_and_b32 s15, s2, {CFR-1}
    s_lshl_b32 s15, s15, 10
    s_add_u32 s15, s15, {CF}
    L_{N}_cqg:
    buffer_load_dwordx4 v[8:11], v3, s[8:11], s15 offen sc1
    s_add_u32 s13, s13, 1
    s_waitcnt vmcnt(0)
    v_and_b32 v8, v8, v9
    v_and_b32 v10, v10, v11
    v_and_b32 v8, v8, v10
    v_cmp_ne_u32 vcc, 1, v8
    s_cmp_eq_u64 vcc, 0
    s_cbranch_scc1 L_{N}_crg
    s_cmp_ge_u32 s13, {SPIN}
    s_cbranch_scc1 L_{N}_crg
    s_sleep {CFS}
    s_branch L_{N}_cqg
    L_{N}_crg:
    v_mov_b32 v8, 1
    ds_write_b32 v4, v8 offset:52
    s_branch L_{N}_cdg
    L_{N}_cwg:
    ds_read_b32 v8, v4 offset:52
    s_waitcnt lgkmcnt(0)
    v_readfirstlane_b32 s13, v8
    s_cmp_eq_u32 s13, 1
    s_cbranch_scc1 L_{N}_cdg
    s_sleep 1
    s_branch L_{N}_cwg
    L_{N}_cdg:
    """)
    stamp(k, 2)
    unit(0); unit(1)
    signal(0)
    unit(2); unit(3)
    def poll(half, need, tag):
        c = 28 + half
        k(f"""
        s_cmp_ge_u32 s{c}, {need}
        s_cbranch_scc1 L_{N}_pd{tag}
        L_{N}_pl{tag}:
        ds_read_b128 v[8:11], v4 offset:{16*half}
        s_waitcnt lgkmcnt(0)
        v_min_u32 v8, v8, v9
        v_min3_u32 v8, v8, v10, v11
        s_nop 0
        v_readfirstlane_b32 s{c}, v8
        s_cmp_ge_u32 s{c}, {need}
        s_cbranch_scc0 L_{N}_pl{tag}
        L_{N}_pd{tag}:
        """)
    def xr(ks, lb, h):
        b = 12 if ks < 16 else 14
        r = XF+12*(ks&3)+4*lb+2*h
        lg.issue(f"ds_read_b64_tr_b16 v[{r}:{r+1}], v{b} offset:{3072*(ks%16)+1024*lb+256*h}", f"x{ks}_{lb}")
    poll(0, 1, "a")
    for st in range(2):
        for lb in range(3): xr(st, lb, 0); xr(st, lb, 1)
    FCK = int(os.environ.get('FCK', '27'))
    for ks in range(32):
        if ks+2 < 32 and (ks+2) % 4 == 0: poll(((ks+2)//4) & 1, (ks+2)//8 + 1, f"m{ks}")
        vm.need(f"W{ks}")
        if ks in (0, 8, 16, 24): stamp(k, {0:1, 8:4, 16:7, 24:8}[ks])
        if ks in (2, 5, 8): signal({2:1, 5:2, 8:3}[ks])
        w = wreg(ks)
        for lb in range(3):
            lg.need(f"x{ks}_{lb}")
            a = ACC+16*lb; x = XF+12*(ks&3)+4*lb
            k(f"v_mfma_f32_32x32x16_bf16 v[{a}:{a+15}], v[{w}:{w+3}], v[{x}:{x+3}], v[{a}:{a+15}]")
            if ks+2 < 32: xr(ks+2, lb, 0); xr(ks+2, lb, 1)
        for j in late_w.get(ks, []): wl(j)
        j = ks - WDLAG
        if 2 <= j < NDI: wdl(j >> 1, j & 1, vm=vm)
        if ks == FCK:
            k(f"""
            v_and_b32 v15, 31, v1
            v_lshlrev_b32 v15, 3, v15
            s_mul_i32 s15, s4, 768
            s_add_u32 s15, s15, {FCG}
            s_cmp_eq_u32 s4, 21
            s_cselect_b32 s47, 0, 256
            s_add_u32 s48, s15, s47
            s_add_u32 s49, s48, s47
            s_mov_b32 s47, s15
            """)
            for lb in range(3): vm.issue(f"buffer_load_dwordx2 v[{FG+2*lb}:{FG+2*lb+1}], v15, s[8:11], s{47+lb} offen sc1", "FG")
    stamp(k, 3)
    k(f"""
    s_cmp_ge_u32 s6, 86
    s_cbranch_scc1 L_{N}_drest
    s_mov_b32 s26, {f32hex(-LOG2E)}
    s_mov_b32 s27, 0
    """)
    vm.need("FG")
    k(f"""
    s_branch L_{N}_gc
    L_{N}_gp:
    s_sleep 4
    """)
    for lb in range(3): k(f"buffer_load_dwordx2 v[{FG+2*lb}:{FG+2*lb+1}], v15, s[8:11], s{47+lb} offen sc1")
    k(f"""
    s_add_u32 s27, s27, 1
    s_waitcnt vmcnt(0)
    L_{N}_gc:
    v_and_b32 v8, v{FG+1}, v{FG+3}
    v_and_b32 v8, v8, v{FG+5}
    v_cmp_ne_u32 vcc, 1, v8
    s_cmp_eq_u64 vcc, 0
    s_cbranch_scc1 L_{N}_gd
    s_cmp_lt_u32 s27, {SPIN}
    s_cbranch_scc1 L_{N}_gp
    L_{N}_gd:
    """)
    for lb in range(3):
        c = FCR+6*lb
        k(f"v_and_b32 v{c+4}, 0xffff0000, v{FG+2*lb}")
        k(f"v_lshlrev_b32 v{c}, 16, v{FG+2*lb}")
    for lb in range(3): k(f"v_rcp_f32 v{FCR+6*lb+2}, v{FCR+6*lb+4}")
    for lb in range(3):
        c = FCR+6*lb
        k(f"v_sub_f32 v{c+1}, 0, v{c}")
        k(f"v_sub_f32 v{c}, 0, v{c}")
        k(f"v_mov_b32 v{c+5}, v{c+4}")
        k(f"v_mul_f32 v{c+3}, s26, v{c+2}")
        k(f"v_mul_f32 v{c+2}, s26, v{c+2}")
    k(f"""
    s_mul_i32 s15, s4, {3*86*1024}
    s_lshl_b32 s12, s6, 10
    s_add_u32 s15, s15, s12
    s_add_u32 s15, s15, {HB}
    """)
    for lb in range(3):
        g = ACC+16*lb; u = g+8; c = FCR+6*lb; o = XF+4*lb
        for j in range(0, 8, 2): k(f"v_pk_fma_f32 {P(g+j)}, {P(CSV+j)}, {P(c)}, {P(g+j)}")
        for j in range(0, 8, 2): k(f"v_pk_mul_f32 {P(g+j)}, {P(g+j)}, {P(c+2)}")
        for j in range(8):
            k(f"v_exp_f32 v{g+j}, v{g+j}")
        for j in range(0, 8, 2): k(f"v_pk_fma_f32 {P(u+j)}, {P(CSV+8+j)}, {P(c)}, {P(u+j)}")
        for j in range(0, 8, 2): k(f"v_pk_fma_f32 {P(g+j)}, {P(g+j)}, {P(c+4)}, {P(c+4)}")
        for j in range(8):
            k(f"v_rcp_f32 v{g+j}, v{g+j}")
        k("s_nop 0")
        for j in range(0, 8, 2): k(f"v_pk_mul_f32 {P(u+j)}, {P(u+j)}, {P(g+j)}")
        for j in range(4): k(f"v_cvt_pk_bf16_f32 v{o+j}, v{u+2*j}, v{u+2*j+1}")
        k(f"buffer_store_dwordx4 v[{o}:{o+3}], v3, s[8:11], s15 offen sc1")
        if lb == 0:
            k(f"s_cmp_eq_u32 s4, 21")
            k(f"s_cbranch_scc1 L_{N}_pub")
        k(f"s_add_u32 s15, s15, {86*1024}")
    k(f"""
    L_{N}_pub:
    s_lshl_b32 s15, s4, 9
    s_lshl_b32 s12, s3, 6
    s_add_u32 s15, s15, s12
    s_lshl_b32 s12, s5, 2
    s_add_u32 s15, s15, s12
    s_add_u32 s15, s15, {HF}
    v_mov_b32 v8, 0
    v_mov_b32 v9, 1
    s_waitcnt vmcnt(0)
    s_mov_b64 exec, 1
    buffer_store_dword v9, v8, s[8:11], s15 offen sc1
    s_mov_b64 exec, -1
    """)
    stamp(k, 5)
    k(f"s_branch L_{N}_drest")
    k.label(f"L_{N}_dall")
    dsetup()
    for (n, i) in wdq[2:NDI]: wdl(n, i)
    k.label(f"L_{N}_drest")
    k("s_waitcnt lgkmcnt(0)")
    k("s_barrier")
    for (n, i) in wdq[:2] + wdq[NDI:]: wdl(n, i)
    for r in range(64): k(f"v_mov_b32 v{A2+r}, 0")
    k(f"""
    s_lshl_b32 s12, s30, 1
    s_mul_i32 s13, s12, 171
    s_lshr_b32 s13, s13, 9
    s_add_u32 s12, s12, 1
    s_mul_i32 s12, s12, 171
    s_lshr_b32 s12, s12, 9
    s_lshl_b32 s13, s13, 9
    s_lshl_b32 s12, s12, 9
    s_add_u32 s38, s13, {HF}
    s_add_u32 s39, s12, {HF}
    v_lshlrev_b32 v10, 2, v1
    v_and_b32 v8, 15, v1
    v_cmp_gt_u32 s[26:27], 11, v8
    v_sub_u32 v9, 11, v7
    v_cmp_gt_u32 s[52:53], v9, v8
    v_and_b32 v6, 31, v1
    v_lshlrev_b32 v5, 8, v7
    v_lshl_add_u32 v5, v6, 1, v5
    s_lshl_b32 s24, s32, 11
    s_lshl_b32 s25, s33, 15
    s_add_u32 s24, s24, s25
    s_lshr_b32 s12, s3, 2
    s_lshl_b32 s12, s12, 10
    s_add_u32 s24, s24, s12
    s_add_u32 s25, s24, {XC}
    s_add_u32 s24, s24, {XB}
    """)
    for n in range(8):
        q, r = n >> 2, n & 3
        k(f"buffer_load_ushort v{RES+n}, v5, s[8:11], s24 offen offset:{(8*q+r)*64} sc1")
    k(f"""
    s_mov_b32 s13, 0
    s_cmp_eq_u32 s3, 0
    s_cbranch_scc0 L_{N}_hw
    L_{N}_hq:
    buffer_load_dword v12, v10, s[8:11], s38 offen sc1
    buffer_load_dword v13, v10, s[8:11], s39 offen sc1
    buffer_load_dword v14, v10, s[8:11], s38 offen offset:256 sc1
    buffer_load_dword v15, v10, s[8:11], s39 offen offset:256 sc1
    s_add_u32 s13, s13, 1
    s_waitcnt vmcnt(0)
    v_and_b32 v12, v12, v13
    v_and_b32 v14, v14, v15
    v_cmp_ne_u32 vcc, 1, v12
    v_cmp_ne_u32 s[54:55], 1, v14
    s_and_b64 vcc, vcc, s[26:27]
    s_and_b64 s[54:55], s[54:55], s[52:53]
    s_or_b64 vcc, vcc, s[54:55]
    s_cbranch_scc0 L_{N}_hr
    s_cmp_ge_u32 s13, {SPIN}
    s_cbranch_scc1 L_{N}_hr
    s_sleep 3
    s_branch L_{N}_hq
    L_{N}_hr:
    v_mov_b32 v12, 1
    ds_write_b32 v4, v12 offset:48
    s_branch L_{N}_hd
    L_{N}_hw:
    ds_read_b32 v12, v4 offset:48
    s_waitcnt lgkmcnt(0)
    v_readfirstlane_b32 s12, v12
    s_cmp_eq_u32 s12, 1
    s_cbranch_scc1 L_{N}_hd
    s_sleep 1
    s_branch L_{N}_hw
    L_{N}_hd:
    s_mov_b32 s22, {WS_USED}
    v_mov_b32 v12, v3
    """)
    stamp(k, 6)
    vm = Q(k, 'vmcnt', 63)
    HD = 6
    def hload(n):
        if n == 10:
            k("s_cmp_ge_u32 s3, 6")
            k("s_cselect_b32 s22, 0, s22")
        for i in range(2):
            r = HR + 8*(n % HD) + 4*i
            vm.issue(f"buffer_load_dwordx4 v[{r}:{r+3}], v12, s[20:23], s{36+i} offen sc1", f"S{n}")
        k("v_add_u32 v12, 8192, v12")
    for n in range(HD): hload(n)
    k("s_and_b32 s13, s3, 3")
    for a in range(4):
        k(f"""
        s_xor_b32 s12, s13, {a}
        s_lshl_b32 s12, s12, 14
        s_lshl_b32 s15, s3, 11
        s_add_u32 s12, s12, s15
        v_add_u32 v{8+a}, s12, v3
        """)
    k(f"""
    s_lshl_b32 s12, s3, 14
    v_add_u32 v13, s12, v3
    v_add_u32 v14, 0x10000, v8
    v_add_u32 v15, 0x10000, v9
    v_add_u32 v0, 0x10000, v10
    v_add_u32 v2, 0x10000, v11
    """)
    for n in range(11):
        vm.need(f"S{n}")
        for ad in range(2):
            for al in range(2):
                a = A2 + 16*(2*ad+al); w = WD0+8*n+4*ad; h = HR+8*(n % HD)+4*al
                k(f"v_mfma_f32_32x32x16_bf16 v[{a}:{a+15}], v[{w}:{w+3}], v[{h}:{h+3}], v[{a}:{a+15}]")
        if n >= 1 and n-1+HD < 11: hload(n-1+HD)
    k("s_nop 3")
    lg = Q(k, 'lgkmcnt', 15)
    hi = [14, 15, 0, 2]
    for n in range(8): k(f"v_lshlrev_b32 v{RES+n}, 16, v{RES+n}")
    for a in range(4):
        for q in range(4):
            ad = (8+a) if q < 2 else hi[a]
            lg.issue(f"ds_write_b128 v{ad}, v[{A2+16*a+4*q}:{A2+16*a+4*q+3}] offset:{1024*(q&1)}", "rw")
    lg.drain()
    k("s_barrier")
    FV = 16
    for q in range(2):
        for s_ in range(8):
            lg.issue(f"ds_read_b128 v[{FV+32*q+4*s_}:{FV+32*q+4*s_+3}], v13 offset:{2048*s_+1024*q}", f"rr{q}_{s_}")
    for q in range(2):
        b = FV+32*q
        for st in (1, 2, 4):
            for s_ in range(0, 8, 2*st):
                lg.need(f"rr{q}_{min(7, s_+2*st-1)}")
                for j in (0, 2): k(f"v_pk_add_f32 {P(b+4*s_+j)}, {P(b+4*s_+j)}, {P(b+4*(s_+st)+j)}")
        k(f"v_cvt_pk_bf16_f32 v{T+2*q}, v{b}, v{b+1}")
        k(f"v_cvt_pk_bf16_f32 v{T+2*q+1}, v{b+2}, v{b+3}")
        unpack(k, b, b+1, T+2*q); unpack(k, b+2, b+3, T+2*q+1)
        for j in (0, 2): k(f"v_pk_add_f32 {P(b+j)}, {P(b+j)}, {P(RES+4*q+j)}")
        k(f"v_cvt_pk_bf16_f32 v{T+2*q}, v{b}, v{b+1}")
        k(f"v_cvt_pk_bf16_f32 v{T+2*q+1}, v{b+2}, v{b+3}")
    k("s_cmp_eq_u32 s93, 1")
    k(f"s_cbranch_scc1 L_{N}_out")
    k("v_mov_b32 v12, 0")
    k("v_mov_b32 v13, 0")
    k("v_mov_b32 v14, 0x3f803f80")
    for q in range(2):
        for r in range(4):
            op = "buffer_store_short_d16_hi" if r & 1 else "buffer_store_short"
            k(f"{op} v{T+2*q+(r>>1)}, v5, s[8:11], s25 offen offset:{(8*q+r)*64}")
        for j in range(2):
            k(f"v_dot2_f32_bf16 v12, v{T+2*q+j}, v14, v12")
            k(f"v_dot2_f32_bf16 v13, v{T+2*q+j}, v{T+2*q+j}, v13")
    k(f"""
    s_nop 2
    v_permlane32_swap_b32 v12, v13
    v_lshlrev_b32 v5, 3, v6
    v_lshl_add_u32 v5, v7, 2, v5
    s_lshl_b32 s12, s33, 8
    s_add_u32 s12, s12, {ST3}
    v_add_f32 v12, v12, v13
    buffer_atomic_add_f32 v12, v5, s[8:11], s12 offen
    s_branch L_{N}_e2
    L_{N}_out:
    s_mov_b32 s28, s96
    s_mov_b32 s29, s97
    s_mov_b32 s30, {2048*512*2}
    s_mov_b32 s31, 0x00020000
    v_lshlrev_b32 v5, 10, v6
    v_lshl_add_u32 v5, v7, 4, v5
    s_lshl_b32 s25, s33, 15
    s_lshl_b32 s12, s32, 6
    s_add_u32 s25, s25, s12
    s_lshr_b32 s12, s3, 2
    s_lshl_b32 s12, s12, 5
    s_add_u32 s25, s25, s12
    v_permlane32_swap_b32 v{T}, v{T+2}
    v_permlane32_swap_b32 v{T+1}, v{T+3}
    buffer_store_dwordx4 v[{T}:{T+3}], v5, s[28:31], s25 offen
    L_{N}_e2:
    """)
    stamp(k, 9)
    stamp_flush(k, slot, 10, 3)
    k(f"s_branch {E}")
    k.label(f"L_{N}_prod")
    k(f"""
    s_mul_i32 s4, s2, 5
    s_lshl_b32 s12, s4, 15
    s_lshl_b32 s13, s3, 10
    s_add_u32 s12, s12, s13
    s_mov_b32 s26, {2*MB}
    s_mov_b32 s27, 0x00020000
    s_add_u32 s24, s18, {XB}
    s_addc_u32 s25, s19, 0
    s_lshl_b32 s5, s3, 14
    v_and_b32 v6, 15, v1
    v_lshrrev_b32 v12, 2, v6
    v_lshl_add_u32 v12, v7, 3, v12
    v_lshlrev_b32 v12, 6, v12
    v_and_b32 v8, 3, v6
    v_lshl_add_u32 v12, v8, 3, v12
    v_and_b32 v8, 16, v1
    v_lshl_add_u32 v12, v8, 1, v12
    v_add_u32 v12, s5, v12
    v_mov_b32 v13, 0x3f803f80
    """)
    for r in range(10): k(f"v_mov_b32 v{16+r}, 0")
    k(f"""
    s_mov_b32 s13, 0
    s_cmp_eq_u32 s3, 0
    s_cbranch_scc0 L_{N}_cwp
    s_sleep {CFD}
    s_and_b32 s15, s2, {CFR-1}
    s_lshl_b32 s15, s15, 10
    s_add_u32 s15, s15, {CF}
    L_{N}_cqp:
    buffer_load_dwordx4 v[8:11], v3, s[8:11], s15 offen sc1
    s_add_u32 s13, s13, 1
    s_waitcnt vmcnt(0)
    v_and_b32 v8, v8, v9
    v_and_b32 v10, v10, v11
    v_and_b32 v8, v8, v10
    v_cmp_ne_u32 vcc, 1, v8
    s_cmp_eq_u64 vcc, 0
    s_cbranch_scc1 L_{N}_crp
    s_cmp_ge_u32 s13, {SPIN}
    s_cbranch_scc1 L_{N}_crp
    s_sleep {CFS}
    s_branch L_{N}_cqp
    L_{N}_crp:
    v_mov_b32 v8, 1
    ds_write_b32 v4, v8 offset:52
    s_branch L_{N}_cdp
    L_{N}_cwp:
    ds_read_b32 v8, v4 offset:52
    s_waitcnt lgkmcnt(0)
    v_readfirstlane_b32 s13, v8
    s_cmp_eq_u32 s13, 1
    s_cbranch_scc1 L_{N}_cdp
    s_sleep 1
    s_branch L_{N}_cwp
    L_{N}_cdp:
    """)
    stamp(k, 2)
    pv = Q(k, 'vmcnt', 63); pl = Q(k, 'lgkmcnt', 15)
    def pdma(n):
        k(f"s_add_u32 m0, s5, {1024*(n % 16)}")
        k(f"s_add_u32 s14, s12, {(n >> 2)*32768 + (n & 3)*8192}")
        pv.issue(f"buffer_load_dwordx4 v3, s[24:27], s14 offen sc1 lds", f"d{n}")
    def prd(n):
        pv.need(f"d{n}")
        r = 32 + 4*(n % 4)
        pl.issue(f"ds_read_b64_tr_b16 v[{r}:{r+1}], v12 offset:{1024*(n%16)}", f"r{n}")
        pl.issue(f"ds_read_b64_tr_b16 v[{r+2}:{r+3}], v12 offset:{1024*(n%16)+256}", f"r{n}")
    for n in range(16): pdma(n)
    prd(0); prd(1)
    for n in range(20):
        if n+2 < 20: prd(n+2)
        pl.need(f"r{n}")
        if n < 4: pdma(16+n)
        r = 32 + 4*(n % 4); lb = n >> 2
        for e in range(4):
            k(f"v_dot2_f32_bf16 v{16+2*lb}, v{r+e}, v13, v{16+2*lb}")
            k(f"v_dot2_f32_bf16 v{17+2*lb}, v{r+e}, v{r+e}, v{17+2*lb}")
    k("s_nop 2")
    for lb in range(5): k(f"v_permlane32_swap_b32 v{16+2*lb}, v{17+2*lb}")
    for lb in range(5): k(f"v_add_f32 v{16+2*lb}, v{16+2*lb}, v{17+2*lb}")
    k(f"""
    v_and_b32 v8, 31, v1
    v_lshlrev_b32 v8, 3, v8
    v_lshl_add_u32 v8, v7, 2, v8
    v_add_u32 v8, s5, v8
    """)
    for lb in range(5): k(f"ds_write_b32 v8, v{16+2*lb} offset:{256*lb}")
    k(f"""
    s_waitcnt lgkmcnt(0)
    s_barrier
    s_cmp_ge_u32 s3, 3
    s_cbranch_scc1 L_{N}_pe
    v_lshlrev_b32 v8, 3, v0
    v_add_u32 v9, 0x10000, v8
    """)
    for w in range(8): k(f"ds_read_b64 v[{32+2*w}:{33+2*w}], v{8 + (w >> 2)} offset:{16384*(w & 3)}")
    k("s_waitcnt lgkmcnt(0)")
    for st in (1, 2, 4):
        for w in range(0, 8, 2*st): k(f"v_pk_add_f32 {P(32+2*w)}, {P(32+2*w)}, {P(32+2*(w+st))}")
    k(f"""
    s_mov_b32 s24, {f32hex(1.0/512)}
    s_mov_b32 s25, {f32hex(1e-5)}
    v_mul_f32 v14, s24, v32
    v_mul_f32 v16, s24, v33
    v_fma_f32 v16, -v14, v14, v16
    v_max_f32 v16, 0, v16
    v_cvt_pk_bf16_f32 v14, v14, v16
    v_and_b32 v16, 0xffff0000, v14
    v_lshlrev_b32 v14, 16, v14
    v_add_f32 v16, s25, v16
    v_cvt_pk_bf16_f32 v16, v16, v16
    v_lshlrev_b32 v16, 16, v16
    v_sqrt_f32 v16, v16
    s_mul_i32 s4, s2, 1280
    s_add_u32 s4, s4, {FCG}
    v_cvt_pk_bf16_f32 v20, v14, v16
    v_mov_b32 v21, 1
    s_movk_i32 s6, 160
    v_cmp_gt_u32 vcc, s6, v0
    s_and_saveexec_b64 s[6:7], vcc
    buffer_store_dwordx2 v[20:21], v8, s[8:11], s4 offen sc1
    s_mov_b64 exec, s[6:7]
    s_nop 1
    L_{N}_pe:
    """)
    for i in (3, 5): stamp(k, i)
    k(f"s_branch L_{N}_dall")
    k.label(E)
    k("s_endpgm")
    return k
```

```python
import sys, os
import asmlib
asmlib.STAMPS = bool(os.environ.get('STAMPS'))
from asmlib import *
from layout import *
import gen_k0, gen_layer
KN = "interleave_layers__ssm_conv_s4d__glu_gated_glu__prompt_kernel"
k0 = gen_k0.gen_k0()
sets1 = {86: XT0, 87: XT1, 88: ST1, 89: FCG1, 90: H, 91: HF1, 92: XT2, 93: 0, 94: CF1, 95: 2}
sets2 = {86: XT2, 87: XT3, 88: ST3, 89: FCG2, 90: H2, 91: HF2, 92: 0, 93: 1, 94: CF2, 95: 6}
lay = gen_layer.gen_layer('lay1_kernel', sets1)
k = Kernel(KN, vgpr=256, sgpr=102)
def rv0():
    k("""
    v_mbcnt_lo_u32_b32 v0, -1, 0
    v_mbcnt_hi_u32_b32 v0, -1, v0
    s_lshl_b32 s3, s100, 6
    v_add_u32 v0, s3, v0
    """)
def gbar(idx):
    k(f"""
    s_waitcnt vmcnt(0) lgkmcnt(0)
    s_barrier
    s_mov_b64 exec, -1
    s_mov_b32 s3, s100
    s_load_dwordx2 s[4:5], s[0:1], 96
    s_waitcnt lgkmcnt(0)
    s_cmp_lg_u32 s3, 0
    s_cbranch_scc1 L_gb{idx}_w
    buffer_wbl2 sc1
    s_waitcnt vmcnt(0)
    v_mov_b32 v1, {idx*128}
    v_mov_b32 v2, 1
    s_mov_b64 exec, 1
    global_atomic_add v1, v2, s[4:5] sc1
    s_mov_b32 s6, 0
    L_gb{idx}_p:
    s_sleep 8
    global_load_dword v3, v1, s[4:5] sc1
    s_add_u32 s6, s6, 1
    s_waitcnt vmcnt(0)
    v_readfirstlane_b32 s7, v3
    s_cmp_ge_u32 s6, 400000
    s_cbranch_scc1 L_gb{idx}_d
    s_cmp_lt_u32 s7, 256
    s_cbranch_scc1 L_gb{idx}_p
    L_gb{idx}_d:
    s_mov_b64 exec, -1
    buffer_inv sc1
    s_waitcnt vmcnt(0)
    L_gb{idx}_w:
    s_barrier
    """)
    rv0()
k(f"""
s_cmp_ge_u32 s2, 256
s_cbranch_scc1 L_all_end
s_mov_b32 s98, s2
s_mov_b32 s99, 0
v_lshrrev_b32 v1, 6, v0
s_nop 0
v_readfirstlane_b32 s100, v1
""")
lines0 = [l for l in k0.lines]
k.label("L_k0_again")
k("s_setprio 0")
k.lines += [l.replace("s_endpgm", "s_nop 0") for l in lines0]
k(f"""
s_mov_b64 exec, -1
s_waitcnt vmcnt(0) lgkmcnt(0)
s_barrier
""")
rv0()
k(f"""
s_add_u32 s99, s99, 1
s_add_u32 s2, s98, 256
s_cmp_eq_u32 s99, 1
s_cbranch_scc1 L_k0_again
s_setprio 0
""")
gbar(0)
k("s_mov_b32 s2, s98")
k("s_mov_b32 s99, 0")
k.lines += [l.replace("s_endpgm", "s_nop 0") for l in lay.lines]
k(f"""
s_cmp_eq_u32 s93, 1
s_cbranch_scc1 L_all_end
s_mov_b64 exec, -1
""")
gbar(1)
k("s_mov_b32 s2, s98")
for r, v in sets2.items(): k(f"s_mov_b32 s{r}, {v}")
k("s_branch L_lay1_kernel_body")
k.label("L_all_end")
k("s_endpgm")
p = Prog(); p.add_kernel(k)
if os.environ.get('ASLIST') or asmlib.STAMPS:
    if asmlib.STAMPS:
        d = Kernel('delay_kernel', vgpr=8, sgpr=16)
        d("s_endpgm"); p.add_kernel(d); p.launch('delay_kernel', 1, 64, 0)
    p.launch(KN, 256, 512, gen_layer.LAYER_LDS)
    t = p.text()
else:
    t = p.text().replace('.amdgcn_target', f"; @launch grid=(256,1,1) block=(512,1,1) lds={gen_layer.LAYER_LDS}\n.amdgcn_target", 1)
open(sys.argv[1], 'w').write(t)
```

```python
MB = 1 << 20
L, D, NS, F = 2048, 512, 128, 1376
XT0, XT1, XT2, XT3 = 0, 2*MB, 4*MB, 6*MB
ST1 = 8*MB
ZR  = ST1 + 16384
ST3 = ZR
FCG1 = ST3 + 16384
FCG2 = FCG1 + 20480
HF1 = FCG2 + 20480
HF2 = HF1 + 12288
CF1 = HF2 + 12288
CF2 = CF1 + 8192
LF  = CF2 + 8192
assert LF + 8192 <= ZR + 131072
CS = ZR + 131072; CSP = 1408*4
WGU = 8*MB + 256*1024
WD  = 11*MB
KG  = 12*MB + 512*1024; KGH = 4128; KGP = 2*KGH
H   = 17*MB
H2  = H + 6*MB
WS_USED = 30*MB
assert WGU + 88*32768 <= WD and WD + 16*86*1024 <= KG and KG + 512*KGP <= H and CS + 32768 <= WGU
PF = CS
NONCE = PF + 8192
PW = NONCE + 1024
assert PW + 8192 <= WGU
CSQ = 29*MB
assert H2 + 64*86*1024 <= CSQ
STG = XT0
```

```python
import asmlib, os
asmlib.STAMPS = bool(os.environ.get('STAMPS'))
from asmlib import *
from layout import *
from gen_k0 import f32hex, LOG2E
from gen_conv import unpack, U0, UP, KC0, KCP, KCH, RED
NPROD = 14; PCH = 19
FLG = 131072
LAYER_LDS = FLG + 256 + 1024
SPIN = 400000
CFD = int(os.environ.get('CFD', '0')); CFS = int(os.environ.get('CFS', '4')); CFR = int(os.environ.get('CFR', '8'))
XSC = os.environ.get('XSC', 'sc1')
NWP = int(os.environ.get('NWP', '18'))
NWP2 = int(os.environ.get('NWP2', '24'))
WDLAG = int(os.environ.get('WDLAG', '12'))
NDI = int(os.environ.get('NDI', '14'))

from gen_k0 import exp_bf16_pair, LOG2E_HI, LOG2E_LO, LN2, INV2PI
SC = ''
def gen_mega(name, sets1, sets2):
    k = Kernel(name, vgpr=256, sgpr=100)
    XA, XB, ST, FCG, HB, HF, XC, CF, slot = 's86', 's87', 's88', 's89', 's90', 's91', 's92', 's94', 's95'
    stamp(k, 0)
    E = "L_mega_end"; N = "m"
    ACC = 16; XF = 64; CSV = 144; FCR = 112
    A2 = 16; HR = 80; WD0 = 168; RES = 128; T = 144; FG = 160
    P = lambda r: f"v[{r}:{r+1}]"
    def wreg(ks):
        if ks < 22: return 168 + 4*ks
        if ks < 30: return 112 + 4*(ks-22)
        return 168 + 4*(ks-30)
    late_w = {}
    for j in range(NWP2, 32): late_w.setdefault(max(3, j - 14) if j < 30 else 12 + j - 30, []).append(j)
    def wpre(ks):
        r = wreg(ks)
        k(f"s_add_u32 s14, s55, {4096*(ks//4)}")
        k(f"buffer_load_dwordx4 v[{r}:{r+3}], v3, s[20:23], s14 offen offset:{1024*(ks&3)} sc1")

    KSC = RED; TS = 90112; WS_ = TS + 8192
    SIDE_AT = int(os.environ.get('SIDE_AT', '5'))
    def side_issue():
        k(f"""
        s_mov_b32 s48, s24
        s_mov_b32 s49, s25
        s_mov_b32 s50, {2*MB}
        s_mov_b32 s51, 0x00020000
        s_lshl_b32 s4, s2, 3
        s_add_u32 s4, s4, s3
        s_lshl_b32 s4, s4, 10
        v_lshlrev_b32 v116, 4, v1
        buffer_load_dwordx4 v[112:115], v116, s[48:51], s4 offen
        v_lshrrev_b32 v117, 4, v1
        v_and_b32 v118, 15, v1
        v_lshlrev_b32 v119, 10, v117
        v_lshl_add_u32 v119, v118, 4, v119
        s_lshr_b32 s4, s2, 2
        s_lshl_b32 s4, s4, 15
        s_lshl_b32 s5, s3, 12
        s_add_u32 s4, s4, s5
        s_and_b32 s5, s2, 3
        s_lshl_b32 s5, s5, 8
        s_add_u32 s4, s4, s5
        s_lshl_b32 s5, s3, 10
        s_add_u32 m0, s5, {TS}
        s_nop 0
        buffer_load_dwordx4 v119, s[48:51], s4 offen lds
        s_lshl_b32 s52, s2, 2
        s_add_u32 s52, s52, s3
        s_add_u32 s4, s2, 1024
        s_cmp_eq_u32 s3, 4
        s_cselect_b32 s52, s4, s52
        s_cmp_gt_u32 s3, 4
        s_cselect_b32 s52, 0x7fff, s52
        s_lshl_b32 s53, s3, 12
        s_add_u32 s53, s53, {WS_}
        s_mov_b32 s50, {D*F*2}
        s_mov_b32 s58, {D*F*2}
        s_mov_b32 s59, 0x00020000
        s_cmp_ge_u32 s52, 1032
        s_cselect_b32 s50, 0, s50
        s_cmp_ge_u32 s52, 688
        s_cbranch_scc1 L_si_wd
        s_mov_b32 s48, s28
        s_mov_b32 s49, s29
        s_mov_b32 s56, s30
        s_mov_b32 s57, s31
        v_lshrrev_b32 v120, 2, v1
        v_and_b32 v121, 3, v1
        v_mul_u32_u24 v120, {F*2}, v120
        v_lshl_add_u32 v120, v121, 4, v120
        s_and_b32 s4, s52, 15
        s_mul_i32 s4, s4, {32*F*2}
        s_lshr_b32 s5, s52, 4
        s_lshl_b32 s5, s5, 6
        s_add_u32 s4, s4, s5
        """)
        for t_ in range(2):
            k(f"s_add_u32 m0, s53, {2048*t_}")
            k("s_nop 0")
            k("buffer_load_dwordx4 v120, s[48:51], s4 offen lds")
            k(f"s_add_u32 m0, s53, {2048*t_+1024}")
            k("s_nop 0")
            k("buffer_load_dwordx4 v120, s[56:59], s4 offen lds")
            k(f"s_add_u32 s4, s4, {16*F*2}")
        k(f"""
        s_branch L_si_done
        L_si_wd:
        s_mov_b32 s48, s26
        s_mov_b32 s49, s27
        s_sub_u32 s4, s52, 688
        s_and_b32 s5, s4, 3
        s_lshr_b32 s4, s4, 2
        s_lshl_b32 s4, s4, 14
        s_lshl_b32 s5, s5, 8
        s_add_u32 s4, s4, s5
        """)
        for t_ in range(4):
            k(f"s_add_u32 m0, s53, {1024*t_}")
            k("s_nop 0")
            k("buffer_load_dwordx4 v119, s[48:51], s4 offen lds")
            k(f"s_add_u32 s4, s4, 4096")
        k.label("L_si_done")
    def side_process():
        k(f"""
        v_mov_b32 v124, 0
        v_mov_b32 v125, 0
        v_mov_b32 v126, 0x3f803f80
        v_lshrrev_b32 v120, 2, v118
        v_lshl_add_u32 v120, v117, 3, v120
        v_lshlrev_b32 v120, 8, v120
        v_and_b32 v121, 3, v118
        v_lshl_add_u32 v120, v121, 3, v120
        s_lshl_b32 s4, s3, 5
        s_add_u32 s4, s4, {TS}
        v_add_u32 v120, s4, v120
        s_waitcnt vmcnt(0)
        s_barrier
        ds_read_b64_tr_b16 v[128:129], v120
        ds_read_b64_tr_b16 v[130:131], v120 offset:1024
        """)
        for j in range(4):
            k(f"v_dot2_f32_bf16 v124, v{112+j}, v126, v124")
            k(f"v_dot2_f32_bf16 v125, v{112+j}, v{112+j}, v125")
        k(f"""
        s_lshr_b32 s4, s2, 2
        s_lshl_b32 s4, s4, 15
        s_and_b32 s5, s2, 3
        s_lshl_b32 s5, s5, 13
        s_add_u32 s4, s4, s5
        s_lshl_b32 s5, s3, 10
        s_add_u32 s4, s4, s5
        s_add_u32 s4, s4, {XT0}
        v_lshlrev_b32 v121, 6, v118
        v_lshl_add_u32 v121, v117, 4, v121
        """)
        for dpp in ("quad_perm:[1,0,3,2] row_mask:0xf bank_mask:0xf", "quad_perm:[2,3,0,1] row_mask:0xf bank_mask:0xf",
                    "row_half_mirror row_mask:0xf bank_mask:0xf", "row_mirror row_mask:0xf bank_mask:0xf",
                    "row_bcast:15 row_mask:0xa bank_mask:0xf", "row_bcast:31 row_mask:0xc bank_mask:0xf"):
            k(f"v_add_f32 v124, v124, v124 {dpp}")
            k(f"v_add_f32 v125, v125, v125 {dpp}")
            k("s_nop 1")
        k(f"""
        s_waitcnt lgkmcnt(0)
        buffer_store_dwordx4 v[128:131], v121, s[8:11], s4 offen sc1
        s_lshl_b32 s4, s2, 3
        s_add_u32 s4, s4, s3
        s_lshl_b32 s4, s4, 3
        s_add_u32 s4, s4, {ST1}
        v_mov_b32 v122, 0
        v_mov_b32 v132, 0
        v_mov_b32 v133, 0
        v_mov_b32 v134, 0
        v_mov_b32 v135, 0
        s_mov_b32 exec_lo, 0
        s_mov_b32 exec_hi, 0x80000000
        buffer_store_dwordx2 v[124:125], v122, s[8:11], s4 offen sc1
        s_mov_b64 exec, -1
        s_cmp_lg_u32 s3, 5
        s_cbranch_scc1 L_sp_nz
        s_lshl_b32 s4, s2, 9
        s_add_u32 s4, s4, {ZR}
        s_mov_b32 exec_hi, 0
        buffer_store_dwordx4 v[132:135], v116, s[8:11], s4 offen sc1
        s_mov_b64 exec, -1
        L_sp_nz:
        s_cmp_ge_u32 s52, 1032
        s_cbranch_scc1 L_sp_done
        v_lshrrev_b32 v122, 5, v1
        v_lshrrev_b32 v120, 2, v118
        v_and_b32 v121, 3, v118
        v_and_b32 v123, 16, v1
        s_cmp_ge_u32 s52, 688
        s_cbranch_scc1 L_sp_wd
        v_lshl_add_u32 v120, v122, 3, v120
        v_lshlrev_b32 v120, 6, v120
        v_lshl_add_u32 v120, v121, 3, v120
        v_lshl_add_u32 v120, v123, 6, v120
        v_add_u32 v120, s53, v120
        s_lshr_b32 s4, s52, 4
        s_lshl_b32 s4, s4, 16
        s_and_b32 s5, s52, 15
        s_lshl_b32 s5, s5, 11
        s_add_u32 s4, s4, s5
        s_add_u32 s4, s4, {WGU}
        s_add_u32 s5, s4, 0x8000
        """)
        for t_ in range(4):
            ks, hf = t_ >> 1, t_ & 1
            k(f"ds_read_b64_tr_b16 v[{136+4*t_}:{137+4*t_}], v120 offset:{2048*ks + 32*hf}")
            k(f"ds_read_b64_tr_b16 v[{138+4*t_}:{139+4*t_}], v120 offset:{2048*ks + 32*hf + 256}")
        for t_ in range(4):
            ks, hf = t_ >> 1, t_ & 1
            k(f"s_waitcnt lgkmcnt({6-2*t_})")
            k(f"buffer_store_dwordx4 v[{136+4*t_}:{139+4*t_}], v116, s[8:11], s{4+hf} offen offset:{1024*ks} sc1")
        k(f"""
        s_branch L_sp_done
        L_sp_wd:
        v_lshl_add_u32 v120, v122, 2, v120
        v_lshlrev_b32 v120, 8, v120
        v_lshl_add_u32 v120, v121, 3, v120
        v_lshl_add_u32 v120, v123, 1, v120
        v_add_u32 v120, s53, v120
        s_sub_u32 s4, s52, 688
        s_and_b32 s5, s4, 3
        s_lshr_b32 s4, s4, 2
        s_lshl_b32 s4, s4, 10
        s_mul_i32 s5, s5, {4*86*1024}
        s_add_u32 s4, s4, s5
        s_add_u32 s4, s4, {WD}
        """)
        for t_ in range(4):
            k(f"ds_read_b64_tr_b16 v[{136+4*t_}:{137+4*t_}], v120 offset:{64*t_}")
            k(f"ds_read_b64_tr_b16 v[{138+4*t_}:{139+4*t_}], v120 offset:{64*t_ + 2048}")
        for t_ in range(4):
            k(f"s_waitcnt lgkmcnt({6-2*t_})")
            k(f"buffer_store_dwordx4 v[{136+4*t_}:{139+4*t_}], v116, s[8:11], s4 offen sc1")
            k(f"s_add_u32 s4, s4, {86*1024}")
        k.label("L_sp_done")
    k(f"""
    s_cmp_ge_u32 s2, 256
    s_cbranch_scc1 {E}
    s_load_dwordx8 s[36:43], s[0:1], 8
    s_load_dwordx2 s[46:47], s[0:1], 40
    s_load_dwordx2 s[18:19], s[0:1], 104
    s_load_dwordx2 s[16:17], s[0:1], 48
    s_load_dwordx4 s[96:99], s[0:1], 88
    s_load_dwordx2 s[24:25], s[0:1], 0
    s_load_dwordx4 s[28:31], s[0:1], 64
    s_load_dwordx2 s[26:27], s[0:1], 80
    v_and_b32 v1, 63, v0
    v_lshrrev_b32 v2, 6, v0
    s_mov_b32 s10, {WS_USED}
    v_readfirstlane_b32 s3, v2
    s_mov_b32 s11, 0x00020000
    """)
    CHB = 20480; PT = 2048; T16 = 2048 + 4*3072
    k(f"""
    s_lshr_b32 s4, s3, 2
    s_and_b32 s45, s3, 3
    s_lshl_b32 s44, s2, 1
    s_add_u32 s44, s44, s4
    s_mul_i32 s34, s4, {CHB}
    s_add_u32 s34, s34, {KSC}
    v_and_b32 v3, 31, v1
    s_lshl_b32 s4, s44, 7
    s_lshl_b32 s5, s45, 5
    s_add_u32 s4, s4, s5
    v_add_u32 v4, s4, v3
    v_lshlrev_b32 v4, 1, v4
    s_lshl_b32 s5, s44, 1
    v_mov_b32 v5, s5
    s_waitcnt lgkmcnt(0)
    s_mov_b32 s8, s18
    s_mov_b32 s9, s19
    global_load_ushort v6, v4, s[36:37]
    global_load_ushort v10, v5, s[46:47]
    global_load_ushort v7, v4, s[38:39]
    global_load_ushort v8, v4, s[40:41]
    global_load_ushort v9, v4, s[42:43]
    """)
    side_issue()
    k(f"""
    s_mov_b32 s30, {f32hex(LOG2E_HI)}
    s_mov_b32 s31, {f32hex(LOG2E_LO)}
    s_mov_b32 s32, {f32hex(LN2)}
    s_mov_b32 s33, {f32hex(INV2PI)}
    v_and_b32 v0, 255, v0
    v_and_b32 v11, 15, v1
    v_lshrrev_b32 v12, 3, v11
    v_lshlrev_b32 v12, 7, v12
    v_and_b32 v13, 7, v11
    v_add_u32 v12, v12, v13
    v_cvt_f32_u32 v20, v12
    v_lshrrev_b32 v12, 2, v11
    v_lshlrev_b32 v12, 7, v12
    v_and_b32 v13, 3, v11
    v_lshl_add_u32 v12, v13, 1, v12
    v_add_u32 v12, 0x100, v12
    v_subrev_u32 v13, 8, v11
    v_lshrrev_b32 v13, 1, v13
    v_lshlrev_b32 v13, 7, v13
    v_and_b32 v14, 1, v11
    v_lshl_add_u32 v13, v14, 2, v13
    v_add_u32 v13, 0x200, v13
    v_cmp_gt_u32 vcc, 8, v11
    v_lshlrev_b32 v14, 7, v11
    v_add_u32 v14, 0x400, v14
    v_cndmask_b32 v12, v13, v12, vcc
    v_cvt_f32_u32 v21, v12
    v_cvt_f32_u32 v22, v14
    v_lshlrev_b32 v14, 3, v11
    v_cvt_f32_u32 v23, v14
    s_lshl_b32 s5, s45, 9
    s_add_u32 s5, s5, s34
    v_lshl_add_u32 v2, v3, 4, s5
    v_lshrrev_b32 v3, 4, v1
    v_lshl_add_u32 v3, v3, 6, s5
    """)
    for r in range(12): k(f"v_mov_b32 v{24+r}, 0")
    k("s_waitcnt vmcnt(9)")
    k("v_lshlrev_b32 v6, 16, v6")
    k("v_lshlrev_b32 v10, 16, v10")
    exp_bf16_pair(k, [6, 10], 12, 30, 31, 32)
    k(f"""
    s_waitcnt vmcnt(6)
    v_lshlrev_b32 v7, 16, v7
    v_lshlrev_b32 v8, 16, v8
    v_lshlrev_b32 v9, 16, v9
    v_mul_f32 v6, v6, v10
    v_mul_f32 v7, v7, v10
    v_add_f32 v10, v10, v10
    v_mul_f32 v18, v8, v10
    v_mul_f32 v19, v9, v10
    v_mul_f32 v16, s30, v6
    v_max_f32 v12, |v18|, |v19|
    v_mul_f32 v17, s33, v7
    v_sub_f32 v16, 0, v16
    v_max_f32_dpp v12, v12, v12 row_ror:8 row_mask:0xf bank_mask:0xf
    s_nop 1
    v_max_f32_dpp v12, v12, v12 row_ror:4 row_mask:0xf bank_mask:0xf
    s_nop 1
    v_max_f32_dpp v12, v12, v12 row_ror:2 row_mask:0xf bank_mask:0xf
    s_nop 1
    v_max_f32_dpp v12, v12, v12 row_ror:1 row_mask:0xf bank_mask:0xf
    s_nop 1
    v_readlane_b32 s6, v12, 0
    v_readlane_b32 s7, v12, 16
    s_max_u32 s6, s6, s7
    s_lshr_b32 s6, s6, 23
    s_max_u32 s6, s6, 1
    s_min_u32 s6, s6, 252
    s_sub_u32 s7, 253, s6
    s_lshl_b32 s7, s7, 23
    s_add_u32 s35, s6, 1
    s_lshl_b32 s35, s35, 23
    v_mul_f32 v18, s7, v18
    v_mul_f32 v19, s7, v19
    ds_write_b128 v2, v[16:19]
    s_waitcnt lgkmcnt(0)
    """)
    for st in range(8): k(f"ds_read_b128 v[{36+4*st}:{39+4*st}], v3 offset:{256*(st>>2) + 16*(st&3)}")
    for st in range(8):
        s_, t = st >> 2, st & 3
        zr, zi, cr, ci = 36+4*st, 37+4*st, 38+4*st, 39+4*st
        Fb = 80 + 16*s_ + t
        if st == SIDE_AT: side_process()
        k(f"s_waitcnt lgkmcnt({7-st})")
        for c in range(4): k(f"v_mul_f32 v{68+c}, v{zr}, v{20+c}")
        for c in range(4): k(f"v_mul_f32 v{72+c}, v{zi}, v{20+c}")
        for c in range(4): k(f"v_exp_f32 v{68+c}, v{68+c}")
        for c in range(4): k(f"v_fract_f32 v{72+c}, v{72+c}")
        for c in range(4): k(f"v_cos_f32 v{76+c}, v{72+c}")
        for c in range(4): k(f"v_sin_f32 v{4+c}, v{72+c}")
        k(f"v_mul_f32 v8, v71, v{cr}")
        k(f"v_mul_f32 v9, v71, v{ci}")
        for c in range(3): k(f"v_fma_mixlo_f16 v{Fb+4*c}, v{68+c}, v{76+c}, 0")
        k(f"v_mul_f32 v10, v8, v79")
        k(f"v_mul_f32 v11, v8, v7")
        for c in range(3): k(f"v_fma_mixhi_f16 v{Fb+4*c}, v{68+c}, v{4+c}, 0")
        k(f"v_fma_mixlo_f16 v{Fb+12}, -v9, v7, v10")
        if st == 4:
            for c in range(3): k(f"v_mfma_f32_16x16x32_f16 v[{24+4*c}:{27+4*c}], v[{80+4*c}:{83+4*c}], v[92:95], v[{24+4*c}:{27+4*c}]")
        else: k("s_nop 0")
        k(f"v_fma_mixhi_f16 v{Fb+12}, -v9, v79, -v11")
    k(f"""
    s_mul_i32 s5, s45, 3072
    s_add_u32 s5, s5, s34
    s_add_u32 s5, s5, {PT}
    v_lshl_add_u32 v12, v1, 4, s5
    """)
    for c in range(3): k(f"v_mfma_f32_16x16x32_f16 v[{24+4*c}:{27+4*c}], v[{96+4*c}:{99+4*c}], v[108:111], v[{24+4*c}:{27+4*c}]")
    k("s_nop 7")
    for r in range(12): k(f"v_mul_f32 v{24+r}, s35, v{24+r}")
    k(f"""
    ds_write_b128 v12, v[24:27]
    ds_write_b128 v12, v[28:31] offset:1024
    ds_write_b128 v12, v[32:35] offset:2048
    v_lshl_add_u32 v12, v0, 4, s34
    v_lshrrev_b32 v13, 4, v1
    v_and_b32 v14, 15, v1
    v_lshl_add_u32 v14, v14, 4, s34
    s_waitcnt vmcnt(0) lgkmcnt(0)
    s_barrier
    s_cmp_lg_u32 s3, 7
    s_cbranch_scc1 L_kg_np
    v_mov_b32 v40, s2
    v_mov_b32 v41, 1
    s_mov_b64 exec, 1
    global_store_byte v40, v41, s[98:99] sc1
    s_mov_b64 exec, -1
    L_kg_np:
    s_cmp_eq_u32 s45, 3
    s_cbranch_scc1 L_kg_stage2
    ds_read_b128 v[24:27], v12 offset:{PT}
    ds_read_b128 v[28:31], v12 offset:{PT+3072}
    ds_read_b128 v[32:35], v12 offset:{PT+2*3072}
    ds_read_b128 v[36:39], v12 offset:{PT+3*3072}
    s_cmp_eq_u32 s45, 1
    s_cbranch_scc1 L_kg_t1
    s_cmp_eq_u32 s45, 2
    s_cbranch_scc1 L_kg_t2
    v_lshrrev_b32 v15, 1, v13
    v_lshlrev_b32 v15, 8, v15
    v_and_b32 v16, 1, v13
    v_lshl_add_u32 v15, v16, 3, v15
    v_add_u32 v16, v15, v14
    v_add_u32 v17, 2, v16
    v_add_u32 v18, 4, v16
    v_add_u32 v19, 6, v16
    s_branch L_kg_w
    L_kg_t1:
    v_lshlrev_b32 v15, 8, v13
    v_add_u32 v15, 0x200, v15
    v_add_u32 v16, v15, v14
    v_add_u32 v17, 4, v16
    v_add_u32 v18, 8, v16
    v_add_u32 v19, 12, v16
    v_lshlrev_b32 v15, 9, v13
    v_add_u32 v15, v15, v14
    v_add_u32 v20, 8, v15
    v_add_u32 v21, 0x100, v15
    v_add_u32 v22, 0x108, v15
    v_cmp_gt_u32 vcc, 2, v13
    s_nop 1
    v_cndmask_b32 v16, v15, v16, vcc
    v_cndmask_b32 v17, v20, v17, vcc
    v_cndmask_b32 v18, v21, v18, vcc
    v_cndmask_b32 v19, v22, v19, vcc
    s_branch L_kg_w
    L_kg_t2:
    v_lshlrev_b32 v15, 10, v13
    v_add_u32 v15, 0x800, v15
    v_add_u32 v16, v15, v14
    v_add_u32 v17, 0x100, v16
    v_add_u32 v18, 0x200, v16
    v_add_u32 v19, 0x300, v16
    L_kg_w:
    s_waitcnt lgkmcnt(0)
    v_pk_add_f32 v[24:25], v[24:25], v[28:29]
    v_pk_add_f32 v[26:27], v[26:27], v[30:31]
    v_pk_add_f32 v[32:33], v[32:33], v[36:37]
    v_pk_add_f32 v[34:35], v[34:35], v[38:39]
    v_pk_add_f32 v[24:25], v[24:25], v[32:33]
    v_pk_add_f32 v[26:27], v[26:27], v[34:35]
    v_cvt_pk_bf16_f32 v24, v24, v25
    v_cvt_pk_bf16_f32 v26, v26, v27
    ds_write_b16 v16, v24 offset:{T16}
    ds_write_b16_d16_hi v17, v24 offset:{T16}
    ds_write_b16 v18, v26 offset:{T16}
    ds_write_b16_d16_hi v19, v26 offset:{T16}
    L_kg_stage2:
    v_lshlrev_b32 v12, 4, v0
    v_sub_u32 v13, 4094, v12
    """)
    for e in range(10): k(f"v_subrev_u32 v{40+e}, {2*e}, v13")
    k("v_max_i32 v48, 0, v48")
    k("v_max_i32 v49, 0, v49")
    for e in range(10): k(f"v_cvt_f32_u32 v{40+e}, v{40+e}")
    for e in range(0, 10, 2): k(f"v_cvt_pk_bf16_f32 v{52+e}, v{40+e}, v{41+e}")
    for e in range(0, 10, 2):
        if e < 8: k(f"v_and_b32 v{53+e}, 0xffff0000, v{52+e}")
        k(f"v_lshlrev_b32 v{52+e}, 16, v{52+e}")
    for e in range(9): k(f"v_cvt_u32_f32 v{52+e}, v{52+e}")
    for e in range(9): k(f"v_add_u32 v{52+e}, s34, v{52+e}")
    k("s_waitcnt lgkmcnt(0)")
    k("s_barrier")
    for e in range(9): k(f"ds_read_u16 v{24+e}, v{52+e} offset:{T16}")
    k(f"""
    s_mul_i32 s5, s44, {KGP}
    s_add_u32 s5, s5, {KG}
    v_mov_b32 v48, 0
    v_mov_b32 v49, 0
    v_mov_b32 v50, 0
    v_mov_b32 v51, 0
    v_add_u32 v13, {KGH}, v12
    v_cmp_ne_u32 vcc, 0xff, v0
    s_waitcnt lgkmcnt(0)
    v_cndmask_b32 v32, 0, v32, vcc
    v_lshl_or_b32 v40, v25, 16, v24
    v_lshl_or_b32 v41, v27, 16, v26
    v_lshl_or_b32 v42, v29, 16, v28
    v_lshl_or_b32 v43, v31, 16, v30
    v_lshl_or_b32 v44, v26, 16, v25
    v_lshl_or_b32 v45, v28, 16, v27
    v_lshl_or_b32 v46, v30, 16, v29
    v_lshl_or_b32 v47, v32, 16, v31
    buffer_store_dwordx4 v[40:43], v12, s[8:11], s5 offen
    buffer_store_dwordx4 v[44:47], v13, s[8:11], s5 offen
    v_cmp_gt_u32 vcc, 2, v0
    s_and_saveexec_b64 s[6:7], vcc
    s_cbranch_execz L_kg_z
    v_add_u32 v12, 4096, v12
    v_add_u32 v13, 4096, v13
    buffer_store_dwordx4 v[48:51], v12, s[8:11], s5 offen
    buffer_store_dwordx4 v[48:51], v13, s[8:11], s5 offen
    L_kg_z:
    s_mov_b64 exec, -1
    """)
    if asmlib.STAMPS:
        for i in range(1, 10): stamp(k, i)
        stamp_flush(k, 0, 10, 3)
        k("s_mov_b64 exec, -1")
    k("s_waitcnt vmcnt(0)")
    k("s_barrier")
    for r, v in sets1.items(): k(f"s_mov_b32 s{r}, {v}")
    k.label("L_layer")
    stamp(k, 0)
    k(f"""
    v_mbcnt_lo_u32_b32 v1, -1, 0
    v_mbcnt_hi_u32_b32 v1, -1, v1
    s_lshl_b32 s4, s3, 6
    v_add_u32 v0, s4, v1
    v_lshlrev_b32 v3, 4, v1
    s_lshl_b32 s4, s2, 1
    s_lshr_b32 s5, s3, 2
    s_and_b32 s6, s3, 3
    s_add_u32 s7, s4, s5
    s_mul_i32 s28, s7, {KGP}
    s_add_u32 s28, s28, {KG}
    s_bitcmp1_b32 s6, 0
    s_cselect_b32 s13, 0, {KGH}
    s_add_u32 s28, s28, s13
    s_cmp_lt_u32 s6, 2
    s_cselect_b32 s13, 4, 0
    s_add_u32 s28, s28, s13
    s_mul_i32 s13, s5, {KCH}
    s_mul_i32 s14, s6, {KCP}
    s_add_u32 s13, s13, s14
    s_add_u32 s13, s13, {KC0}
    s_mov_b32 m0, s13
    s_lshl_b32 s12, s7, 1
    """)
    for c in range(4): k(f"buffer_load_dwordx4 v3, s[8:11], s28 offen offset:{1024*c} lds")
    k(f"""
    v_mov_b32 v9, s12
    global_load_ushort v52, v9, s[16:17]
    v_lshlrev_b32 v4, 3, v0
    v_lshlrev_b32 v53, 5, v0
    v_lshrrev_b32 v54, 3, v0
    v_and_b32 v7, 7, v0
    v_lshlrev_b32 v54, 15, v54
    v_lshl_add_u32 v54, v7, 3, v54
    v_and_b32 v7, 15, v1
    v_lshrrev_b32 v8, 4, v1
    v_lshlrev_b32 v6, 5, v7
    v_lshl_add_u32 v6, v8, 3, v6
    v_lshrrev_b32 v5, 1, v7
    v_lshlrev_b32 v5, 15, v5
    v_and_b32 v9, 1, v7
    v_lshl_add_u32 v5, v9, 5, v5
    v_lshl_add_u32 v5, v8, 3, v5
    s_lshl_b32 s30, s4, 6
    s_add_u32 s30, s30, {XA}
    s_lshl_b32 s12, s7, 6
    s_lshl_b32 s14, s6, 19
    s_add_u32 s12, s12, s14
    s_add_u32 s26, s12, {XB}
    s_add_u32 s27, s26, 0x40000
    s_add_u32 s31, s12, {XA}
    s_add_u32 s32, s31, 0x40000
    v_mov_b32 v12, 0
    v_mov_b32 v13, 0
    v_mov_b32 v14, 0
    v_mov_b32 v15, 0
    s_add_u32 s13, s13, 4096
    v_add_u32 v9, s13, v3
    s_mul_i32 s13, s5, {UP}
    v_add_u32 v10, s13, v3
    v_cmp_gt_u32 vcc, 2, v1
    s_and_saveexec_b64 s[28:29], vcc
    ds_write_b128 v9, v[12:15]
    s_mov_b64 exec, s[28:29]
    v_cmp_gt_u32 vcc, 30, v1
    s_and_saveexec_b64 s[28:29], vcc
    ds_write_b128 v10, v[12:15]
    s_mov_b64 exec, s[28:29]
    v_and_b32 v9, 3, v7
    v_mul_u32_u24 v9, {KCP}, v9
    v_lshrrev_b32 v10, 2, v7
    v_lshlrev_b32 v10, 3, v10
    v_sub_u32 v9, v9, v10
    v_lshl_add_u32 v9, v8, 4, v9
    s_mul_i32 s13, s5, {KCH}
    s_add_u32 s13, s13, {KC0+24}
    s_lshl_b32 s14, s6, 7
    s_sub_u32 s13, s13, s14
    v_add_u32 v10, s13, v9
    v_lshlrev_b32 v11, 5, v7
    v_lshl_add_u32 v11, v8, 4, v11
    s_mul_i32 s13, s5, {UP}
    s_add_u32 s13, s13, 384
    s_sub_u32 s13, s13, s14
    v_add_u32 v11, s13, v11
    s_mov_b32 s24, {f32hex(1.0/512)}
    s_mov_b32 s25, {f32hex(1e-5)}
    """)
    for r in range(32): k(f"v_mov_b32 v{16+r}, 0")
    k(f"""
    s_and_b32 s52, s2, 7
    s_lshr_b32 s53, s2, 3
    s_mul_i32 s55, s52, 30
    s_add_u32 s55, s55, s53
    s_sub_u32 s55, s55, 2
    s_cmp_ge_u32 s52, 6
    s_cselect_b32 s53, 1, 0
    s_add_u32 s55, s55, s53
    s_cmp_eq_u32 s52, 7
    s_cselect_b32 s53, 1, 0
    s_add_u32 s55, s55, s53
    s_cmp_ge_u32 s55, 88
    s_cselect_b32 s54, 88, 0
    s_cselect_b32 s53, 4, 0
    s_sub_u32 s12, s55, s54
    s_lshr_b32 s52, s12, 2
    s_and_b32 s12, s12, 3
    s_add_u32 s53, s53, s12
    s_sub_u32 s12, s55, 176
    s_mul_i32 s13, s12, 171
    s_lshr_b32 s13, s13, 9
    s_mul_i32 s54, s13, 3
    s_sub_u32 s54, s12, s54
    s_add_u32 s54, s54, 8
    s_cmp_ge_u32 s55, 176
    s_cselect_b32 s52, s13, s52
    s_cselect_b32 s53, s54, s53
    s_lshl_b32 s54, s53, 3
    s_add_u32 s54, s54, s3
    s_lshl_b32 s55, s54, 15
    s_add_u32 s55, s55, {WGU}
    s_mov_b32 s20, s18
    s_mov_b32 s21, s19
    s_mov_b32 s23, 0x00020000
    s_cmp_lt_u32 s2, {NPROD}
    s_cselect_b32 s22, 0, s10
    s_cselect_b32 s55, 0, s55
    v_mov_b32 v9, {FLG}
    ds_write_b128 v9, v[12:15]
    ds_write_b128 v9, v[12:15] offset:16
    ds_write_b128 v9, v[12:15] offset:32
    ds_write_b128 v9, v[12:15] offset:48
    """)
    k(f"""
    s_cmp_lg_u32 s3, 0
    s_cbranch_scc1 L_in_d
    s_mov_b32 s13, 0
    v_lshlrev_b32 v56, 2, v1
    s_and_b32 s15, s2, 7
    s_lshl_b32 s15, s15, 10
    s_add_u32 s15, s15, {LF}
    s_cmp_eq_u32 s93, 1
    s_cbranch_scc1 L_in_b
    L_in_a:
    global_load_dword v57, v56, s[98:99] sc1
    s_add_u32 s13, s13, 1
    s_waitcnt vmcnt(0)
    v_cmp_ne_u32 vcc, 0x01010101, v57
    s_cmp_eq_u64 vcc, 0
    s_cbranch_scc1 L_in_d
    s_cmp_ge_u32 s13, {SPIN}
    s_cbranch_scc1 L_in_d
    s_sleep 8
    s_branch L_in_a
    L_in_b:
    buffer_load_dwordx4 v[56:59], v3, s[8:11], s15 offen sc1
    s_add_u32 s13, s13, 1
    s_waitcnt vmcnt(0)
    v_and_b32 v56, v56, v57
    v_and_b32 v58, v58, v59
    v_and_b32 v56, v56, v58
    v_cmp_ne_u32 vcc, 1, v56
    s_cmp_eq_u64 vcc, 0
    s_cbranch_scc1 L_in_d
    s_cmp_ge_u32 s13, {SPIN}
    s_cbranch_scc1 L_in_d
    s_sleep {CFS}
    s_branch L_in_b
    L_in_d:
    s_barrier
    """)
    stamp(k, 1)
    k(f"""
    buffer_load_dwordx4 v[64:67], v53, s[8:11], {ST} offen sc1
    buffer_load_dwordx4 v[68:71], v53, s[8:11], {ST} offen offset:16 sc1
    buffer_load_dwordx2 v[72:73], v54, s[8:11], s30 offen sc1
    buffer_load_dwordx2 v[74:75], v54, s[8:11], s30 offen offset:64 sc1
    buffer_load_dwordx2 v[48:49], v5, s[8:11], s31 offen sc1
    buffer_load_dwordx2 v[50:51], v5, s[8:11], s32 offen sc1
    """)
    k("s_waitcnt vmcnt(4)")
    for r in range(4):
        k(f"v_mul_f32 v{64+2*r}, s24, v{64+2*r}")
        k(f"v_mul_f32 v{65+2*r}, s24, v{65+2*r}")
    for r in range(4): k(f"v_fma_f32 v{65+2*r}, -v{64+2*r}, v{64+2*r}, v{65+2*r}")
    for r in range(4): k(f"v_max_f32 v{65+2*r}, 0, v{65+2*r}")
    k("v_cvt_pk_bf16_f32 v76, v64, v66")
    k("v_cvt_pk_bf16_f32 v77, v68, v70")
    k("v_cvt_pk_bf16_f32 v78, v65, v67")
    k("v_cvt_pk_bf16_f32 v79, v69, v71")
    unpack(k, 84, 85, 78); unpack(k, 86, 87, 79); unpack(k, 80, 81, 76); unpack(k, 82, 83, 77)
    for r in range(4): k(f"v_add_f32 v{84+r}, s25, v{84+r}")
    k("v_cvt_pk_bf16_f32 v78, v84, v85")
    k("v_cvt_pk_bf16_f32 v79, v86, v87")
    unpack(k, 84, 85, 78); unpack(k, 86, 87, 79)
    for r in range(4): k(f"v_sqrt_f32 v{84+r}, v{84+r}")
    k("s_waitcnt vmcnt(2)")
    for ch in range(2): unpack(k, 88+4*ch, 89+4*ch, 72+2*ch); unpack(k, 90+4*ch, 91+4*ch, 73+2*ch)
    k("v_cvt_pk_bf16_f32 v78, v84, v85")
    k("v_cvt_pk_bf16_f32 v79, v86, v87")
    for ch in range(2):
        for j in (0, 2): k(f"v_pk_add_f32 {P(88+4*ch+j)}, {P(88+4*ch+j)}, {P(80+j)} neg_lo:[0,1] neg_hi:[0,1]")
    unpack(k, 84, 85, 78); unpack(k, 86, 87, 79)
    for ch in range(2):
        k(f"v_cvt_pk_bf16_f32 v{72+2*ch}, v{88+4*ch}, v{89+4*ch}")
        k(f"v_cvt_pk_bf16_f32 v{73+2*ch}, v{90+4*ch}, v{91+4*ch}")
    for r in range(4): k(f"v_rcp_f32 v{84+r}, v{84+r}")
    for ch in range(2): unpack(k, 88+4*ch, 89+4*ch, 72+2*ch); unpack(k, 90+4*ch, 91+4*ch, 73+2*ch)
    for ch in range(2):
        for j in (0, 2): k(f"v_pk_mul_f32 {P(88+4*ch+j)}, {P(88+4*ch+j)}, {P(84+j)}")
    for ch in range(2):
        k(f"v_cvt_pk_bf16_f32 v{72+2*ch}, v{88+4*ch}, v{89+4*ch}")
        k(f"v_cvt_pk_bf16_f32 v{73+2*ch}, v{90+4*ch}, v{91+4*ch}")
        k(f"ds_write_b64 v4, v[{72+2*ch}:{73+2*ch}] offset:{480 + ch*UP}")
    k("s_waitcnt vmcnt(0) lgkmcnt(0)")
    k("s_barrier")
    lg = Q(k, 'lgkmcnt', 15)
    pool = [56+4*i for i in range(28)]
    reg = {}
    def ld(i0p, kind, s):
        r = pool.pop(0); reg[(i0p, kind, s)] = r
        if kind == 'A':
            off = 64*(63 - i0p - 8*s)
            lg.issue(f"ds_read_b64 v[{r}:{r+1}], v10 offset:{off}", (i0p, kind, s))
            lg.issue(f"ds_read_b64 v[{r+2}:{r+3}], v10 offset:{off+8}", (i0p, kind, s))
        else:
            lg.issue(f"ds_read_b128 v[{r}:{r+3}], v11 offset:{512*s + 64*(1-i0p)}", (i0p, kind, s))
    order = [(i, kd, s) for i in range(2) for s in range(8) for kd in 'AB']
    mf = []
    for i in range(2):
        for m in range(8):
            for s in range(8):
                for w in range(8):
                    if s + w <= 7 and max(s, w) == m: mf.append((i, s, w))
    last_use = {}
    for n, (i, s, w) in enumerate(mf):
        last_use[(i, 'A', s)] = n; last_use[(i, 'B', w)] = n
    li = 0; npre = 0
    for _ in range(8): ld(*order[li]); li += 1
    freed = []
    for n, (i, s, w) in enumerate(mf):
        while (i, 'A', s) not in reg or (i, 'B', w) not in reg:
            ld(*order[li]); li += 1
        lg.need((i, 'A', s), (i, 'B', w))
        c = s + w; a = reg[(i, 'A', s)]; b = reg[(i, 'B', w)]
        k(f"v_mfma_f32_16x16x32_bf16 v[{16+4*c}:{19+4*c}], v[{a}:{a+3}], v[{b}:{b+3}], v[{16+4*c}:{19+4*c}]")
        for key in [(i, 'A', s), (i, 'B', w)]:
            if last_use[key] == n: freed.append((n+3, reg[key]))
        while freed and freed[0][0] <= n: pool.append(freed.pop(0)[1])
        if n % 3 == 1 and npre < NWP: wpre(npre); npre += 1
        if li < len(order) and pool and (lg.n - lg.done) <= 12:
            ld(*order[li]); li += 1
    assert li == len(order) and npre == NWP
    k(f"""
    s_lshl_b32 s13, s5, 15
    s_lshl_b32 s14, s6, 10
    s_add_u32 s13, s13, s14
    s_add_u32 s13, s13, {RED}
    v_add_u32 v9, s13, v3
    s_lshl_b32 s13, s5, 15
    s_lshl_b32 s14, s6, 13
    s_add_u32 s13, s13, s14
    s_add_u32 s13, s13, {RED}
    v_add_u32 v12, s13, v3
    s_mul_i32 s13, s5, {UP}
    s_lshl_b32 s14, s6, 10
    s_add_u32 s13, s13, s14
    s_add_u32 s13, s13, 480
    v_add_u32 v13, s13, v6
    ds_read_b64 v[88:89], v13
    ds_read_b64 v[90:91], v13 offset:512
    """)
    for p in range(4):
        if p < 3:
            k(f"s_cmp_lg_u32 s6, {p}")
            k(f"s_cbranch_scc1 L_{N}_rv{p+1}")
        for c in range(8):
            if c in (2*p, 2*p+1): continue
            k(f"ds_write_b128 v9, v[{16+4*c}:{19+4*c}] offset:{4096*c}")
        for r in range(8): k(f"v_mov_b32 v{56+r}, v{16+8*p+r}")
        others = [q for q in range(4) if q != p]
        for j, q in enumerate(others): k(f"v_add_u32 v{92+j}, {1024*q}, v12")
        if p < 3:
            k(f"s_branch L_{N}_ep")
            k.label(f"L_{N}_rv{p+1}")
    k.label(f"L_{N}_ep")
    k("s_waitcnt lgkmcnt(6)")
    k("v_lshlrev_b32 v52, 16, v52")
    k("v_mov_b32 v53, v52")
    for j in range(4): unpack(k, 96+2*j, 97+2*j, 88+j)
    for j in range(4): k(f"v_pk_mul_f32 {P(96+2*j)}, {P(96+2*j)}, v[52:53]")
    for j in range(4): k(f"v_cvt_pk_bf16_f32 v{88+j}, v{96+2*j}, v{97+2*j}")
    k("s_waitcnt lgkmcnt(0)")
    k("s_barrier")
    for t in range(2):
        for j in range(3): k(f"ds_read_b128 v[{64+12*t+4*j}:{67+12*t+4*j}], v{92+j} offset:{4096*t}")
    for j in range(4): unpack(k, 96+2*j, 97+2*j, 88+j)
    for j in range(4): unpack(k, 104+2*j, 105+2*j, 48+j)
    for t in range(2):
        k(f"s_waitcnt lgkmcnt({3-3*t})")
        for j in (0, 2):
            k(f"v_pk_add_f32 {P(56+4*t+j)}, {P(56+4*t+j)}, {P(64+12*t+j)}")
            k(f"v_pk_add_f32 {P(68+12*t+j)}, {P(68+12*t+j)}, {P(72+12*t+j)}")
        for j in (0, 2): k(f"v_pk_add_f32 {P(56+4*t+j)}, {P(56+4*t+j)}, {P(68+12*t+j)}")
    for j in range(4): k(f"v_cvt_pk_bf16_f32 v{64+j}, v{56+2*j}, v{57+2*j}")
    for j in range(4): unpack(k, 56+2*j, 57+2*j, 64+j)
    for j in range(4): k(f"v_pk_add_f32 {P(56+2*j)}, {P(56+2*j)}, {P(96+2*j)}")
    for j in range(4): k(f"v_cvt_pk_bf16_f32 v{64+j}, v{56+2*j}, v{57+2*j}")
    for j in range(4): unpack(k, 56+2*j, 57+2*j, 64+j)
    for j in range(4): k(f"v_pk_add_f32 {P(56+2*j)}, {P(56+2*j)}, {P(104+2*j)}")
    for j in range(4): k(f"v_cvt_pk_bf16_f32 v{64+j}, v{56+2*j}, v{57+2*j}")
    k("buffer_store_dwordx2 v[64:65], v5, s[8:11], s26 offen sc1")
    k("buffer_store_dwordx2 v[66:67], v5, s[8:11], s27 offen sc1")
    vm = Q(k, 'vmcnt', 63); lg = Q(k, 'lgkmcnt', 15)
    def unit(p):
        for i in range(3):
            k(f"s_add_u32 m0, s25, {p*24576 + i*1024}")
            k(f"s_add_u32 s14, s12, {i*32768 + p*8192}")
            vm.issue(f"buffer_load_dwordx4 v3, s[8:11], s14 offen {XSC} lds", f"U{p}")
    def wl(ks):
        r = wreg(ks)
        k(f"s_add_u32 s14, s55, {4096*(ks//4)}")
        vm.issue(f"buffer_load_dwordx4 v[{r}:{r+3}], v3, s[8:11], s14 offen offset:{1024*(ks&3)} sc1", f"W{ks}")
    for ks in range(NWP): vm.tags[f"W{ks}"] = 0
    def csdot(ks):
        vm.need(f"W{ks}")
        for e in range(4): k(f"v_dot2_f32_bf16 v{166+(e&1)}, v{wreg(ks)+e}, v13, v{166+(e&1)}")
    def signal(p):
        k(f"v_mov_b32 v6, {p+1}")
        vm.need(f"U{p}")
        lg.issue("ds_write_b32 v2, v6", "sig")
    def dsetup():
        k(f"""
    s_and_b32 s30, s2, 7
    s_lshr_b32 s31, s2, 3
    s_lshl_b32 s30, s30, 2
    s_lshr_b32 s12, s31, 3
    s_add_u32 s30, s30, s12
    s_and_b32 s31, s31, 7
    s_bfe_u32 s12, s3, 0x10001
    s_lshl_b32 s32, s31, 1
    s_add_u32 s32, s32, s12
    s_and_b32 s12, s3, 1
    s_lshl_b32 s33, s30, 1
    s_add_u32 s33, s33, s12
    s_xor_b32 s12, s32, 1
    s_mul_i32 s34, s32, {86*1024}
    s_mul_i32 s35, s12, {86*1024}
    s_xor_b32 s12, s33, 1
    s_mul_i32 s36, s33, {86*1024}
    s_mul_i32 s37, s12, {86*1024}
    s_lshl_b32 s12, s3, 10
    s_add_u32 s13, s12, {WD}
    s_add_u32 s34, s34, s13
    s_add_u32 s35, s35, s13
    s_add_u32 s13, s12, {HB}
    s_add_u32 s36, s36, s13
    s_add_u32 s37, s37, s13
    s_cmp_ge_u32 s3, 6
    s_cselect_b32 s22, 0, s10
        """)
    def wdl(n, i, vm=None):
        r = WD0 + 8*n + 4*i
        k(f"s_add_u32 s14, s{34+i}, {8192*n}")
        srd = "s[20:23]" if n == 10 else "s[8:11]"
        ins = f"buffer_load_dwordx4 v[{r}:{r+3}], v3, {srd}, s14 offen sc1"
        if vm: vm.issue(ins, "WD")
        else: k(ins)
    wdq = [(n, i) for n in range(11) for i in range(2)]
    k("s_waitcnt vmcnt(0)")
    k("s_barrier")
    k(f"""
    v_mov_b32 v4, {FLG}
    v_lshrrev_b32 v7, 5, v1
    s_lshl_b32 s12, s2, 2
    s_add_u32 s12, s12, {CF}
    v_lshlrev_b32 v8, 10, v1
    v_mov_b32 v9, 1
    s_cmp_lg_u32 s3, 0
    s_cbranch_scc1 L_{N}_np
    s_mov_b64 exec, {(1<<CFR)-1}
    buffer_store_dword v9, v8, s[8:11], s12 offen sc1
    s_mov_b64 exec, -1
    L_{N}_np:
    s_cmp_lt_u32 s2, {NPROD}
    s_cbranch_scc1 L_{N}_prod
    """)
    dsetup()
    k(f"""
    s_mov_b32 s4, s52
    s_mov_b32 s5, s53
    s_mov_b32 s6, s54
    s_mul_i32 s12, s4, 98304
    s_lshl_b32 s13, s3, 10
    s_add_u32 s12, s12, s13
    s_add_u32 s12, s12, {XB}
    s_mul_i32 s25, s3, 3072
    """)
    vm.n += 1
    for ks in range(NWP, NWP2): wl(ks)
    k("v_mov_b32 v13, 0x3f803f80")
    k("v_mov_b32 v166, 0")
    k("v_mov_b32 v167, 0")
    k(f"""
    v_and_b32 v6, 15, v1
    v_lshrrev_b32 v12, 2, v6
    v_lshl_add_u32 v12, v7, 3, v12
    v_lshlrev_b32 v12, 6, v12
    v_and_b32 v8, 3, v6
    v_lshl_add_u32 v12, v8, 3, v12
    v_and_b32 v8, 16, v1
    v_lshl_add_u32 v12, v8, 1, v12
    v_add_u32 v14, 49152, v12
    s_lshl_b32 s15, s3, 2
    v_add_u32 v2, s15, v4
    s_mov_b32 s28, 0
    s_mov_b32 s29, 0
    """)
    for r in range(48): k(f"v_mov_b32 v{ACC+r}, 0")
    for ks in range(NWP2): csdot(ks)
    k(f"""
    s_mov_b32 s13, 0
    s_cmp_eq_u32 s3, 0
    s_cbranch_scc0 L_{N}_cwg
    s_sleep {CFD}
    s_and_b32 s15, s2, {CFR-1}
    s_lshl_b32 s15, s15, 10
    s_add_u32 s15, s15, {CF}
    L_{N}_cqg:
    buffer_load_dwordx4 v[8:11], v3, s[8:11], s15 offen sc1
    s_add_u32 s13, s13, 1
    s_waitcnt vmcnt(0)
    v_and_b32 v8, v8, v9
    v_and_b32 v10, v10, v11
    v_and_b32 v8, v8, v10
    v_cmp_ne_u32 vcc, 1, v8
    s_cmp_eq_u64 vcc, 0
    s_cbranch_scc1 L_{N}_crg
    s_cmp_ge_u32 s13, {SPIN}
    s_cbranch_scc1 L_{N}_crg
    s_sleep {CFS}
    s_branch L_{N}_cqg
    L_{N}_crg:
    v_mov_b32 v8, 1
    ds_write_b32 v4, v8 offset:52
    s_branch L_{N}_cdg
    L_{N}_cwg:
    ds_read_b32 v8, v4 offset:52
    s_waitcnt lgkmcnt(0)
    v_readfirstlane_b32 s13, v8
    s_cmp_eq_u32 s13, 1
    s_cbranch_scc1 L_{N}_cdg
    s_sleep 1
    s_branch L_{N}_cwg
    L_{N}_cdg:
    """)
    stamp(k, 2)
    unit(0); unit(1)
    signal(0)
    unit(2); unit(3)
    def poll(half, need, tag):
        c = 28 + half
        k(f"""
        s_cmp_ge_u32 s{c}, {need}
        s_cbranch_scc1 L_{N}_pd{tag}
        L_{N}_pl{tag}:
        ds_read_b128 v[8:11], v4 offset:{16*half}
        s_waitcnt lgkmcnt(0)
        v_min_u32 v8, v8, v9
        v_min3_u32 v8, v8, v10, v11
        s_nop 0
        v_readfirstlane_b32 s{c}, v8
        s_cmp_ge_u32 s{c}, {need}
        s_cbranch_scc0 L_{N}_pl{tag}
        L_{N}_pd{tag}:
        """)
    def xr(ks, lb, h):
        b = 12 if ks < 16 else 14
        r = XF+12*(ks&3)+4*lb+2*h
        lg.issue(f"ds_read_b64_tr_b16 v[{r}:{r+1}], v{b} offset:{3072*(ks%16)+1024*lb+256*h}", f"x{ks}_{lb}")
    poll(0, 1, "a")
    for st in range(2):
        for lb in range(3): xr(st, lb, 0); xr(st, lb, 1)
    FCK = int(os.environ.get('FCK', '27'))
    for ks in range(32):
        if ks+2 < 32 and (ks+2) % 4 == 0: poll(((ks+2)//4) & 1, (ks+2)//8 + 1, f"m{ks}")
        vm.need(f"W{ks}")
        if ks == 0: stamp(k, 4)
        if ks in (2, 5, 8): signal({2:1, 5:2, 8:3}[ks])
        w = wreg(ks)
        for lb in range(3):
            lg.need(f"x{ks}_{lb}")
            a = ACC+16*lb; x = XF+12*(ks&3)+4*lb
            k(f"v_mfma_f32_32x32x16_bf16 v[{a}:{a+15}], v[{w}:{w+3}], v[{x}:{x+3}], v[{a}:{a+15}]")
            if ks+2 < 32: xr(ks+2, lb, 0); xr(ks+2, lb, 1)
        if ks >= NWP2: csdot(ks)
        for j in late_w.get(ks, []): wl(j)
        j = ks - WDLAG
        if 2 <= j < NDI: wdl(j >> 1, j & 1, vm=vm)
        if ks == FCK:
            k(f"""
            v_and_b32 v15, 31, v1
            v_lshlrev_b32 v15, 3, v15
            s_mul_i32 s15, s4, 768
            s_add_u32 s15, s15, {FCG}
            s_cmp_eq_u32 s4, 21
            s_cselect_b32 s47, 0, 256
            s_add_u32 s48, s15, s47
            s_add_u32 s49, s48, s47
            s_mov_b32 s47, s15
            """)
            for lb in range(3): vm.issue(f"buffer_load_dwordx2 v[{FG+2*lb}:{FG+2*lb+1}], v15, s[8:11], s{47+lb} offen sc1", "FG")
    stamp(k, 3)
    k(f"""
    s_cmp_ge_u32 s6, 86
    s_cbranch_scc1 L_{N}_drest
    s_mov_b32 s26, {f32hex(-LOG2E)}
    s_mov_b32 s27, 0
    v_add_f32 v166, v166, v167
    s_lshl_b32 s12, s3, 7
    s_add_u32 s12, s12, {FLG+256}
    v_mov_b32 v167, v166
    v_and_b32 v8, 31, v1
    v_lshl_add_u32 v8, v8, 2, s12
    v_permlane32_swap_b32 v166, v167
    v_lshl_add_u32 v9, v7, 4, s12
    v_add_f32 v166, v166, v167
    ds_write_b32 v8, v166
    ds_read_b128 v[{CSV}:{CSV+3}], v9
    ds_read_b128 v[{CSV+4}:{CSV+7}], v9 offset:32
    ds_read_b128 v[{CSV+8}:{CSV+11}], v9 offset:64
    ds_read_b128 v[{CSV+12}:{CSV+15}], v9 offset:96
    """)
    vm.need("FG")
    k(f"""
    s_branch L_{N}_gc
    L_{N}_gp:
    s_sleep 4
    """)
    for lb in range(3): k(f"buffer_load_dwordx2 v[{FG+2*lb}:{FG+2*lb+1}], v15, s[8:11], s{47+lb} offen sc1")
    k(f"""
    s_add_u32 s27, s27, 1
    s_waitcnt vmcnt(0)
    L_{N}_gc:
    v_and_b32 v8, v{FG+1}, v{FG+3}
    v_and_b32 v8, v8, v{FG+5}
    v_cmp_ne_u32 vcc, 1, v8
    s_cmp_eq_u64 vcc, 0
    s_cbranch_scc1 L_{N}_gd
    s_cmp_lt_u32 s27, {SPIN}
    s_cbranch_scc1 L_{N}_gp
    L_{N}_gd:
    """)
    for lb in range(3):
        c = FCR+6*lb
        k(f"v_and_b32 v{c+4}, 0xffff0000, v{FG+2*lb}")
        k(f"v_lshlrev_b32 v{c}, 16, v{FG+2*lb}")
    for lb in range(3): k(f"v_rcp_f32 v{FCR+6*lb+2}, v{FCR+6*lb+4}")
    for lb in range(3):
        c = FCR+6*lb
        k(f"v_sub_f32 v{c+1}, 0, v{c}")
        k(f"v_sub_f32 v{c}, 0, v{c}")
        k(f"v_mov_b32 v{c+5}, v{c+4}")
        k(f"v_mul_f32 v{c+3}, s26, v{c+2}")
        k(f"v_mul_f32 v{c+2}, s26, v{c+2}")
    k(f"""
    s_mul_i32 s15, s4, {3*86*1024}
    s_lshl_b32 s12, s6, 10
    s_add_u32 s15, s15, s12
    s_add_u32 s15, s15, {HB}
    s_waitcnt lgkmcnt(0)
    """)
    for lb in range(3):
        g = ACC+16*lb; u = g+8; c = FCR+6*lb; o = XF+4*lb
        for j in range(0, 8, 2): k(f"v_pk_fma_f32 {P(g+j)}, {P(CSV+j)}, {P(c)}, {P(g+j)}")
        for j in range(0, 8, 2): k(f"v_pk_mul_f32 {P(g+j)}, {P(g+j)}, {P(c+2)}")
        for j in range(8):
            k(f"v_exp_f32 v{g+j}, v{g+j}")
        for j in range(0, 8, 2): k(f"v_pk_fma_f32 {P(u+j)}, {P(CSV+8+j)}, {P(c)}, {P(u+j)}")
        for j in range(0, 8, 2): k(f"v_pk_fma_f32 {P(g+j)}, {P(g+j)}, {P(c+4)}, {P(c+4)}")
        for j in range(8):
            k(f"v_rcp_f32 v{g+j}, v{g+j}")
        k("s_nop 0")
        for j in range(0, 8, 2): k(f"v_pk_mul_f32 {P(u+j)}, {P(u+j)}, {P(g+j)}")
        for j in range(4): k(f"v_cvt_pk_bf16_f32 v{o+j}, v{u+2*j}, v{u+2*j+1}")
        k(f"buffer_store_dwordx4 v[{o}:{o+3}], v3, s[8:11], s15 offen sc1")
        if lb == 0:
            k(f"s_cmp_eq_u32 s4, 21")
            k(f"s_cbranch_scc1 L_{N}_pub")
        k(f"s_add_u32 s15, s15, {86*1024}")
    k(f"""
    L_{N}_pub:
    s_lshl_b32 s15, s4, 9
    s_lshl_b32 s12, s3, 6
    s_add_u32 s15, s15, s12
    s_lshl_b32 s12, s5, 2
    s_add_u32 s15, s15, s12
    s_add_u32 s15, s15, {HF}
    v_mov_b32 v8, 0
    v_mov_b32 v9, 1
    s_waitcnt vmcnt(0)
    s_mov_b64 exec, 1
    buffer_store_dword v9, v8, s[8:11], s15 offen sc1
    s_mov_b64 exec, -1
    """)
    stamp(k, 5)
    k(f"s_branch L_{N}_drest")
    k.label(f"L_{N}_dall")
    dsetup()
    for (n, i) in wdq[2:NDI]: wdl(n, i)
    k.label(f"L_{N}_drest")
    k("s_waitcnt lgkmcnt(0)")
    k("s_barrier")
    for (n, i) in wdq[:2] + wdq[NDI:]: wdl(n, i)
    for r in range(64): k(f"v_mov_b32 v{A2+r}, 0")
    k(f"""
    s_lshl_b32 s12, s30, 1
    s_mul_i32 s13, s12, 171
    s_lshr_b32 s13, s13, 9
    s_add_u32 s12, s12, 1
    s_mul_i32 s12, s12, 171
    s_lshr_b32 s12, s12, 9
    s_lshl_b32 s13, s13, 9
    s_lshl_b32 s12, s12, 9
    s_add_u32 s38, s13, {HF}
    s_add_u32 s39, s12, {HF}
    v_lshlrev_b32 v10, 2, v1
    v_and_b32 v8, 15, v1
    v_cmp_gt_u32 s[26:27], 11, v8
    v_sub_u32 v9, 11, v7
    v_cmp_gt_u32 s[52:53], v9, v8
    v_and_b32 v6, 31, v1
    v_lshlrev_b32 v5, 8, v7
    v_lshl_add_u32 v5, v6, 1, v5
    s_lshl_b32 s24, s32, 11
    s_lshl_b32 s25, s33, 15
    s_add_u32 s24, s24, s25
    s_lshr_b32 s12, s3, 2
    s_lshl_b32 s12, s12, 10
    s_add_u32 s24, s24, s12
    s_add_u32 s25, s24, {XC}
    s_add_u32 s24, s24, {XB}
    """)
    for n in range(8):
        q, r = n >> 2, n & 3
        k(f"buffer_load_ushort v{RES+n}, v5, s[8:11], s24 offen offset:{(8*q+r)*64} sc1")
    k(f"""
    s_mov_b32 s13, 0
    s_cmp_eq_u32 s3, 0
    s_cbranch_scc0 L_{N}_hw
    L_{N}_hq:
    buffer_load_dword v12, v10, s[8:11], s38 offen sc1
    buffer_load_dword v13, v10, s[8:11], s39 offen sc1
    buffer_load_dword v14, v10, s[8:11], s38 offen offset:256 sc1
    buffer_load_dword v15, v10, s[8:11], s39 offen offset:256 sc1
    s_add_u32 s13, s13, 1
    s_waitcnt vmcnt(0)
    v_and_b32 v12, v12, v13
    v_and_b32 v14, v14, v15
    v_cmp_ne_u32 vcc, 1, v12
    v_cmp_ne_u32 s[54:55], 1, v14
    s_and_b64 vcc, vcc, s[26:27]
    s_and_b64 s[54:55], s[54:55], s[52:53]
    s_or_b64 vcc, vcc, s[54:55]
    s_cbranch_scc0 L_{N}_hr
    s_cmp_ge_u32 s13, {SPIN}
    s_cbranch_scc1 L_{N}_hr
    s_sleep 3
    s_branch L_{N}_hq
    L_{N}_hr:
    v_mov_b32 v12, 1
    ds_write_b32 v4, v12 offset:48
    s_branch L_{N}_hd
    L_{N}_hw:
    ds_read_b32 v12, v4 offset:48
    s_waitcnt lgkmcnt(0)
    v_readfirstlane_b32 s12, v12
    s_cmp_eq_u32 s12, 1
    s_cbranch_scc1 L_{N}_hd
    s_sleep 1
    s_branch L_{N}_hw
    L_{N}_hd:
    s_mov_b32 s22, {WS_USED}
    v_mov_b32 v12, v3
    """)
    stamp(k, 6)
    vm = Q(k, 'vmcnt', 63)
    HD = 6
    def hload(n):
        if n == 10:
            k("s_cmp_ge_u32 s3, 6")
            k("s_cselect_b32 s22, 0, s22")
        for i in range(2):
            r = HR + 8*(n % HD) + 4*i
            vm.issue(f"buffer_load_dwordx4 v[{r}:{r+3}], v12, s[20:23], s{36+i} offen sc1", f"S{n}")
        k("v_add_u32 v12, 8192, v12")
    for n in range(HD): hload(n)
    k("s_and_b32 s13, s3, 3")
    for a in range(4):
        k(f"""
        s_xor_b32 s12, s13, {a}
        s_lshl_b32 s12, s12, 14
        s_lshl_b32 s15, s3, 11
        s_add_u32 s12, s12, s15
        v_add_u32 v{8+a}, s12, v3
        """)
    k(f"""
    s_lshl_b32 s12, s3, 14
    v_add_u32 v13, s12, v3
    v_add_u32 v14, 0x10000, v8
    v_add_u32 v15, 0x10000, v9
    v_add_u32 v0, 0x10000, v10
    v_add_u32 v2, 0x10000, v11
    """)
    for n in range(11):
        vm.need(f"S{n}")
        for ad in range(2):
            for al in range(2):
                a = A2 + 16*(2*ad+al); w = WD0+8*n+4*ad; h = HR+8*(n % HD)+4*al
                k(f"v_mfma_f32_32x32x16_bf16 v[{a}:{a+15}], v[{w}:{w+3}], v[{h}:{h+3}], v[{a}:{a+15}]")
        if n >= 1 and n-1+HD < 11: hload(n-1+HD)
    k("s_nop 3")
    lg = Q(k, 'lgkmcnt', 15)
    hi = [14, 15, 0, 2]
    for n in range(8): k(f"v_lshlrev_b32 v{RES+n}, 16, v{RES+n}")
    for a in range(4):
        for q in range(4):
            ad = (8+a) if q < 2 else hi[a]
            lg.issue(f"ds_write_b128 v{ad}, v[{A2+16*a+4*q}:{A2+16*a+4*q+3}] offset:{1024*(q&1)}", "rw")
    lg.drain()
    k("s_barrier")
    FV = 16
    for q in range(2):
        for s_ in range(8):
            lg.issue(f"ds_read_b128 v[{FV+32*q+4*s_}:{FV+32*q+4*s_+3}], v13 offset:{2048*s_+1024*q}", f"rr{q}_{s_}")
    for q in range(2):
        b = FV+32*q
        for st in (1, 2, 4):
            for s_ in range(0, 8, 2*st):
                lg.need(f"rr{q}_{min(7, s_+2*st-1)}")
                for j in (0, 2): k(f"v_pk_add_f32 {P(b+4*s_+j)}, {P(b+4*s_+j)}, {P(b+4*(s_+st)+j)}")
        k(f"v_cvt_pk_bf16_f32 v{T+2*q}, v{b}, v{b+1}")
        k(f"v_cvt_pk_bf16_f32 v{T+2*q+1}, v{b+2}, v{b+3}")
        unpack(k, b, b+1, T+2*q); unpack(k, b+2, b+3, T+2*q+1)
        for j in (0, 2): k(f"v_pk_add_f32 {P(b+j)}, {P(b+j)}, {P(RES+4*q+j)}")
        k(f"v_cvt_pk_bf16_f32 v{T+2*q}, v{b}, v{b+1}")
        k(f"v_cvt_pk_bf16_f32 v{T+2*q+1}, v{b+2}, v{b+3}")
    k("s_cmp_eq_u32 s93, 1")
    k(f"s_cbranch_scc1 L_{N}_out")
    k(f"""
    v_mov_b32 v14, 0x3f803f80
    s_lshl_b32 s12, s3, 14
    v_add_u32 v8, s12, v5
    v_mov_b32 v12, 0
    v_mov_b32 v9, 0
    """)
    for q in range(2):
        for r in range(4):
            op = "ds_write_b16_d16_hi" if r & 1 else "ds_write_b16"
            k(f"{op} v8, v{T+2*q+(r>>1)} offset:{(8*q+r)*64}")
    k("ds_read_b128 v[16:19], v13")
    for q in range(2):
        for j in range(2):
            k(f"v_dot2_f32_bf16 v12, v{T+2*q+j}, v14, v12")
            k(f"v_dot2_f32_bf16 v9, v{T+2*q+j}, v{T+2*q+j}, v9")
    k(f"""
    v_lshlrev_b32 v5, 3, v6
    v_lshl_add_u32 v5, v7, 2, v5
    s_lshl_b32 s12, s33, 8
    v_permlane32_swap_b32 v12, v9
    s_add_u32 s12, s12, {ST3}
    s_waitcnt lgkmcnt(0)
    buffer_store_dwordx4 v[16:19], v3, s[8:11], s25 offen sc1
    v_add_f32 v12, v12, v9
    buffer_atomic_add_f32 v12, v5, s[8:11], s12 offen
    s_lshl_b32 s12, s2, 2
    s_add_u32 s12, s12, {LF}
    v_lshlrev_b32 v8, 10, v1
    v_mov_b32 v9, 1
    """)
    stamp(k, 9)
    k(f"""
    s_waitcnt vmcnt(0)
    s_barrier
    s_cmp_lg_u32 s3, 0
    s_cbranch_scc1 L_lf_np
    s_mov_b64 exec, 0xff
    buffer_store_dword v9, v8, s[8:11], s12 offen sc1
    s_mov_b64 exec, -1
    L_lf_np:
    """)
    stamp_flush(k, slot, 10, 3)
    k("s_mov_b64 exec, -1")
    for r, v in sets2.items(): k(f"s_mov_b32 s{r}, {v}")
    k(f"""
    s_branch L_layer
    L_{N}_out:
    s_mov_b32 s28, s96
    s_mov_b32 s29, s97
    s_mov_b32 s30, {2048*512*2}
    s_mov_b32 s31, 0x00020000
    v_lshlrev_b32 v5, 10, v6
    v_lshl_add_u32 v5, v7, 4, v5
    s_lshl_b32 s25, s33, 15
    s_lshl_b32 s12, s32, 6
    s_add_u32 s25, s25, s12
    s_lshr_b32 s12, s3, 2
    s_lshl_b32 s12, s12, 5
    s_add_u32 s25, s25, s12
    v_permlane32_swap_b32 v{T}, v{T+2}
    v_permlane32_swap_b32 v{T+1}, v{T+3}
    buffer_store_dwordx4 v[{T}:{T+3}], v5, s[28:31], s25 offen
    """)
    stamp(k, 9)
    stamp_flush(k, slot, 10, 3)
    k(f"s_branch {E}")
    k.label(f"L_{N}_prod")
    k(f"""
    s_mul_i32 s4, s2, 5
    s_lshl_b32 s12, s4, 15
    s_lshl_b32 s13, s3, 10
    s_add_u32 s12, s12, s13
    s_mov_b32 s26, {2*MB}
    s_mov_b32 s27, 0x00020000
    s_add_u32 s24, s18, {XB}
    s_addc_u32 s25, s19, 0
    s_lshl_b32 s5, s3, 14
    v_and_b32 v6, 15, v1
    v_lshrrev_b32 v12, 2, v6
    v_lshl_add_u32 v12, v7, 3, v12
    v_lshlrev_b32 v12, 6, v12
    v_and_b32 v8, 3, v6
    v_lshl_add_u32 v12, v8, 3, v12
    v_and_b32 v8, 16, v1
    v_lshl_add_u32 v12, v8, 1, v12
    v_add_u32 v12, s5, v12
    v_mov_b32 v13, 0x3f803f80
    """)
    for r in range(10): k(f"v_mov_b32 v{16+r}, 0")
    k(f"""
    s_mov_b32 s13, 0
    s_cmp_eq_u32 s3, 0
    s_cbranch_scc0 L_{N}_cwp
    s_sleep {CFD}
    s_and_b32 s15, s2, {CFR-1}
    s_lshl_b32 s15, s15, 10
    s_add_u32 s15, s15, {CF}
    L_{N}_cqp:
    buffer_load_dwordx4 v[8:11], v3, s[8:11], s15 offen sc1
    s_add_u32 s13, s13, 1
    s_waitcnt vmcnt(0)
    v_and_b32 v8, v8, v9
    v_and_b32 v10, v10, v11
    v_and_b32 v8, v8, v10
    v_cmp_ne_u32 vcc, 1, v8
    s_cmp_eq_u64 vcc, 0
    s_cbranch_scc1 L_{N}_crp
    s_cmp_ge_u32 s13, {SPIN}
    s_cbranch_scc1 L_{N}_crp
    s_sleep {CFS}
    s_branch L_{N}_cqp
    L_{N}_crp:
    v_mov_b32 v8, 1
    ds_write_b32 v4, v8 offset:52
    s_branch L_{N}_cdp
    L_{N}_cwp:
    ds_read_b32 v8, v4 offset:52
    s_waitcnt lgkmcnt(0)
    v_readfirstlane_b32 s13, v8
    s_cmp_eq_u32 s13, 1
    s_cbranch_scc1 L_{N}_cdp
    s_sleep 1
    s_branch L_{N}_cwp
    L_{N}_cdp:
    """)
    stamp(k, 2)
    pv = Q(k, 'vmcnt', 63); pl = Q(k, 'lgkmcnt', 15)
    def pdma(n):
        k(f"s_add_u32 m0, s5, {1024*(n % 16)}")
        k(f"s_add_u32 s14, s12, {(n >> 2)*32768 + (n & 3)*8192}")
        pv.issue(f"buffer_load_dwordx4 v3, s[24:27], s14 offen sc1 lds", f"d{n}")
    def prd(n):
        pv.need(f"d{n}")
        r = 32 + 4*(n % 4)
        pl.issue(f"ds_read_b64_tr_b16 v[{r}:{r+1}], v12 offset:{1024*(n%16)}", f"r{n}")
        pl.issue(f"ds_read_b64_tr_b16 v[{r+2}:{r+3}], v12 offset:{1024*(n%16)+256}", f"r{n}")
    for n in range(16): pdma(n)
    prd(0); prd(1)
    for n in range(20):
        if n+2 < 20: prd(n+2)
        pl.need(f"r{n}")
        if n < 4: pdma(16+n)
        r = 32 + 4*(n % 4); lb = n >> 2
        for e in range(4):
            k(f"v_dot2_f32_bf16 v{16+2*lb}, v{r+e}, v13, v{16+2*lb}")
            k(f"v_dot2_f32_bf16 v{17+2*lb}, v{r+e}, v{r+e}, v{17+2*lb}")
    k("s_nop 2")
    for lb in range(5): k(f"v_permlane32_swap_b32 v{16+2*lb}, v{17+2*lb}")
    for lb in range(5): k(f"v_add_f32 v{16+2*lb}, v{16+2*lb}, v{17+2*lb}")
    k(f"""
    v_and_b32 v8, 31, v1
    v_lshlrev_b32 v8, 3, v8
    v_lshl_add_u32 v8, v7, 2, v8
    v_add_u32 v8, s5, v8
    """)
    for lb in range(5): k(f"ds_write_b32 v8, v{16+2*lb} offset:{256*lb}")
    k(f"""
    s_waitcnt lgkmcnt(0)
    s_barrier
    s_cmp_ge_u32 s3, 3
    s_cbranch_scc1 L_{N}_pe
    v_lshlrev_b32 v8, 3, v0
    v_add_u32 v9, 0x10000, v8
    """)
    for w in range(8): k(f"ds_read_b64 v[{32+2*w}:{33+2*w}], v{8 + (w >> 2)} offset:{16384*(w & 3)}")
    k("s_waitcnt lgkmcnt(0)")
    for st in (1, 2, 4):
        for w in range(0, 8, 2*st): k(f"v_pk_add_f32 {P(32+2*w)}, {P(32+2*w)}, {P(32+2*(w+st))}")
    k(f"""
    s_mov_b32 s24, {f32hex(1.0/512)}
    s_mov_b32 s25, {f32hex(1e-5)}
    v_mul_f32 v14, s24, v32
    v_mul_f32 v16, s24, v33
    v_fma_f32 v16, -v14, v14, v16
    v_max_f32 v16, 0, v16
    v_cvt_pk_bf16_f32 v14, v14, v16
    v_and_b32 v16, 0xffff0000, v14
    v_lshlrev_b32 v14, 16, v14
    v_add_f32 v16, s25, v16
    v_cvt_pk_bf16_f32 v16, v16, v16
    v_lshlrev_b32 v16, 16, v16
    v_sqrt_f32 v16, v16
    s_mul_i32 s4, s2, 1280
    s_add_u32 s4, s4, {FCG}
    v_cvt_pk_bf16_f32 v20, v14, v16
    v_mov_b32 v21, 1
    s_movk_i32 s6, 160
    v_cmp_gt_u32 vcc, s6, v0
    s_and_saveexec_b64 s[6:7], vcc
    buffer_store_dwordx2 v[20:21], v8, s[8:11], s4 offen sc1
    s_mov_b64 exec, s[6:7]
    s_nop 1
    L_{N}_pe:
    """)
    for i in (3, 5): stamp(k, i)
    k(f"s_branch L_{N}_dall")
    k.label(E)
    k("s_endpgm")
    return k

if __name__ == '__main__':
    import sys
    KN = "interleave_layers__ssm_conv_s4d__glu_gated_glu__prompt_kernel"
    sets1 = {86: XT0, 87: XT1, 88: ST1, 89: FCG1, 90: H, 91: HF1, 92: XT2, 93: 0, 94: CF1, 95: 2}
    sets2 = {86: XT2, 87: XT3, 88: ST3, 89: FCG2, 90: H2, 91: HF2, 92: 0, 93: 1, 94: CF2, 95: 6}
    p = Prog(); p.add_kernel(gen_mega(KN, sets1, sets2))
    t = p.text().replace('.amdgcn_target', f"; @launch grid=(256,1,1) block=(512,1,1) lds={LAYER_LDS}\n.amdgcn_target", 1)
    open(sys.argv[1], 'w').write(t)
```

```python
import asmlib, os
asmlib.STAMPS = bool(os.environ.get('STAMPS'))
from asmlib import *
from layout import *
from gen_k0 import f32hex, LOG2E
from gen_conv import unpack, U0, UP, KC0, KCP, KCH, RED
NPROD = 14; PCH = 19
FLG = 131072
LAYER_LDS = FLG + 256 + 1024
SPIN = 400000
CFD = int(os.environ.get('CFD', '0')); CFS = int(os.environ.get('CFS', '4')); CFR = int(os.environ.get('CFR', '8'))
XSC = os.environ.get('XSC', 'sc1')
NWP = int(os.environ.get('NWP', '18'))
NWP2 = int(os.environ.get('NWP2', '24'))
WDLAG = int(os.environ.get('WDLAG', '12'))
NDI = int(os.environ.get('NDI', '14'))

from gen_k0 import exp_bf16_pair, LOG2E_HI, LOG2E_LO, LN2, INV2PI
SC = ''
def gen_mega(name, sets1, sets2):
    k = Kernel(name, vgpr=256, sgpr=100)
    XA, XB, ST, FCG, HB, HF, XC, CF, slot = 's86', 's87', 's88', 's89', 's90', 's91', 's92', 's94', 's95'
    stamp(k, 0)
    E = "L_mega_end"; N = "m"
    ACC = 16; XF = 64; CSV = 144; FCR = 112
    A2 = 16; HR = 80; WD0 = 168; RES = 128; T = 144; FG = 160
    P = lambda r: f"v[{r}:{r+1}]"
    def wreg(ks):
        if ks < 22: return 168 + 4*ks
        if ks < 30: return 112 + 4*(ks-22)
        return 168 + 4*(ks-30)
    late_w = {}
    for j in range(NWP2, 32): late_w.setdefault(max(3, j - 14) if j < 30 else 12 + j - 30, []).append(j)
    def wpre(ks):
        r = wreg(ks)
        k(f"s_add_u32 s14, s55, {4096*(ks//4)}")
        k(f"buffer_load_dwordx4 v[{r}:{r+3}], v3, s[20:23], s14 offen offset:{1024*(ks&3)} sc1")

    KSC = RED; TS = 90112; WS_ = TS + 8192
    SIDE_AT = int(os.environ.get('SIDE_AT', '5'))
    def side_issue(tg):
        n0 = len(k.lines)
        k(f"""
        s_mov_b32 s48, s24
        s_mov_b32 s49, s25
        s_mov_b32 s50, {2*MB}
        s_mov_b32 s51, 0x00020000
        s_lshl_b32 s4, s2, 3
        s_add_u32 s4, s4, s3
        s_lshl_b32 s4, s4, 10
        v_lshlrev_b32 v116, 4, v1
        buffer_load_dwordx4 v[112:115], v116, s[48:51], s4 offen
        v_lshrrev_b32 v117, 4, v1
        v_and_b32 v118, 15, v1
        v_lshlrev_b32 v119, 10, v117
        v_lshl_add_u32 v119, v118, 4, v119
        s_lshr_b32 s4, s2, 2
        s_lshl_b32 s4, s4, 15
        s_lshl_b32 s5, s3, 12
        s_add_u32 s4, s4, s5
        s_and_b32 s5, s2, 3
        s_lshl_b32 s5, s5, 8
        s_add_u32 s4, s4, s5
        s_lshl_b32 s5, s3, 10
        s_add_u32 m0, s5, {TS}
        s_nop 0
        buffer_load_dwordx4 v119, s[48:51], s4 offen lds
        s_lshl_b32 s52, s2, 2
        s_add_u32 s52, s52, s3
        s_add_u32 s4, s2, 1024
        s_cmp_eq_u32 s3, 4
        s_cselect_b32 s52, s4, s52
        s_cmp_gt_u32 s3, 4
        s_cselect_b32 s52, 0x7fff, s52
        s_lshl_b32 s53, s3, 12
        s_add_u32 s53, s53, {WS_}
        s_mov_b32 s50, {D*F*2}
        s_mov_b32 s58, {D*F*2}
        s_mov_b32 s59, 0x00020000
        s_cmp_ge_u32 s52, 1032
        s_cselect_b32 s50, 0, s50
        s_cmp_ge_u32 s52, 688
        s_cbranch_scc1 L_si_wd
        s_mov_b32 s48, s20
        s_mov_b32 s49, s21
        s_mov_b32 s56, s22
        s_mov_b32 s57, s23
        v_lshrrev_b32 v120, 2, v1
        v_and_b32 v121, 3, v1
        v_mul_u32_u24 v120, {F*2}, v120
        v_lshl_add_u32 v120, v121, 4, v120
        s_and_b32 s4, s52, 15
        s_mul_i32 s4, s4, {32*F*2}
        s_lshr_b32 s5, s52, 4
        s_lshl_b32 s5, s5, 6
        s_add_u32 s4, s4, s5
        """)
        for t_ in range(2):
            k(f"s_add_u32 m0, s53, {2048*t_}")
            k("s_nop 0")
            k("buffer_load_dwordx4 v120, s[48:51], s4 offen lds")
            k(f"s_add_u32 m0, s53, {2048*t_+1024}")
            k("s_nop 0")
            k("buffer_load_dwordx4 v120, s[56:59], s4 offen lds")
            k(f"s_add_u32 s4, s4, {16*F*2}")
        k(f"""
        s_branch L_si_done
        L_si_wd:
        s_mov_b32 s48, s26
        s_mov_b32 s49, s27
        s_sub_u32 s4, s52, 688
        s_and_b32 s5, s4, 3
        s_lshr_b32 s4, s4, 2
        s_lshl_b32 s4, s4, 14
        s_lshl_b32 s5, s5, 8
        s_add_u32 s4, s4, s5
        """)
        for t_ in range(4):
            k(f"s_add_u32 m0, s53, {1024*t_}")
            k("s_nop 0")
            k("buffer_load_dwordx4 v119, s[48:51], s4 offen lds")
            k(f"s_add_u32 s4, s4, 4096")
        k.label("L_si_done")
        k.lines[n0:] = [l.replace("L_si_", f"L_si{tg}_") for l in k.lines[n0:]]
    def side_process():
        k(f"""
        v_mov_b32 v124, 0
        v_mov_b32 v125, 0
        v_mov_b32 v126, 0x3f803f80
        v_lshrrev_b32 v120, 2, v118
        v_lshl_add_u32 v120, v117, 3, v120
        v_lshlrev_b32 v120, 8, v120
        v_and_b32 v121, 3, v118
        v_lshl_add_u32 v120, v121, 3, v120
        s_lshl_b32 s4, s3, 5
        s_add_u32 s4, s4, {TS}
        v_add_u32 v120, s4, v120
        ds_read_b64_tr_b16 v[128:129], v120
        ds_read_b64_tr_b16 v[130:131], v120 offset:1024
        """)
        for j in range(4):
            k(f"v_dot2_f32_bf16 v124, v{112+j}, v126, v124")
            k(f"v_dot2_f32_bf16 v125, v{112+j}, v{112+j}, v125")
        k(f"""
        s_lshr_b32 s4, s2, 2
        s_lshl_b32 s4, s4, 15
        s_and_b32 s5, s2, 3
        s_lshl_b32 s5, s5, 13
        s_add_u32 s4, s4, s5
        s_lshl_b32 s5, s3, 10
        s_add_u32 s4, s4, s5
        s_add_u32 s4, s4, {XT0}
        v_lshlrev_b32 v121, 6, v118
        v_lshl_add_u32 v121, v117, 4, v121
        """)
        for dpp in ("quad_perm:[1,0,3,2] row_mask:0xf bank_mask:0xf", "quad_perm:[2,3,0,1] row_mask:0xf bank_mask:0xf",
                    "row_half_mirror row_mask:0xf bank_mask:0xf", "row_mirror row_mask:0xf bank_mask:0xf",
                    "row_bcast:15 row_mask:0xa bank_mask:0xf", "row_bcast:31 row_mask:0xc bank_mask:0xf"):
            k(f"v_add_f32 v124, v124, v124 {dpp}")
            k(f"v_add_f32 v125, v125, v125 {dpp}")
            k("s_nop 1")
        k(f"""
        s_waitcnt lgkmcnt(0)
        buffer_store_dwordx4 v[128:131], v121, s[8:11], s4 offen sc1
        s_lshl_b32 s4, s2, 3
        s_add_u32 s4, s4, s3
        s_lshl_b32 s4, s4, 3
        s_add_u32 s4, s4, {ST1}
        v_mov_b32 v122, 0
        v_mov_b32 v132, 0
        v_mov_b32 v133, 0
        v_mov_b32 v134, 0
        v_mov_b32 v135, 0
        s_mov_b32 exec_lo, 0
        s_mov_b32 exec_hi, 0x80000000
        buffer_store_dwordx2 v[124:125], v122, s[8:11], s4 offen sc1
        s_mov_b64 exec, -1
        s_cmp_lg_u32 s3, 5
        s_cbranch_scc1 L_sp_nz
        s_lshl_b32 s4, s2, 9
        s_add_u32 s4, s4, {ZR}
        s_mov_b32 exec_hi, 0
        buffer_store_dwordx4 v[132:135], v116, s[8:11], s4 offen sc1
        s_mov_b64 exec, -1
        L_sp_nz:
        s_cmp_ge_u32 s52, 1032
        s_cbranch_scc1 L_sp_done
        v_lshrrev_b32 v122, 5, v1
        v_lshrrev_b32 v120, 2, v118
        v_and_b32 v121, 3, v118
        v_and_b32 v123, 16, v1
        s_cmp_ge_u32 s52, 688
        s_cbranch_scc1 L_sp_wd
        v_lshl_add_u32 v120, v122, 3, v120
        v_lshlrev_b32 v120, 6, v120
        v_lshl_add_u32 v120, v121, 3, v120
        v_lshl_add_u32 v120, v123, 6, v120
        v_add_u32 v120, s53, v120
        s_lshr_b32 s4, s52, 4
        s_lshl_b32 s4, s4, 16
        s_and_b32 s5, s52, 15
        s_lshl_b32 s5, s5, 11
        s_add_u32 s4, s4, s5
        s_add_u32 s4, s4, {WGU}
        s_add_u32 s5, s4, 0x8000
        """)
        for t_ in range(4):
            ks, hf = t_ >> 1, t_ & 1
            k(f"ds_read_b64_tr_b16 v[{136+4*t_}:{137+4*t_}], v120 offset:{2048*ks + 32*hf}")
            k(f"ds_read_b64_tr_b16 v[{138+4*t_}:{139+4*t_}], v120 offset:{2048*ks + 32*hf + 256}")
        for t_ in range(4):
            ks, hf = t_ >> 1, t_ & 1
            k(f"s_waitcnt lgkmcnt({6-2*t_})")
            k(f"buffer_store_dwordx4 v[{136+4*t_}:{139+4*t_}], v116, s[8:11], s{4+hf} offen offset:{1024*ks} sc1")
        k(f"""
        s_branch L_sp_done
        L_sp_wd:
        v_lshl_add_u32 v120, v122, 2, v120
        v_lshlrev_b32 v120, 8, v120
        v_lshl_add_u32 v120, v121, 3, v120
        v_lshl_add_u32 v120, v123, 1, v120
        v_add_u32 v120, s53, v120
        s_sub_u32 s4, s52, 688
        s_and_b32 s5, s4, 3
        s_lshr_b32 s4, s4, 2
        s_lshl_b32 s4, s4, 10
        s_mul_i32 s5, s5, {4*86*1024}
        s_add_u32 s4, s4, s5
        s_add_u32 s4, s4, {WD}
        """)
        for t_ in range(4):
            k(f"ds_read_b64_tr_b16 v[{136+4*t_}:{137+4*t_}], v120 offset:{64*t_}")
            k(f"ds_read_b64_tr_b16 v[{138+4*t_}:{139+4*t_}], v120 offset:{64*t_ + 2048}")
        for t_ in range(4):
            k(f"s_waitcnt lgkmcnt({6-2*t_})")
            k(f"buffer_store_dwordx4 v[{136+4*t_}:{139+4*t_}], v116, s[8:11], s4 offen sc1")
            k(f"s_add_u32 s4, s4, {86*1024}")
        k.label("L_sp_done")
    k(f"""
    s_cmp_ge_u32 s2, 256
    s_cbranch_scc1 {E}
    s_load_dwordx8 s[36:43], s[0:1], 8
    s_load_dwordx2 s[46:47], s[0:1], 40
    s_load_dwordx2 s[18:19], s[0:1], 104
    s_load_dwordx2 s[16:17], s[0:1], 48
    s_load_dwordx4 s[96:99], s[0:1], 88
    s_load_dwordx2 s[24:25], s[0:1], 0
    s_load_dwordx4 s[20:23], s[0:1], 64
    s_load_dwordx2 s[26:27], s[0:1], 80
    v_and_b32 v1, 63, v0
    v_lshrrev_b32 v2, 6, v0
    s_mov_b32 s10, {WS_USED}
    v_readfirstlane_b32 s3, v2
    s_mov_b32 s11, 0x00020000
    """)
    if os.environ.get('CPF', '1') == '1':
        k(f"""
        s_getpc_b64 s[4:5]
        L_pc0:
        s_cmp_ge_u32 s2, 64
        s_cbranch_scc1 L_cpf
        v_lshlrev_b32 v4, 7, v0
        v_min_u32 v4, L_mega_end-L_pc0, v4
        global_load_dword v156, v4, s[4:5]
        L_cpf:
        """)
    CHB = 20480; PT = 2048; T16 = 2048 + 4*3072
    k(f"""
    s_lshr_b32 s4, s3, 2
    s_and_b32 s45, s3, 3
    s_lshl_b32 s44, s2, 1
    s_add_u32 s44, s44, s4
    s_mul_i32 s34, s4, {CHB}
    s_add_u32 s34, s34, {KSC}
    v_and_b32 v3, 31, v1
    s_lshl_b32 s4, s44, 7
    s_lshl_b32 s5, s45, 5
    s_add_u32 s4, s4, s5
    v_add_u32 v4, s4, v3
    v_lshlrev_b32 v4, 1, v4
    s_lshl_b32 s5, s44, 1
    v_mov_b32 v5, s5
    s_waitcnt lgkmcnt(0)
    s_mov_b32 s8, s18
    s_mov_b32 s9, s19
    s_lshl_b32 s54, s2, 3
    s_add_u32 s54, s54, s3
    v_mov_b32 v152, 0
    v_mov_b32 v155, 1
    s_mov_b32 s55, {NONCE}
    s_cmp_lg_u32 s54, 7
    s_cbranch_scc1 L_nn
    buffer_load_dword v154, v152, s[8:11], s55 offen sc1
    L_nn:
    global_load_ushort v6, v4, s[36:37]
    global_load_ushort v10, v5, s[46:47]
    global_load_ushort v7, v4, s[38:39]
    global_load_ushort v8, v4, s[40:41]
    global_load_ushort v9, v4, s[42:43]
    s_mov_b32 s30, {f32hex(LOG2E_HI)}
    s_mov_b32 s31, {f32hex(LOG2E_LO)}
    s_mov_b32 s32, {f32hex(LN2)}
    s_mov_b32 s33, {f32hex(INV2PI)}
    v_and_b32 v0, 255, v0
    v_and_b32 v11, 15, v1
    v_lshrrev_b32 v12, 3, v11
    v_lshlrev_b32 v12, 7, v12
    v_and_b32 v13, 7, v11
    v_add_u32 v12, v12, v13
    v_cvt_f32_u32 v20, v12
    v_lshrrev_b32 v12, 2, v11
    v_lshlrev_b32 v12, 7, v12
    v_and_b32 v13, 3, v11
    v_lshl_add_u32 v12, v13, 1, v12
    v_add_u32 v12, 0x100, v12
    v_subrev_u32 v13, 8, v11
    v_lshrrev_b32 v13, 1, v13
    v_lshlrev_b32 v13, 7, v13
    v_and_b32 v14, 1, v11
    v_lshl_add_u32 v13, v14, 2, v13
    v_add_u32 v13, 0x200, v13
    v_cmp_gt_u32 vcc, 8, v11
    v_lshlrev_b32 v14, 7, v11
    v_add_u32 v14, 0x400, v14
    v_cndmask_b32 v12, v13, v12, vcc
    v_cvt_f32_u32 v21, v12
    v_cvt_f32_u32 v22, v14
    v_lshlrev_b32 v14, 3, v11
    v_cvt_f32_u32 v23, v14
    s_lshl_b32 s5, s45, 9
    s_add_u32 s5, s5, s34
    v_lshl_add_u32 v2, v3, 4, s5
    v_lshrrev_b32 v3, 4, v1
    v_lshl_add_u32 v3, v3, 6, s5
    """)
    for r in range(12): k(f"v_mov_b32 v{24+r}, 0")
    k("s_waitcnt vmcnt(3)")
    k("v_lshlrev_b32 v6, 16, v6")
    k("v_lshlrev_b32 v10, 16, v10")
    exp_bf16_pair(k, [6, 10], 12, 30, 31, 32)
    k(f"""
    s_waitcnt vmcnt(0)
    v_lshlrev_b32 v7, 16, v7
    v_lshlrev_b32 v8, 16, v8
    v_lshlrev_b32 v9, 16, v9
    v_mul_f32 v6, v6, v10
    v_mul_f32 v7, v7, v10
    v_add_f32 v10, v10, v10
    v_mul_f32 v18, v8, v10
    v_mul_f32 v19, v9, v10
    v_mul_f32 v16, s30, v6
    v_max_f32 v12, |v18|, |v19|
    v_mul_f32 v17, s33, v7
    v_sub_f32 v16, 0, v16
    v_max_f32_dpp v12, v12, v12 row_ror:8 row_mask:0xf bank_mask:0xf
    s_nop 1
    v_max_f32_dpp v12, v12, v12 row_ror:4 row_mask:0xf bank_mask:0xf
    s_nop 1
    v_max_f32_dpp v12, v12, v12 row_ror:2 row_mask:0xf bank_mask:0xf
    s_nop 1
    v_max_f32_dpp v12, v12, v12 row_ror:1 row_mask:0xf bank_mask:0xf
    s_nop 1
    v_readlane_b32 s6, v12, 0
    v_readlane_b32 s7, v12, 16
    s_max_u32 s6, s6, s7
    s_lshr_b32 s6, s6, 23
    s_max_u32 s6, s6, 1
    s_min_u32 s6, s6, 252
    s_sub_u32 s7, 253, s6
    s_lshl_b32 s7, s7, 23
    s_add_u32 s35, s6, 1
    s_lshl_b32 s35, s35, 23
    v_mul_f32 v18, s7, v18
    v_mul_f32 v19, s7, v19
    ds_write_b128 v2, v[16:19]
    s_waitcnt lgkmcnt(0)
    """)
    for st in range(8): k(f"ds_read_b128 v[{36+4*st}:{39+4*st}], v3 offset:{256*(st>>2) + 16*(st&3)}")
    k(f"""
    s_cmp_lg_u32 s54, 7
    s_cbranch_scc1 L_nn2
    v_add_u32 v154, 1, v154
    v_max_u32 v154, 1, v154
    s_mov_b64 exec, 1
    buffer_store_dword v154, v152, s[8:11], s55 offen sc1
    s_mov_b64 exec, -1
    L_nn2:
    """)
    side_issue("a")
    stamp(k, 1)
    for st in range(8):
        s_, t = st >> 2, st & 3
        zr, zi, cr, ci = 36+4*st, 37+4*st, 38+4*st, 39+4*st
        Fb = 80 + 16*s_ + t
        if st == 3:
            k(f"""
            s_cmp_lg_u32 s54, 7
            s_cbranch_scc1 L_nn3
            s_waitcnt vmcnt(6)
            s_mov_b64 exec, 1
            global_store_dwordx2 v152, v[154:155], s[98:99] sc1
            s_mov_b64 exec, -1
            L_nn3:
            """)
        k(f"s_waitcnt lgkmcnt({7-st})")
        for c in range(4): k(f"v_mul_f32 v{68+c}, v{zr}, v{20+c}")
        for c in range(4): k(f"v_mul_f32 v{72+c}, v{zi}, v{20+c}")
        for c in range(4): k(f"v_exp_f32 v{68+c}, v{68+c}")
        for c in range(4): k(f"v_fract_f32 v{72+c}, v{72+c}")
        for c in range(4): k(f"v_cos_f32 v{76+c}, v{72+c}")
        for c in range(4): k(f"v_sin_f32 v{4+c}, v{72+c}")
        k(f"v_mul_f32 v8, v71, v{cr}")
        k(f"v_mul_f32 v9, v71, v{ci}")
        for c in range(3): k(f"v_fma_mixlo_f16 v{Fb+4*c}, v{68+c}, v{76+c}, 0")
        k(f"v_mul_f32 v10, v8, v79")
        k(f"v_mul_f32 v11, v8, v7")
        for c in range(3): k(f"v_fma_mixhi_f16 v{Fb+4*c}, v{68+c}, v{4+c}, 0")
        k(f"v_fma_mixlo_f16 v{Fb+12}, -v9, v7, v10")
        if st == 4:
            for c in range(3): k(f"v_mfma_f32_16x16x32_f16 v[{24+4*c}:{27+4*c}], v[{80+4*c}:{83+4*c}], v[92:95], v[{24+4*c}:{27+4*c}]")
        else: k("s_nop 0")
        k(f"v_fma_mixhi_f16 v{Fb+12}, -v9, v79, -v11")
    k(f"""
    s_mul_i32 s5, s45, 3072
    s_add_u32 s5, s5, s34
    s_add_u32 s5, s5, {PT}
    v_lshl_add_u32 v12, v1, 4, s5
    """)
    for c in range(3): k(f"v_mfma_f32_16x16x32_f16 v[{24+4*c}:{27+4*c}], v[{96+4*c}:{99+4*c}], v[108:111], v[{24+4*c}:{27+4*c}]")
    stamp(k, 2)
    k("s_nop 7")
    for r in range(12): k(f"v_mul_f32 v{24+r}, s35, v{24+r}")
    k(f"""
    ds_write_b128 v12, v[24:27]
    ds_write_b128 v12, v[28:31] offset:1024
    ds_write_b128 v12, v[32:35] offset:2048
    v_lshl_add_u32 v12, v0, 4, s34
    v_lshrrev_b32 v13, 4, v1
    v_and_b32 v14, 15, v1
    v_lshl_add_u32 v14, v14, 4, s34
    s_waitcnt vmcnt(0) lgkmcnt(0)
    s_barrier
    """)
    stamp(k, 3)
    side_process()
    stamp(k, 4)
    k(f"""
    s_cmp_eq_u32 s45, 3
    s_cbranch_scc1 L_kg_stage2
    ds_read_b128 v[24:27], v12 offset:{PT}
    ds_read_b128 v[28:31], v12 offset:{PT+3072}
    ds_read_b128 v[32:35], v12 offset:{PT+2*3072}
    ds_read_b128 v[36:39], v12 offset:{PT+3*3072}
    s_cmp_eq_u32 s45, 1
    s_cbranch_scc1 L_kg_t1
    s_cmp_eq_u32 s45, 2
    s_cbranch_scc1 L_kg_t2
    v_lshrrev_b32 v15, 1, v13
    v_lshlrev_b32 v15, 8, v15
    v_and_b32 v16, 1, v13
    v_lshl_add_u32 v15, v16, 3, v15
    v_add_u32 v16, v15, v14
    v_add_u32 v17, 2, v16
    v_add_u32 v18, 4, v16
    v_add_u32 v19, 6, v16
    s_branch L_kg_w
    L_kg_t1:
    v_lshlrev_b32 v15, 8, v13
    v_add_u32 v15, 0x200, v15
    v_add_u32 v16, v15, v14
    v_add_u32 v17, 4, v16
    v_add_u32 v18, 8, v16
    v_add_u32 v19, 12, v16
    v_lshlrev_b32 v15, 9, v13
    v_add_u32 v15, v15, v14
    v_add_u32 v20, 8, v15
    v_add_u32 v21, 0x100, v15
    v_add_u32 v22, 0x108, v15
    v_cmp_gt_u32 vcc, 2, v13
    s_nop 1
    v_cndmask_b32 v16, v15, v16, vcc
    v_cndmask_b32 v17, v20, v17, vcc
    v_cndmask_b32 v18, v21, v18, vcc
    v_cndmask_b32 v19, v22, v19, vcc
    s_branch L_kg_w
    L_kg_t2:
    v_lshlrev_b32 v15, 10, v13
    v_add_u32 v15, 0x800, v15
    v_add_u32 v16, v15, v14
    v_add_u32 v17, 0x100, v16
    v_add_u32 v18, 0x200, v16
    v_add_u32 v19, 0x300, v16
    L_kg_w:
    s_waitcnt lgkmcnt(0)
    v_pk_add_f32 v[24:25], v[24:25], v[28:29]
    v_pk_add_f32 v[26:27], v[26:27], v[30:31]
    v_pk_add_f32 v[32:33], v[32:33], v[36:37]
    v_pk_add_f32 v[34:35], v[34:35], v[38:39]
    v_pk_add_f32 v[24:25], v[24:25], v[32:33]
    v_pk_add_f32 v[26:27], v[26:27], v[34:35]
    v_cvt_pk_bf16_f32 v24, v24, v25
    v_cvt_pk_bf16_f32 v26, v26, v27
    ds_write_b16 v16, v24 offset:{T16}
    ds_write_b16_d16_hi v17, v24 offset:{T16}
    ds_write_b16 v18, v26 offset:{T16}
    ds_write_b16_d16_hi v19, v26 offset:{T16}
    L_kg_stage2:
    v_lshlrev_b32 v12, 4, v0
    v_sub_u32 v13, 4094, v12
    """)
    for e in range(10): k(f"v_subrev_u32 v{40+e}, {2*e}, v13")
    k("v_max_i32 v48, 0, v48")
    k("v_max_i32 v49, 0, v49")
    for e in range(10): k(f"v_cvt_f32_u32 v{40+e}, v{40+e}")
    for e in range(0, 10, 2): k(f"v_cvt_pk_bf16_f32 v{52+e}, v{40+e}, v{41+e}")
    for e in range(0, 10, 2):
        if e < 8: k(f"v_and_b32 v{53+e}, 0xffff0000, v{52+e}")
        k(f"v_lshlrev_b32 v{52+e}, 16, v{52+e}")
    for e in range(9): k(f"v_cvt_u32_f32 v{52+e}, v{52+e}")
    for e in range(9): k(f"v_add_u32 v{52+e}, s34, v{52+e}")
    stamp(k, 5)
    k("s_waitcnt lgkmcnt(0)")
    k("s_barrier")
    stamp(k, 6)
    for e in range(9): k(f"ds_read_u16 v{24+e}, v{52+e} offset:{T16}")
    k(f"""
    s_mul_i32 s5, s44, {KGP}
    s_add_u32 s5, s5, {KG}
    v_mov_b32 v48, 0
    v_mov_b32 v49, 0
    v_mov_b32 v50, 0
    v_mov_b32 v51, 0
    v_add_u32 v13, {KGH}, v12
    v_cmp_ne_u32 vcc, 0xff, v0
    s_waitcnt lgkmcnt(0)
    v_cndmask_b32 v32, 0, v32, vcc
    v_lshl_or_b32 v40, v25, 16, v24
    v_lshl_or_b32 v41, v27, 16, v26
    v_lshl_or_b32 v42, v29, 16, v28
    v_lshl_or_b32 v43, v31, 16, v30
    v_lshl_or_b32 v44, v26, 16, v25
    v_lshl_or_b32 v45, v28, 16, v27
    v_lshl_or_b32 v46, v30, 16, v29
    v_lshl_or_b32 v47, v32, 16, v31
    buffer_store_dwordx4 v[40:43], v12, s[8:11], s5 offen
    buffer_store_dwordx4 v[44:47], v13, s[8:11], s5 offen
    v_cmp_gt_u32 vcc, 2, v0
    s_and_saveexec_b64 s[6:7], vcc
    s_cbranch_execz L_kg_z
    v_add_u32 v12, 4096, v12
    v_add_u32 v13, 4096, v13
    buffer_store_dwordx4 v[48:51], v12, s[8:11], s5 offen
    buffer_store_dwordx4 v[48:51], v13, s[8:11], s5 offen
    L_kg_z:
    s_mov_b64 exec, -1
    """)
    if asmlib.STAMPS:
        for i in range(7, 10): stamp(k, i)
        stamp_flush(k, 0, 10, 3)
        k("s_mov_b64 exec, -1")
    k(f"""
    s_cmp_lg_u32 s3, 7
    s_cbranch_scc1 L_nd
    v_mov_b32 v40, 0
    s_mov_b32 s6, 0
    L_nq:
    global_load_dwordx2 v[42:43], v40, s[98:99] sc1
    s_add_u32 s6, s6, 1
    s_waitcnt vmcnt(0)
    v_readfirstlane_b32 s7, v43
    s_cmp_ge_u32 s6, {SPIN}
    s_cbranch_scc1 L_ne
    s_cmp_eq_u32 s7, 1
    s_cbranch_scc0 L_nq
    L_ne:
    v_mov_b32 v40, {FLG+64}
    ds_write_b32 v40, v42
    L_nd:
    s_waitcnt vmcnt(0) lgkmcnt(0)
    s_barrier
    s_cmp_lg_u32 s3, 7
    s_cbranch_scc1 L_kg_np
    s_lshl_b32 s6, s2, 2
    s_add_u32 s6, s6, {PF}
    v_mbcnt_lo_u32_b32 v40, -1, 0
    v_lshlrev_b32 v40, 10, v40
    s_mov_b64 exec, 0xff
    buffer_store_dword v42, v40, s[8:11], s6 offen sc1
    s_mov_b64 exec, -1
    L_kg_np:
    """)
    for r, v in sets1.items(): k(f"s_mov_b32 s{r}, {v}")
    k.label("L_layer")
    stamp(k, 0)
    k(f"""
    v_mbcnt_lo_u32_b32 v1, -1, 0
    v_mbcnt_hi_u32_b32 v1, -1, v1
    s_lshl_b32 s4, s3, 6
    v_add_u32 v0, s4, v1
    v_lshlrev_b32 v3, 4, v1
    s_lshl_b32 s4, s2, 1
    s_lshr_b32 s5, s3, 2
    s_and_b32 s6, s3, 3
    s_add_u32 s7, s4, s5
    s_mul_i32 s28, s7, {KGP}
    s_add_u32 s28, s28, {KG}
    s_bitcmp1_b32 s6, 0
    s_cselect_b32 s13, 0, {KGH}
    s_add_u32 s28, s28, s13
    s_cmp_lt_u32 s6, 2
    s_cselect_b32 s13, 4, 0
    s_add_u32 s28, s28, s13
    s_mul_i32 s13, s5, {KCH}
    s_mul_i32 s14, s6, {KCP}
    s_add_u32 s13, s13, s14
    s_add_u32 s13, s13, {KC0}
    s_mov_b32 m0, s13
    s_lshl_b32 s12, s7, 1
    """)
    for c in range(4): k(f"buffer_load_dwordx4 v3, s[8:11], s28 offen offset:{1024*c} lds")
    k(f"""
    v_mov_b32 v9, s12
    global_load_ushort v52, v9, s[16:17]
    v_lshlrev_b32 v4, 3, v0
    v_lshlrev_b32 v53, 5, v0
    v_lshrrev_b32 v54, 3, v0
    v_and_b32 v7, 7, v0
    v_lshlrev_b32 v54, 15, v54
    v_lshl_add_u32 v54, v7, 3, v54
    v_and_b32 v7, 15, v1
    v_lshrrev_b32 v8, 4, v1
    v_lshlrev_b32 v6, 5, v7
    v_lshl_add_u32 v6, v8, 3, v6
    v_lshrrev_b32 v5, 1, v7
    v_lshlrev_b32 v5, 15, v5
    v_and_b32 v9, 1, v7
    v_lshl_add_u32 v5, v9, 5, v5
    v_lshl_add_u32 v5, v8, 3, v5
    s_lshl_b32 s30, s4, 6
    s_add_u32 s30, s30, {XA}
    s_lshl_b32 s12, s7, 6
    s_lshl_b32 s14, s6, 19
    s_add_u32 s12, s12, s14
    s_add_u32 s26, s12, {XB}
    s_add_u32 s27, s26, 0x40000
    s_add_u32 s31, s12, {XA}
    s_add_u32 s32, s31, 0x40000
    v_mov_b32 v12, 0
    v_mov_b32 v13, 0
    v_mov_b32 v14, 0
    v_mov_b32 v15, 0
    s_add_u32 s13, s13, 4096
    v_add_u32 v9, s13, v3
    s_mul_i32 s13, s5, {UP}
    v_add_u32 v10, s13, v3
    v_cmp_gt_u32 vcc, 2, v1
    s_and_saveexec_b64 s[28:29], vcc
    ds_write_b128 v9, v[12:15]
    s_mov_b64 exec, s[28:29]
    v_cmp_gt_u32 vcc, 30, v1
    s_and_saveexec_b64 s[28:29], vcc
    ds_write_b128 v10, v[12:15]
    s_mov_b64 exec, s[28:29]
    v_and_b32 v9, 3, v7
    v_mul_u32_u24 v9, {KCP}, v9
    v_lshrrev_b32 v10, 2, v7
    v_lshlrev_b32 v10, 3, v10
    v_sub_u32 v9, v9, v10
    v_lshl_add_u32 v9, v8, 4, v9
    s_mul_i32 s13, s5, {KCH}
    s_add_u32 s13, s13, {KC0+24}
    s_lshl_b32 s14, s6, 7
    s_sub_u32 s13, s13, s14
    v_add_u32 v10, s13, v9
    v_lshlrev_b32 v11, 5, v7
    v_lshl_add_u32 v11, v8, 4, v11
    s_mul_i32 s13, s5, {UP}
    s_add_u32 s13, s13, 384
    s_sub_u32 s13, s13, s14
    v_add_u32 v11, s13, v11
    s_mov_b32 s24, {f32hex(1.0/512)}
    s_mov_b32 s25, {f32hex(1e-5)}
    """)
    for r in range(32): k(f"v_mov_b32 v{16+r}, 0")
    k(f"""
    s_and_b32 s52, s2, 7
    s_lshr_b32 s53, s2, 3
    s_mul_i32 s55, s52, 30
    s_add_u32 s55, s55, s53
    s_sub_u32 s55, s55, 2
    s_cmp_ge_u32 s52, 6
    s_cselect_b32 s53, 1, 0
    s_add_u32 s55, s55, s53
    s_cmp_eq_u32 s52, 7
    s_cselect_b32 s53, 1, 0
    s_add_u32 s55, s55, s53
    s_cmp_ge_u32 s55, 88
    s_cselect_b32 s54, 88, 0
    s_cselect_b32 s53, 4, 0
    s_sub_u32 s12, s55, s54
    s_lshr_b32 s52, s12, 2
    s_and_b32 s12, s12, 3
    s_add_u32 s53, s53, s12
    s_sub_u32 s12, s55, 176
    s_mul_i32 s13, s12, 171
    s_lshr_b32 s13, s13, 9
    s_mul_i32 s54, s13, 3
    s_sub_u32 s54, s12, s54
    s_add_u32 s54, s54, 8
    s_cmp_ge_u32 s55, 176
    s_cselect_b32 s52, s13, s52
    s_cselect_b32 s53, s54, s53
    s_lshl_b32 s54, s53, 3
    s_add_u32 s54, s54, s3
    s_lshl_b32 s55, s54, 15
    s_add_u32 s55, s55, {WGU}
    s_mov_b32 s20, s18
    s_mov_b32 s21, s19
    s_mov_b32 s23, 0x00020000
    s_cmp_lt_u32 s2, {NPROD}
    s_cselect_b32 s22, 0, s10
    s_cselect_b32 s55, 0, s55
    v_mov_b32 v9, {FLG}
    ds_write_b128 v9, v[12:15]
    ds_write_b128 v9, v[12:15] offset:16
    ds_write_b128 v9, v[12:15] offset:32
    ds_write_b128 v9, v[12:15] offset:48
    """)
    k(f"""
    s_cmp_lg_u32 s3, 0
    s_cbranch_scc1 L_in_d
    s_mov_b32 s13, 0
    v_mov_b32 v56, {FLG+64}
    ds_read_b32 v60, v56
    s_and_b32 s15, s2, 7
    s_lshl_b32 s15, s15, 10
    s_cmp_eq_u32 s93, 1
    s_cselect_b32 s14, 0, {PF-LF}
    s_add_u32 s15, s15, s14
    s_add_u32 s15, s15, {LF}
    s_waitcnt lgkmcnt(0)
    L_in_b:
    buffer_load_dwordx4 v[56:59], v3, s[8:11], s15 offen sc1
    s_add_u32 s13, s13, 1
    s_waitcnt vmcnt(0)
    v_xor_b32 v56, v56, v60
    v_xor_b32 v57, v57, v60
    v_xor_b32 v58, v58, v60
    v_xor_b32 v59, v59, v60
    v_or3_b32 v56, v56, v57, v58
    v_or_b32 v56, v56, v59
    v_cmp_ne_u32 vcc, 0, v56
    s_cmp_eq_u64 vcc, 0
    s_cbranch_scc1 L_in_d
    s_cmp_ge_u32 s13, {SPIN}
    s_cbranch_scc1 L_in_d
    s_sleep {CFS}
    s_branch L_in_b
    L_in_d:
    s_barrier
    """)
    stamp(k, 1)
    k(f"""
    buffer_load_dwordx4 v[64:67], v53, s[8:11], {ST} offen sc1
    buffer_load_dwordx4 v[68:71], v53, s[8:11], {ST} offen offset:16 sc1
    buffer_load_dwordx2 v[72:73], v54, s[8:11], s30 offen sc1
    buffer_load_dwordx2 v[74:75], v54, s[8:11], s30 offen offset:64 sc1
    buffer_load_dwordx2 v[48:49], v5, s[8:11], s31 offen sc1
    buffer_load_dwordx2 v[50:51], v5, s[8:11], s32 offen sc1
    """)
    k("s_waitcnt vmcnt(4)")
    for r in range(4):
        k(f"v_mul_f32 v{64+2*r}, s24, v{64+2*r}")
        k(f"v_mul_f32 v{65+2*r}, s24, v{65+2*r}")
    for r in range(4): k(f"v_fma_f32 v{65+2*r}, -v{64+2*r}, v{64+2*r}, v{65+2*r}")
    for r in range(4): k(f"v_max_f32 v{65+2*r}, 0, v{65+2*r}")
    k("v_cvt_pk_bf16_f32 v76, v64, v66")
    k("v_cvt_pk_bf16_f32 v77, v68, v70")
    k("v_cvt_pk_bf16_f32 v78, v65, v67")
    k("v_cvt_pk_bf16_f32 v79, v69, v71")
    unpack(k, 84, 85, 78); unpack(k, 86, 87, 79); unpack(k, 80, 81, 76); unpack(k, 82, 83, 77)
    for r in range(4): k(f"v_add_f32 v{84+r}, s25, v{84+r}")
    k("v_cvt_pk_bf16_f32 v78, v84, v85")
    k("v_cvt_pk_bf16_f32 v79, v86, v87")
    unpack(k, 84, 85, 78); unpack(k, 86, 87, 79)
    for r in range(4): k(f"v_sqrt_f32 v{84+r}, v{84+r}")
    k("s_waitcnt vmcnt(2)")
    for ch in range(2): unpack(k, 88+4*ch, 89+4*ch, 72+2*ch); unpack(k, 90+4*ch, 91+4*ch, 73+2*ch)
    k("v_cvt_pk_bf16_f32 v78, v84, v85")
    k("v_cvt_pk_bf16_f32 v79, v86, v87")
    for ch in range(2):
        for j in (0, 2): k(f"v_pk_add_f32 {P(88+4*ch+j)}, {P(88+4*ch+j)}, {P(80+j)} neg_lo:[0,1] neg_hi:[0,1]")
    unpack(k, 84, 85, 78); unpack(k, 86, 87, 79)
    for ch in range(2):
        k(f"v_cvt_pk_bf16_f32 v{72+2*ch}, v{88+4*ch}, v{89+4*ch}")
        k(f"v_cvt_pk_bf16_f32 v{73+2*ch}, v{90+4*ch}, v{91+4*ch}")
    for r in range(4): k(f"v_rcp_f32 v{84+r}, v{84+r}")
    for ch in range(2): unpack(k, 88+4*ch, 89+4*ch, 72+2*ch); unpack(k, 90+4*ch, 91+4*ch, 73+2*ch)
    for ch in range(2):
        for j in (0, 2): k(f"v_pk_mul_f32 {P(88+4*ch+j)}, {P(88+4*ch+j)}, {P(84+j)}")
    for ch in range(2):
        k(f"v_cvt_pk_bf16_f32 v{72+2*ch}, v{88+4*ch}, v{89+4*ch}")
        k(f"v_cvt_pk_bf16_f32 v{73+2*ch}, v{90+4*ch}, v{91+4*ch}")
        k(f"ds_write_b64 v4, v[{72+2*ch}:{73+2*ch}] offset:{480 + ch*UP}")
    k("s_waitcnt vmcnt(0) lgkmcnt(0)")
    k("s_barrier")
    stamp(k, 7)
    lg = Q(k, 'lgkmcnt', 15)
    pool = [56+4*i for i in range(28)]
    reg = {}
    def ld(i0p, kind, s):
        r = pool.pop(0); reg[(i0p, kind, s)] = r
        if kind == 'A':
            off = 64*(63 - i0p - 8*s)
            lg.issue(f"ds_read_b64 v[{r}:{r+1}], v10 offset:{off}", (i0p, kind, s))
            lg.issue(f"ds_read_b64 v[{r+2}:{r+3}], v10 offset:{off+8}", (i0p, kind, s))
        else:
            lg.issue(f"ds_read_b128 v[{r}:{r+3}], v11 offset:{512*s + 64*(1-i0p)}", (i0p, kind, s))
    order = [(i, kd, s) for i in range(2) for s in range(8) for kd in 'AB']
    mf = []
    for i in range(2):
        for m in range(8):
            for s in range(8):
                for w in range(8):
                    if s + w <= 7 and max(s, w) == m: mf.append((i, s, w))
    last_use = {}
    for n, (i, s, w) in enumerate(mf):
        last_use[(i, 'A', s)] = n; last_use[(i, 'B', w)] = n
    li = 0; npre = 0
    for _ in range(8): ld(*order[li]); li += 1
    freed = []
    for n, (i, s, w) in enumerate(mf):
        while (i, 'A', s) not in reg or (i, 'B', w) not in reg:
            ld(*order[li]); li += 1
        lg.need((i, 'A', s), (i, 'B', w))
        c = s + w; a = reg[(i, 'A', s)]; b = reg[(i, 'B', w)]
        k(f"v_mfma_f32_16x16x32_bf16 v[{16+4*c}:{19+4*c}], v[{a}:{a+3}], v[{b}:{b+3}], v[{16+4*c}:{19+4*c}]")
        for key in [(i, 'A', s), (i, 'B', w)]:
            if last_use[key] == n: freed.append((n+3, reg[key]))
        while freed and freed[0][0] <= n: pool.append(freed.pop(0)[1])
        if n % 3 == 1 and npre < NWP: wpre(npre); npre += 1
        if li < len(order) and pool and (lg.n - lg.done) <= 12:
            ld(*order[li]); li += 1
    assert li == len(order) and npre == NWP
    k(f"""
    s_lshl_b32 s13, s5, 15
    s_lshl_b32 s14, s6, 10
    s_add_u32 s13, s13, s14
    s_add_u32 s13, s13, {RED}
    v_add_u32 v9, s13, v3
    s_lshl_b32 s13, s5, 15
    s_lshl_b32 s14, s6, 13
    s_add_u32 s13, s13, s14
    s_add_u32 s13, s13, {RED}
    v_add_u32 v12, s13, v3
    s_mul_i32 s13, s5, {UP}
    s_lshl_b32 s14, s6, 10
    s_add_u32 s13, s13, s14
    s_add_u32 s13, s13, 480
    v_add_u32 v13, s13, v6
    ds_read_b64 v[88:89], v13
    ds_read_b64 v[90:91], v13 offset:512
    """)
    for p in range(4):
        if p < 3:
            k(f"s_cmp_lg_u32 s6, {p}")
            k(f"s_cbranch_scc1 L_{N}_rv{p+1}")
        for c in range(8):
            if c in (2*p, 2*p+1): continue
            k(f"ds_write_b128 v9, v[{16+4*c}:{19+4*c}] offset:{4096*c}")
        for r in range(8): k(f"v_mov_b32 v{56+r}, v{16+8*p+r}")
        others = [q for q in range(4) if q != p]
        for j, q in enumerate(others): k(f"v_add_u32 v{92+j}, {1024*q}, v12")
        if p < 3:
            k(f"s_branch L_{N}_ep")
            k.label(f"L_{N}_rv{p+1}")
    k.label(f"L_{N}_ep")
    k("s_waitcnt lgkmcnt(6)")
    k("v_lshlrev_b32 v52, 16, v52")
    k("v_mov_b32 v53, v52")
    for j in range(4): unpack(k, 96+2*j, 97+2*j, 88+j)
    for j in range(4): k(f"v_pk_mul_f32 {P(96+2*j)}, {P(96+2*j)}, v[52:53]")
    for j in range(4): k(f"v_cvt_pk_bf16_f32 v{88+j}, v{96+2*j}, v{97+2*j}")
    k("s_waitcnt lgkmcnt(0)")
    k("s_barrier")
    for t in range(2):
        for j in range(3): k(f"ds_read_b128 v[{64+12*t+4*j}:{67+12*t+4*j}], v{92+j} offset:{4096*t}")
    for j in range(4): unpack(k, 96+2*j, 97+2*j, 88+j)
    for j in range(4): unpack(k, 104+2*j, 105+2*j, 48+j)
    for t in range(2):
        k(f"s_waitcnt lgkmcnt({3-3*t})")
        for j in (0, 2):
            k(f"v_pk_add_f32 {P(56+4*t+j)}, {P(56+4*t+j)}, {P(64+12*t+j)}")
            k(f"v_pk_add_f32 {P(68+12*t+j)}, {P(68+12*t+j)}, {P(72+12*t+j)}")
        for j in (0, 2): k(f"v_pk_add_f32 {P(56+4*t+j)}, {P(56+4*t+j)}, {P(68+12*t+j)}")
    for j in range(4): k(f"v_cvt_pk_bf16_f32 v{64+j}, v{56+2*j}, v{57+2*j}")
    for j in range(4): unpack(k, 56+2*j, 57+2*j, 64+j)
    for j in range(4): k(f"v_pk_add_f32 {P(56+2*j)}, {P(56+2*j)}, {P(96+2*j)}")
    for j in range(4): k(f"v_cvt_pk_bf16_f32 v{64+j}, v{56+2*j}, v{57+2*j}")
    for j in range(4): unpack(k, 56+2*j, 57+2*j, 64+j)
    for j in range(4): k(f"v_pk_add_f32 {P(56+2*j)}, {P(56+2*j)}, {P(104+2*j)}")
    for j in range(4): k(f"v_cvt_pk_bf16_f32 v{64+j}, v{56+2*j}, v{57+2*j}")
    k("buffer_store_dwordx2 v[64:65], v5, s[8:11], s26 offen sc1")
    k("buffer_store_dwordx2 v[66:67], v5, s[8:11], s27 offen sc1")
    vm = Q(k, 'vmcnt', 63); lg = Q(k, 'lgkmcnt', 15)
    def unit(p):
        for i in range(3):
            k(f"s_add_u32 m0, s25, {p*24576 + i*1024}")
            k(f"s_add_u32 s14, s12, {i*32768 + p*8192}")
            vm.issue(f"buffer_load_dwordx4 v3, s[8:11], s14 offen {XSC} lds", f"U{p}")
    def wl(ks):
        r = wreg(ks)
        k(f"s_add_u32 s14, s55, {4096*(ks//4)}")
        vm.issue(f"buffer_load_dwordx4 v[{r}:{r+3}], v3, s[8:11], s14 offen offset:{1024*(ks&3)} sc1", f"W{ks}")
    for ks in range(NWP): vm.tags[f"W{ks}"] = 0
    def csdot(ks):
        vm.need(f"W{ks}")
        for e in range(4): k(f"v_dot2_f32_bf16 v{166+(e&1)}, v{wreg(ks)+e}, v13, v{166+(e&1)}")
    def signal(p):
        k(f"v_mov_b32 v6, {p+1}")
        vm.need(f"U{p}")
        lg.issue("ds_write_b32 v2, v6", "sig")
    def dsetup():
        k(f"""
    s_and_b32 s30, s2, 7
    s_lshr_b32 s31, s2, 3
    s_lshl_b32 s30, s30, 2
    s_lshr_b32 s12, s31, 3
    s_add_u32 s30, s30, s12
    s_and_b32 s31, s31, 7
    s_bfe_u32 s12, s3, 0x10001
    s_lshl_b32 s32, s31, 1
    s_add_u32 s32, s32, s12
    s_and_b32 s12, s3, 1
    s_lshl_b32 s33, s30, 1
    s_add_u32 s33, s33, s12
    s_xor_b32 s12, s32, 1
    s_mul_i32 s34, s32, {86*1024}
    s_mul_i32 s35, s12, {86*1024}
    s_xor_b32 s12, s33, 1
    s_mul_i32 s36, s33, {86*1024}
    s_mul_i32 s37, s12, {86*1024}
    s_lshl_b32 s12, s3, 10
    s_add_u32 s13, s12, {WD}
    s_add_u32 s34, s34, s13
    s_add_u32 s35, s35, s13
    s_add_u32 s13, s12, {HB}
    s_add_u32 s36, s36, s13
    s_add_u32 s37, s37, s13
    s_cmp_ge_u32 s3, 6
    s_cselect_b32 s22, 0, s10
        """)
    def wdl(n, i, vm=None):
        r = WD0 + 8*n + 4*i
        k(f"s_add_u32 s14, s{34+i}, {8192*n}")
        srd = "s[20:23]" if n == 10 else "s[8:11]"
        ins = f"buffer_load_dwordx4 v[{r}:{r+3}], v3, {srd}, s14 offen sc1"
        if vm: vm.issue(ins, "WD")
        else: k(ins)
    wdq = [(n, i) for n in range(11) for i in range(2)]
    k("s_waitcnt vmcnt(0)")
    k("s_barrier")
    stamp(k, 8)
    k(f"""
    v_mov_b32 v4, {FLG}
    v_lshrrev_b32 v7, 5, v1
    s_lshl_b32 s12, s2, 2
    s_add_u32 s12, s12, {CF}
    v_lshlrev_b32 v8, 10, v1
    v_mov_b32 v9, 1
    s_cmp_lg_u32 s3, 0
    s_cbranch_scc1 L_{N}_np
    s_mov_b64 exec, {(1<<CFR)-1}
    buffer_store_dword v9, v8, s[8:11], s12 offen sc1
    s_mov_b64 exec, -1
    L_{N}_np:
    s_cmp_lt_u32 s2, {NPROD}
    s_cbranch_scc1 L_{N}_prod
    """)
    dsetup()
    k(f"""
    s_mov_b32 s4, s52
    s_mov_b32 s5, s53
    s_mov_b32 s6, s54
    s_mul_i32 s12, s4, 98304
    s_lshl_b32 s13, s3, 10
    s_add_u32 s12, s12, s13
    s_add_u32 s12, s12, {XB}
    s_mul_i32 s25, s3, 3072
    """)
    vm.n += 1
    for ks in range(NWP, NWP2): wl(ks)
    k("v_mov_b32 v13, 0x3f803f80")
    k("v_mov_b32 v166, 0")
    k("v_mov_b32 v167, 0")
    k(f"""
    v_and_b32 v6, 15, v1
    v_lshrrev_b32 v12, 2, v6
    v_lshl_add_u32 v12, v7, 3, v12
    v_lshlrev_b32 v12, 6, v12
    v_and_b32 v8, 3, v6
    v_lshl_add_u32 v12, v8, 3, v12
    v_and_b32 v8, 16, v1
    v_lshl_add_u32 v12, v8, 1, v12
    v_add_u32 v14, 49152, v12
    s_lshl_b32 s15, s3, 2
    v_add_u32 v2, s15, v4
    s_mov_b32 s28, 0
    s_mov_b32 s29, 0
    """)
    for r in range(48): k(f"v_mov_b32 v{ACC+r}, 0")
    for ks in range(NWP2): csdot(ks)
    k(f"""
    s_mov_b32 s13, 0
    s_cmp_eq_u32 s3, 0
    s_cbranch_scc0 L_{N}_cwg
    s_sleep {CFD}
    s_and_b32 s15, s2, {CFR-1}
    s_lshl_b32 s15, s15, 10
    s_add_u32 s15, s15, {CF}
    L_{N}_cqg:
    buffer_load_dwordx4 v[8:11], v3, s[8:11], s15 offen sc1
    s_add_u32 s13, s13, 1
    s_waitcnt vmcnt(0)
    v_and_b32 v8, v8, v9
    v_and_b32 v10, v10, v11
    v_and_b32 v8, v8, v10
    v_cmp_ne_u32 vcc, 1, v8
    s_cmp_eq_u64 vcc, 0
    s_cbranch_scc1 L_{N}_crg
    s_cmp_ge_u32 s13, {SPIN}
    s_cbranch_scc1 L_{N}_crg
    s_sleep {CFS}
    s_branch L_{N}_cqg
    L_{N}_crg:
    v_mov_b32 v8, 1
    ds_write_b32 v4, v8 offset:52
    s_branch L_{N}_cdg
    L_{N}_cwg:
    ds_read_b32 v8, v4 offset:52
    s_waitcnt lgkmcnt(0)
    v_readfirstlane_b32 s13, v8
    s_cmp_eq_u32 s13, 1
    s_cbranch_scc1 L_{N}_cdg
    s_sleep 1
    s_branch L_{N}_cwg
    L_{N}_cdg:
    """)
    stamp(k, 2)
    unit(0); unit(1)
    signal(0)
    unit(2); unit(3)
    def poll(half, need, tag):
        c = 28 + half
        k(f"""
        s_cmp_ge_u32 s{c}, {need}
        s_cbranch_scc1 L_{N}_pd{tag}
        L_{N}_pl{tag}:
        ds_read_b128 v[8:11], v4 offset:{16*half}
        s_waitcnt lgkmcnt(0)
        v_min_u32 v8, v8, v9
        v_min3_u32 v8, v8, v10, v11
        s_nop 0
        v_readfirstlane_b32 s{c}, v8
        s_cmp_ge_u32 s{c}, {need}
        s_cbranch_scc0 L_{N}_pl{tag}
        L_{N}_pd{tag}:
        """)
    def xr(ks, lb, h):
        b = 12 if ks < 16 else 14
        r = XF+12*(ks&3)+4*lb+2*h
        lg.issue(f"ds_read_b64_tr_b16 v[{r}:{r+1}], v{b} offset:{3072*(ks%16)+1024*lb+256*h}", f"x{ks}_{lb}")
    poll(0, 1, "a")
    for st in range(2):
        for lb in range(3): xr(st, lb, 0); xr(st, lb, 1)
    FCK = int(os.environ.get('FCK', '27'))
    for ks in range(32):
        if ks+2 < 32 and (ks+2) % 4 == 0: poll(((ks+2)//4) & 1, (ks+2)//8 + 1, f"m{ks}")
        vm.need(f"W{ks}")
        if ks == 0: stamp(k, 4)
        if ks in (2, 5, 8): signal({2:1, 5:2, 8:3}[ks])
        w = wreg(ks)
        for lb in range(3):
            lg.need(f"x{ks}_{lb}")
            a = ACC+16*lb; x = XF+12*(ks&3)+4*lb
            k(f"v_mfma_f32_32x32x16_bf16 v[{a}:{a+15}], v[{w}:{w+3}], v[{x}:{x+3}], v[{a}:{a+15}]")
            if ks+2 < 32: xr(ks+2, lb, 0); xr(ks+2, lb, 1)
        if ks >= NWP2: csdot(ks)
        for j in late_w.get(ks, []): wl(j)
        j = ks - WDLAG
        if 2 <= j < NDI: wdl(j >> 1, j & 1, vm=vm)
        if ks == FCK:
            k(f"""
            v_and_b32 v15, 31, v1
            v_lshlrev_b32 v15, 3, v15
            s_mul_i32 s15, s4, 768
            s_add_u32 s15, s15, {FCG}
            s_cmp_eq_u32 s4, 21
            s_cselect_b32 s47, 0, 256
            s_add_u32 s48, s15, s47
            s_add_u32 s49, s48, s47
            s_mov_b32 s47, s15
            """)
            for lb in range(3): vm.issue(f"buffer_load_dwordx2 v[{FG+2*lb}:{FG+2*lb+1}], v15, s[8:11], s{47+lb} offen sc1", "FG")
    stamp(k, 3)
    k(f"""
    s_cmp_ge_u32 s6, 86
    s_cbranch_scc1 L_{N}_drest
    s_mov_b32 s26, {f32hex(-LOG2E)}
    s_mov_b32 s27, 0
    v_add_f32 v166, v166, v167
    s_lshl_b32 s12, s3, 7
    s_add_u32 s12, s12, {FLG+256}
    v_mov_b32 v167, v166
    v_and_b32 v8, 31, v1
    v_lshl_add_u32 v8, v8, 2, s12
    v_permlane32_swap_b32 v166, v167
    v_lshl_add_u32 v9, v7, 4, s12
    v_add_f32 v166, v166, v167
    ds_write_b32 v8, v166
    ds_read_b128 v[{CSV}:{CSV+3}], v9
    ds_read_b128 v[{CSV+4}:{CSV+7}], v9 offset:32
    ds_read_b128 v[{CSV+8}:{CSV+11}], v9 offset:64
    ds_read_b128 v[{CSV+12}:{CSV+15}], v9 offset:96
    """)
    vm.need("FG")
    k(f"""
    s_branch L_{N}_gc
    L_{N}_gp:
    s_sleep 4
    """)
    for lb in range(3): k(f"buffer_load_dwordx2 v[{FG+2*lb}:{FG+2*lb+1}], v15, s[8:11], s{47+lb} offen sc1")
    k(f"""
    s_add_u32 s27, s27, 1
    s_waitcnt vmcnt(0)
    L_{N}_gc:
    v_and_b32 v8, v{FG+1}, v{FG+3}
    v_and_b32 v8, v8, v{FG+5}
    v_cmp_ne_u32 vcc, 1, v8
    s_cmp_eq_u64 vcc, 0
    s_cbranch_scc1 L_{N}_gd
    s_cmp_lt_u32 s27, {SPIN}
    s_cbranch_scc1 L_{N}_gp
    L_{N}_gd:
    """)
    for lb in range(3):
        c = FCR+6*lb
        k(f"v_and_b32 v{c+4}, 0xffff0000, v{FG+2*lb}")
        k(f"v_lshlrev_b32 v{c}, 16, v{FG+2*lb}")
    for lb in range(3): k(f"v_rcp_f32 v{FCR+6*lb+2}, v{FCR+6*lb+4}")
    for lb in range(3):
        c = FCR+6*lb
        k(f"v_sub_f32 v{c+1}, 0, v{c}")
        k(f"v_sub_f32 v{c}, 0, v{c}")
        k(f"v_mov_b32 v{c+5}, v{c+4}")
        k(f"v_mul_f32 v{c+3}, s26, v{c+2}")
        k(f"v_mul_f32 v{c+2}, s26, v{c+2}")
    k(f"""
    s_mul_i32 s15, s4, {3*86*1024}
    s_lshl_b32 s12, s6, 10
    s_add_u32 s15, s15, s12
    s_add_u32 s15, s15, {HB}
    s_waitcnt lgkmcnt(0)
    """)
    for lb in range(3):
        g = ACC+16*lb; u = g+8; c = FCR+6*lb; o = XF+4*lb
        for j in range(0, 8, 2): k(f"v_pk_fma_f32 {P(g+j)}, {P(CSV+j)}, {P(c)}, {P(g+j)}")
        for j in range(0, 8, 2): k(f"v_pk_mul_f32 {P(g+j)}, {P(g+j)}, {P(c+2)}")
        for j in range(8):
            k(f"v_exp_f32 v{g+j}, v{g+j}")
        for j in range(0, 8, 2): k(f"v_pk_fma_f32 {P(u+j)}, {P(CSV+8+j)}, {P(c)}, {P(u+j)}")
        for j in range(0, 8, 2): k(f"v_pk_fma_f32 {P(g+j)}, {P(g+j)}, {P(c+4)}, {P(c+4)}")
        for j in range(8):
            k(f"v_rcp_f32 v{g+j}, v{g+j}")
        k("s_nop 0")
        for j in range(0, 8, 2): k(f"v_pk_mul_f32 {P(u+j)}, {P(u+j)}, {P(g+j)}")
        for j in range(4): k(f"v_cvt_pk_bf16_f32 v{o+j}, v{u+2*j}, v{u+2*j+1}")
        k(f"buffer_store_dwordx4 v[{o}:{o+3}], v3, s[8:11], s15 offen sc1")
        if lb == 0:
            k(f"s_cmp_eq_u32 s4, 21")
            k(f"s_cbranch_scc1 L_{N}_pub")
        k(f"s_add_u32 s15, s15, {86*1024}")
    k(f"""
    L_{N}_pub:
    s_lshl_b32 s15, s4, 9
    s_lshl_b32 s12, s3, 6
    s_add_u32 s15, s15, s12
    s_lshl_b32 s12, s5, 2
    s_add_u32 s15, s15, s12
    s_add_u32 s15, s15, {HF}
    v_mov_b32 v8, 0
    v_mov_b32 v9, 1
    s_waitcnt vmcnt(0)
    s_mov_b64 exec, 1
    buffer_store_dword v9, v8, s[8:11], s15 offen sc1
    s_mov_b64 exec, -1
    """)
    stamp(k, 5)
    k(f"s_branch L_{N}_drest")
    k.label(f"L_{N}_dall")
    dsetup()
    for (n, i) in wdq[2:NDI]: wdl(n, i)
    k.label(f"L_{N}_drest")
    k("s_waitcnt lgkmcnt(0)")
    k("s_barrier")
    for (n, i) in wdq[:2] + wdq[NDI:]: wdl(n, i)
    for r in range(64): k(f"v_mov_b32 v{A2+r}, 0")
    k(f"""
    s_lshl_b32 s12, s30, 1
    s_mul_i32 s13, s12, 171
    s_lshr_b32 s13, s13, 9
    s_add_u32 s12, s12, 1
    s_mul_i32 s12, s12, 171
    s_lshr_b32 s12, s12, 9
    s_lshl_b32 s13, s13, 9
    s_lshl_b32 s12, s12, 9
    s_add_u32 s38, s13, {HF}
    s_add_u32 s39, s12, {HF}
    v_lshlrev_b32 v10, 2, v1
    v_and_b32 v8, 15, v1
    v_cmp_gt_u32 s[26:27], 11, v8
    v_sub_u32 v9, 11, v7
    v_cmp_gt_u32 s[52:53], v9, v8
    v_and_b32 v6, 31, v1
    v_lshlrev_b32 v5, 8, v7
    v_lshl_add_u32 v5, v6, 1, v5
    s_lshl_b32 s24, s32, 11
    s_lshl_b32 s25, s33, 15
    s_add_u32 s24, s24, s25
    s_lshr_b32 s12, s3, 2
    s_lshl_b32 s12, s12, 10
    s_add_u32 s24, s24, s12
    s_add_u32 s25, s24, {XC}
    s_add_u32 s24, s24, {XB}
    """)
    for n in range(8):
        q, r = n >> 2, n & 3
        k(f"buffer_load_ushort v{RES+n}, v5, s[8:11], s24 offen offset:{(8*q+r)*64} sc1")
    k(f"""
    s_mov_b32 s13, 0
    s_cmp_eq_u32 s3, 0
    s_cbranch_scc0 L_{N}_hw
    L_{N}_hq:
    buffer_load_dword v12, v10, s[8:11], s38 offen sc1
    buffer_load_dword v13, v10, s[8:11], s39 offen sc1
    buffer_load_dword v14, v10, s[8:11], s38 offen offset:256 sc1
    buffer_load_dword v15, v10, s[8:11], s39 offen offset:256 sc1
    s_add_u32 s13, s13, 1
    s_waitcnt vmcnt(0)
    v_and_b32 v12, v12, v13
    v_and_b32 v14, v14, v15
    v_cmp_ne_u32 vcc, 1, v12
    v_cmp_ne_u32 s[54:55], 1, v14
    s_and_b64 vcc, vcc, s[26:27]
    s_and_b64 s[54:55], s[54:55], s[52:53]
    s_or_b64 vcc, vcc, s[54:55]
    s_cbranch_scc0 L_{N}_hr
    s_cmp_ge_u32 s13, {SPIN}
    s_cbranch_scc1 L_{N}_hr
    s_sleep 3
    s_branch L_{N}_hq
    L_{N}_hr:
    v_mov_b32 v12, 1
    ds_write_b32 v4, v12 offset:48
    s_branch L_{N}_hd
    L_{N}_hw:
    ds_read_b32 v12, v4 offset:48
    s_waitcnt lgkmcnt(0)
    v_readfirstlane_b32 s12, v12
    s_cmp_eq_u32 s12, 1
    s_cbranch_scc1 L_{N}_hd
    s_sleep 1
    s_branch L_{N}_hw
    L_{N}_hd:
    s_mov_b32 s22, {WS_USED}
    v_mov_b32 v12, v3
    """)
    stamp(k, 6)
    vm = Q(k, 'vmcnt', 63)
    HD = 6
    def hload(n):
        if n == 10:
            k("s_cmp_ge_u32 s3, 6")
            k("s_cselect_b32 s22, 0, s22")
        for i in range(2):
            r = HR + 8*(n % HD) + 4*i
            vm.issue(f"buffer_load_dwordx4 v[{r}:{r+3}], v12, s[20:23], s{36+i} offen sc1", f"S{n}")
        k("v_add_u32 v12, 8192, v12")
    for n in range(HD): hload(n)
    k("s_and_b32 s13, s3, 3")
    for a in range(4):
        k(f"""
        s_xor_b32 s12, s13, {a}
        s_lshl_b32 s12, s12, 14
        s_lshl_b32 s15, s3, 11
        s_add_u32 s12, s12, s15
        v_add_u32 v{8+a}, s12, v3
        """)
    k(f"""
    s_lshl_b32 s12, s3, 14
    v_add_u32 v13, s12, v3
    v_add_u32 v14, 0x10000, v8
    v_add_u32 v15, 0x10000, v9
    v_add_u32 v0, 0x10000, v10
    v_add_u32 v2, 0x10000, v11
    """)
    for n in range(11):
        vm.need(f"S{n}")
        for ad in range(2):
            for al in range(2):
                a = A2 + 16*(2*ad+al); w = WD0+8*n+4*ad; h = HR+8*(n % HD)+4*al
                k(f"v_mfma_f32_32x32x16_bf16 v[{a}:{a+15}], v[{w}:{w+3}], v[{h}:{h+3}], v[{a}:{a+15}]")
        if n >= 1 and n-1+HD < 11: hload(n-1+HD)
    k("s_nop 3")
    lg = Q(k, 'lgkmcnt', 15)
    hi = [14, 15, 0, 2]
    for n in range(8): k(f"v_lshlrev_b32 v{RES+n}, 16, v{RES+n}")
    for a in range(4):
        for q in range(4):
            ad = (8+a) if q < 2 else hi[a]
            lg.issue(f"ds_write_b128 v{ad}, v[{A2+16*a+4*q}:{A2+16*a+4*q+3}] offset:{1024*(q&1)}", "rw")
    lg.drain()
    k("s_barrier")
    FV = 16
    for q in range(2):
        for s_ in range(8):
            lg.issue(f"ds_read_b128 v[{FV+32*q+4*s_}:{FV+32*q+4*s_+3}], v13 offset:{2048*s_+1024*q}", f"rr{q}_{s_}")
    for q in range(2):
        b = FV+32*q
        for st in (1, 2, 4):
            for s_ in range(0, 8, 2*st):
                lg.need(f"rr{q}_{min(7, s_+2*st-1)}")
                for j in (0, 2): k(f"v_pk_add_f32 {P(b+4*s_+j)}, {P(b+4*s_+j)}, {P(b+4*(s_+st)+j)}")
        k(f"v_cvt_pk_bf16_f32 v{T+2*q}, v{b}, v{b+1}")
        k(f"v_cvt_pk_bf16_f32 v{T+2*q+1}, v{b+2}, v{b+3}")
        unpack(k, b, b+1, T+2*q); unpack(k, b+2, b+3, T+2*q+1)
        for j in (0, 2): k(f"v_pk_add_f32 {P(b+j)}, {P(b+j)}, {P(RES+4*q+j)}")
        k(f"v_cvt_pk_bf16_f32 v{T+2*q}, v{b}, v{b+1}")
        k(f"v_cvt_pk_bf16_f32 v{T+2*q+1}, v{b+2}, v{b+3}")
    k("s_cmp_eq_u32 s93, 1")
    k(f"s_cbranch_scc1 L_{N}_out")
    k(f"""
    v_mov_b32 v14, 0x3f803f80
    s_lshl_b32 s12, s3, 14
    v_add_u32 v8, s12, v5
    v_mov_b32 v12, 0
    v_mov_b32 v9, 0
    """)
    for q in range(2):
        for r in range(4):
            op = "ds_write_b16_d16_hi" if r & 1 else "ds_write_b16"
            k(f"{op} v8, v{T+2*q+(r>>1)} offset:{(8*q+r)*64}")
    k("ds_read_b128 v[16:19], v13")
    for q in range(2):
        for j in range(2):
            k(f"v_dot2_f32_bf16 v12, v{T+2*q+j}, v14, v12")
            k(f"v_dot2_f32_bf16 v9, v{T+2*q+j}, v{T+2*q+j}, v9")
    k(f"""
    v_lshlrev_b32 v5, 3, v6
    v_lshl_add_u32 v5, v7, 2, v5
    s_lshl_b32 s12, s33, 8
    v_permlane32_swap_b32 v12, v9
    s_add_u32 s12, s12, {ST3}
    s_waitcnt lgkmcnt(0)
    buffer_store_dwordx4 v[16:19], v3, s[8:11], s25 offen sc1
    v_add_f32 v12, v12, v9
    buffer_atomic_add_f32 v12, v5, s[8:11], s12 offen
    s_lshl_b32 s12, s2, 2
    s_add_u32 s12, s12, {LF}
    v_lshlrev_b32 v8, 10, v1
    ds_read_b32 v9, v4 offset:64
    """)
    stamp(k, 9)
    k(f"""
    s_waitcnt vmcnt(0) lgkmcnt(0)
    s_barrier
    s_cmp_lg_u32 s3, 0
    s_cbranch_scc1 L_lf_np
    s_mov_b64 exec, 0xff
    buffer_store_dword v9, v8, s[8:11], s12 offen sc1
    s_mov_b64 exec, -1
    L_lf_np:
    """)
    stamp_flush(k, slot, 10, 3)
    k("s_mov_b64 exec, -1")
    for r, v in sets2.items(): k(f"s_mov_b32 s{r}, {v}")
    k(f"""
    s_branch L_layer
    L_{N}_out:
    s_mov_b32 s28, s96
    s_mov_b32 s29, s97
    s_mov_b32 s30, {2048*512*2}
    s_mov_b32 s31, 0x00020000
    v_lshlrev_b32 v5, 10, v6
    v_lshl_add_u32 v5, v7, 4, v5
    s_lshl_b32 s25, s33, 15
    s_lshl_b32 s12, s32, 6
    s_add_u32 s25, s25, s12
    s_lshr_b32 s12, s3, 2
    s_lshl_b32 s12, s12, 5
    s_add_u32 s25, s25, s12
    v_permlane32_swap_b32 v{T}, v{T+2}
    v_permlane32_swap_b32 v{T+1}, v{T+3}
    buffer_store_dwordx4 v[{T}:{T+3}], v5, s[28:31], s25 offen
    """)
    stamp(k, 9)
    stamp_flush(k, slot, 10, 3)
    k(f"s_branch {E}")
    k.label(f"L_{N}_prod")
    k(f"""
    s_mul_i32 s4, s2, 5
    s_lshl_b32 s12, s4, 15
    s_lshl_b32 s13, s3, 10
    s_add_u32 s12, s12, s13
    s_mov_b32 s26, {2*MB}
    s_mov_b32 s27, 0x00020000
    s_add_u32 s24, s18, {XB}
    s_addc_u32 s25, s19, 0
    s_lshl_b32 s5, s3, 14
    v_and_b32 v6, 15, v1
    v_lshrrev_b32 v12, 2, v6
    v_lshl_add_u32 v12, v7, 3, v12
    v_lshlrev_b32 v12, 6, v12
    v_and_b32 v8, 3, v6
    v_lshl_add_u32 v12, v8, 3, v12
    v_and_b32 v8, 16, v1
    v_lshl_add_u32 v12, v8, 1, v12
    v_add_u32 v12, s5, v12
    v_mov_b32 v13, 0x3f803f80
    """)
    for r in range(10): k(f"v_mov_b32 v{16+r}, 0")
    k(f"""
    s_mov_b32 s13, 0
    s_cmp_eq_u32 s3, 0
    s_cbranch_scc0 L_{N}_cwp
    s_sleep {CFD}
    s_and_b32 s15, s2, {CFR-1}
    s_lshl_b32 s15, s15, 10
    s_add_u32 s15, s15, {CF}
    L_{N}_cqp:
    buffer_load_dwordx4 v[8:11], v3, s[8:11], s15 offen sc1
    s_add_u32 s13, s13, 1
    s_waitcnt vmcnt(0)
    v_and_b32 v8, v8, v9
    v_and_b32 v10, v10, v11
    v_and_b32 v8, v8, v10
    v_cmp_ne_u32 vcc, 1, v8
    s_cmp_eq_u64 vcc, 0
    s_cbranch_scc1 L_{N}_crp
    s_cmp_ge_u32 s13, {SPIN}
    s_cbranch_scc1 L_{N}_crp
    s_sleep {CFS}
    s_branch L_{N}_cqp
    L_{N}_crp:
    v_mov_b32 v8, 1
    ds_write_b32 v4, v8 offset:52
    s_branch L_{N}_cdp
    L_{N}_cwp:
    ds_read_b32 v8, v4 offset:52
    s_waitcnt lgkmcnt(0)
    v_readfirstlane_b32 s13, v8
    s_cmp_eq_u32 s13, 1
    s_cbranch_scc1 L_{N}_cdp
    s_sleep 1
    s_branch L_{N}_cwp
    L_{N}_cdp:
    """)
    stamp(k, 2)
    pv = Q(k, 'vmcnt', 63); pl = Q(k, 'lgkmcnt', 15)
    def pdma(n):
        k(f"s_add_u32 m0, s5, {1024*(n % 16)}")
        k(f"s_add_u32 s14, s12, {(n >> 2)*32768 + (n & 3)*8192}")
        pv.issue(f"buffer_load_dwordx4 v3, s[24:27], s14 offen sc1 lds", f"d{n}")
    def prd(n):
        pv.need(f"d{n}")
        r = 32 + 4*(n % 4)
        pl.issue(f"ds_read_b64_tr_b16 v[{r}:{r+1}], v12 offset:{1024*(n%16)}", f"r{n}")
        pl.issue(f"ds_read_b64_tr_b16 v[{r+2}:{r+3}], v12 offset:{1024*(n%16)+256}", f"r{n}")
    for n in range(16): pdma(n)
    prd(0); prd(1)
    for n in range(20):
        if n+2 < 20: prd(n+2)
        pl.need(f"r{n}")
        if n < 4: pdma(16+n)
        r = 32 + 4*(n % 4); lb = n >> 2
        for e in range(4):
            k(f"v_dot2_f32_bf16 v{16+2*lb}, v{r+e}, v13, v{16+2*lb}")
            k(f"v_dot2_f32_bf16 v{17+2*lb}, v{r+e}, v{r+e}, v{17+2*lb}")
    k("s_nop 2")
    for lb in range(5): k(f"v_permlane32_swap_b32 v{16+2*lb}, v{17+2*lb}")
    for lb in range(5): k(f"v_add_f32 v{16+2*lb}, v{16+2*lb}, v{17+2*lb}")
    k(f"""
    v_and_b32 v8, 31, v1
    v_lshlrev_b32 v8, 3, v8
    v_lshl_add_u32 v8, v7, 2, v8
    v_add_u32 v8, s5, v8
    """)
    for lb in range(5): k(f"ds_write_b32 v8, v{16+2*lb} offset:{256*lb}")
    k(f"""
    s_waitcnt lgkmcnt(0)
    s_barrier
    s_cmp_ge_u32 s3, 3
    s_cbranch_scc1 L_{N}_pe
    v_lshlrev_b32 v8, 3, v0
    v_add_u32 v9, 0x10000, v8
    """)
    for w in range(8): k(f"ds_read_b64 v[{32+2*w}:{33+2*w}], v{8 + (w >> 2)} offset:{16384*(w & 3)}")
    k("s_waitcnt lgkmcnt(0)")
    for st in (1, 2, 4):
        for w in range(0, 8, 2*st): k(f"v_pk_add_f32 {P(32+2*w)}, {P(32+2*w)}, {P(32+2*(w+st))}")
    k(f"""
    s_mov_b32 s24, {f32hex(1.0/512)}
    s_mov_b32 s25, {f32hex(1e-5)}
    v_mul_f32 v14, s24, v32
    v_mul_f32 v16, s24, v33
    v_fma_f32 v16, -v14, v14, v16
    v_max_f32 v16, 0, v16
    v_cvt_pk_bf16_f32 v14, v14, v16
    v_and_b32 v16, 0xffff0000, v14
    v_lshlrev_b32 v14, 16, v14
    v_add_f32 v16, s25, v16
    v_cvt_pk_bf16_f32 v16, v16, v16
    v_lshlrev_b32 v16, 16, v16
    v_sqrt_f32 v16, v16
    s_mul_i32 s4, s2, 1280
    s_add_u32 s4, s4, {FCG}
    v_cvt_pk_bf16_f32 v20, v14, v16
    v_mov_b32 v21, 1
    s_movk_i32 s6, 160
    v_cmp_gt_u32 vcc, s6, v0
    s_and_saveexec_b64 s[6:7], vcc
    buffer_store_dwordx2 v[20:21], v8, s[8:11], s4 offen sc1
    s_mov_b64 exec, s[6:7]
    s_nop 1
    L_{N}_pe:
    """)
    for i in (3, 5): stamp(k, i)
    k(f"s_branch L_{N}_dall")
    k.label(E)
    k("s_endpgm")
    return k

if __name__ == '__main__':
    import sys
    KN = "interleave_layers__ssm_conv_s4d__glu_gated_glu__prompt_kernel"
    sets1 = {86: XT0, 87: XT1, 88: ST1, 89: FCG1, 90: H, 91: HF1, 92: XT2, 93: 0, 94: CF1, 95: 2}
    sets2 = {86: XT2, 87: XT3, 88: ST3, 89: FCG2, 90: H2, 91: HF2, 92: 0, 93: 1, 94: CF2, 95: 6}
    p = Prog(); p.add_kernel(gen_mega(KN, sets1, sets2))
    t = p.text().replace('.amdgcn_target', f"; @launch grid=(256,1,1) block=(512,1,1) lds={LAYER_LDS}\n.amdgcn_target", 1)
    open(sys.argv[1], 'w').write(t)
```

```python
import asmlib, os
asmlib.STAMPS = bool(os.environ.get('STAMPS'))
from asmlib import *
from layout import *
from gen_k0 import f32hex, LOG2E
from gen_conv import unpack, U0, UP, KC0, KCP, KCH, RED
NPROD = 14; PCH = 19
FLG = 131072
LAYER_LDS = FLG + 256 + 1024
SPIN = 400000
EARLYU = int(os.environ.get('EARLYU', '12'))
RETRY = 30000
RSL = int(os.environ.get('RSL', '3'))
CFD = int(os.environ.get('CFD', '0')); CFS = int(os.environ.get('CFS', '4')); CFR = int(os.environ.get('CFR', '8'))
XSC = os.environ.get('XSC', 'sc1')
NWP = int(os.environ.get('NWP', '18'))
NWP2 = int(os.environ.get('NWP2', '24'))
WDLAG = int(os.environ.get('WDLAG', '8'))
NDI = int(os.environ.get('NDI', '20'))

from gen_k0 import exp_bf16_pair, LOG2E_HI, LOG2E_LO, LN2, INV2PI
SC = ''
def gen_mega(name, sets1, sets2):
    k = Kernel(name, vgpr=256, sgpr=100)
    XA, XB, ST, FCG, HB, HF, XC, CF, slot = 's86', 's87', 's88', 's89', 's90', 's91', 's92', 's94', 's95'
    stamp(k, 0)
    E = "L_mega_end"; N = "m"
    ACC = 16; XF = 64; CSV = 144; FCR = 112
    A2 = 16; HR = 80; WD0 = 168; RES = 128; T = 144; FG = 160
    P = lambda r: f"v[{r}:{r+1}]"
    def wreg(ks):
        if ks < 22: return 168 + 4*ks
        if ks < 30: return 112 + 4*(ks-22)
        return 168 + 4*(ks-30)
    late_w = {}
    for j in range(NWP2, 32): late_w.setdefault(max(3, j - 14) if j < 30 else 12 + j - 30, []).append(j)
    def wpre(ks):
        r = wreg(ks)
        k(f"s_add_u32 s14, s55, {4096*(ks//4)}")
        k(f"buffer_load_dwordx4 v[{r}:{r+3}], v3, s[20:23], s14 offen offset:{1024*(ks&3)} sc1")

    KSC = RED; TS = 90112; WS_ = TS + 8192
    SIDE_AT = int(os.environ.get('SIDE_AT', '7'))
    NTASK = 688 + 172
    def side_issue():
        k(f"""
        v_lshlrev_b32 v116, 4, v1
        v_lshrrev_b32 v117, 4, v1
        v_and_b32 v118, 15, v1
        v_lshrrev_b32 v120, 2, v1
        v_and_b32 v121, 3, v1
        s_mov_b32 s51, 0x00020000
        s_mov_b32 s59, 0x00020000
        s_lshl_b32 s52, s2, 2
        s_add_u32 s52, s52, s45
        s_lshl_b32 s53, s45, 13
        s_add_u32 s53, s53, {WS_}
        s_cmp_lt_u32 s3, 4
        s_cbranch_scc1 L_si_w
        s_mov_b32 s48, s24
        s_mov_b32 s49, s25
        s_mov_b32 s50, {2*MB}
        s_lshl_b32 s4, s52, 11
        buffer_load_dwordx4 v[112:115], v116, s[48:51], s4 offen
        buffer_load_dwordx4 v[160:163], v116, s[48:51], s4 offen offset:1024
        v_lshlrev_b32 v120, 10, v120
        v_lshl_add_u32 v120, v121, 4, v120
        s_lshr_b32 s4, s2, 2
        s_lshl_b32 s4, s4, 15
        s_and_b32 s5, s52, 15
        s_lshl_b32 s5, s5, 6
        s_add_u32 s4, s4, s5
        s_lshl_b32 s53, s45, 11
        s_add_u32 s53, s53, {TS}
        s_mov_b32 m0, s53
        s_add_u32 s5, s4, 16384
        buffer_load_dwordx4 v120, s[48:51], s4 offen lds
        s_add_u32 m0, s53, 1024
        s_mov_b32 s58, 0
        buffer_load_dwordx4 v120, s[48:51], s5 offen lds
        s_mov_b32 s56, s24
        s_mov_b32 s57, s25
        """)
        for t_ in range(4): k("buffer_load_dword v164, v116, s[56:59], 0 offen")
        k(f"""
        s_branch L_si_done
        L_si_w:
        s_mov_b32 s50, {D*F*2}
        s_mov_b32 s58, {D*F*2}
        s_cmp_ge_u32 s52, {NTASK}
        s_cselect_b32 s50, 0, s50
        s_cmp_ge_u32 s52, 688
        s_cbranch_scc1 L_si_wd
        s_mov_b32 s48, s20
        s_mov_b32 s49, s21
        s_mov_b32 s56, s22
        s_mov_b32 s57, s23
        v_mul_u32_u24 v120, {F*2}, v120
        v_lshl_add_u32 v120, v121, 4, v120
        s_and_b32 s4, s52, 15
        s_mul_i32 s4, s4, {32*F*2}
        s_lshr_b32 s5, s52, 4
        s_lshl_b32 s5, s5, 6
        s_add_u32 s4, s4, s5
        """)
        for t_ in range(2):
            k(f"s_add_u32 m0, s53, {2048*t_}")
            k("s_nop 0")
            k("buffer_load_dwordx4 v120, s[48:51], s4 offen lds")
            k(f"s_add_u32 m0, s53, {2048*t_+1024}")
            k("s_nop 0")
            k("buffer_load_dwordx4 v120, s[56:59], s4 offen lds")
            k(f"s_add_u32 s4, s4, {16*F*2}")
        k("s_mov_b32 s58, 0")
        for t_ in range(4): k("buffer_load_dword v164, v116, s[56:59], 0 offen")
        k(f"""
        s_branch L_si_done
        L_si_wd:
        s_mov_b32 s48, s26
        s_mov_b32 s49, s27
        v_lshrrev_b32 v120, 5, v1
        v_and_b32 v121, 31, v1
        v_lshlrev_b32 v120, 10, v120
        v_lshl_add_u32 v120, v121, 4, v120
        s_sub_u32 s4, s52, 688
        s_and_b32 s5, s4, 1
        s_lshr_b32 s4, s4, 1
        s_lshl_b32 s4, s4, 14
        s_lshl_b32 s5, s5, 9
        s_add_u32 s4, s4, s5
        """)
        for t_ in range(8):
            k(f"s_add_u32 m0, s53, {1024*t_}")
            k("s_nop 0")
            k("buffer_load_dwordx4 v120, s[48:51], s4 offen lds")
            k(f"s_add_u32 s4, s4, 2048")
        k.label("L_si_done")
    def side_process():
        k(f"""
        v_lshrrev_b32 v122, 5, v1
        v_lshrrev_b32 v120, 2, v118
        v_and_b32 v121, 3, v118
        v_and_b32 v123, 16, v1
        s_cmp_lt_u32 s3, 4
        s_cbranch_scc1 L_sp_w
        v_mov_b32 v124, 0
        v_mov_b32 v125, 0
        v_mov_b32 v126, 0
        v_mov_b32 v127, 0
        v_mov_b32 v136, 0x3f803f80
        v_lshl_add_u32 v120, v117, 3, v120
        v_lshlrev_b32 v120, 6, v120
        v_lshl_add_u32 v120, v121, 3, v120
        v_add_u32 v120, s53, v120
        s_waitcnt vmcnt(0)
        s_cmp_lg_u32 s54, 7
        s_cbranch_scc1 L_nn3
        s_mov_b64 exec, 1
        global_store_dwordx2 v152, v[154:155], s[98:99] sc1
        s_mov_b64 exec, -1
        L_nn3:
        ds_read_b64_tr_b16 v[128:129], v120
        ds_read_b64_tr_b16 v[130:131], v120 offset:256
        ds_read_b64_tr_b16 v[132:133], v120 offset:32
        ds_read_b64_tr_b16 v[134:135], v120 offset:288
        """)
        for j in range(4):
            k(f"v_dot2_f32_bf16 v124, v{112+j}, v136, v124")
            k(f"v_dot2_f32_bf16 v125, v{112+j}, v{112+j}, v125")
            k(f"v_dot2_f32_bf16 v126, v{160+j}, v136, v126")
            k(f"v_dot2_f32_bf16 v127, v{160+j}, v{160+j}, v127")
        k(f"""
        s_lshr_b32 s4, s2, 2
        s_lshl_b32 s4, s4, 15
        s_and_b32 s5, s52, 15
        s_lshl_b32 s5, s5, 11
        s_add_u32 s4, s4, s5
        s_add_u32 s4, s4, {XT0}
        v_lshlrev_b32 v121, 6, v118
        v_lshl_add_u32 v121, v117, 4, v121
        s_waitcnt lgkmcnt(0)
        buffer_store_dwordx4 v[128:131], v121, s[8:11], s4 offen sc1
        buffer_store_dwordx4 v[132:135], v121, s[8:11], s4 offen offset:1024 sc1
        """)
        for dpp in ("quad_perm:[1,0,3,2] row_mask:0xf bank_mask:0xf", "quad_perm:[2,3,0,1] row_mask:0xf bank_mask:0xf",
                    "row_half_mirror row_mask:0xf bank_mask:0xf", "row_mirror row_mask:0xf bank_mask:0xf",
                    "row_bcast:15 row_mask:0xa bank_mask:0xf", "row_bcast:31 row_mask:0xc bank_mask:0xf"):
            for r in range(4): k(f"v_add_f32 v{124+r}, v{124+r}, v{124+r} {dpp}")
        k(f"""
        s_lshl_b32 s4, s52, 4
        s_add_u32 s4, s4, {ST1}
        v_mov_b32 v138, 0
        v_mov_b32 v139, 0
        v_mov_b32 v140, -1
        v_mov_b32 v141, -1
        s_mov_b32 exec_lo, 0
        s_mov_b32 exec_hi, 0x80000000
        buffer_store_dwordx4 v[124:127], v152, s[8:11], s4 offen sc1
        s_mov_b64 exec, 0xffff
        s_lshl_b32 s4, s52, 7
        s_add_u32 s4, s4, {ZR}
        v_lshlrev_b32 v121, 3, v1
        buffer_store_dwordx2 v[138:139], v121, s[8:11], s4 offen sc1
        s_mov_b64 exec, -1
        v_lshrrev_b32 v122, 1, v118
        v_lshlrev_b32 v122, 15, v122
        v_and_b32 v123, 1, v118
        v_lshl_add_u32 v122, v123, 5, v122
        v_lshl_add_u32 v122, v117, 3, v122
        s_lshl_b32 s4, s2, 7
        s_lshl_b32 s5, s45, 19
        s_add_u32 s4, s4, s5
        s_add_u32 s4, s4, {XT1}
        s_add_u32 s5, s4, 0x40000
        buffer_store_dwordx2 v[140:141], v122, s[8:11], s4 offen sc1
        buffer_store_dwordx2 v[140:141], v122, s[8:11], s4 offen offset:64 sc1
        buffer_store_dwordx2 v[140:141], v122, s[8:11], s5 offen sc1
        buffer_store_dwordx2 v[140:141], v122, s[8:11], s5 offen offset:64 sc1
        s_branch L_sp_done
        L_sp_w:
        s_cmp_ge_u32 s52, {NTASK}
        s_cbranch_scc1 L_sp_done
        s_cmp_ge_u32 s52, 688
        s_cbranch_scc1 L_sp_wd
        v_lshl_add_u32 v120, v122, 3, v120
        v_lshlrev_b32 v120, 6, v120
        v_lshl_add_u32 v120, v121, 3, v120
        v_lshl_add_u32 v120, v123, 6, v120
        v_add_u32 v120, s53, v120
        s_lshr_b32 s4, s52, 4
        s_lshl_b32 s4, s4, 16
        s_and_b32 s5, s52, 15
        s_lshl_b32 s5, s5, 11
        s_add_u32 s4, s4, s5
        s_add_u32 s4, s4, {WGU}
        s_add_u32 s5, s4, 0x8000
        s_waitcnt vmcnt(0)
        """)
        for t_ in range(4):
            ks, hf = t_ >> 1, t_ & 1
            k(f"ds_read_b64_tr_b16 v[{124+4*t_}:{125+4*t_}], v120 offset:{2048*ks + 32*hf}")
            k(f"ds_read_b64_tr_b16 v[{126+4*t_}:{127+4*t_}], v120 offset:{2048*ks + 32*hf + 256}")
        for t_ in range(4):
            ks, hf = t_ >> 1, t_ & 1
            k(f"s_waitcnt lgkmcnt({6-2*t_})")
            k(f"buffer_store_dwordx4 v[{124+4*t_}:{127+4*t_}], v116, s[8:11], s{4+hf} offen offset:{1024*ks} sc1")
        k(f"""
        s_branch L_sp_done
        L_sp_wd:
        v_lshl_add_u32 v120, v122, 2, v120
        v_lshlrev_b32 v120, 9, v120
        v_lshl_add_u32 v120, v121, 3, v120
        v_lshl_add_u32 v120, v123, 1, v120
        v_add_u32 v120, s53, v120
        s_sub_u32 s4, s52, 688
        s_and_b32 s5, s4, 1
        s_lshr_b32 s4, s4, 1
        s_lshl_b32 s4, s4, 10
        s_mul_i32 s5, s5, {8*86*1024}
        s_add_u32 s4, s4, s5
        s_add_u32 s4, s4, {WD}
        s_waitcnt vmcnt(0)
        """)
        for h_ in range(2):
            for t_ in range(4):
                k(f"ds_read_b64_tr_b16 v[{168+16*h_+4*t_}:{169+16*h_+4*t_}], v120 offset:{64*(4*h_+t_)}")
                k(f"ds_read_b64_tr_b16 v[{170+16*h_+4*t_}:{171+16*h_+4*t_}], v120 offset:{64*(4*h_+t_) + 4096}")
            for t_ in range(4):
                k(f"s_waitcnt lgkmcnt({6-2*t_})")
                k(f"buffer_store_dwordx4 v[{168+16*h_+4*t_}:{171+16*h_+4*t_}], v116, s[8:11], s4 offen sc1")
                k(f"s_add_u32 s4, s4, {86*1024}")
        k.label("L_sp_done")
    k(f"""
    s_cmp_ge_u32 s2, 256
    s_cbranch_scc1 {E}
    s_load_dwordx8 s[36:43], s[0:1], 8
    s_load_dwordx2 s[46:47], s[0:1], 40
    s_load_dwordx2 s[18:19], s[0:1], 104
    s_load_dwordx2 s[16:17], s[0:1], 48
    s_load_dwordx4 s[96:99], s[0:1], 88
    s_load_dwordx2 s[24:25], s[0:1], 0
    s_load_dwordx4 s[20:23], s[0:1], 64
    s_load_dwordx2 s[26:27], s[0:1], 80
    v_and_b32 v1, 63, v0
    v_lshrrev_b32 v2, 6, v0
    s_mov_b32 s10, {WS_USED}
    v_readfirstlane_b32 s3, v2
    s_mov_b32 s11, 0x00020000
    """)
    if os.environ.get('CPF', '0') == '1':
        k(f"""
        s_getpc_b64 s[4:5]
        L_pc0:
        s_cmp_ge_u32 s2, 64
        s_cbranch_scc1 L_cpf
        v_lshlrev_b32 v4, 7, v0
        v_min_u32 v4, L_mega_end-L_pc0, v4
        global_load_dword v156, v4, s[4:5]
        L_cpf:
        """)
    CHB = 20480; PT = 2048; T16 = 2048 + 4*3072
    k(f"""
    s_lshr_b32 s4, s3, 2
    s_and_b32 s45, s3, 3
    s_lshl_b32 s44, s2, 1
    s_add_u32 s44, s44, s4
    s_mul_i32 s34, s4, {CHB}
    s_add_u32 s34, s34, {KSC}
    v_and_b32 v3, 31, v1
    s_lshl_b32 s4, s44, 7
    s_lshl_b32 s5, s45, 5
    s_add_u32 s4, s4, s5
    v_add_u32 v4, s4, v3
    v_lshlrev_b32 v4, 1, v4
    s_lshl_b32 s5, s44, 1
    v_mov_b32 v5, s5
    v_mov_b32 v158, {FLG+64}
    v_mov_b32 v159, 0
    ds_write_b32 v158, v159 offset:4
    ds_write_b32 v158, v159 offset:8
    s_waitcnt lgkmcnt(0)
    s_barrier
    s_mov_b32 s8, s18
    s_mov_b32 s9, s19
    s_lshl_b32 s54, s2, 3
    s_add_u32 s54, s54, s3
    v_mov_b32 v152, 0
    v_mov_b32 v155, 1
    s_mov_b32 s55, {NONCE}
    s_cmp_lg_u32 s54, 7
    s_cbranch_scc1 L_nn
    buffer_load_dword v154, v152, s[8:11], s55 offen sc1
    L_nn:
    global_load_ushort v6, v4, s[36:37]
    global_load_ushort v10, v5, s[46:47]
    global_load_ushort v7, v4, s[38:39]
    global_load_ushort v8, v4, s[40:41]
    global_load_ushort v9, v4, s[42:43]
    """)
    side_issue()
    k(f"""
    s_mov_b32 s30, {f32hex(LOG2E_HI)}
    s_mov_b32 s31, {f32hex(LOG2E_LO)}
    s_mov_b32 s32, {f32hex(LN2)}
    s_mov_b32 s33, {f32hex(INV2PI)}
    v_and_b32 v0, 255, v0
    v_and_b32 v11, 15, v1
    v_lshrrev_b32 v12, 3, v11
    v_lshlrev_b32 v12, 7, v12
    v_and_b32 v13, 7, v11
    v_add_u32 v12, v12, v13
    v_cvt_f32_u32 v20, v12
    v_lshrrev_b32 v12, 2, v11
    v_lshlrev_b32 v12, 7, v12
    v_and_b32 v13, 3, v11
    v_lshl_add_u32 v12, v13, 1, v12
    v_add_u32 v12, 0x100, v12
    v_subrev_u32 v13, 8, v11
    v_lshrrev_b32 v13, 1, v13
    v_lshlrev_b32 v13, 7, v13
    v_and_b32 v14, 1, v11
    v_lshl_add_u32 v13, v14, 2, v13
    v_add_u32 v13, 0x200, v13
    v_cmp_gt_u32 vcc, 8, v11
    v_lshlrev_b32 v14, 7, v11
    v_add_u32 v14, 0x400, v14
    v_cndmask_b32 v12, v13, v12, vcc
    v_cvt_f32_u32 v21, v12
    v_cvt_f32_u32 v22, v14
    v_lshlrev_b32 v14, 3, v11
    v_cvt_f32_u32 v23, v14
    s_lshl_b32 s5, s45, 9
    s_add_u32 s5, s5, s34
    v_lshl_add_u32 v2, v3, 4, s5
    v_lshrrev_b32 v3, 4, v1
    v_lshl_add_u32 v3, v3, 6, s5
    """)
    for r in range(12): k(f"v_mov_b32 v{24+r}, 0")
    k("s_waitcnt vmcnt(11)")
    k("v_lshlrev_b32 v6, 16, v6")
    k("v_lshlrev_b32 v10, 16, v10")
    exp_bf16_pair(k, [6, 10], 12, 30, 31, 32)
    k(f"""
    s_waitcnt vmcnt(8)
    v_lshlrev_b32 v7, 16, v7
    v_lshlrev_b32 v8, 16, v8
    v_lshlrev_b32 v9, 16, v9
    v_mul_f32 v6, v6, v10
    v_mul_f32 v7, v7, v10
    v_add_f32 v10, v10, v10
    v_mul_f32 v18, v8, v10
    v_mul_f32 v19, v9, v10
    v_mul_f32 v16, s30, v6
    v_max_f32 v12, |v18|, |v19|
    v_mul_f32 v17, s33, v7
    v_sub_f32 v16, 0, v16
    v_max_f32_dpp v12, v12, v12 row_ror:8 row_mask:0xf bank_mask:0xf
    s_nop 1
    v_max_f32_dpp v12, v12, v12 row_ror:4 row_mask:0xf bank_mask:0xf
    s_nop 1
    v_max_f32_dpp v12, v12, v12 row_ror:2 row_mask:0xf bank_mask:0xf
    s_nop 1
    v_max_f32_dpp v12, v12, v12 row_ror:1 row_mask:0xf bank_mask:0xf
    s_nop 1
    v_readlane_b32 s6, v12, 0
    v_readlane_b32 s7, v12, 16
    s_max_u32 s6, s6, s7
    s_lshr_b32 s6, s6, 23
    s_max_u32 s6, s6, 1
    s_min_u32 s6, s6, 252
    s_sub_u32 s7, 253, s6
    s_lshl_b32 s7, s7, 23
    s_add_u32 s35, s6, 1
    s_lshl_b32 s35, s35, 23
    v_mul_f32 v18, s7, v18
    v_mul_f32 v19, s7, v19
    ds_write_b128 v2, v[16:19]
    s_waitcnt lgkmcnt(0)
    """)
    for st in range(8): k(f"ds_read_b128 v[{36+4*st}:{39+4*st}], v3 offset:{256*(st>>2) + 16*(st&3)}")
    k(f"""
    s_cmp_lg_u32 s54, 7
    s_cbranch_scc1 L_nn2
    v_add_u32 v154, 1, v154
    v_max_u32 v154, 1, v154
    s_mov_b64 exec, 1
    buffer_store_dword v154, v152, s[8:11], s55 offen sc1
    s_mov_b64 exec, -1
    L_nn2:
    """)
    stamp(k, 1)
    for st in range(8):
        s_, t = st >> 2, st & 3
        zr, zi, cr, ci = 36+4*st, 37+4*st, 38+4*st, 39+4*st
        Fb = 80 + 16*s_ + t
        if st == SIDE_AT:
            side_process()
            stamp(k, 4)
        k(f"s_waitcnt lgkmcnt({7-st})")
        for c in range(4): k(f"v_mul_f32 v{68+c}, v{zr}, v{20+c}")
        for c in range(4): k(f"v_mul_f32 v{72+c}, v{zi}, v{20+c}")
        for c in range(4): k(f"v_exp_f32 v{68+c}, v{68+c}")
        for c in range(4): k(f"v_fract_f32 v{72+c}, v{72+c}")
        for c in range(4): k(f"v_cos_f32 v{76+c}, v{72+c}")
        for c in range(4): k(f"v_sin_f32 v{4+c}, v{72+c}")
        k(f"v_mul_f32 v8, v71, v{cr}")
        k(f"v_mul_f32 v9, v71, v{ci}")
        for c in range(3): k(f"v_fma_mixlo_f16 v{Fb+4*c}, v{68+c}, v{76+c}, 0")
        k(f"v_mul_f32 v10, v8, v79")
        k(f"v_mul_f32 v11, v8, v7")
        for c in range(3): k(f"v_fma_mixhi_f16 v{Fb+4*c}, v{68+c}, v{4+c}, 0")
        k(f"v_fma_mixlo_f16 v{Fb+12}, -v9, v7, v10")
        if st == 4:
            for c in range(3): k(f"v_mfma_f32_16x16x32_f16 v[{24+4*c}:{27+4*c}], v[{80+4*c}:{83+4*c}], v[92:95], v[{24+4*c}:{27+4*c}]")
        else: k("s_nop 0")
        k(f"v_fma_mixhi_f16 v{Fb+12}, -v9, v79, -v11")
    k(f"""
    s_mul_i32 s5, s45, 3072
    s_add_u32 s5, s5, s34
    s_add_u32 s5, s5, {PT}
    v_lshl_add_u32 v12, v1, 4, s5
    """)
    for c in range(3): k(f"v_mfma_f32_16x16x32_f16 v[{24+4*c}:{27+4*c}], v[{96+4*c}:{99+4*c}], v[108:111], v[{24+4*c}:{27+4*c}]")
    stamp(k, 2)
    k("s_nop 7")
    for r in range(12): k(f"v_mul_f32 v{24+r}, s35, v{24+r}")
    k(f"""
    ds_write_b128 v12, v[24:27]
    ds_write_b128 v12, v[28:31] offset:1024
    ds_write_b128 v12, v[32:35] offset:2048
    v_lshl_add_u32 v12, v0, 4, s34
    v_lshrrev_b32 v13, 4, v1
    v_and_b32 v14, 15, v1
    v_lshl_add_u32 v14, v14, 4, s34
    s_waitcnt lgkmcnt(0)
    s_barrier
    global_load_dwordx2 v[156:157], v152, s[98:99] sc1
    """)
    stamp(k, 3)
    k(f"""
    s_cmp_eq_u32 s45, 3
    s_cbranch_scc1 L_kg_stage2
    ds_read_b128 v[24:27], v12 offset:{PT}
    ds_read_b128 v[28:31], v12 offset:{PT+3072}
    ds_read_b128 v[32:35], v12 offset:{PT+2*3072}
    ds_read_b128 v[36:39], v12 offset:{PT+3*3072}
    s_cmp_eq_u32 s45, 1
    s_cbranch_scc1 L_kg_t1
    s_cmp_eq_u32 s45, 2
    s_cbranch_scc1 L_kg_t2
    v_lshrrev_b32 v15, 1, v13
    v_lshlrev_b32 v15, 8, v15
    v_and_b32 v16, 1, v13
    v_lshl_add_u32 v15, v16, 3, v15
    v_add_u32 v16, v15, v14
    v_add_u32 v17, 2, v16
    v_add_u32 v18, 4, v16
    v_add_u32 v19, 6, v16
    s_branch L_kg_w
    L_kg_t1:
    v_lshlrev_b32 v15, 8, v13
    v_add_u32 v15, 0x200, v15
    v_add_u32 v16, v15, v14
    v_add_u32 v17, 4, v16
    v_add_u32 v18, 8, v16
    v_add_u32 v19, 12, v16
    v_lshlrev_b32 v15, 9, v13
    v_add_u32 v15, v15, v14
    v_add_u32 v20, 8, v15
    v_add_u32 v21, 0x100, v15
    v_add_u32 v22, 0x108, v15
    v_cmp_gt_u32 vcc, 2, v13
    s_nop 1
    v_cndmask_b32 v16, v15, v16, vcc
    v_cndmask_b32 v17, v20, v17, vcc
    v_cndmask_b32 v18, v21, v18, vcc
    v_cndmask_b32 v19, v22, v19, vcc
    s_branch L_kg_w
    L_kg_t2:
    v_lshlrev_b32 v15, 10, v13
    v_add_u32 v15, 0x800, v15
    v_add_u32 v16, v15, v14
    v_add_u32 v17, 0x100, v16
    v_add_u32 v18, 0x200, v16
    v_add_u32 v19, 0x300, v16
    L_kg_w:
    s_waitcnt lgkmcnt(0)
    v_pk_add_f32 v[24:25], v[24:25], v[28:29]
    v_pk_add_f32 v[26:27], v[26:27], v[30:31]
    v_pk_add_f32 v[32:33], v[32:33], v[36:37]
    v_pk_add_f32 v[34:35], v[34:35], v[38:39]
    v_pk_add_f32 v[24:25], v[24:25], v[32:33]
    v_pk_add_f32 v[26:27], v[26:27], v[34:35]
    v_cvt_pk_bf16_f32 v24, v24, v25
    v_cvt_pk_bf16_f32 v26, v26, v27
    ds_write_b16 v16, v24 offset:{T16}
    ds_write_b16_d16_hi v17, v24 offset:{T16}
    ds_write_b16 v18, v26 offset:{T16}
    ds_write_b16_d16_hi v19, v26 offset:{T16}
    L_kg_stage2:
    v_lshlrev_b32 v12, 4, v0
    v_sub_u32 v13, 4094, v12
    """)
    for e in range(10): k(f"v_subrev_u32 v{40+e}, {2*e}, v13")
    k("v_max_i32 v48, 0, v48")
    k("v_max_i32 v49, 0, v49")
    for e in range(10): k(f"v_cvt_f32_u32 v{40+e}, v{40+e}")
    for e in range(0, 10, 2): k(f"v_cvt_pk_bf16_f32 v{52+e}, v{40+e}, v{41+e}")
    for e in range(0, 10, 2):
        if e < 8: k(f"v_and_b32 v{53+e}, 0xffff0000, v{52+e}")
        k(f"v_lshlrev_b32 v{52+e}, 16, v{52+e}")
    for e in range(9): k(f"v_cvt_u32_f32 v{52+e}, v{52+e}")
    for e in range(9): k(f"v_add_u32 v{52+e}, s34, v{52+e}")
    stamp(k, 5)
    k("s_waitcnt lgkmcnt(0)")
    k("s_barrier")
    stamp(k, 6)
    for e in range(9): k(f"ds_read_u16 v{24+e}, v{52+e} offset:{T16}")
    k(f"""
    s_and_b32 s7, s3, 4
    v_mov_b32 v158, {FLG+64}
    v_add_u32 v153, s7, v158
    v_mov_b32 v159, 1
    s_mov_b32 s6, 0
    s_waitcnt vmcnt(0)
    s_mov_b64 exec, 1
    ds_add_rtn_u32 v159, v153, v159 offset:4
    s_waitcnt lgkmcnt(0)
    v_readfirstlane_b32 s7, v159
    s_mov_b64 exec, -1
    s_cmp_lg_u32 s7, 3
    s_cbranch_scc1 L_kg_np
    s_branch L_nc
    L_nq:
    global_load_dwordx2 v[156:157], v152, s[98:99] sc1
    s_add_u32 s6, s6, 1
    s_waitcnt vmcnt(0)
    L_nc:
    v_readfirstlane_b32 s7, v157
    s_cmp_ge_u32 s6, {SPIN}
    s_cbranch_scc1 L_ne
    s_cmp_eq_u32 s7, 1
    s_cbranch_scc0 L_nq
    L_ne:
    ds_write_b32 v158, v156
    s_lshl_b32 s6, s2, 2
    s_add_u32 s6, s6, {PF}
    s_cmp_lt_u32 s3, 4
    s_cselect_b32 s7, {PW-PF}, 0
    s_add_u32 s6, s6, s7
    v_lshlrev_b32 v159, 10, v1
    s_mov_b64 exec, 0xff
    buffer_store_dword v156, v159, s[8:11], s6 offen sc1
    s_mov_b64 exec, -1
    L_kg_np:
    """)
    k(f"""
    s_mul_i32 s5, s44, {KGP}
    s_add_u32 s5, s5, {KG}
    v_mov_b32 v48, 0
    v_mov_b32 v49, 0
    v_mov_b32 v50, 0
    v_mov_b32 v51, 0
    v_add_u32 v13, {KGH}, v12
    v_cmp_ne_u32 vcc, 0xff, v0
    s_waitcnt lgkmcnt(0)
    v_cndmask_b32 v32, 0, v32, vcc
    v_lshl_or_b32 v40, v25, 16, v24
    v_lshl_or_b32 v41, v27, 16, v26
    v_lshl_or_b32 v42, v29, 16, v28
    v_lshl_or_b32 v43, v31, 16, v30
    v_lshl_or_b32 v44, v26, 16, v25
    v_lshl_or_b32 v45, v28, 16, v27
    v_lshl_or_b32 v46, v30, 16, v29
    v_lshl_or_b32 v47, v32, 16, v31
    buffer_store_dwordx4 v[40:43], v12, s[8:11], s5 offen
    buffer_store_dwordx4 v[44:47], v13, s[8:11], s5 offen
    v_cmp_gt_u32 vcc, 2, v0
    s_and_saveexec_b64 s[6:7], vcc
    s_cbranch_execz L_kg_z
    v_add_u32 v12, 4096, v12
    v_add_u32 v13, 4096, v13
    buffer_store_dwordx4 v[48:51], v12, s[8:11], s5 offen
    buffer_store_dwordx4 v[48:51], v13, s[8:11], s5 offen
    L_kg_z:
    s_mov_b64 exec, -1
    """)
    if asmlib.STAMPS:
        for i in range(7, 10): stamp(k, i)
        stamp_flush(k, 0, 10, 3)
        k("s_mov_b64 exec, -1")
    k("s_waitcnt vmcnt(0) lgkmcnt(0)")
    k("s_barrier")
    for r, v in sets1.items(): k(f"s_mov_b32 s{r}, {v}")
    k.label("L_layer")
    stamp(k, 0)
    k(f"""
    v_mbcnt_lo_u32_b32 v1, -1, 0
    v_mbcnt_hi_u32_b32 v1, -1, v1
    s_lshl_b32 s4, s3, 6
    v_add_u32 v0, s4, v1
    v_lshlrev_b32 v3, 4, v1
    s_lshl_b32 s4, s2, 1
    s_lshr_b32 s5, s3, 2
    s_and_b32 s6, s3, 3
    s_add_u32 s7, s4, s5
    s_mul_i32 s28, s7, {KGP}
    s_add_u32 s28, s28, {KG}
    s_bitcmp1_b32 s6, 0
    s_cselect_b32 s13, 0, {KGH}
    s_add_u32 s28, s28, s13
    s_cmp_lt_u32 s6, 2
    s_cselect_b32 s13, 4, 0
    s_add_u32 s28, s28, s13
    s_mul_i32 s13, s5, {KCH}
    s_mul_i32 s14, s6, {KCP}
    s_add_u32 s13, s13, s14
    s_add_u32 s13, s13, {KC0}
    s_mov_b32 m0, s13
    s_lshl_b32 s12, s7, 1
    """)
    for c in range(4): k(f"buffer_load_dwordx4 v3, s[8:11], s28 offen offset:{1024*c} lds")
    k(f"""
    v_mov_b32 v9, s12
    global_load_ushort v52, v9, s[16:17]
    v_lshlrev_b32 v4, 3, v0
    v_lshlrev_b32 v53, 5, v0
    v_lshrrev_b32 v54, 3, v0
    v_and_b32 v7, 7, v0
    v_lshlrev_b32 v54, 15, v54
    v_lshl_add_u32 v54, v7, 3, v54
    v_and_b32 v7, 15, v1
    v_lshrrev_b32 v8, 4, v1
    v_lshlrev_b32 v6, 5, v7
    v_lshl_add_u32 v6, v8, 3, v6
    v_lshrrev_b32 v5, 1, v7
    v_lshlrev_b32 v5, 15, v5
    v_and_b32 v9, 1, v7
    v_lshl_add_u32 v5, v9, 5, v5
    v_lshl_add_u32 v5, v8, 3, v5
    s_lshl_b32 s30, s4, 6
    s_add_u32 s30, s30, {XA}
    s_lshl_b32 s12, s7, 6
    s_lshl_b32 s14, s6, 19
    s_add_u32 s12, s12, s14
    s_add_u32 s26, s12, {XB}
    s_add_u32 s27, s26, 0x40000
    s_add_u32 s31, s12, {XA}
    s_add_u32 s32, s31, 0x40000
    v_mov_b32 v12, 0
    v_mov_b32 v13, 0
    v_mov_b32 v14, 0
    v_mov_b32 v15, 0
    s_add_u32 s13, s13, 4096
    v_add_u32 v9, s13, v3
    s_mul_i32 s13, s5, {UP}
    v_add_u32 v10, s13, v3
    v_cmp_gt_u32 vcc, 2, v1
    s_and_saveexec_b64 s[28:29], vcc
    ds_write_b128 v9, v[12:15]
    s_mov_b64 exec, s[28:29]
    v_cmp_gt_u32 vcc, 30, v1
    s_and_saveexec_b64 s[28:29], vcc
    ds_write_b128 v10, v[12:15]
    s_mov_b64 exec, s[28:29]
    v_and_b32 v9, 3, v7
    v_mul_u32_u24 v9, {KCP}, v9
    v_lshrrev_b32 v10, 2, v7
    v_lshlrev_b32 v10, 3, v10
    v_sub_u32 v9, v9, v10
    v_lshl_add_u32 v9, v8, 4, v9
    s_mul_i32 s13, s5, {KCH}
    s_add_u32 s13, s13, {KC0+24}
    s_lshl_b32 s14, s6, 7
    s_sub_u32 s13, s13, s14
    v_add_u32 v10, s13, v9
    v_lshlrev_b32 v11, 5, v7
    v_lshl_add_u32 v11, v8, 4, v11
    s_mul_i32 s13, s5, {UP}
    s_add_u32 s13, s13, 384
    s_sub_u32 s13, s13, s14
    v_add_u32 v11, s13, v11
    s_mov_b32 s24, {f32hex(1.0/512)}
    s_mov_b32 s25, {f32hex(1e-5)}
    """)
    for r in range(32): k(f"v_mov_b32 v{16+r}, 0")
    k(f"""
    s_and_b32 s52, s2, 7
    s_lshr_b32 s53, s2, 3
    s_mul_i32 s55, s52, 30
    s_add_u32 s55, s55, s53
    s_sub_u32 s55, s55, 2
    s_cmp_ge_u32 s52, 6
    s_cselect_b32 s53, 1, 0
    s_add_u32 s55, s55, s53
    s_cmp_eq_u32 s52, 7
    s_cselect_b32 s53, 1, 0
    s_add_u32 s55, s55, s53
    s_cmp_ge_u32 s55, 88
    s_cselect_b32 s54, 88, 0
    s_cselect_b32 s53, 4, 0
    s_sub_u32 s12, s55, s54
    s_lshr_b32 s52, s12, 2
    s_and_b32 s12, s12, 3
    s_add_u32 s53, s53, s12
    s_sub_u32 s12, s55, 176
    s_mul_i32 s13, s12, 171
    s_lshr_b32 s13, s13, 9
    s_mul_i32 s54, s13, 3
    s_sub_u32 s54, s12, s54
    s_add_u32 s54, s54, 8
    s_cmp_ge_u32 s55, 176
    s_cselect_b32 s52, s13, s52
    s_cselect_b32 s53, s54, s53
    s_lshl_b32 s54, s53, 3
    s_add_u32 s54, s54, s3
    s_lshl_b32 s55, s54, 15
    s_add_u32 s55, s55, {WGU}
    s_mov_b32 s20, s18
    s_mov_b32 s21, s19
    s_mov_b32 s23, 0x00020000
    s_cmp_lt_u32 s2, {NPROD}
    s_cselect_b32 s22, 0, s10
    s_cselect_b32 s55, 0, s55
    v_mov_b32 v9, {FLG}
    ds_write_b128 v9, v[12:15]
    ds_write_b128 v9, v[12:15] offset:16
    ds_write_b128 v9, v[12:15] offset:32
    ds_write_b128 v9, v[12:15] offset:48
    """)
    k(f"""
    s_cmp_lg_u32 s3, 0
    s_cbranch_scc1 L_in_d
    s_mov_b32 s13, 0
    v_mov_b32 v56, {FLG+64}
    ds_read_b32 v60, v56
    s_and_b32 s15, s2, 7
    s_lshl_b32 s15, s15, 10
    s_cmp_eq_u32 s93, 1
    s_cselect_b32 s14, 0, {PF-LF}
    s_add_u32 s15, s15, s14
    s_add_u32 s15, s15, {LF}
    s_waitcnt lgkmcnt(0)
    L_in_b:
    buffer_load_dwordx4 v[56:59], v3, s[8:11], s15 offen sc1
    s_add_u32 s13, s13, 1
    s_waitcnt vmcnt(0)
    v_xor_b32 v56, v56, v60
    v_xor_b32 v57, v57, v60
    v_xor_b32 v58, v58, v60
    v_xor_b32 v59, v59, v60
    v_or3_b32 v56, v56, v57, v58
    v_or_b32 v56, v56, v59
    v_cmp_ne_u32 vcc, 0, v56
    s_cmp_eq_u64 vcc, 0
    s_cbranch_scc1 L_in_d
    s_cmp_ge_u32 s13, {SPIN}
    s_cbranch_scc1 L_in_d
    s_sleep {CFS}
    s_branch L_in_b
    L_in_d:
    s_barrier
    """)
    stamp(k, 1)
    k(f"""
    buffer_load_dwordx4 v[64:67], v53, s[8:11], {ST} offen sc1
    buffer_load_dwordx4 v[68:71], v53, s[8:11], {ST} offen offset:16 sc1
    buffer_load_dwordx2 v[72:73], v54, s[8:11], s30 offen sc1
    buffer_load_dwordx2 v[74:75], v54, s[8:11], s30 offen offset:64 sc1
    buffer_load_dwordx2 v[48:49], v5, s[8:11], s31 offen sc1
    buffer_load_dwordx2 v[50:51], v5, s[8:11], s32 offen sc1
    """)
    k("s_waitcnt vmcnt(4)")
    for r in range(4):
        k(f"v_mul_f32 v{64+2*r}, s24, v{64+2*r}")
        k(f"v_mul_f32 v{65+2*r}, s24, v{65+2*r}")
    for r in range(4): k(f"v_fma_f32 v{65+2*r}, -v{64+2*r}, v{64+2*r}, v{65+2*r}")
    for r in range(4): k(f"v_max_f32 v{65+2*r}, 0, v{65+2*r}")
    k("v_cvt_pk_bf16_f32 v76, v64, v66")
    k("v_cvt_pk_bf16_f32 v77, v68, v70")
    k("v_cvt_pk_bf16_f32 v78, v65, v67")
    k("v_cvt_pk_bf16_f32 v79, v69, v71")
    unpack(k, 84, 85, 78); unpack(k, 86, 87, 79); unpack(k, 80, 81, 76); unpack(k, 82, 83, 77)
    for r in range(4): k(f"v_add_f32 v{84+r}, s25, v{84+r}")
    k("v_cvt_pk_bf16_f32 v78, v84, v85")
    k("v_cvt_pk_bf16_f32 v79, v86, v87")
    unpack(k, 84, 85, 78); unpack(k, 86, 87, 79)
    for r in range(4): k(f"v_sqrt_f32 v{84+r}, v{84+r}")
    k("s_waitcnt vmcnt(2)")
    for ch in range(2): unpack(k, 88+4*ch, 89+4*ch, 72+2*ch); unpack(k, 90+4*ch, 91+4*ch, 73+2*ch)
    k("v_cvt_pk_bf16_f32 v78, v84, v85")
    k("v_cvt_pk_bf16_f32 v79, v86, v87")
    for ch in range(2):
        for j in (0, 2): k(f"v_pk_add_f32 {P(88+4*ch+j)}, {P(88+4*ch+j)}, {P(80+j)} neg_lo:[0,1] neg_hi:[0,1]")
    unpack(k, 84, 85, 78); unpack(k, 86, 87, 79)
    for ch in range(2):
        k(f"v_cvt_pk_bf16_f32 v{72+2*ch}, v{88+4*ch}, v{89+4*ch}")
        k(f"v_cvt_pk_bf16_f32 v{73+2*ch}, v{90+4*ch}, v{91+4*ch}")
    for r in range(4): k(f"v_rcp_f32 v{84+r}, v{84+r}")
    for ch in range(2): unpack(k, 88+4*ch, 89+4*ch, 72+2*ch); unpack(k, 90+4*ch, 91+4*ch, 73+2*ch)
    for ch in range(2):
        for j in (0, 2): k(f"v_pk_mul_f32 {P(88+4*ch+j)}, {P(88+4*ch+j)}, {P(84+j)}")
    for ch in range(2):
        k(f"v_cvt_pk_bf16_f32 v{72+2*ch}, v{88+4*ch}, v{89+4*ch}")
        k(f"v_cvt_pk_bf16_f32 v{73+2*ch}, v{90+4*ch}, v{91+4*ch}")
        k(f"ds_write_b64 v4, v[{72+2*ch}:{73+2*ch}] offset:{480 + ch*UP}")
    k(f"""
    s_lshl_b32 s13, s93, 3
    s_add_u32 s13, s13, s3
    s_cmp_lg_u32 s13, 1
    s_cbranch_scc1 L_pw_d
    s_mov_b32 s13, 0
    v_mov_b32 v56, {FLG+64}
    ds_read_b32 v60, v56
    s_and_b32 s15, s2, 7
    s_lshl_b32 s15, s15, 10
    s_add_u32 s15, s15, {PW}
    s_waitcnt lgkmcnt(0)
    L_pw_b:
    buffer_load_dwordx4 v[56:59], v3, s[8:11], s15 offen sc1
    s_add_u32 s13, s13, 1
    s_waitcnt vmcnt(0)
    v_xor_b32 v56, v56, v60
    v_xor_b32 v57, v57, v60
    v_xor_b32 v58, v58, v60
    v_xor_b32 v59, v59, v60
    v_or3_b32 v56, v56, v57, v58
    v_or_b32 v56, v56, v59
    v_cmp_ne_u32 vcc, 0, v56
    s_cmp_eq_u64 vcc, 0
    s_cbranch_scc1 L_pw_d
    s_cmp_ge_u32 s13, {SPIN}
    s_cbranch_scc1 L_pw_d
    s_sleep {CFS}
    s_branch L_pw_b
    L_pw_d:
    """)
    k("s_waitcnt vmcnt(0) lgkmcnt(0)")
    k("s_barrier")
    stamp(k, 7)
    lg = Q(k, 'lgkmcnt', 15)
    pool = [56+4*i for i in range(27)]
    reg = {}
    def ld(i0p, kind, s):
        r = pool.pop(0); reg[(i0p, kind, s)] = r
        if kind == 'A':
            off = 64*(63 - i0p - 8*s)
            lg.issue(f"ds_read_b64 v[{r}:{r+1}], v10 offset:{off}", (i0p, kind, s))
            lg.issue(f"ds_read_b64 v[{r+2}:{r+3}], v10 offset:{off+8}", (i0p, kind, s))
        else:
            lg.issue(f"ds_read_b128 v[{r}:{r+3}], v11 offset:{512*s + 64*(1-i0p)}", (i0p, kind, s))
    order = [(i, kd, s) for i in range(2) for s in range(8) for kd in 'AB']
    mf = []
    for i in range(2):
        for m in range(8):
            for s in range(8):
                for w in range(8):
                    if s + w <= 7 and max(s, w) == m: mf.append((i, s, w))
    last_use = {}
    for n, (i, s, w) in enumerate(mf):
        last_use[(i, 'A', s)] = n; last_use[(i, 'B', w)] = n
    li = 0; npre = 0
    for _ in range(8): ld(*order[li]); li += 1
    k(f"""
    v_mov_b32 v164, -1
    v_mov_b32 v165, -1
    v_mov_b32 v166, -1
    v_mov_b32 v167, -1
    s_mov_b32 s48, s18
    s_mov_b32 s49, s19
    s_mov_b32 s51, 0x00020000
    s_cmp_eq_u32 s93, 1
    s_cselect_b32 s50, 0, s10
    s_add_u32 s15, s26, {4*MB}
    buffer_store_dwordx2 v[164:165], v5, s[48:51], s15 offen sc1
    s_add_u32 s15, s27, {4*MB}
    buffer_store_dwordx2 v[164:165], v5, s[48:51], s15 offen sc1
    s_nop 1
    """)
    freed = [(12, 164)]
    for n, (i, s, w) in enumerate(mf):
        while (i, 'A', s) not in reg or (i, 'B', w) not in reg:
            ld(*order[li]); li += 1
        lg.need((i, 'A', s), (i, 'B', w))
        c = s + w; a = reg[(i, 'A', s)]; b = reg[(i, 'B', w)]
        k(f"v_mfma_f32_16x16x32_bf16 v[{16+4*c}:{19+4*c}], v[{a}:{a+3}], v[{b}:{b+3}], v[{16+4*c}:{19+4*c}]")
        for key in [(i, 'A', s), (i, 'B', w)]:
            if last_use[key] == n: freed.append((n+3, reg[key]))
        while freed and freed[0][0] <= n: pool.append(freed.pop(0)[1])
        if n % 3 == 1 and npre < NWP: wpre(npre); npre += 1
        if li < len(order) and pool and (lg.n - lg.done) <= 12:
            ld(*order[li]); li += 1
    assert li == len(order) and npre == NWP
    k(f"""
    s_lshl_b32 s13, s5, 15
    s_lshl_b32 s14, s6, 10
    s_add_u32 s13, s13, s14
    s_add_u32 s13, s13, {RED}
    v_add_u32 v9, s13, v3
    s_lshl_b32 s13, s5, 15
    s_lshl_b32 s14, s6, 13
    s_add_u32 s13, s13, s14
    s_add_u32 s13, s13, {RED}
    v_add_u32 v12, s13, v3
    s_mul_i32 s13, s5, {UP}
    s_lshl_b32 s14, s6, 10
    s_add_u32 s13, s13, s14
    s_add_u32 s13, s13, 480
    v_add_u32 v13, s13, v6
    ds_read_b64 v[88:89], v13
    ds_read_b64 v[90:91], v13 offset:512
    """)
    for p in range(4):
        if p < 3:
            k(f"s_cmp_lg_u32 s6, {p}")
            k(f"s_cbranch_scc1 L_{N}_rv{p+1}")
        for c in range(8):
            if c in (2*p, 2*p+1): continue
            k(f"ds_write_b128 v9, v[{16+4*c}:{19+4*c}] offset:{4096*c}")
        for r in range(8): k(f"v_mov_b32 v{56+r}, v{16+8*p+r}")
        others = [q for q in range(4) if q != p]
        for j, q in enumerate(others): k(f"v_add_u32 v{92+j}, {1024*q}, v12")
        if p < 3:
            k(f"s_branch L_{N}_ep")
            k.label(f"L_{N}_rv{p+1}")
    k.label(f"L_{N}_ep")
    k("s_waitcnt lgkmcnt(6)")
    k("v_lshlrev_b32 v52, 16, v52")
    k("v_mov_b32 v53, v52")
    for j in range(4): unpack(k, 96+2*j, 97+2*j, 88+j)
    for j in range(4): k(f"v_pk_mul_f32 {P(96+2*j)}, {P(96+2*j)}, v[52:53]")
    for j in range(4): k(f"v_cvt_pk_bf16_f32 v{88+j}, v{96+2*j}, v{97+2*j}")
    k("s_waitcnt lgkmcnt(0)")
    k("s_barrier")
    for t in range(2):
        for j in range(3): k(f"ds_read_b128 v[{64+12*t+4*j}:{67+12*t+4*j}], v{92+j} offset:{4096*t}")
    for j in range(4): unpack(k, 96+2*j, 97+2*j, 88+j)
    for j in range(4): unpack(k, 104+2*j, 105+2*j, 48+j)
    for t in range(2):
        k(f"s_waitcnt lgkmcnt({3-3*t})")
        for j in (0, 2):
            k(f"v_pk_add_f32 {P(56+4*t+j)}, {P(56+4*t+j)}, {P(64+12*t+j)}")
            k(f"v_pk_add_f32 {P(68+12*t+j)}, {P(68+12*t+j)}, {P(72+12*t+j)}")
        for j in (0, 2): k(f"v_pk_add_f32 {P(56+4*t+j)}, {P(56+4*t+j)}, {P(68+12*t+j)}")
    for j in range(4): k(f"v_cvt_pk_bf16_f32 v{64+j}, v{56+2*j}, v{57+2*j}")
    for j in range(4): unpack(k, 56+2*j, 57+2*j, 64+j)
    for j in range(4): k(f"v_pk_add_f32 {P(56+2*j)}, {P(56+2*j)}, {P(96+2*j)}")
    for j in range(4): k(f"v_cvt_pk_bf16_f32 v{64+j}, v{56+2*j}, v{57+2*j}")
    for j in range(4): unpack(k, 56+2*j, 57+2*j, 64+j)
    for j in range(4): k(f"v_pk_add_f32 {P(56+2*j)}, {P(56+2*j)}, {P(104+2*j)}")
    for j in range(4): k(f"v_cvt_pk_bf16_f32 v{64+j}, v{56+2*j}, v{57+2*j}")
    for j in range(4): k(f"v_min_u32 v{64+j}, -2, v{64+j}")
    k("buffer_store_dwordx2 v[64:65], v5, s[8:11], s26 offen sc1")
    k("buffer_store_dwordx2 v[66:67], v5, s[8:11], s27 offen sc1")
    vm = Q(k, 'vmcnt', 63); lg = Q(k, 'lgkmcnt', 15)
    def unit(p):
        for i in range(3):
            k(f"s_add_u32 m0, s25, {p*24576 + i*1024}")
            k(f"s_add_u32 s14, s12, {i*32768 + p*8192}")
            vm.issue(f"buffer_load_dwordx4 v3, {'s[8:11]' if i == 0 else 's[48:51]'}, s14 offen sc1 lds", f"U{p}")
    def wl(ks):
        r = wreg(ks)
        k(f"s_add_u32 s14, s55, {4096*(ks//4)}")
        vm.issue(f"buffer_load_dwordx4 v[{r}:{r+3}], v3, s[8:11], s14 offen offset:{1024*(ks&3)} sc1", f"W{ks}")
    for ks in range(NWP): vm.tags[f"W{ks}"] = 0
    def csdot(ks):
        vm.need(f"W{ks}")
        for e in range(4): k(f"v_dot2_f32_bf16 v{166+(e&1)}, v{wreg(ks)+e}, v13, v{166+(e&1)}")
    def signal(p):
        V = CSV
        vm.need(f"U{p}")
        k.label(f"L_vf{p}")
        for i in range(3): k(f"ds_read_b128 v[{V+4*i}:{V+4*i+3}], v5 offset:{(p&1)*24576 + 1024*i}")
        k(f"v_mov_b32 v6, {p+1}")
        k("s_waitcnt lgkmcnt(0)")
        lg.reset()
        for i in range(0, 12, 3): k(f"v_max3_u32 v{V+i}, v{V+i}, v{V+i+1}, v{V+i+2}")
        k(f"v_max3_u32 v{V}, v{V}, v{V+3}, v{V+6}")
        k(f"v_max_u32 v{V}, v{V}, v{V+9}")
        k(f"v_cmp_eq_u32 vcc, -1, v{V}")
        k("s_cmp_eq_u64 vcc, 0")
        k(f"s_cbranch_scc1 L_vo{p}")
        k("s_add_u32 s13, s13, 1")
        k(f"s_cmp_ge_u32 s13, {RETRY}")
        k(f"s_cbranch_scc1 L_vo{p}")
        k(f"s_sleep {RSL}")
        for i in range(3):
            k(f"s_add_u32 m0, s25, {p*24576 + i*1024}")
            k(f"s_add_u32 s14, s12, {i*32768 + p*8192}")
            k(f"buffer_load_dwordx4 v3, {'s[8:11]' if i == 0 else 's[48:51]'}, s14 offen sc1 lds")
        k("s_waitcnt vmcnt(0)")
        k(f"s_branch L_vf{p}")
        k.label(f"L_vo{p}")
        lg.issue("ds_write_b32 v2, v6", "sig")
        if p == 1: k("v_add_u32 v5, 49152, v5")
    def dsetup():
        k(f"""
    s_and_b32 s30, s2, 7
    s_lshr_b32 s31, s2, 3
    s_lshl_b32 s30, s30, 2
    s_lshr_b32 s12, s31, 3
    s_add_u32 s30, s30, s12
    s_and_b32 s31, s31, 7
    s_bfe_u32 s12, s3, 0x10001
    s_lshl_b32 s32, s31, 1
    s_add_u32 s32, s32, s12
    s_and_b32 s12, s3, 1
    s_lshl_b32 s33, s30, 1
    s_add_u32 s33, s33, s12
    s_xor_b32 s12, s32, 1
    s_mul_i32 s34, s32, {86*1024}
    s_mul_i32 s35, s12, {86*1024}
    s_xor_b32 s12, s33, 1
    s_mul_i32 s36, s33, {86*1024}
    s_mul_i32 s37, s12, {86*1024}
    s_lshl_b32 s12, s3, 10
    s_add_u32 s13, s12, {WD}
    s_add_u32 s34, s34, s13
    s_add_u32 s35, s35, s13
    s_add_u32 s13, s12, {HB}
    s_add_u32 s36, s36, s13
    s_add_u32 s37, s37, s13
    s_cmp_ge_u32 s3, 6
    s_cselect_b32 s22, 0, s10
        """)
    def wdl(n, i, vm=None):
        r = WD0 + 8*n + 4*i
        k(f"s_add_u32 s14, s{34+i}, {8192*n}")
        srd = "s[20:23]" if n == 10 else "s[8:11]"
        ins = f"buffer_load_dwordx4 v[{r}:{r+3}], v3, {srd}, s14 offen sc1"
        if vm: vm.issue(ins, "WD")
        else: k(ins)
    wdq = [(n, i) for n in range(11) for i in range(2)]
    k("s_waitcnt vmcnt(0)")
    k("s_barrier")
    stamp(k, 8)
    k(f"""
    v_mov_b32 v4, {FLG}
    v_lshrrev_b32 v7, 5, v1
    s_cmp_lt_u32 s2, {NPROD}
    s_cbranch_scc1 L_{N}_prod
    """)
    dsetup()
    k(f"""
    s_mov_b32 s4, s52
    s_mov_b32 s5, s53
    s_mov_b32 s6, s54
    s_mul_i32 s12, s4, 98304
    s_lshl_b32 s13, s3, 10
    s_add_u32 s12, s12, s13
    s_add_u32 s12, s12, {XB}
    s_mul_i32 s25, s3, 3072
    v_add_u32 v5, s25, v3
    s_cmp_eq_u32 s4, 21
    s_cselect_b32 s50, 0, s10
    """)
    k("s_mov_b32 s13, 0")
    if EARLYU == 0: unit(0)
    for ks in range(NWP, NWP2): wl(ks)
    k("v_mov_b32 v13, 0x3f803f80")
    k("v_mov_b32 v166, 0")
    k("v_mov_b32 v167, 0")
    k(f"""
    v_and_b32 v6, 15, v1
    v_lshrrev_b32 v12, 2, v6
    v_lshl_add_u32 v12, v7, 3, v12
    v_lshlrev_b32 v12, 6, v12
    v_and_b32 v8, 3, v6
    v_lshl_add_u32 v12, v8, 3, v12
    v_and_b32 v8, 16, v1
    v_lshl_add_u32 v12, v8, 1, v12
    v_add_u32 v14, 49152, v12
    s_lshl_b32 s15, s3, 2
    v_add_u32 v2, s15, v4
    s_mov_b32 s28, 0
    s_mov_b32 s29, 0
    """)
    for r in range(48): k(f"v_mov_b32 v{ACC+r}, 0")
    for ks in range(NWP2):
        if ks == EARLYU and EARLYU > 0: unit(0)
        if ks < NWP: csdot(ks)
    signal(0)
    stamp(k, 2)
    unit(1); unit(2); unit(3)
    def poll(half, need, tag):
        c = 28 + half
        k(f"""
        s_cmp_ge_u32 s{c}, {need}
        s_cbranch_scc1 L_{N}_pd{tag}
        L_{N}_pl{tag}:
        ds_read_b128 v[8:11], v4 offset:{16*half}
        s_waitcnt lgkmcnt(0)
        v_min_u32 v8, v8, v9
        v_min3_u32 v8, v8, v10, v11
        s_nop 0
        v_readfirstlane_b32 s{c}, v8
        s_cmp_ge_u32 s{c}, {need}
        s_cbranch_scc0 L_{N}_pl{tag}
        L_{N}_pd{tag}:
        """)
    def xr(ks, lb, h):
        b = 12 if ks < 16 else 14
        r = XF+12*(ks&3)+4*lb+2*h
        lg.issue(f"ds_read_b64_tr_b16 v[{r}:{r+1}], v{b} offset:{3072*(ks%16)+1024*lb+256*h}", f"x{ks}_{lb}")
    poll(0, 1, "a")
    for st in range(2):
        for lb in range(3): xr(st, lb, 0); xr(st, lb, 1)
    FCK = int(os.environ.get('FCK', '27'))
    for ks in range(32):
        if ks+2 < 32 and (ks+2) % 4 == 0: poll(((ks+2)//4) & 1, (ks+2)//8 + 1, f"m{ks}")
        vm.need(f"W{ks}")
        if ks == 0: stamp(k, 4)
        if ks in (2, 5, 8): signal({2:1, 5:2, 8:3}[ks])
        w = wreg(ks)
        for lb in range(3):
            lg.need(f"x{ks}_{lb}")
            a = ACC+16*lb; x = XF+12*(ks&3)+4*lb
            k(f"v_mfma_f32_32x32x16_bf16 v[{a}:{a+15}], v[{w}:{w+3}], v[{x}:{x+3}], v[{a}:{a+15}]")
            if ks+2 < 32: xr(ks+2, lb, 0); xr(ks+2, lb, 1)
        if ks >= NWP: csdot(ks)
        for j in late_w.get(ks, []): wl(j)
        j = ks - WDLAG
        if 2 <= j < NDI: wdl(j >> 1, j & 1, vm=vm)
        if ks == FCK:
            k(f"""
            v_and_b32 v15, 31, v1
            v_lshlrev_b32 v15, 3, v15
            s_mul_i32 s15, s4, 768
            s_add_u32 s15, s15, {FCG}
            s_cmp_eq_u32 s4, 21
            s_cselect_b32 s47, 0, 256
            s_add_u32 s48, s15, s47
            s_add_u32 s49, s48, s47
            s_mov_b32 s47, s15
            """)
            for lb in range(3): vm.issue(f"buffer_load_dwordx2 v[{FG+2*lb}:{FG+2*lb+1}], v15, s[8:11], s{47+lb} offen sc1", "FG")
    stamp(k, 3)
    k(f"""
    s_cmp_ge_u32 s6, 86
    s_cbranch_scc1 L_{N}_drest
    s_mov_b32 s26, {f32hex(-LOG2E)}
    s_mov_b32 s27, 0
    v_add_f32 v166, v166, v167
    s_lshl_b32 s12, s3, 7
    s_add_u32 s12, s12, {FLG+256}
    v_mov_b32 v167, v166
    v_and_b32 v8, 31, v1
    v_lshl_add_u32 v8, v8, 2, s12
    v_permlane32_swap_b32 v166, v167
    v_lshl_add_u32 v9, v7, 4, s12
    v_add_f32 v166, v166, v167
    ds_write_b32 v8, v166
    ds_read_b128 v[{CSV}:{CSV+3}], v9
    ds_read_b128 v[{CSV+4}:{CSV+7}], v9 offset:32
    ds_read_b128 v[{CSV+8}:{CSV+11}], v9 offset:64
    ds_read_b128 v[{CSV+12}:{CSV+15}], v9 offset:96
    """)
    vm.need("FG")
    k(f"""
    s_branch L_{N}_gc
    L_{N}_gp:
    s_sleep 4
    """)
    for lb in range(3): k(f"buffer_load_dwordx2 v[{FG+2*lb}:{FG+2*lb+1}], v15, s[8:11], s{47+lb} offen sc1")
    k(f"""
    s_add_u32 s27, s27, 1
    s_waitcnt vmcnt(0)
    L_{N}_gc:
    v_and_b32 v8, v{FG+1}, v{FG+3}
    v_and_b32 v8, v8, v{FG+5}
    v_cmp_ne_u32 vcc, 1, v8
    s_cmp_eq_u64 vcc, 0
    s_cbranch_scc1 L_{N}_gd
    s_cmp_lt_u32 s27, {SPIN}
    s_cbranch_scc1 L_{N}_gp
    L_{N}_gd:
    """)
    for lb in range(3):
        c = FCR+6*lb
        k(f"v_and_b32 v{c+4}, 0xffff0000, v{FG+2*lb}")
        k(f"v_lshlrev_b32 v{c}, 16, v{FG+2*lb}")
    for lb in range(3): k(f"v_rcp_f32 v{FCR+6*lb+2}, v{FCR+6*lb+4}")
    for lb in range(3):
        c = FCR+6*lb
        k(f"v_sub_f32 v{c+1}, 0, v{c}")
        k(f"v_sub_f32 v{c}, 0, v{c}")
        k(f"v_mov_b32 v{c+5}, v{c+4}")
        k(f"v_mul_f32 v{c+3}, s26, v{c+2}")
        k(f"v_mul_f32 v{c+2}, s26, v{c+2}")
    k(f"""
    s_mul_i32 s15, s4, {3*86*1024}
    s_lshl_b32 s12, s6, 10
    s_add_u32 s15, s15, s12
    s_add_u32 s15, s15, {HB}
    s_waitcnt lgkmcnt(0)
    """)
    for lb in range(3):
        g = ACC+16*lb; u = g+8; c = FCR+6*lb; o = XF+4*lb
        for j in range(0, 8, 2): k(f"v_pk_fma_f32 {P(g+j)}, {P(CSV+j)}, {P(c)}, {P(g+j)}")
        for j in range(0, 8, 2): k(f"v_pk_mul_f32 {P(g+j)}, {P(g+j)}, {P(c+2)}")
        for j in range(8):
            k(f"v_exp_f32 v{g+j}, v{g+j}")
        for j in range(0, 8, 2): k(f"v_pk_fma_f32 {P(u+j)}, {P(CSV+8+j)}, {P(c)}, {P(u+j)}")
        for j in range(0, 8, 2): k(f"v_pk_fma_f32 {P(g+j)}, {P(g+j)}, {P(c+4)}, {P(c+4)}")
        for j in range(8):
            k(f"v_rcp_f32 v{g+j}, v{g+j}")
        k("s_nop 0")
        for j in range(0, 8, 2): k(f"v_pk_mul_f32 {P(u+j)}, {P(u+j)}, {P(g+j)}")
        for j in range(4): k(f"v_cvt_pk_bf16_f32 v{o+j}, v{u+2*j}, v{u+2*j+1}")
        k(f"buffer_store_dwordx4 v[{o}:{o+3}], v3, s[8:11], s15 offen sc1")
        if lb == 0:
            k(f"s_cmp_eq_u32 s4, 21")
            k(f"s_cbranch_scc1 L_{N}_pub")
        k(f"s_add_u32 s15, s15, {86*1024}")
    k(f"""
    L_{N}_pub:
    s_lshl_b32 s15, s4, 9
    s_lshl_b32 s12, s3, 6
    s_add_u32 s15, s15, s12
    s_lshl_b32 s12, s5, 2
    s_add_u32 s15, s15, s12
    s_add_u32 s15, s15, {HF}
    v_mov_b32 v8, 0
    v_mov_b32 v9, 1
    s_waitcnt vmcnt(0)
    s_mov_b64 exec, 1
    buffer_store_dword v9, v8, s[8:11], s15 offen sc1
    s_mov_b64 exec, -1
    """)
    stamp(k, 5)
    k(f"s_branch L_{N}_drest")
    k.label(f"L_{N}_dall")
    dsetup()
    for (n, i) in wdq[2:NDI]: wdl(n, i)
    k.label(f"L_{N}_drest")
    k("s_waitcnt lgkmcnt(0)")
    k("s_barrier")
    for (n, i) in wdq[:2] + wdq[NDI:]: wdl(n, i)
    for r in range(64): k(f"v_mov_b32 v{A2+r}, 0")
    k(f"""
    s_lshl_b32 s12, s30, 1
    s_mul_i32 s13, s12, 171
    s_lshr_b32 s13, s13, 9
    s_add_u32 s12, s12, 1
    s_mul_i32 s12, s12, 171
    s_lshr_b32 s12, s12, 9
    s_lshl_b32 s13, s13, 9
    s_lshl_b32 s12, s12, 9
    s_add_u32 s38, s13, {HF}
    s_add_u32 s39, s12, {HF}
    v_lshlrev_b32 v10, 2, v1
    v_and_b32 v8, 15, v1
    v_cmp_gt_u32 s[26:27], 11, v8
    v_sub_u32 v9, 11, v7
    v_cmp_gt_u32 s[52:53], v9, v8
    v_and_b32 v6, 31, v1
    v_lshlrev_b32 v5, 8, v7
    v_lshl_add_u32 v5, v6, 1, v5
    s_lshl_b32 s24, s32, 11
    s_lshl_b32 s25, s33, 15
    s_add_u32 s24, s24, s25
    s_lshr_b32 s12, s3, 2
    s_lshl_b32 s12, s12, 10
    s_add_u32 s24, s24, s12
    s_add_u32 s25, s24, {XC}
    s_add_u32 s24, s24, {XB}
    """)
    k(f"""
    s_mov_b32 s13, 0
    s_cmp_eq_u32 s3, 0
    s_cbranch_scc0 L_{N}_hw
    L_{N}_hq:
    buffer_load_dword v12, v10, s[8:11], s38 offen sc1
    buffer_load_dword v13, v10, s[8:11], s39 offen sc1
    buffer_load_dword v14, v10, s[8:11], s38 offen offset:256 sc1
    buffer_load_dword v15, v10, s[8:11], s39 offen offset:256 sc1
    s_add_u32 s13, s13, 1
    s_waitcnt vmcnt(0)
    v_and_b32 v12, v12, v13
    v_and_b32 v14, v14, v15
    v_cmp_ne_u32 vcc, 1, v12
    v_cmp_ne_u32 s[54:55], 1, v14
    s_and_b64 vcc, vcc, s[26:27]
    s_and_b64 s[54:55], s[54:55], s[52:53]
    s_or_b64 vcc, vcc, s[54:55]
    s_cbranch_scc0 L_{N}_hr
    s_cmp_ge_u32 s13, {SPIN}
    s_cbranch_scc1 L_{N}_hr
    s_sleep 3
    s_branch L_{N}_hq
    L_{N}_hr:
    v_mov_b32 v12, 1
    ds_write_b32 v4, v12 offset:48
    s_branch L_{N}_hd
    L_{N}_hw:
    ds_read_b32 v12, v4 offset:48
    s_waitcnt lgkmcnt(0)
    v_readfirstlane_b32 s12, v12
    s_cmp_eq_u32 s12, 1
    s_cbranch_scc1 L_{N}_hd
    s_sleep 1
    s_branch L_{N}_hw
    L_{N}_hd:
    s_mov_b32 s22, {WS_USED}
    v_mov_b32 v12, v3
    """)
    stamp(k, 6)
    vm = Q(k, 'vmcnt', 63)
    HD = 6
    def hload(n):
        if n == 10:
            k("s_cmp_ge_u32 s3, 6")
            k("s_cselect_b32 s22, 0, s22")
        for i in range(2):
            r = HR + 8*(n % HD) + 4*i
            vm.issue(f"buffer_load_dwordx4 v[{r}:{r+3}], v12, s[20:23], s{36+i} offen sc1", f"S{n}")
        k("v_add_u32 v12, 8192, v12")
    for n in range(HD): hload(n)
    for n in range(8):
        q, r = n >> 2, n & 3
        vm.issue(f"buffer_load_ushort v{RES+n}, v5, s[8:11], s24 offen offset:{(8*q+r)*64} sc1", "RES")
    k("s_and_b32 s13, s3, 3")
    for a in range(4):
        k(f"""
        s_xor_b32 s12, s13, {a}
        s_lshl_b32 s12, s12, 14
        s_lshl_b32 s15, s3, 11
        s_add_u32 s12, s12, s15
        v_add_u32 v{8+a}, s12, v3
        """)
    k(f"""
    s_lshl_b32 s12, s3, 14
    v_add_u32 v13, s12, v3
    v_add_u32 v14, 0x10000, v8
    v_add_u32 v15, 0x10000, v9
    v_add_u32 v0, 0x10000, v10
    v_add_u32 v2, 0x10000, v11
    """)
    for n in range(11):
        vm.need(f"S{n}")
        for ad in range(2):
            for al in range(2):
                a = A2 + 16*(2*ad+al); w = WD0+8*n+4*ad; h = HR+8*(n % HD)+4*al
                k(f"v_mfma_f32_32x32x16_bf16 v[{a}:{a+15}], v[{w}:{w+3}], v[{h}:{h+3}], v[{a}:{a+15}]")
        if n >= 1 and n-1+HD < 11: hload(n-1+HD)
    k("s_nop 3")
    lg = Q(k, 'lgkmcnt', 15)
    hi = [14, 15, 0, 2]
    for n in range(8): k(f"v_lshlrev_b32 v{RES+n}, 16, v{RES+n}")
    for a in range(4):
        for q in range(4):
            ad = (8+a) if q < 2 else hi[a]
            lg.issue(f"ds_write_b128 v{ad}, v[{A2+16*a+4*q}:{A2+16*a+4*q+3}] offset:{1024*(q&1)}", "rw")
    lg.drain()
    k("s_barrier")
    FV = 16
    for q in range(2):
        for s_ in range(8):
            lg.issue(f"ds_read_b128 v[{FV+32*q+4*s_}:{FV+32*q+4*s_+3}], v13 offset:{2048*s_+1024*q}", f"rr{q}_{s_}")
    for q in range(2):
        b = FV+32*q
        for st in (1, 2, 4):
            for s_ in range(0, 8, 2*st):
                lg.need(f"rr{q}_{min(7, s_+2*st-1)}")
                for j in (0, 2): k(f"v_pk_add_f32 {P(b+4*s_+j)}, {P(b+4*s_+j)}, {P(b+4*(s_+st)+j)}")
        k(f"v_cvt_pk_bf16_f32 v{T+2*q}, v{b}, v{b+1}")
        k(f"v_cvt_pk_bf16_f32 v{T+2*q+1}, v{b+2}, v{b+3}")
        unpack(k, b, b+1, T+2*q); unpack(k, b+2, b+3, T+2*q+1)
        for j in (0, 2): k(f"v_pk_add_f32 {P(b+j)}, {P(b+j)}, {P(RES+4*q+j)}")
        k(f"v_cvt_pk_bf16_f32 v{T+2*q}, v{b}, v{b+1}")
        k(f"v_cvt_pk_bf16_f32 v{T+2*q+1}, v{b+2}, v{b+3}")
    k("s_cmp_eq_u32 s93, 1")
    k(f"s_cbranch_scc1 L_{N}_out")
    k(f"""
    v_mov_b32 v14, 0x3f803f80
    s_lshl_b32 s12, s3, 14
    v_add_u32 v8, s12, v5
    v_mov_b32 v12, 0
    v_mov_b32 v9, 0
    """)
    for q in range(2):
        for r in range(4):
            op = "ds_write_b16_d16_hi" if r & 1 else "ds_write_b16"
            k(f"{op} v8, v{T+2*q+(r>>1)} offset:{(8*q+r)*64}")
    k("ds_read_b128 v[16:19], v13")
    for q in range(2):
        for j in range(2):
            k(f"v_dot2_f32_bf16 v12, v{T+2*q+j}, v14, v12")
            k(f"v_dot2_f32_bf16 v9, v{T+2*q+j}, v{T+2*q+j}, v9")
    k(f"""
    v_lshlrev_b32 v5, 3, v6
    v_lshl_add_u32 v5, v7, 2, v5
    s_lshl_b32 s12, s33, 8
    v_permlane32_swap_b32 v12, v9
    s_add_u32 s12, s12, {ST3}
    s_waitcnt lgkmcnt(0)
    buffer_store_dwordx4 v[16:19], v3, s[8:11], s25 offen sc1
    v_add_f32 v12, v12, v9
    buffer_atomic_add_f32 v12, v5, s[8:11], s12 offen
    s_lshl_b32 s12, s2, 2
    s_add_u32 s12, s12, {LF}
    v_lshlrev_b32 v8, 10, v1
    ds_read_b32 v9, v4 offset:64
    """)
    stamp(k, 9)
    k(f"""
    s_waitcnt vmcnt(0) lgkmcnt(0)
    s_barrier
    s_cmp_lg_u32 s3, 0
    s_cbranch_scc1 L_lf_np
    s_mov_b64 exec, 0xff
    buffer_store_dword v9, v8, s[8:11], s12 offen sc1
    s_mov_b64 exec, -1
    L_lf_np:
    """)
    stamp_flush(k, slot, 10, 3)
    k("s_mov_b64 exec, -1")
    for r, v in sets2.items(): k(f"s_mov_b32 s{r}, {v}")
    k(f"""
    s_branch L_layer
    L_{N}_out:
    s_mov_b32 s28, s96
    s_mov_b32 s29, s97
    s_mov_b32 s30, {2048*512*2}
    s_mov_b32 s31, 0x00020000
    v_lshlrev_b32 v5, 10, v6
    v_lshl_add_u32 v5, v7, 4, v5
    s_lshl_b32 s25, s33, 15
    s_lshl_b32 s12, s32, 6
    s_add_u32 s25, s25, s12
    s_lshr_b32 s12, s3, 2
    s_lshl_b32 s12, s12, 5
    s_add_u32 s25, s25, s12
    v_permlane32_swap_b32 v{T}, v{T+2}
    v_permlane32_swap_b32 v{T+1}, v{T+3}
    buffer_store_dwordx4 v[{T}:{T+3}], v5, s[28:31], s25 offen
    """)
    stamp(k, 9)
    stamp_flush(k, slot, 10, 3)
    k(f"s_branch {E}")
    k.label(f"L_{N}_prod")
    k(f"""
    s_mul_i32 s4, s2, 5
    s_min_u32 s4, s4, 60
    s_lshl_b32 s12, s4, 15
    s_lshl_b32 s13, s3, 10
    s_add_u32 s12, s12, s13
    s_mov_b32 s26, {2*MB}
    s_mov_b32 s27, 0x00020000
    s_add_u32 s24, s18, {XB}
    s_addc_u32 s25, s19, 0
    s_lshl_b32 s5, s3, 14
    v_and_b32 v6, 15, v1
    v_lshrrev_b32 v12, 2, v6
    v_lshl_add_u32 v12, v7, 3, v12
    v_lshlrev_b32 v12, 6, v12
    v_and_b32 v8, 3, v6
    v_lshl_add_u32 v12, v8, 3, v12
    v_and_b32 v8, 16, v1
    v_lshl_add_u32 v12, v8, 1, v12
    v_add_u32 v12, s5, v12
    v_mov_b32 v13, 0x3f803f80
    """)
    for r in range(10): k(f"v_mov_b32 v{16+r}, 0")
    k("s_mov_b32 s13, 0")
    pv = Q(k, 'vmcnt', 63); pl = Q(k, 'lgkmcnt', 15)
    def pdma(n):
        k(f"s_add_u32 m0, s5, {1024*(n % 16)}")
        k(f"s_add_u32 s14, s12, {(n >> 2)*32768 + (n & 3)*8192}")
        pv.issue(f"buffer_load_dwordx4 v3, s[24:27], s14 offen sc1 lds", f"d{n}")
    def prd(n):
        pv.need(f"d{n}")
        r = 32 + 4*(n % 4)
        pl.issue(f"ds_read_b64_tr_b16 v[{r}:{r+1}], v12 offset:{1024*(n%16)}", f"r{n}")
        pl.issue(f"ds_read_b64_tr_b16 v[{r+2}:{r+3}], v12 offset:{1024*(n%16)+256}", f"r{n}")
    def pcheck(n):
        r = 32 + 4*(n % 4)
        pl.need(f"r{n}")
        k.label(f"L_pv{n}")
        k(f"v_max3_u32 v8, v{r}, v{r+1}, v{r+2}")
        k(f"v_max_u32 v8, v8, v{r+3}")
        k(f"v_lshrrev_b32 v9, 16, v8")
        k(f"v_and_b32 v10, 0xffff, v{r}")
        k(f"v_and_b32 v11, 0xffff, v{r+1}")
        k(f"v_max3_u32 v9, v9, v10, v11")
        k(f"v_and_b32 v10, 0xffff, v{r+2}")
        k(f"v_and_b32 v11, 0xffff, v{r+3}")
        k(f"v_max3_u32 v9, v9, v10, v11")
        k("v_cmp_eq_u32 vcc, 0xffff, v9")
        k("s_and_b64 vcc, vcc, s[28:29]")
        k(f"s_cbranch_scc0 L_po{n}")
        k("s_add_u32 s13, s13, 1")
        k(f"s_cmp_ge_u32 s13, {RETRY}")
        k(f"s_cbranch_scc1 L_po{n}")
        k(f"s_sleep {RSL}")
        k(f"s_add_u32 m0, s5, {1024*(n % 16)}")
        k(f"s_add_u32 s14, s12, {(n >> 2)*32768 + (n & 3)*8192}")
        k(f"buffer_load_dwordx4 v3, s[24:27], s14 offen sc1 lds")
        k("s_waitcnt vmcnt(0)")
        k(f"ds_read_b64_tr_b16 v[{r}:{r+1}], v12 offset:{1024*(n%16)}")
        k(f"ds_read_b64_tr_b16 v[{r+2}:{r+3}], v12 offset:{1024*(n%16)+256}")
        k("s_waitcnt lgkmcnt(0)")
        k(f"s_branch L_pv{n}")
        k.label(f"L_po{n}")
    k("s_mov_b32 s28, 0x55555555")
    k("s_mov_b32 s29, 0x55555555")
    pdma(0); prd(0); pcheck(0)
    stamp(k, 2)
    for n in range(1, 16): pdma(n)
    prd(1)
    for n in range(20):
        if n+2 < 20: prd(n+2)
        if n > 0: pcheck(n)
        if n < 4: pdma(16+n)
        r = 32 + 4*(n % 4); lb = n >> 2
        for e in range(4):
            k(f"v_dot2_f32_bf16 v{16+2*lb}, v{r+e}, v13, v{16+2*lb}")
            k(f"v_dot2_f32_bf16 v{17+2*lb}, v{r+e}, v{r+e}, v{17+2*lb}")
    k("s_nop 2")
    for lb in range(5): k(f"v_permlane32_swap_b32 v{16+2*lb}, v{17+2*lb}")
    for lb in range(5): k(f"v_add_f32 v{16+2*lb}, v{16+2*lb}, v{17+2*lb}")
    k(f"""
    v_and_b32 v8, 31, v1
    v_lshlrev_b32 v8, 3, v8
    v_lshl_add_u32 v8, v7, 2, v8
    v_add_u32 v8, s5, v8
    """)
    for lb in range(5): k(f"ds_write_b32 v8, v{16+2*lb} offset:{256*lb}")
    k(f"""
    s_waitcnt lgkmcnt(0)
    s_barrier
    s_cmp_ge_u32 s3, 3
    s_cbranch_scc1 L_{N}_pe
    v_lshlrev_b32 v8, 3, v0
    v_add_u32 v9, 0x10000, v8
    """)
    for w in range(8): k(f"ds_read_b64 v[{32+2*w}:{33+2*w}], v{8 + (w >> 2)} offset:{16384*(w & 3)}")
    k("s_waitcnt lgkmcnt(0)")
    for st in (1, 2, 4):
        for w in range(0, 8, 2*st): k(f"v_pk_add_f32 {P(32+2*w)}, {P(32+2*w)}, {P(32+2*(w+st))}")
    k(f"""
    s_mov_b32 s24, {f32hex(1.0/512)}
    s_mov_b32 s25, {f32hex(1e-5)}
    v_mul_f32 v14, s24, v32
    v_mul_f32 v16, s24, v33
    v_fma_f32 v16, -v14, v14, v16
    v_max_f32 v16, 0, v16
    v_cvt_pk_bf16_f32 v14, v14, v16
    v_and_b32 v16, 0xffff0000, v14
    v_lshlrev_b32 v14, 16, v14
    v_add_f32 v16, s25, v16
    v_cvt_pk_bf16_f32 v16, v16, v16
    v_lshlrev_b32 v16, 16, v16
    v_sqrt_f32 v16, v16
    s_mul_i32 s4, s2, 1280
    s_add_u32 s4, s4, {FCG}
    v_cvt_pk_bf16_f32 v20, v14, v16
    v_mov_b32 v21, 1
    s_movk_i32 s6, 160
    v_cmp_gt_u32 vcc, s6, v0
    s_and_saveexec_b64 s[6:7], vcc
    buffer_store_dwordx2 v[20:21], v8, s[8:11], s4 offen sc1
    s_mov_b64 exec, s[6:7]
    s_nop 1
    L_{N}_pe:
    """)
    for i in (3, 5): stamp(k, i)
    k(f"s_branch L_{N}_dall")
    k.label(E)
    k("s_endpgm")
    return k

if __name__ == '__main__':
    import sys
    KN = "interleave_layers__ssm_conv_s4d__glu_gated_glu__prompt_kernel"
    sets1 = {86: XT0, 87: XT1, 88: ST1, 89: FCG1, 90: H, 91: HF1, 92: XT2, 93: 0, 94: CF1, 95: 2}
    sets2 = {86: XT2, 87: XT3, 88: ST3, 89: FCG2, 90: H2, 91: HF2, 92: 0, 93: 1, 94: CF2, 95: 6}
    p = Prog(); p.add_kernel(gen_mega(KN, sets1, sets2))
    t = p.text().replace('.amdgcn_target', f"; @launch grid=(256,1,1) block=(512,1,1) lds={LAYER_LDS}\n.amdgcn_target", 1)
    open(sys.argv[1], 'w').write(t)
```

```python
import asmlib, os
asmlib.STAMPS = bool(os.environ.get('STAMPS'))
from asmlib import *
from layout import *
from gen_k0 import f32hex, LOG2E
from gen_conv import unpack, U0, UP, KC0, KCP, KCH, RED
NPROD = 14; PCH = 19
FLG = 131072
LAYER_LDS = FLG + 256 + 1024
SPIN = 400000
EARLYU = int(os.environ.get('EARLYU', '12'))
RETRY = 30000
RSL = int(os.environ.get('RSL', '3'))
CFD = int(os.environ.get('CFD', '0')); CFS = int(os.environ.get('CFS', '4')); CFR = int(os.environ.get('CFR', '8'))
XSC = os.environ.get('XSC', 'sc1')
NWP = int(os.environ.get('NWP', '18'))
NWP2 = int(os.environ.get('NWP2', '24'))
WDLAG = int(os.environ.get('WDLAG', '6'))
NDI = int(os.environ.get('NDI', '22'))

from gen_k0 import exp_bf16_pair, LOG2E_HI, LOG2E_LO, LN2, INV2PI
SC = ''
def gen_mega(name, sets1, sets2):
    k = Kernel(name, vgpr=256, sgpr=100)
    XA, XB, ST, FCG, HB, HF, XC, CF, slot = 's86', 's87', 's88', 's89', 's90', 's91', 's92', 's94', 's95'
    stamp(k, 0)
    E = "L_mega_end"; N = "m"
    ACC = 16; XF = 64; CSV = 144; FCR = 112
    A2 = 16; HR = 80; WD0 = 168; RES = 128; T = 144; FG = 160
    P = lambda r: f"v[{r}:{r+1}]"
    def wreg(ks):
        if ks < 22: return 168 + 4*ks
        if ks < 30: return 112 + 4*(ks-22)
        return 168 + 4*(ks-30)
    late_w = {}
    for j in range(NWP2, 32): late_w.setdefault(max(3, j - 14) if j < 30 else 12 + j - 30, []).append(j)
    def wpre(ks):
        r = wreg(ks)
        k(f"s_add_u32 s14, s55, {4096*(ks//4)}")
        k(f"buffer_load_dwordx4 v[{r}:{r+3}], v3, s[20:23], s14 offen offset:{1024*(ks&3)} sc1")

    KSC = RED; TS = 90112; WS_ = TS + 8192
    SIDE_AT = int(os.environ.get('SIDE_AT', '7'))
    NTASK = 688 + 172
    def side_issue():
        k(f"""
        v_lshlrev_b32 v116, 4, v1
        v_lshrrev_b32 v117, 4, v1
        v_and_b32 v118, 15, v1
        v_lshrrev_b32 v120, 2, v1
        v_and_b32 v121, 3, v1
        s_mov_b32 s51, 0x00020000
        s_mov_b32 s59, 0x00020000
        s_lshl_b32 s52, s2, 2
        s_add_u32 s52, s52, s45
        s_lshl_b32 s53, s45, 13
        s_add_u32 s53, s53, {WS_}
        s_cmp_lt_u32 s3, 4
        s_cbranch_scc1 L_si_w
        s_mov_b32 s48, s24
        s_mov_b32 s49, s25
        s_mov_b32 s50, {2*MB}
        s_lshl_b32 s4, s52, 11
        buffer_load_dwordx4 v[112:115], v116, s[48:51], s4 offen
        buffer_load_dwordx4 v[160:163], v116, s[48:51], s4 offen offset:1024
        v_lshlrev_b32 v120, 10, v120
        v_lshl_add_u32 v120, v121, 4, v120
        s_lshr_b32 s4, s2, 2
        s_lshl_b32 s4, s4, 15
        s_and_b32 s5, s52, 15
        s_lshl_b32 s5, s5, 6
        s_add_u32 s4, s4, s5
        s_lshl_b32 s53, s45, 11
        s_add_u32 s53, s53, {TS}
        s_mov_b32 m0, s53
        s_add_u32 s5, s4, 16384
        buffer_load_dwordx4 v120, s[48:51], s4 offen lds
        s_add_u32 m0, s53, 1024
        s_mov_b32 s58, 0
        buffer_load_dwordx4 v120, s[48:51], s5 offen lds
        s_mov_b32 s56, s24
        s_mov_b32 s57, s25
        """)
        for t_ in range(4): k("buffer_load_dword v164, v116, s[56:59], 0 offen")
        k(f"""
        s_branch L_si_done
        L_si_w:
        s_mov_b32 s50, {D*F*2}
        s_mov_b32 s58, {D*F*2}
        s_cmp_ge_u32 s52, {NTASK}
        s_cselect_b32 s50, 0, s50
        s_cmp_ge_u32 s52, 688
        s_cbranch_scc1 L_si_wd
        s_mov_b32 s48, s20
        s_mov_b32 s49, s21
        s_mov_b32 s56, s22
        s_mov_b32 s57, s23
        v_mul_u32_u24 v120, {F*2}, v120
        v_lshl_add_u32 v120, v121, 4, v120
        s_and_b32 s4, s52, 15
        s_mul_i32 s4, s4, {32*F*2}
        s_lshr_b32 s5, s52, 4
        s_lshl_b32 s5, s5, 6
        s_add_u32 s4, s4, s5
        """)
        for t_ in range(2):
            k(f"s_add_u32 m0, s53, {2048*t_}")
            k("s_nop 0")
            k("buffer_load_dwordx4 v120, s[48:51], s4 offen lds")
            k(f"s_add_u32 m0, s53, {2048*t_+1024}")
            k("s_nop 0")
            k("buffer_load_dwordx4 v120, s[56:59], s4 offen lds")
            k(f"s_add_u32 s4, s4, {16*F*2}")
        k("s_mov_b32 s58, 0")
        for t_ in range(4): k("buffer_load_dword v164, v116, s[56:59], 0 offen")
        k(f"""
        s_branch L_si_done
        L_si_wd:
        s_mov_b32 s48, s26
        s_mov_b32 s49, s27
        v_lshrrev_b32 v120, 5, v1
        v_and_b32 v121, 31, v1
        v_lshlrev_b32 v120, 10, v120
        v_lshl_add_u32 v120, v121, 4, v120
        s_sub_u32 s4, s52, 688
        s_and_b32 s5, s4, 1
        s_lshr_b32 s4, s4, 1
        s_lshl_b32 s4, s4, 14
        s_lshl_b32 s5, s5, 9
        s_add_u32 s4, s4, s5
        """)
        for t_ in range(8):
            k(f"s_add_u32 m0, s53, {1024*t_}")
            k("s_nop 0")
            k("buffer_load_dwordx4 v120, s[48:51], s4 offen lds")
            k(f"s_add_u32 s4, s4, 2048")
        k.label("L_si_done")
    def side_process():
        k(f"""
        v_lshrrev_b32 v122, 5, v1
        v_lshrrev_b32 v120, 2, v118
        v_and_b32 v121, 3, v118
        v_and_b32 v123, 16, v1
        s_cmp_lt_u32 s3, 4
        s_cbranch_scc1 L_sp_w
        v_mov_b32 v124, 0
        v_mov_b32 v125, 0
        v_mov_b32 v126, 0
        v_mov_b32 v127, 0
        v_mov_b32 v136, 0x3f803f80
        v_lshl_add_u32 v120, v117, 3, v120
        v_lshlrev_b32 v120, 6, v120
        v_lshl_add_u32 v120, v121, 3, v120
        v_add_u32 v120, s53, v120
        s_waitcnt vmcnt(0)
        s_cmp_lg_u32 s54, 7
        s_cbranch_scc1 L_nn3
        s_mov_b64 exec, 1
        global_store_dwordx2 v152, v[154:155], s[98:99] sc1
        s_mov_b64 exec, -1
        L_nn3:
        ds_read_b64_tr_b16 v[128:129], v120
        ds_read_b64_tr_b16 v[130:131], v120 offset:256
        ds_read_b64_tr_b16 v[132:133], v120 offset:32
        ds_read_b64_tr_b16 v[134:135], v120 offset:288
        """)
        for j in range(4):
            k(f"v_dot2_f32_bf16 v124, v{112+j}, v136, v124")
            k(f"v_dot2_f32_bf16 v125, v{112+j}, v{112+j}, v125")
            k(f"v_dot2_f32_bf16 v126, v{160+j}, v136, v126")
            k(f"v_dot2_f32_bf16 v127, v{160+j}, v{160+j}, v127")
        k(f"""
        s_lshr_b32 s4, s2, 2
        s_lshl_b32 s4, s4, 15
        s_and_b32 s5, s52, 15
        s_lshl_b32 s5, s5, 11
        s_add_u32 s4, s4, s5
        s_add_u32 s4, s4, {XT0}
        v_lshlrev_b32 v121, 6, v118
        v_lshl_add_u32 v121, v117, 4, v121
        s_waitcnt lgkmcnt(0)
        buffer_store_dwordx4 v[128:131], v121, s[8:11], s4 offen sc1
        buffer_store_dwordx4 v[132:135], v121, s[8:11], s4 offen offset:1024 sc1
        """)
        for dpp in ("quad_perm:[1,0,3,2] row_mask:0xf bank_mask:0xf", "quad_perm:[2,3,0,1] row_mask:0xf bank_mask:0xf",
                    "row_half_mirror row_mask:0xf bank_mask:0xf", "row_mirror row_mask:0xf bank_mask:0xf",
                    "row_bcast:15 row_mask:0xa bank_mask:0xf", "row_bcast:31 row_mask:0xc bank_mask:0xf"):
            for r in range(4): k(f"v_add_f32 v{124+r}, v{124+r}, v{124+r} {dpp}")
        k(f"""
        s_lshl_b32 s4, s52, 4
        s_add_u32 s4, s4, {ST1}
        v_mov_b32 v138, 0
        v_mov_b32 v139, 0
        v_mov_b32 v140, -1
        v_mov_b32 v141, -1
        s_mov_b32 exec_lo, 0
        s_mov_b32 exec_hi, 0x80000000
        buffer_store_dwordx4 v[124:127], v152, s[8:11], s4 offen sc1
        s_mov_b64 exec, 0xffff
        s_lshl_b32 s4, s52, 7
        s_add_u32 s4, s4, {ZR}
        v_lshlrev_b32 v121, 3, v1
        buffer_store_dwordx2 v[138:139], v121, s[8:11], s4 offen sc1
        s_mov_b64 exec, -1
        v_lshrrev_b32 v122, 1, v118
        v_lshlrev_b32 v122, 15, v122
        v_and_b32 v123, 1, v118
        v_lshl_add_u32 v122, v123, 5, v122
        v_lshl_add_u32 v122, v117, 3, v122
        s_lshl_b32 s4, s2, 7
        s_lshl_b32 s5, s45, 19
        s_add_u32 s4, s4, s5
        s_add_u32 s4, s4, {XT1}
        s_add_u32 s5, s4, 0x40000
        buffer_store_dwordx2 v[140:141], v122, s[8:11], s4 offen sc1
        buffer_store_dwordx2 v[140:141], v122, s[8:11], s4 offen offset:64 sc1
        buffer_store_dwordx2 v[140:141], v122, s[8:11], s5 offen sc1
        buffer_store_dwordx2 v[140:141], v122, s[8:11], s5 offen offset:64 sc1
        s_branch L_sp_done
        L_sp_w:
        s_cmp_ge_u32 s52, {NTASK}
        s_cbranch_scc1 L_sp_done
        s_cmp_ge_u32 s52, 688
        s_cbranch_scc1 L_sp_wd
        v_lshl_add_u32 v120, v122, 3, v120
        v_lshlrev_b32 v120, 6, v120
        v_lshl_add_u32 v120, v121, 3, v120
        v_lshl_add_u32 v120, v123, 6, v120
        v_add_u32 v120, s53, v120
        s_lshr_b32 s4, s52, 4
        s_lshl_b32 s4, s4, 16
        s_and_b32 s5, s52, 15
        s_lshl_b32 s5, s5, 11
        s_add_u32 s4, s4, s5
        s_add_u32 s4, s4, {WGU}
        s_add_u32 s5, s4, 0x8000
        s_waitcnt vmcnt(0)
        """)
        for t_ in range(4):
            ks, hf = t_ >> 1, t_ & 1
            k(f"ds_read_b64_tr_b16 v[{124+4*t_}:{125+4*t_}], v120 offset:{2048*ks + 32*hf}")
            k(f"ds_read_b64_tr_b16 v[{126+4*t_}:{127+4*t_}], v120 offset:{2048*ks + 32*hf + 256}")
        for t_ in range(4):
            ks, hf = t_ >> 1, t_ & 1
            k(f"s_waitcnt lgkmcnt({6-2*t_})")
            k(f"buffer_store_dwordx4 v[{124+4*t_}:{127+4*t_}], v116, s[8:11], s{4+hf} offen offset:{1024*ks} sc1")
        k("v_mov_b32 v140, 0")
        k("v_mov_b32 v141, 0")
        k("v_mov_b32 v142, 0x3f803f80")
        for t_ in range(4):
            for j in range(4): k(f"v_dot2_f32_bf16 v{140+(t_&1)}, v{124+4*t_+j}, v142, v{140+(t_&1)}")
        k(f"""
        s_lshr_b32 s4, s52, 4
        s_lshl_b32 s4, s4, 12
        s_and_b32 s5, s52, 15
        s_lshl_b32 s5, s5, 7
        v_permlane32_swap_b32 v140, v141
        s_add_u32 s4, s4, s5
        s_add_u32 s4, s4, {CSQ}
        v_and_b32 v121, 31, v1
        v_lshlrev_b32 v121, 2, v121
        v_lshl_add_u32 v121, v122, 11, v121
        v_add_f32 v140, v140, v141
        buffer_store_dword v140, v121, s[8:11], s4 offen sc1
        s_branch L_sp_done
        L_sp_wd:
        v_lshl_add_u32 v120, v122, 2, v120
        v_lshlrev_b32 v120, 9, v120
        v_lshl_add_u32 v120, v121, 3, v120
        v_lshl_add_u32 v120, v123, 1, v120
        v_add_u32 v120, s53, v120
        s_sub_u32 s4, s52, 688
        s_and_b32 s5, s4, 1
        s_lshr_b32 s4, s4, 1
        s_lshl_b32 s4, s4, 10
        s_mul_i32 s5, s5, {8*86*1024}
        s_add_u32 s4, s4, s5
        s_add_u32 s4, s4, {WD}
        s_waitcnt vmcnt(0)
        """)
        for h_ in range(2):
            for t_ in range(4):
                k(f"ds_read_b64_tr_b16 v[{168+16*h_+4*t_}:{169+16*h_+4*t_}], v120 offset:{64*(4*h_+t_)}")
                k(f"ds_read_b64_tr_b16 v[{170+16*h_+4*t_}:{171+16*h_+4*t_}], v120 offset:{64*(4*h_+t_) + 4096}")
            for t_ in range(4):
                k(f"s_waitcnt lgkmcnt({6-2*t_})")
                k(f"buffer_store_dwordx4 v[{168+16*h_+4*t_}:{171+16*h_+4*t_}], v116, s[8:11], s4 offen sc1")
                k(f"s_add_u32 s4, s4, {86*1024}")
        k.label("L_sp_done")
    k(f"""
    s_cmp_ge_u32 s2, 256
    s_cbranch_scc1 {E}
    s_load_dwordx8 s[36:43], s[0:1], 8
    s_load_dwordx2 s[46:47], s[0:1], 40
    s_load_dwordx2 s[18:19], s[0:1], 104
    s_load_dwordx2 s[16:17], s[0:1], 48
    s_load_dwordx4 s[96:99], s[0:1], 88
    s_load_dwordx2 s[24:25], s[0:1], 0
    s_load_dwordx4 s[20:23], s[0:1], 64
    s_load_dwordx2 s[26:27], s[0:1], 80
    v_and_b32 v1, 63, v0
    v_lshrrev_b32 v2, 6, v0
    s_mov_b32 s10, {WS_USED}
    v_readfirstlane_b32 s3, v2
    s_mov_b32 s11, 0x00020000
    """)
    if os.environ.get('CPF', '0') == '1':
        k(f"""
        s_getpc_b64 s[4:5]
        L_pc0:
        s_cmp_ge_u32 s2, 64
        s_cbranch_scc1 L_cpf
        v_lshlrev_b32 v4, 7, v0
        v_min_u32 v4, L_mega_end-L_pc0, v4
        global_load_dword v156, v4, s[4:5]
        L_cpf:
        """)
    CHB = 20480; PT = 2048; T16 = 2048 + 4*3072
    k(f"""
    s_lshr_b32 s4, s3, 2
    s_and_b32 s45, s3, 3
    s_lshl_b32 s44, s2, 1
    s_add_u32 s44, s44, s4
    s_mul_i32 s34, s4, {CHB}
    s_add_u32 s34, s34, {KSC}
    v_and_b32 v3, 31, v1
    s_lshl_b32 s4, s44, 7
    s_lshl_b32 s5, s45, 5
    s_add_u32 s4, s4, s5
    v_add_u32 v4, s4, v3
    v_lshlrev_b32 v4, 1, v4
    s_lshl_b32 s5, s44, 1
    v_mov_b32 v5, s5
    v_mov_b32 v158, {FLG+64}
    v_mov_b32 v159, 0
    ds_write_b32 v158, v159 offset:4
    ds_write_b32 v158, v159 offset:8
    s_waitcnt lgkmcnt(0)
    s_barrier
    s_mov_b32 s8, s18
    s_mov_b32 s9, s19
    s_lshl_b32 s54, s2, 3
    s_add_u32 s54, s54, s3
    v_mov_b32 v152, 0
    v_mov_b32 v155, 1
    s_mov_b32 s55, {NONCE}
    s_cmp_lg_u32 s54, 7
    s_cbranch_scc1 L_nn
    buffer_load_dword v154, v152, s[8:11], s55 offen sc1
    L_nn:
    global_load_ushort v6, v4, s[36:37]
    global_load_ushort v10, v5, s[46:47]
    global_load_ushort v7, v4, s[38:39]
    global_load_ushort v8, v4, s[40:41]
    global_load_ushort v9, v4, s[42:43]
    """)
    side_issue()
    k(f"""
    s_mov_b32 s30, {f32hex(LOG2E_HI)}
    s_mov_b32 s31, {f32hex(LOG2E_LO)}
    s_mov_b32 s32, {f32hex(LN2)}
    s_mov_b32 s33, {f32hex(INV2PI)}
    v_and_b32 v0, 255, v0
    v_and_b32 v11, 15, v1
    v_lshrrev_b32 v12, 3, v11
    v_lshlrev_b32 v12, 7, v12
    v_and_b32 v13, 7, v11
    v_add_u32 v12, v12, v13
    v_cvt_f32_u32 v20, v12
    v_lshrrev_b32 v12, 2, v11
    v_lshlrev_b32 v12, 7, v12
    v_and_b32 v13, 3, v11
    v_lshl_add_u32 v12, v13, 1, v12
    v_add_u32 v12, 0x100, v12
    v_subrev_u32 v13, 8, v11
    v_lshrrev_b32 v13, 1, v13
    v_lshlrev_b32 v13, 7, v13
    v_and_b32 v14, 1, v11
    v_lshl_add_u32 v13, v14, 2, v13
    v_add_u32 v13, 0x200, v13
    v_cmp_gt_u32 vcc, 8, v11
    v_lshlrev_b32 v14, 7, v11
    v_add_u32 v14, 0x400, v14
    v_cndmask_b32 v12, v13, v12, vcc
    v_cvt_f32_u32 v21, v12
    v_cvt_f32_u32 v22, v14
    v_lshlrev_b32 v14, 3, v11
    v_cvt_f32_u32 v23, v14
    s_lshl_b32 s5, s45, 9
    s_add_u32 s5, s5, s34
    v_lshl_add_u32 v2, v3, 4, s5
    v_lshrrev_b32 v3, 4, v1
    v_lshl_add_u32 v3, v3, 6, s5
    """)
    for r in range(12): k(f"v_mov_b32 v{24+r}, 0")
    k("s_waitcnt vmcnt(11)")
    k("v_lshlrev_b32 v6, 16, v6")
    k("v_lshlrev_b32 v10, 16, v10")
    exp_bf16_pair(k, [6, 10], 12, 30, 31, 32)
    k(f"""
    s_waitcnt vmcnt(8)
    v_lshlrev_b32 v7, 16, v7
    v_lshlrev_b32 v8, 16, v8
    v_lshlrev_b32 v9, 16, v9
    v_mul_f32 v6, v6, v10
    v_mul_f32 v7, v7, v10
    v_add_f32 v10, v10, v10
    v_mul_f32 v18, v8, v10
    v_mul_f32 v19, v9, v10
    v_mul_f32 v16, s30, v6
    v_max_f32 v12, |v18|, |v19|
    v_mul_f32 v17, s33, v7
    v_sub_f32 v16, 0, v16
    v_max_f32_dpp v12, v12, v12 row_ror:8 row_mask:0xf bank_mask:0xf
    s_nop 1
    v_max_f32_dpp v12, v12, v12 row_ror:4 row_mask:0xf bank_mask:0xf
    s_nop 1
    v_max_f32_dpp v12, v12, v12 row_ror:2 row_mask:0xf bank_mask:0xf
    s_nop 1
    v_max_f32_dpp v12, v12, v12 row_ror:1 row_mask:0xf bank_mask:0xf
    s_nop 1
    v_readlane_b32 s6, v12, 0
    v_readlane_b32 s7, v12, 16
    s_max_u32 s6, s6, s7
    s_lshr_b32 s6, s6, 23
    s_max_u32 s6, s6, 1
    s_min_u32 s6, s6, 252
    s_sub_u32 s7, 253, s6
    s_lshl_b32 s7, s7, 23
    s_add_u32 s35, s6, 1
    s_lshl_b32 s35, s35, 23
    v_mul_f32 v18, s7, v18
    v_mul_f32 v19, s7, v19
    ds_write_b128 v2, v[16:19]
    s_waitcnt lgkmcnt(0)
    """)
    for st in range(8): k(f"ds_read_b128 v[{36+4*st}:{39+4*st}], v3 offset:{256*(st>>2) + 16*(st&3)}")
    k(f"""
    s_cmp_lg_u32 s54, 7
    s_cbranch_scc1 L_nn2
    v_add_u32 v154, 1, v154
    v_max_u32 v154, 1, v154
    s_mov_b64 exec, 1
    buffer_store_dword v154, v152, s[8:11], s55 offen sc1
    s_mov_b64 exec, -1
    L_nn2:
    """)
    stamp(k, 1)
    for st in range(8):
        s_, t = st >> 2, st & 3
        zr, zi, cr, ci = 36+4*st, 37+4*st, 38+4*st, 39+4*st
        Fb = 80 + 16*s_ + t
        if st == SIDE_AT:
            side_process()
            stamp(k, 4)
        k(f"s_waitcnt lgkmcnt({7-st})")
        for c in range(4): k(f"v_mul_f32 v{68+c}, v{zr}, v{20+c}")
        for c in range(4): k(f"v_mul_f32 v{72+c}, v{zi}, v{20+c}")
        for c in range(4): k(f"v_exp_f32 v{68+c}, v{68+c}")
        for c in range(4): k(f"v_fract_f32 v{72+c}, v{72+c}")
        for c in range(4): k(f"v_cos_f32 v{76+c}, v{72+c}")
        for c in range(4): k(f"v_sin_f32 v{4+c}, v{72+c}")
        k(f"v_mul_f32 v8, v71, v{cr}")
        k(f"v_mul_f32 v9, v71, v{ci}")
        for c in range(3): k(f"v_fma_mixlo_f16 v{Fb+4*c}, v{68+c}, v{76+c}, 0")
        k(f"v_mul_f32 v10, v8, v79")
        k(f"v_mul_f32 v11, v8, v7")
        for c in range(3): k(f"v_fma_mixhi_f16 v{Fb+4*c}, v{68+c}, v{4+c}, 0")
        k(f"v_fma_mixlo_f16 v{Fb+12}, -v9, v7, v10")
        if st == 4:
            for c in range(3): k(f"v_mfma_f32_16x16x32_f16 v[{24+4*c}:{27+4*c}], v[{80+4*c}:{83+4*c}], v[92:95], v[{24+4*c}:{27+4*c}]")
        else: k("s_nop 0")
        k(f"v_fma_mixhi_f16 v{Fb+12}, -v9, v79, -v11")
    k(f"""
    s_mul_i32 s5, s45, 3072
    s_add_u32 s5, s5, s34
    s_add_u32 s5, s5, {PT}
    v_lshl_add_u32 v12, v1, 4, s5
    """)
    for c in range(3): k(f"v_mfma_f32_16x16x32_f16 v[{24+4*c}:{27+4*c}], v[{96+4*c}:{99+4*c}], v[108:111], v[{24+4*c}:{27+4*c}]")
    stamp(k, 2)
    k("s_nop 7")
    for r in range(12): k(f"v_mul_f32 v{24+r}, s35, v{24+r}")
    k(f"""
    ds_write_b128 v12, v[24:27]
    ds_write_b128 v12, v[28:31] offset:1024
    ds_write_b128 v12, v[32:35] offset:2048
    v_lshl_add_u32 v12, v0, 4, s34
    v_lshrrev_b32 v13, 4, v1
    v_and_b32 v14, 15, v1
    v_lshl_add_u32 v14, v14, 4, s34
    s_waitcnt lgkmcnt(0)
    s_barrier
    global_load_dwordx2 v[156:157], v152, s[98:99] sc1
    """)
    stamp(k, 3)
    k(f"""
    s_cmp_eq_u32 s45, 3
    s_cbranch_scc1 L_kg_stage2
    ds_read_b128 v[24:27], v12 offset:{PT}
    ds_read_b128 v[28:31], v12 offset:{PT+3072}
    ds_read_b128 v[32:35], v12 offset:{PT+2*3072}
    ds_read_b128 v[36:39], v12 offset:{PT+3*3072}
    s_cmp_eq_u32 s45, 1
    s_cbranch_scc1 L_kg_t1
    s_cmp_eq_u32 s45, 2
    s_cbranch_scc1 L_kg_t2
    v_lshrrev_b32 v15, 1, v13
    v_lshlrev_b32 v15, 8, v15
    v_and_b32 v16, 1, v13
    v_lshl_add_u32 v15, v16, 3, v15
    v_add_u32 v16, v15, v14
    v_add_u32 v17, 2, v16
    v_add_u32 v18, 4, v16
    v_add_u32 v19, 6, v16
    s_branch L_kg_w
    L_kg_t1:
    v_lshlrev_b32 v15, 8, v13
    v_add_u32 v15, 0x200, v15
    v_add_u32 v16, v15, v14
    v_add_u32 v17, 4, v16
    v_add_u32 v18, 8, v16
    v_add_u32 v19, 12, v16
    v_lshlrev_b32 v15, 9, v13
    v_add_u32 v15, v15, v14
    v_add_u32 v20, 8, v15
    v_add_u32 v21, 0x100, v15
    v_add_u32 v22, 0x108, v15
    v_cmp_gt_u32 vcc, 2, v13
    s_nop 1
    v_cndmask_b32 v16, v15, v16, vcc
    v_cndmask_b32 v17, v20, v17, vcc
    v_cndmask_b32 v18, v21, v18, vcc
    v_cndmask_b32 v19, v22, v19, vcc
    s_branch L_kg_w
    L_kg_t2:
    v_lshlrev_b32 v15, 10, v13
    v_add_u32 v15, 0x800, v15
    v_add_u32 v16, v15, v14
    v_add_u32 v17, 0x100, v16
    v_add_u32 v18, 0x200, v16
    v_add_u32 v19, 0x300, v16
    L_kg_w:
    s_waitcnt lgkmcnt(0)
    v_pk_add_f32 v[24:25], v[24:25], v[28:29]
    v_pk_add_f32 v[26:27], v[26:27], v[30:31]
    v_pk_add_f32 v[32:33], v[32:33], v[36:37]
    v_pk_add_f32 v[34:35], v[34:35], v[38:39]
    v_pk_add_f32 v[24:25], v[24:25], v[32:33]
    v_pk_add_f32 v[26:27], v[26:27], v[34:35]
    v_cvt_pk_bf16_f32 v24, v24, v25
    v_cvt_pk_bf16_f32 v26, v26, v27
    ds_write_b16 v16, v24 offset:{T16}
    ds_write_b16_d16_hi v17, v24 offset:{T16}
    ds_write_b16 v18, v26 offset:{T16}
    ds_write_b16_d16_hi v19, v26 offset:{T16}
    L_kg_stage2:
    v_lshlrev_b32 v12, 4, v0
    v_sub_u32 v13, 4094, v12
    """)
    for e in range(10): k(f"v_subrev_u32 v{40+e}, {2*e}, v13")
    k("v_max_i32 v48, 0, v48")
    k("v_max_i32 v49, 0, v49")
    for e in range(10): k(f"v_cvt_f32_u32 v{40+e}, v{40+e}")
    for e in range(0, 10, 2): k(f"v_cvt_pk_bf16_f32 v{52+e}, v{40+e}, v{41+e}")
    for e in range(0, 10, 2):
        if e < 8: k(f"v_and_b32 v{53+e}, 0xffff0000, v{52+e}")
        k(f"v_lshlrev_b32 v{52+e}, 16, v{52+e}")
    for e in range(9): k(f"v_cvt_u32_f32 v{52+e}, v{52+e}")
    for e in range(9): k(f"v_add_u32 v{52+e}, s34, v{52+e}")
    stamp(k, 5)
    k("s_waitcnt lgkmcnt(0)")
    k("s_barrier")
    stamp(k, 6)
    for e in range(9): k(f"ds_read_u16 v{24+e}, v{52+e} offset:{T16}")
    k(f"""
    s_and_b32 s7, s3, 4
    v_mov_b32 v158, {FLG+64}
    v_add_u32 v153, s7, v158
    v_mov_b32 v159, 1
    s_mov_b32 s6, 0
    s_waitcnt vmcnt(0)
    s_mov_b64 exec, 1
    ds_add_rtn_u32 v159, v153, v159 offset:4
    s_waitcnt lgkmcnt(0)
    v_readfirstlane_b32 s7, v159
    s_mov_b64 exec, -1
    s_cmp_lg_u32 s7, 3
    s_cbranch_scc1 L_kg_np
    s_branch L_nc
    L_nq:
    global_load_dwordx2 v[156:157], v152, s[98:99] sc1
    s_add_u32 s6, s6, 1
    s_waitcnt vmcnt(0)
    L_nc:
    v_readfirstlane_b32 s7, v157
    s_cmp_ge_u32 s6, {SPIN}
    s_cbranch_scc1 L_ne
    s_cmp_eq_u32 s7, 1
    s_cbranch_scc0 L_nq
    L_ne:
    ds_write_b32 v158, v156
    s_lshl_b32 s6, s2, 2
    s_add_u32 s6, s6, {PF}
    s_cmp_lt_u32 s3, 4
    s_cselect_b32 s7, {PW-PF}, 0
    s_add_u32 s6, s6, s7
    v_lshlrev_b32 v159, 10, v1
    s_mov_b64 exec, 0xff
    buffer_store_dword v156, v159, s[8:11], s6 offen sc1
    s_mov_b64 exec, -1
    L_kg_np:
    """)
    k(f"""
    s_mul_i32 s5, s44, {KGP}
    s_add_u32 s5, s5, {KG}
    v_mov_b32 v48, 0
    v_mov_b32 v49, 0
    v_mov_b32 v50, 0
    v_mov_b32 v51, 0
    v_add_u32 v13, {KGH}, v12
    v_cmp_ne_u32 vcc, 0xff, v0
    s_waitcnt lgkmcnt(0)
    v_cndmask_b32 v32, 0, v32, vcc
    v_lshl_or_b32 v40, v25, 16, v24
    v_lshl_or_b32 v41, v27, 16, v26
    v_lshl_or_b32 v42, v29, 16, v28
    v_lshl_or_b32 v43, v31, 16, v30
    v_lshl_or_b32 v44, v26, 16, v25
    v_lshl_or_b32 v45, v28, 16, v27
    v_lshl_or_b32 v46, v30, 16, v29
    v_lshl_or_b32 v47, v32, 16, v31
    buffer_store_dwordx4 v[40:43], v12, s[8:11], s5 offen
    buffer_store_dwordx4 v[44:47], v13, s[8:11], s5 offen
    v_cmp_gt_u32 vcc, 2, v0
    s_and_saveexec_b64 s[6:7], vcc
    s_cbranch_execz L_kg_z
    v_add_u32 v12, 4096, v12
    v_add_u32 v13, 4096, v13
    buffer_store_dwordx4 v[48:51], v12, s[8:11], s5 offen
    buffer_store_dwordx4 v[48:51], v13, s[8:11], s5 offen
    L_kg_z:
    s_mov_b64 exec, -1
    """)
    if asmlib.STAMPS:
        for i in range(7, 10): stamp(k, i)
        stamp_flush(k, 0, 10, 3)
        k("s_mov_b64 exec, -1")
    k("s_waitcnt vmcnt(0) lgkmcnt(0)")
    k("s_barrier")
    for r, v in sets1.items(): k(f"s_mov_b32 s{r}, {v}")
    k.label("L_layer")
    stamp(k, 0)
    k(f"""
    v_mbcnt_lo_u32_b32 v1, -1, 0
    v_mbcnt_hi_u32_b32 v1, -1, v1
    s_lshl_b32 s4, s3, 6
    v_add_u32 v0, s4, v1
    v_lshlrev_b32 v3, 4, v1
    s_lshl_b32 s4, s2, 1
    s_lshr_b32 s5, s3, 2
    s_and_b32 s6, s3, 3
    s_add_u32 s7, s4, s5
    s_mul_i32 s28, s7, {KGP}
    s_add_u32 s28, s28, {KG}
    s_bitcmp1_b32 s6, 0
    s_cselect_b32 s13, 0, {KGH}
    s_add_u32 s28, s28, s13
    s_cmp_lt_u32 s6, 2
    s_cselect_b32 s13, 4, 0
    s_add_u32 s28, s28, s13
    s_mul_i32 s13, s5, {KCH}
    s_mul_i32 s14, s6, {KCP}
    s_add_u32 s13, s13, s14
    s_add_u32 s13, s13, {KC0}
    s_mov_b32 m0, s13
    s_lshl_b32 s12, s7, 1
    """)
    for c in range(4): k(f"buffer_load_dwordx4 v3, s[8:11], s28 offen offset:{1024*c} lds")
    k(f"""
    v_mov_b32 v9, s12
    global_load_ushort v52, v9, s[16:17]
    v_lshlrev_b32 v4, 3, v0
    v_lshlrev_b32 v53, 5, v0
    v_lshrrev_b32 v54, 3, v0
    v_and_b32 v7, 7, v0
    v_lshlrev_b32 v54, 15, v54
    v_lshl_add_u32 v54, v7, 3, v54
    v_and_b32 v7, 15, v1
    v_lshrrev_b32 v8, 4, v1
    v_lshlrev_b32 v6, 5, v7
    v_lshl_add_u32 v6, v8, 3, v6
    v_lshrrev_b32 v5, 1, v7
    v_lshlrev_b32 v5, 15, v5
    v_and_b32 v9, 1, v7
    v_lshl_add_u32 v5, v9, 5, v5
    v_lshl_add_u32 v5, v8, 3, v5
    s_lshl_b32 s30, s4, 6
    s_add_u32 s30, s30, {XA}
    s_lshl_b32 s12, s7, 6
    s_lshl_b32 s14, s6, 19
    s_add_u32 s12, s12, s14
    s_add_u32 s26, s12, {XB}
    s_add_u32 s27, s26, 0x40000
    s_add_u32 s31, s12, {XA}
    s_add_u32 s32, s31, 0x40000
    v_mov_b32 v12, 0
    v_mov_b32 v13, 0
    v_mov_b32 v14, 0
    v_mov_b32 v15, 0
    s_add_u32 s13, s13, 4096
    v_add_u32 v9, s13, v3
    s_mul_i32 s13, s5, {UP}
    v_add_u32 v10, s13, v3
    v_cmp_gt_u32 vcc, 2, v1
    s_and_saveexec_b64 s[28:29], vcc
    ds_write_b128 v9, v[12:15]
    s_mov_b64 exec, s[28:29]
    v_cmp_gt_u32 vcc, 30, v1
    s_and_saveexec_b64 s[28:29], vcc
    ds_write_b128 v10, v[12:15]
    s_mov_b64 exec, s[28:29]
    v_and_b32 v9, 3, v7
    v_mul_u32_u24 v9, {KCP}, v9
    v_lshrrev_b32 v10, 2, v7
    v_lshlrev_b32 v10, 3, v10
    v_sub_u32 v9, v9, v10
    v_lshl_add_u32 v9, v8, 4, v9
    s_mul_i32 s13, s5, {KCH}
    s_add_u32 s13, s13, {KC0+24}
    s_lshl_b32 s14, s6, 7
    s_sub_u32 s13, s13, s14
    v_add_u32 v10, s13, v9
    v_lshlrev_b32 v11, 5, v7
    v_lshl_add_u32 v11, v8, 4, v11
    s_mul_i32 s13, s5, {UP}
    s_add_u32 s13, s13, 384
    s_sub_u32 s13, s13, s14
    v_add_u32 v11, s13, v11
    s_mov_b32 s24, {f32hex(1.0/512)}
    s_mov_b32 s25, {f32hex(1e-5)}
    """)
    for r in range(32): k(f"v_mov_b32 v{16+r}, 0")
    k(f"""
    s_and_b32 s52, s2, 7
    s_lshr_b32 s53, s2, 3
    s_mul_i32 s55, s52, 30
    s_add_u32 s55, s55, s53
    s_sub_u32 s55, s55, 2
    s_cmp_ge_u32 s52, 6
    s_cselect_b32 s53, 1, 0
    s_add_u32 s55, s55, s53
    s_cmp_eq_u32 s52, 7
    s_cselect_b32 s53, 1, 0
    s_add_u32 s55, s55, s53
    s_cmp_ge_u32 s55, 88
    s_cselect_b32 s54, 88, 0
    s_cselect_b32 s53, 4, 0
    s_sub_u32 s12, s55, s54
    s_lshr_b32 s52, s12, 2
    s_and_b32 s12, s12, 3
    s_add_u32 s53, s53, s12
    s_sub_u32 s12, s55, 176
    s_mul_i32 s13, s12, 171
    s_lshr_b32 s13, s13, 9
    s_mul_i32 s54, s13, 3
    s_sub_u32 s54, s12, s54
    s_add_u32 s54, s54, 8
    s_cmp_ge_u32 s55, 176
    s_cselect_b32 s52, s13, s52
    s_cselect_b32 s53, s54, s53
    s_lshl_b32 s54, s53, 3
    s_add_u32 s54, s54, s3
    s_lshl_b32 s55, s54, 15
    s_add_u32 s55, s55, {WGU}
    s_mov_b32 s20, s18
    s_mov_b32 s21, s19
    s_mov_b32 s23, 0x00020000
    s_cmp_lt_u32 s2, {NPROD}
    s_cselect_b32 s22, 0, s10
    s_cselect_b32 s55, 0, s55
    v_mov_b32 v9, {FLG}
    ds_write_b128 v9, v[12:15]
    ds_write_b128 v9, v[12:15] offset:16
    ds_write_b128 v9, v[12:15] offset:32
    ds_write_b128 v9, v[12:15] offset:48
    """)
    k(f"""
    s_cmp_lg_u32 s3, 0
    s_cbranch_scc1 L_in_d
    s_mov_b32 s13, 0
    v_mov_b32 v56, {FLG+64}
    ds_read_b32 v60, v56
    s_and_b32 s15, s2, 7
    s_lshl_b32 s15, s15, 10
    s_cmp_eq_u32 s93, 1
    s_cselect_b32 s14, 0, {PF-LF}
    s_add_u32 s15, s15, s14
    s_add_u32 s15, s15, {LF}
    s_waitcnt lgkmcnt(0)
    L_in_b:
    buffer_load_dwordx4 v[56:59], v3, s[8:11], s15 offen sc1
    s_add_u32 s13, s13, 1
    s_waitcnt vmcnt(0)
    v_xor_b32 v56, v56, v60
    v_xor_b32 v57, v57, v60
    v_xor_b32 v58, v58, v60
    v_xor_b32 v59, v59, v60
    v_or3_b32 v56, v56, v57, v58
    v_or_b32 v56, v56, v59
    v_cmp_ne_u32 vcc, 0, v56
    s_cmp_eq_u64 vcc, 0
    s_cbranch_scc1 L_in_d
    s_cmp_ge_u32 s13, {SPIN}
    s_cbranch_scc1 L_in_d
    s_sleep {CFS}
    s_branch L_in_b
    L_in_d:
    s_barrier
    """)
    stamp(k, 1)
    k(f"""
    buffer_load_dwordx4 v[64:67], v53, s[8:11], {ST} offen sc1
    buffer_load_dwordx4 v[68:71], v53, s[8:11], {ST} offen offset:16 sc1
    buffer_load_dwordx2 v[72:73], v54, s[8:11], s30 offen sc1
    buffer_load_dwordx2 v[74:75], v54, s[8:11], s30 offen offset:64 sc1
    buffer_load_dwordx2 v[48:49], v5, s[8:11], s31 offen sc1
    buffer_load_dwordx2 v[50:51], v5, s[8:11], s32 offen sc1
    """)
    k("s_waitcnt vmcnt(4)")
    for r in range(4):
        k(f"v_mul_f32 v{64+2*r}, s24, v{64+2*r}")
        k(f"v_mul_f32 v{65+2*r}, s24, v{65+2*r}")
    for r in range(4): k(f"v_fma_f32 v{65+2*r}, -v{64+2*r}, v{64+2*r}, v{65+2*r}")
    for r in range(4): k(f"v_max_f32 v{65+2*r}, 0, v{65+2*r}")
    k("v_cvt_pk_bf16_f32 v76, v64, v66")
    k("v_cvt_pk_bf16_f32 v77, v68, v70")
    k("v_cvt_pk_bf16_f32 v78, v65, v67")
    k("v_cvt_pk_bf16_f32 v79, v69, v71")
    unpack(k, 84, 85, 78); unpack(k, 86, 87, 79); unpack(k, 80, 81, 76); unpack(k, 82, 83, 77)
    for r in range(4): k(f"v_add_f32 v{84+r}, s25, v{84+r}")
    k("v_cvt_pk_bf16_f32 v78, v84, v85")
    k("v_cvt_pk_bf16_f32 v79, v86, v87")
    unpack(k, 84, 85, 78); unpack(k, 86, 87, 79)
    for r in range(4): k(f"v_sqrt_f32 v{84+r}, v{84+r}")
    k("s_waitcnt vmcnt(2)")
    for ch in range(2): unpack(k, 88+4*ch, 89+4*ch, 72+2*ch); unpack(k, 90+4*ch, 91+4*ch, 73+2*ch)
    k("v_cvt_pk_bf16_f32 v78, v84, v85")
    k("v_cvt_pk_bf16_f32 v79, v86, v87")
    for ch in range(2):
        for j in (0, 2): k(f"v_pk_add_f32 {P(88+4*ch+j)}, {P(88+4*ch+j)}, {P(80+j)} neg_lo:[0,1] neg_hi:[0,1]")
    unpack(k, 84, 85, 78); unpack(k, 86, 87, 79)
    for ch in range(2):
        k(f"v_cvt_pk_bf16_f32 v{72+2*ch}, v{88+4*ch}, v{89+4*ch}")
        k(f"v_cvt_pk_bf16_f32 v{73+2*ch}, v{90+4*ch}, v{91+4*ch}")
    for r in range(4): k(f"v_rcp_f32 v{84+r}, v{84+r}")
    for ch in range(2): unpack(k, 88+4*ch, 89+4*ch, 72+2*ch); unpack(k, 90+4*ch, 91+4*ch, 73+2*ch)
    for ch in range(2):
        for j in (0, 2): k(f"v_pk_mul_f32 {P(88+4*ch+j)}, {P(88+4*ch+j)}, {P(84+j)}")
    for ch in range(2):
        k(f"v_cvt_pk_bf16_f32 v{72+2*ch}, v{88+4*ch}, v{89+4*ch}")
        k(f"v_cvt_pk_bf16_f32 v{73+2*ch}, v{90+4*ch}, v{91+4*ch}")
        k(f"ds_write_b64 v4, v[{72+2*ch}:{73+2*ch}] offset:{480 + ch*UP}")
    k(f"""
    s_lshl_b32 s13, s93, 3
    s_add_u32 s13, s13, s3
    s_cmp_lg_u32 s13, 1
    s_cbranch_scc1 L_pw_d
    s_mov_b32 s13, 0
    v_mov_b32 v56, {FLG+64}
    ds_read_b32 v60, v56
    s_and_b32 s15, s2, 7
    s_lshl_b32 s15, s15, 10
    s_add_u32 s15, s15, {PW}
    s_waitcnt lgkmcnt(0)
    L_pw_b:
    buffer_load_dwordx4 v[56:59], v3, s[8:11], s15 offen sc1
    s_add_u32 s13, s13, 1
    s_waitcnt vmcnt(0)
    v_xor_b32 v56, v56, v60
    v_xor_b32 v57, v57, v60
    v_xor_b32 v58, v58, v60
    v_xor_b32 v59, v59, v60
    v_or3_b32 v56, v56, v57, v58
    v_or_b32 v56, v56, v59
    v_cmp_ne_u32 vcc, 0, v56
    s_cmp_eq_u64 vcc, 0
    s_cbranch_scc1 L_pw_d
    s_cmp_ge_u32 s13, {SPIN}
    s_cbranch_scc1 L_pw_d
    s_sleep {CFS}
    s_branch L_pw_b
    L_pw_d:
    s_lshl_b32 s13, s93, 3
    s_add_u32 s13, s13, s3
    s_lshl_b32 s14, s2, 4
    s_add_u32 s13, s13, s14
    s_cmp_lg_u32 s13, 1
    s_cbranch_scc1 L_dz
    s_mov_b64 exec, 1
    global_store_dwordx2 v12, v[12:13], s[98:99] sc1
    s_mov_b64 exec, -1
    L_dz:
    """)
    k("s_waitcnt vmcnt(0) lgkmcnt(0)")
    k("s_barrier")
    stamp(k, 7)
    lg = Q(k, 'lgkmcnt', 15)
    pool = [56+4*i for i in range(27)]
    reg = {}
    def ld(i0p, kind, s):
        r = pool.pop(0); reg[(i0p, kind, s)] = r
        if kind == 'A':
            off = 64*(63 - i0p - 8*s)
            lg.issue(f"ds_read_b64 v[{r}:{r+1}], v10 offset:{off}", (i0p, kind, s))
            lg.issue(f"ds_read_b64 v[{r+2}:{r+3}], v10 offset:{off+8}", (i0p, kind, s))
        else:
            lg.issue(f"ds_read_b128 v[{r}:{r+3}], v11 offset:{512*s + 64*(1-i0p)}", (i0p, kind, s))
    order = [(i, kd, s) for i in range(2) for s in range(8) for kd in 'AB']
    mf = []
    for i in range(2):
        for m in range(8):
            for s in range(8):
                for w in range(8):
                    if s + w <= 7 and max(s, w) == m: mf.append((i, s, w))
    last_use = {}
    for n, (i, s, w) in enumerate(mf):
        last_use[(i, 'A', s)] = n; last_use[(i, 'B', w)] = n
    li = 0; npre = 0
    for _ in range(8): ld(*order[li]); li += 1
    k(f"""
    v_mov_b32 v164, -1
    v_mov_b32 v165, -1
    v_mov_b32 v166, -1
    v_mov_b32 v167, -1
    s_mov_b32 s48, s18
    s_mov_b32 s49, s19
    s_mov_b32 s51, 0x00020000
    s_cmp_eq_u32 s93, 1
    s_cselect_b32 s50, 0, s10
    s_add_u32 s15, s26, {4*MB}
    buffer_store_dwordx2 v[164:165], v5, s[48:51], s15 offen sc1
    s_add_u32 s15, s27, {4*MB}
    buffer_store_dwordx2 v[164:165], v5, s[48:51], s15 offen sc1
    s_nop 1
    """)
    freed = [(12, 164)]
    for n, (i, s, w) in enumerate(mf):
        while (i, 'A', s) not in reg or (i, 'B', w) not in reg:
            ld(*order[li]); li += 1
        lg.need((i, 'A', s), (i, 'B', w))
        c = s + w; a = reg[(i, 'A', s)]; b = reg[(i, 'B', w)]
        k(f"v_mfma_f32_16x16x32_bf16 v[{16+4*c}:{19+4*c}], v[{a}:{a+3}], v[{b}:{b+3}], v[{16+4*c}:{19+4*c}]")
        for key in [(i, 'A', s), (i, 'B', w)]:
            if last_use[key] == n: freed.append((n+3, reg[key]))
        while freed and freed[0][0] <= n: pool.append(freed.pop(0)[1])
        if n % 3 == 1 and npre < NWP: wpre(npre); npre += 1
        if li < len(order) and pool and (lg.n - lg.done) <= 12:
            ld(*order[li]); li += 1
    assert li == len(order) and npre == NWP
    k(f"""
    s_lshl_b32 s13, s5, 15
    s_lshl_b32 s14, s6, 10
    s_add_u32 s13, s13, s14
    s_add_u32 s13, s13, {RED}
    v_add_u32 v9, s13, v3
    s_lshl_b32 s13, s5, 15
    s_lshl_b32 s14, s6, 13
    s_add_u32 s13, s13, s14
    s_add_u32 s13, s13, {RED}
    v_add_u32 v12, s13, v3
    s_mul_i32 s13, s5, {UP}
    s_lshl_b32 s14, s6, 10
    s_add_u32 s13, s13, s14
    s_add_u32 s13, s13, 480
    v_add_u32 v13, s13, v6
    ds_read_b64 v[88:89], v13
    ds_read_b64 v[90:91], v13 offset:512
    """)
    for p in range(4):
        if p < 3:
            k(f"s_cmp_lg_u32 s6, {p}")
            k(f"s_cbranch_scc1 L_{N}_rv{p+1}")
        for c in range(8):
            if c in (2*p, 2*p+1): continue
            k(f"ds_write_b128 v9, v[{16+4*c}:{19+4*c}] offset:{4096*c}")
        for r in range(8): k(f"v_mov_b32 v{56+r}, v{16+8*p+r}")
        others = [q for q in range(4) if q != p]
        for j, q in enumerate(others): k(f"v_add_u32 v{92+j}, {1024*q}, v12")
        if p < 3:
            k(f"s_branch L_{N}_ep")
            k.label(f"L_{N}_rv{p+1}")
    k.label(f"L_{N}_ep")
    k("s_waitcnt lgkmcnt(6)")
    k("v_lshlrev_b32 v52, 16, v52")
    k("v_mov_b32 v53, v52")
    for j in range(4): unpack(k, 96+2*j, 97+2*j, 88+j)
    for j in range(4): k(f"v_pk_mul_f32 {P(96+2*j)}, {P(96+2*j)}, v[52:53]")
    for j in range(4): k(f"v_cvt_pk_bf16_f32 v{88+j}, v{96+2*j}, v{97+2*j}")
    k("s_waitcnt lgkmcnt(0)")
    k("s_barrier")
    for t in range(2):
        for j in range(3): k(f"ds_read_b128 v[{64+12*t+4*j}:{67+12*t+4*j}], v{92+j} offset:{4096*t}")
    for j in range(4): unpack(k, 96+2*j, 97+2*j, 88+j)
    for j in range(4): unpack(k, 104+2*j, 105+2*j, 48+j)
    for t in range(2):
        k(f"s_waitcnt lgkmcnt({3-3*t})")
        for j in (0, 2):
            k(f"v_pk_add_f32 {P(56+4*t+j)}, {P(56+4*t+j)}, {P(64+12*t+j)}")
            k(f"v_pk_add_f32 {P(68+12*t+j)}, {P(68+12*t+j)}, {P(72+12*t+j)}")
        for j in (0, 2): k(f"v_pk_add_f32 {P(56+4*t+j)}, {P(56+4*t+j)}, {P(68+12*t+j)}")
    for j in range(4): k(f"v_cvt_pk_bf16_f32 v{64+j}, v{56+2*j}, v{57+2*j}")
    for j in range(4): unpack(k, 56+2*j, 57+2*j, 64+j)
    for j in range(4): k(f"v_pk_add_f32 {P(56+2*j)}, {P(56+2*j)}, {P(96+2*j)}")
    for j in range(4): k(f"v_cvt_pk_bf16_f32 v{64+j}, v{56+2*j}, v{57+2*j}")
    for j in range(4): unpack(k, 56+2*j, 57+2*j, 64+j)
    for j in range(4): k(f"v_pk_add_f32 {P(56+2*j)}, {P(56+2*j)}, {P(104+2*j)}")
    for j in range(4): k(f"v_cvt_pk_bf16_f32 v{64+j}, v{56+2*j}, v{57+2*j}")
    for j in range(4): k(f"v_min_u32 v{64+j}, -2, v{64+j}")
    k("buffer_store_dwordx2 v[64:65], v5, s[8:11], s26 offen sc1")
    k("buffer_store_dwordx2 v[66:67], v5, s[8:11], s27 offen sc1")
    vm = Q(k, 'vmcnt', 63); lg = Q(k, 'lgkmcnt', 15)
    def unit(p):
        for i in range(3):
            k(f"s_add_u32 m0, s25, {p*24576 + i*1024}")
            k(f"s_add_u32 s14, s12, {i*32768 + p*8192}")
            vm.issue(f"buffer_load_dwordx4 v3, {'s[8:11]' if i == 0 else 's[48:51]'}, s14 offen sc1 lds", f"U{p}")
    def wl(ks):
        r = wreg(ks)
        k(f"s_add_u32 s14, s55, {4096*(ks//4)}")
        vm.issue(f"buffer_load_dwordx4 v[{r}:{r+3}], v3, s[8:11], s14 offen offset:{1024*(ks&3)} sc1", f"W{ks}")
    for ks in range(NWP): vm.tags[f"W{ks}"] = 0
    def csdot(ks): pass
    def csl():
        k("v_lshlrev_b32 v13, 2, v1")
        k("s_lshl_b32 s14, s6, 11")
        k(f"s_add_u32 s14, s14, {CSQ}")
        for j in range(8): vm.issue(f"buffer_load_dword v{CSV+8+j}, v13, s[8:11], s14 offen offset:{256*j} sc1", "CS")
    def css():
        vm.need("CS")
        for st in (1, 2):
            for j in range(0, 8, 2*st): k(f"v_add_f32 v{CSV+8+j}, v{CSV+8+j}, v{CSV+8+j+st}")
        k(f"v_add_f32 v166, v{CSV+8}, v{CSV+12}")
        k("v_mov_b32 v167, 0")
    def signal(p):
        V = CSV
        vm.need(f"U{p}")
        k.label(f"L_vf{p}")
        for i in range(3): k(f"ds_read_b128 v[{V+4*i}:{V+4*i+3}], v5 offset:{(p&1)*24576 + 1024*i}")
        k(f"v_mov_b32 v6, {p+1}")
        k("s_waitcnt lgkmcnt(0)")
        lg.reset()
        for i in range(0, 12, 3): k(f"v_max3_u32 v{V+i}, v{V+i}, v{V+i+1}, v{V+i+2}")
        k(f"v_max3_u32 v{V}, v{V}, v{V+3}, v{V+6}")
        k(f"v_max_u32 v{V}, v{V}, v{V+9}")
        k(f"v_cmp_eq_u32 vcc, -1, v{V}")
        k("s_cmp_eq_u64 vcc, 0")
        k(f"s_cbranch_scc1 L_vo{p}")
        k("s_add_u32 s13, s13, 1")
        k(f"s_cmp_ge_u32 s13, {RETRY}")
        k(f"s_cbranch_scc1 L_vo{p}")
        k(f"s_sleep {RSL}")
        for i in range(3):
            k(f"s_add_u32 m0, s25, {p*24576 + i*1024}")
            k(f"s_add_u32 s14, s12, {i*32768 + p*8192}")
            k(f"buffer_load_dwordx4 v3, {'s[8:11]' if i == 0 else 's[48:51]'}, s14 offen sc1 lds")
        k("s_waitcnt vmcnt(0)")
        k(f"s_branch L_vf{p}")
        k.label(f"L_vo{p}")
        lg.issue("ds_write_b32 v2, v6", "sig")
        if p == 1: k("v_add_u32 v5, 49152, v5")
    def dsetup():
        k(f"""
    s_and_b32 s30, s2, 7
    s_lshr_b32 s31, s2, 3
    s_lshl_b32 s30, s30, 2
    s_lshr_b32 s12, s31, 3
    s_add_u32 s30, s30, s12
    s_and_b32 s31, s31, 7
    s_bfe_u32 s12, s3, 0x10001
    s_lshl_b32 s32, s31, 1
    s_add_u32 s32, s32, s12
    s_and_b32 s12, s3, 1
    s_lshl_b32 s33, s30, 1
    s_add_u32 s33, s33, s12
    s_xor_b32 s12, s32, 1
    s_mul_i32 s34, s32, {86*1024}
    s_mul_i32 s35, s12, {86*1024}
    s_xor_b32 s12, s33, 1
    s_mul_i32 s36, s33, {86*1024}
    s_mul_i32 s37, s12, {86*1024}
    s_lshl_b32 s12, s3, 10
    s_add_u32 s13, s12, {WD}
    s_add_u32 s34, s34, s13
    s_add_u32 s35, s35, s13
    s_add_u32 s13, s12, {HB}
    s_add_u32 s36, s36, s13
    s_add_u32 s37, s37, s13
    s_cmp_ge_u32 s3, 6
    s_cselect_b32 s22, 0, s10
        """)
    def wdl(n, i, vm=None):
        r = WD0 + 8*n + 4*i
        k(f"s_add_u32 s14, s{34+i}, {8192*n}")
        srd = "s[20:23]" if n == 10 else "s[8:11]"
        ins = f"buffer_load_dwordx4 v[{r}:{r+3}], v3, {srd}, s14 offen sc1"
        if vm: vm.issue(ins, "WD")
        else: k(ins)
    wdq = [(n, i) for n in range(11) for i in range(2)]
    k("s_waitcnt vmcnt(0)")
    k("s_barrier")
    stamp(k, 8)
    k(f"""
    v_mov_b32 v4, {FLG}
    v_lshrrev_b32 v7, 5, v1
    s_cmp_lt_u32 s2, {NPROD}
    s_cbranch_scc1 L_{N}_prod
    """)
    dsetup()
    k(f"""
    s_mov_b32 s4, s52
    s_mov_b32 s5, s53
    s_mov_b32 s6, s54
    s_mul_i32 s12, s4, 98304
    s_lshl_b32 s13, s3, 10
    s_add_u32 s12, s12, s13
    s_add_u32 s12, s12, {XB}
    s_mul_i32 s25, s3, 3072
    v_add_u32 v5, s25, v3
    s_cmp_eq_u32 s4, 21
    s_cselect_b32 s50, 0, s10
    """)
    k("s_mov_b32 s13, 0")
    if EARLYU == 0: unit(0)
    for ks in range(NWP, NWP2): wl(ks)
    csl()
    k(f"""
    v_and_b32 v6, 15, v1
    v_lshrrev_b32 v12, 2, v6
    v_lshl_add_u32 v12, v7, 3, v12
    v_lshlrev_b32 v12, 6, v12
    v_and_b32 v8, 3, v6
    v_lshl_add_u32 v12, v8, 3, v12
    v_and_b32 v8, 16, v1
    v_lshl_add_u32 v12, v8, 1, v12
    v_add_u32 v14, 49152, v12
    s_lshl_b32 s15, s3, 2
    v_add_u32 v2, s15, v4
    s_mov_b32 s28, 0
    s_mov_b32 s29, 0
    """)
    for r in range(48): k(f"v_mov_b32 v{ACC+r}, 0")
    for ks in range(NWP2):
        if ks == EARLYU and EARLYU > 0: unit(0)
        if ks < NWP: csdot(ks)
    css()
    signal(0)
    stamp(k, 2)
    unit(1); unit(2); unit(3)
    def poll(half, need, tag):
        c = 28 + half
        k(f"""
        s_cmp_ge_u32 s{c}, {need}
        s_cbranch_scc1 L_{N}_pd{tag}
        L_{N}_pl{tag}:
        ds_read_b128 v[8:11], v4 offset:{16*half}
        s_waitcnt lgkmcnt(0)
        v_min_u32 v8, v8, v9
        v_min3_u32 v8, v8, v10, v11
        s_nop 0
        v_readfirstlane_b32 s{c}, v8
        s_cmp_ge_u32 s{c}, {need}
        s_cbranch_scc0 L_{N}_pl{tag}
        L_{N}_pd{tag}:
        """)
    def xr(ks, lb, h):
        b = 12 if ks < 16 else 14
        r = XF+12*(ks&3)+4*lb+2*h
        lg.issue(f"ds_read_b64_tr_b16 v[{r}:{r+1}], v{b} offset:{3072*(ks%16)+1024*lb+256*h}", f"x{ks}_{lb}")
    poll(0, 1, "a")
    for st in range(2):
        for lb in range(3): xr(st, lb, 0); xr(st, lb, 1)
    FCK = int(os.environ.get('FCK', '27'))
    for ks in range(32):
        if ks+2 < 32 and (ks+2) % 4 == 0: poll(((ks+2)//4) & 1, (ks+2)//8 + 1, f"m{ks}")
        vm.need(f"W{ks}")
        if ks == 0: stamp(k, 4)
        if ks in (2, 5, 8): signal({2:1, 5:2, 8:3}[ks])
        w = wreg(ks)
        for lb in range(3):
            lg.need(f"x{ks}_{lb}")
            a = ACC+16*lb; x = XF+12*(ks&3)+4*lb
            k(f"v_mfma_f32_32x32x16_bf16 v[{a}:{a+15}], v[{w}:{w+3}], v[{x}:{x+3}], v[{a}:{a+15}]")
            if ks+2 < 32: xr(ks+2, lb, 0); xr(ks+2, lb, 1)
        if ks >= NWP: csdot(ks)
        for j in late_w.get(ks, []): wl(j)
        j = ks - WDLAG
        if 2 <= j < NDI: wdl(j >> 1, j & 1, vm=vm)
        if ks == FCK:
            k(f"""
            v_and_b32 v15, 31, v1
            v_lshlrev_b32 v15, 3, v15
            s_mul_i32 s15, s4, 768
            s_add_u32 s15, s15, {FCG}
            s_cmp_eq_u32 s4, 21
            s_cselect_b32 s47, 0, 256
            s_add_u32 s48, s15, s47
            s_add_u32 s49, s48, s47
            s_mov_b32 s47, s15
            """)
            for lb in range(3): vm.issue(f"buffer_load_dwordx2 v[{FG+2*lb}:{FG+2*lb+1}], v15, s[8:11], s{47+lb} offen sc1", "FG")
    stamp(k, 3)
    k(f"""
    s_cmp_ge_u32 s6, 86
    s_cbranch_scc1 L_{N}_drest
    s_mov_b32 s26, {f32hex(-LOG2E)}
    s_mov_b32 s27, 0
    v_add_f32 v166, v166, v167
    s_lshl_b32 s12, s3, 7
    s_add_u32 s12, s12, {FLG+256}
    v_mov_b32 v167, v166
    v_and_b32 v8, 31, v1
    v_lshl_add_u32 v8, v8, 2, s12
    v_permlane32_swap_b32 v166, v167
    v_lshl_add_u32 v9, v7, 4, s12
    v_add_f32 v166, v166, v167
    ds_write_b32 v8, v166
    ds_read_b128 v[{CSV}:{CSV+3}], v9
    ds_read_b128 v[{CSV+4}:{CSV+7}], v9 offset:32
    ds_read_b128 v[{CSV+8}:{CSV+11}], v9 offset:64
    ds_read_b128 v[{CSV+12}:{CSV+15}], v9 offset:96
    """)
    vm.need("FG")
    k(f"""
    s_branch L_{N}_gc
    L_{N}_gp:
    s_sleep 4
    """)
    for lb in range(3): k(f"buffer_load_dwordx2 v[{FG+2*lb}:{FG+2*lb+1}], v15, s[8:11], s{47+lb} offen sc1")
    k(f"""
    s_add_u32 s27, s27, 1
    s_waitcnt vmcnt(0)
    L_{N}_gc:
    v_and_b32 v8, v{FG+1}, v{FG+3}
    v_and_b32 v8, v8, v{FG+5}
    v_cmp_ne_u32 vcc, 1, v8
    s_cmp_eq_u64 vcc, 0
    s_cbranch_scc1 L_{N}_gd
    s_cmp_lt_u32 s27, {SPIN}
    s_cbranch_scc1 L_{N}_gp
    L_{N}_gd:
    """)
    for lb in range(3):
        c = FCR+6*lb
        k(f"v_and_b32 v{c+4}, 0xffff0000, v{FG+2*lb}")
        k(f"v_lshlrev_b32 v{c}, 16, v{FG+2*lb}")
    for lb in range(3): k(f"v_rcp_f32 v{FCR+6*lb+2}, v{FCR+6*lb+4}")
    for lb in range(3):
        c = FCR+6*lb
        k(f"v_sub_f32 v{c+1}, 0, v{c}")
        k(f"v_sub_f32 v{c}, 0, v{c}")
        k(f"v_mov_b32 v{c+5}, v{c+4}")
        k(f"v_mul_f32 v{c+3}, s26, v{c+2}")
        k(f"v_mul_f32 v{c+2}, s26, v{c+2}")
    k(f"""
    s_mul_i32 s15, s4, {3*86*1024}
    s_lshl_b32 s12, s6, 10
    s_add_u32 s15, s15, s12
    s_add_u32 s15, s15, {HB}
    s_waitcnt lgkmcnt(0)
    """)
    for lb in range(3):
        g = ACC+16*lb; u = g+8; c = FCR+6*lb; o = XF+4*lb
        for j in range(0, 8, 2): k(f"v_pk_fma_f32 {P(g+j)}, {P(CSV+j)}, {P(c)}, {P(g+j)}")
        for j in range(0, 8, 2): k(f"v_pk_mul_f32 {P(g+j)}, {P(g+j)}, {P(c+2)}")
        for j in range(8):
            k(f"v_exp_f32 v{g+j}, v{g+j}")
        for j in range(0, 8, 2): k(f"v_pk_fma_f32 {P(u+j)}, {P(CSV+8+j)}, {P(c)}, {P(u+j)}")
        for j in range(0, 8, 2): k(f"v_pk_fma_f32 {P(g+j)}, {P(g+j)}, {P(c+4)}, {P(c+4)}")
        for j in range(8):
            k(f"v_rcp_f32 v{g+j}, v{g+j}")
        k("s_nop 0")
        for j in range(0, 8, 2): k(f"v_pk_mul_f32 {P(u+j)}, {P(u+j)}, {P(g+j)}")
        for j in range(4): k(f"v_cvt_pk_bf16_f32 v{o+j}, v{u+2*j}, v{u+2*j+1}")
        k(f"buffer_store_dwordx4 v[{o}:{o+3}], v3, s[8:11], s15 offen sc1")
        if lb == 0:
            k(f"s_cmp_eq_u32 s4, 21")
            k(f"s_cbranch_scc1 L_{N}_pub")
        k(f"s_add_u32 s15, s15, {86*1024}")
    k(f"""
    L_{N}_pub:
    s_lshl_b32 s15, s4, 9
    s_lshl_b32 s12, s3, 6
    s_add_u32 s15, s15, s12
    s_lshl_b32 s12, s5, 2
    s_add_u32 s15, s15, s12
    s_add_u32 s15, s15, {HF}
    v_mov_b32 v8, 0
    v_mov_b32 v9, 1
    s_waitcnt vmcnt(0)
    s_mov_b64 exec, 1
    buffer_store_dword v9, v8, s[8:11], s15 offen sc1
    s_mov_b64 exec, -1
    """)
    stamp(k, 5)
    k(f"s_branch L_{N}_drest")
    k.label(f"L_{N}_dall")
    dsetup()
    for (n, i) in wdq[2:NDI]: wdl(n, i)
    k.label(f"L_{N}_drest")
    k("s_waitcnt lgkmcnt(0)")
    k("s_barrier")
    for (n, i) in wdq[:2] + wdq[NDI:]: wdl(n, i)
    for r in range(64): k(f"v_mov_b32 v{A2+r}, 0")
    k(f"""
    s_lshl_b32 s12, s30, 1
    s_mul_i32 s13, s12, 171
    s_lshr_b32 s13, s13, 9
    s_add_u32 s12, s12, 1
    s_mul_i32 s12, s12, 171
    s_lshr_b32 s12, s12, 9
    s_lshl_b32 s13, s13, 9
    s_lshl_b32 s12, s12, 9
    s_add_u32 s38, s13, {HF}
    s_add_u32 s39, s12, {HF}
    v_lshlrev_b32 v10, 2, v1
    v_and_b32 v8, 15, v1
    v_cmp_gt_u32 s[26:27], 11, v8
    v_sub_u32 v9, 11, v7
    v_cmp_gt_u32 s[52:53], v9, v8
    v_and_b32 v6, 31, v1
    v_lshlrev_b32 v5, 8, v7
    v_lshl_add_u32 v5, v6, 1, v5
    s_lshl_b32 s24, s32, 11
    s_lshl_b32 s25, s33, 15
    s_add_u32 s24, s24, s25
    s_lshr_b32 s12, s3, 2
    s_lshl_b32 s12, s12, 10
    s_add_u32 s24, s24, s12
    s_add_u32 s25, s24, {XC}
    s_add_u32 s24, s24, {XB}
    """)
    k(f"""
    s_mov_b32 s13, 0
    s_cmp_eq_u32 s3, 0
    s_cbranch_scc0 L_{N}_hw
    L_{N}_hq:
    buffer_load_dword v12, v10, s[8:11], s38 offen sc1
    buffer_load_dword v13, v10, s[8:11], s39 offen sc1
    buffer_load_dword v14, v10, s[8:11], s38 offen offset:256 sc1
    buffer_load_dword v15, v10, s[8:11], s39 offen offset:256 sc1
    s_add_u32 s13, s13, 1
    s_waitcnt vmcnt(0)
    v_and_b32 v12, v12, v13
    v_and_b32 v14, v14, v15
    v_cmp_ne_u32 vcc, 1, v12
    v_cmp_ne_u32 s[54:55], 1, v14
    s_and_b64 vcc, vcc, s[26:27]
    s_and_b64 s[54:55], s[54:55], s[52:53]
    s_or_b64 vcc, vcc, s[54:55]
    s_cbranch_scc0 L_{N}_hr
    s_cmp_ge_u32 s13, {SPIN}
    s_cbranch_scc1 L_{N}_hr
    s_sleep 3
    s_branch L_{N}_hq
    L_{N}_hr:
    v_mov_b32 v12, 1
    ds_write_b32 v4, v12 offset:48
    s_branch L_{N}_hd
    L_{N}_hw:
    ds_read_b32 v12, v4 offset:48
    s_waitcnt lgkmcnt(0)
    v_readfirstlane_b32 s12, v12
    s_cmp_eq_u32 s12, 1
    s_cbranch_scc1 L_{N}_hd
    s_sleep 1
    s_branch L_{N}_hw
    L_{N}_hd:
    s_mov_b32 s22, {WS_USED}
    v_mov_b32 v12, v3
    """)
    stamp(k, 6)
    vm = Q(k, 'vmcnt', 63)
    HD = 6
    def hload(n):
        if n == 10:
            k("s_cmp_ge_u32 s3, 6")
            k("s_cselect_b32 s22, 0, s22")
        for i in range(2):
            r = HR + 8*(n % HD) + 4*i
            vm.issue(f"buffer_load_dwordx4 v[{r}:{r+3}], v12, s[20:23], s{36+i} offen sc1", f"S{n}")
        k("v_add_u32 v12, 8192, v12")
    for n in range(HD): hload(n)
    for n in range(8):
        q, r = n >> 2, n & 3
        vm.issue(f"buffer_load_ushort v{RES+n}, v5, s[8:11], s24 offen offset:{(8*q+r)*64} sc1", "RES")
    k("s_and_b32 s13, s3, 3")
    for a in range(4):
        k(f"""
        s_xor_b32 s12, s13, {a}
        s_lshl_b32 s12, s12, 14
        s_lshl_b32 s15, s3, 11
        s_add_u32 s12, s12, s15
        v_add_u32 v{8+a}, s12, v3
        """)
    k(f"""
    s_lshl_b32 s12, s3, 14
    v_add_u32 v13, s12, v3
    v_add_u32 v14, 0x10000, v8
    v_add_u32 v15, 0x10000, v9
    v_add_u32 v0, 0x10000, v10
    v_add_u32 v2, 0x10000, v11
    """)
    for n in range(11):
        vm.need(f"S{n}")
        for ad in range(2):
            for al in range(2):
                a = A2 + 16*(2*ad+al); w = WD0+8*n+4*ad; h = HR+8*(n % HD)+4*al
                k(f"v_mfma_f32_32x32x16_bf16 v[{a}:{a+15}], v[{w}:{w+3}], v[{h}:{h+3}], v[{a}:{a+15}]")
        if n >= 1 and n-1+HD < 11: hload(n-1+HD)
    k("s_nop 3")
    lg = Q(k, 'lgkmcnt', 15)
    hi = [14, 15, 0, 2]
    for n in range(8): k(f"v_lshlrev_b32 v{RES+n}, 16, v{RES+n}")
    for a in range(4):
        for q in range(4):
            ad = (8+a) if q < 2 else hi[a]
            lg.issue(f"ds_write_b128 v{ad}, v[{A2+16*a+4*q}:{A2+16*a+4*q+3}] offset:{1024*(q&1)}", "rw")
    lg.drain()
    k("s_barrier")
    FV = 16
    for q in range(2):
        for s_ in range(8):
            lg.issue(f"ds_read_b128 v[{FV+32*q+4*s_}:{FV+32*q+4*s_+3}], v13 offset:{2048*s_+1024*q}", f"rr{q}_{s_}")
    for q in range(2):
        b = FV+32*q
        for st in (1, 2, 4):
            for s_ in range(0, 8, 2*st):
                lg.need(f"rr{q}_{min(7, s_+2*st-1)}")
                for j in (0, 2): k(f"v_pk_add_f32 {P(b+4*s_+j)}, {P(b+4*s_+j)}, {P(b+4*(s_+st)+j)}")
        k(f"v_cvt_pk_bf16_f32 v{T+2*q}, v{b}, v{b+1}")
        k(f"v_cvt_pk_bf16_f32 v{T+2*q+1}, v{b+2}, v{b+3}")
        unpack(k, b, b+1, T+2*q); unpack(k, b+2, b+3, T+2*q+1)
        for j in (0, 2): k(f"v_pk_add_f32 {P(b+j)}, {P(b+j)}, {P(RES+4*q+j)}")
        k(f"v_cvt_pk_bf16_f32 v{T+2*q}, v{b}, v{b+1}")
        k(f"v_cvt_pk_bf16_f32 v{T+2*q+1}, v{b+2}, v{b+3}")
    k("s_cmp_eq_u32 s93, 1")
    k(f"s_cbranch_scc1 L_{N}_out")
    k(f"""
    v_mov_b32 v14, 0x3f803f80
    s_lshl_b32 s12, s3, 14
    v_add_u32 v8, s12, v5
    v_mov_b32 v12, 0
    v_mov_b32 v9, 0
    """)
    for q in range(2):
        for r in range(4):
            op = "ds_write_b16_d16_hi" if r & 1 else "ds_write_b16"
            k(f"{op} v8, v{T+2*q+(r>>1)} offset:{(8*q+r)*64}")
    k("ds_read_b128 v[16:19], v13")
    for q in range(2):
        for j in range(2):
            k(f"v_dot2_f32_bf16 v12, v{T+2*q+j}, v14, v12")
            k(f"v_dot2_f32_bf16 v9, v{T+2*q+j}, v{T+2*q+j}, v9")
    k(f"""
    v_lshlrev_b32 v5, 3, v6
    v_lshl_add_u32 v5, v7, 2, v5
    s_lshl_b32 s12, s33, 8
    v_permlane32_swap_b32 v12, v9
    s_add_u32 s12, s12, {ST3}
    s_waitcnt lgkmcnt(0)
    buffer_store_dwordx4 v[16:19], v3, s[8:11], s25 offen sc1
    v_add_f32 v12, v12, v9
    buffer_atomic_add_f32 v12, v5, s[8:11], s12 offen
    s_lshl_b32 s12, s2, 2
    s_add_u32 s12, s12, {LF}
    v_lshlrev_b32 v8, 10, v1
    ds_read_b32 v9, v4 offset:64
    """)
    stamp(k, 9)
    k(f"""
    s_waitcnt vmcnt(0) lgkmcnt(0)
    s_barrier
    s_cmp_lg_u32 s3, 0
    s_cbranch_scc1 L_lf_np
    s_mov_b64 exec, 0xff
    buffer_store_dword v9, v8, s[8:11], s12 offen sc1
    s_mov_b64 exec, -1
    L_lf_np:
    """)
    stamp_flush(k, slot, 10, 3)
    k("s_mov_b64 exec, -1")
    for r, v in sets2.items(): k(f"s_mov_b32 s{r}, {v}")
    k(f"""
    s_branch L_layer
    L_{N}_out:
    s_mov_b32 s28, s96
    s_mov_b32 s29, s97
    s_mov_b32 s30, {2048*512*2}
    s_mov_b32 s31, 0x00020000
    v_lshlrev_b32 v5, 10, v6
    v_lshl_add_u32 v5, v7, 4, v5
    s_lshl_b32 s25, s33, 15
    s_lshl_b32 s12, s32, 6
    s_add_u32 s25, s25, s12
    s_lshr_b32 s12, s3, 2
    s_lshl_b32 s12, s12, 5
    s_add_u32 s25, s25, s12
    v_permlane32_swap_b32 v{T}, v{T+2}
    v_permlane32_swap_b32 v{T+1}, v{T+3}
    buffer_store_dwordx4 v[{T}:{T+3}], v5, s[28:31], s25 offen
    """)
    stamp(k, 9)
    stamp_flush(k, slot, 10, 3)
    k(f"s_branch {E}")
    k.label(f"L_{N}_prod")
    k(f"""
    s_mul_i32 s4, s2, 5
    s_min_u32 s4, s4, 60
    s_lshl_b32 s12, s4, 15
    s_lshl_b32 s13, s3, 10
    s_add_u32 s12, s12, s13
    s_mov_b32 s26, {2*MB}
    s_mov_b32 s27, 0x00020000
    s_add_u32 s24, s18, {XB}
    s_addc_u32 s25, s19, 0
    s_lshl_b32 s5, s3, 14
    v_and_b32 v6, 15, v1
    v_lshrrev_b32 v12, 2, v6
    v_lshl_add_u32 v12, v7, 3, v12
    v_lshlrev_b32 v12, 6, v12
    v_and_b32 v8, 3, v6
    v_lshl_add_u32 v12, v8, 3, v12
    v_and_b32 v8, 16, v1
    v_lshl_add_u32 v12, v8, 1, v12
    v_add_u32 v12, s5, v12
    v_mov_b32 v13, 0x3f803f80
    """)
    for r in range(10): k(f"v_mov_b32 v{16+r}, 0")
    k("s_mov_b32 s13, 0")
    pv = Q(k, 'vmcnt', 63); pl = Q(k, 'lgkmcnt', 15)
    def pdma(n):
        k(f"s_add_u32 m0, s5, {1024*(n % 16)}")
        k(f"s_add_u32 s14, s12, {(n >> 2)*32768 + (n & 3)*8192}")
        pv.issue(f"buffer_load_dwordx4 v3, s[24:27], s14 offen sc1 lds", f"d{n}")
    def prd(n):
        pv.need(f"d{n}")
        r = 32 + 4*(n % 4)
        pl.issue(f"ds_read_b64_tr_b16 v[{r}:{r+1}], v12 offset:{1024*(n%16)}", f"r{n}")
        pl.issue(f"ds_read_b64_tr_b16 v[{r+2}:{r+3}], v12 offset:{1024*(n%16)+256}", f"r{n}")
    def dots(n):
        r = 32 + 4*(n % 8); lb = n >> 2
        for e in range(4):
            k(f"v_dot2_f32_bf16 v{16+2*lb}, v{r+e}, v13, v{16+2*lb}")
            k(f"v_dot2_f32_bf16 v{17+2*lb}, v{r+e}, v{r+e}, v{17+2*lb}")
    def prd8(n):
        pv.need(f"d{n}")
        r = 32 + 4*(n % 8)
        pl.issue(f"ds_read_b64_tr_b16 v[{r}:{r+1}], v12 offset:{1024*(n%16)}", f"r{n}")
        pl.issue(f"ds_read_b64_tr_b16 v[{r+2}:{r+3}], v12 offset:{1024*(n%16)+256}", f"r{n}")
    def bcheck(lb):
        k("s_nop 2")
        k.label(f"L_pv{lb}")
        k(f"v_cmp_u_f32 vcc, v{17+2*lb}, v{17+2*lb}")
        k("s_cmp_eq_u64 vcc, 0")
        k(f"s_cbranch_scc1 L_po{lb}")
        k("s_add_u32 s13, s13, 1")
        k(f"s_cmp_ge_u32 s13, {RETRY}")
        k(f"s_cbranch_scc1 L_po{lb}")
        k(f"s_sleep {RSL}")
        for n in range(4*lb, 4*lb+4):
            k(f"s_add_u32 m0, s5, {1024*(n % 16)}")
            k(f"s_add_u32 s14, s12, {(n >> 2)*32768 + (n & 3)*8192}")
            k(f"buffer_load_dwordx4 v3, s[24:27], s14 offen sc1 lds")
        k(f"v_mov_b32 v{16+2*lb}, 0")
        k(f"v_mov_b32 v{17+2*lb}, 0")
        k("s_waitcnt vmcnt(0) lgkmcnt(0)")
        for n in range(4*lb, 4*lb+4):
            r = 64 + 4*(n & 3)
            k(f"ds_read_b64_tr_b16 v[{r}:{r+1}], v12 offset:{1024*(n%16)}")
            k(f"ds_read_b64_tr_b16 v[{r+2}:{r+3}], v12 offset:{1024*(n%16)+256}")
        k("s_waitcnt lgkmcnt(0)")
        for r in range(64, 80):
            k(f"v_dot2_f32_bf16 v{16+2*lb}, v{r}, v13, v{16+2*lb}")
            k(f"v_dot2_f32_bf16 v{17+2*lb}, v{r}, v{r}, v{17+2*lb}")
        k("s_nop 2")
        k(f"s_branch L_pv{lb}")
        k.label(f"L_po{lb}")
    for n in range(4): pdma(n)
    for n in range(4): prd8(n)
    for n in range(4): pl.need(f"r{n}"); dots(n)
    bcheck(0)
    stamp(k, 2)
    for n in range(4, 20): pdma(n)
    prd8(4); prd8(5); prd8(6)
    for n in range(4, 20):
        if n+3 < 20: prd8(n+3)
        pl.need(f"r{n}"); dots(n)
        if n % 4 == 3: bcheck(n >> 2)
    k("s_nop 2")
    for lb in range(5): k(f"v_permlane32_swap_b32 v{16+2*lb}, v{17+2*lb}")
    for lb in range(5): k(f"v_add_f32 v{16+2*lb}, v{16+2*lb}, v{17+2*lb}")
    k(f"""
    v_and_b32 v8, 31, v1
    v_lshlrev_b32 v8, 3, v8
    v_lshl_add_u32 v8, v7, 2, v8
    v_add_u32 v8, s5, v8
    """)
    for lb in range(5): k(f"ds_write_b32 v8, v{16+2*lb} offset:{256*lb}")
    k(f"""
    s_waitcnt lgkmcnt(0)
    s_barrier
    s_cmp_ge_u32 s3, 3
    s_cbranch_scc1 L_{N}_pe
    v_lshlrev_b32 v8, 3, v0
    v_add_u32 v9, 0x10000, v8
    """)
    for w in range(8): k(f"ds_read_b64 v[{32+2*w}:{33+2*w}], v{8 + (w >> 2)} offset:{16384*(w & 3)}")
    k("s_waitcnt lgkmcnt(0)")
    for st in (1, 2, 4):
        for w in range(0, 8, 2*st): k(f"v_pk_add_f32 {P(32+2*w)}, {P(32+2*w)}, {P(32+2*(w+st))}")
    k(f"""
    s_mov_b32 s24, {f32hex(1.0/512)}
    s_mov_b32 s25, {f32hex(1e-5)}
    v_mul_f32 v14, s24, v32
    v_mul_f32 v16, s24, v33
    v_fma_f32 v16, -v14, v14, v16
    v_max_f32 v16, 0, v16
    v_cvt_pk_bf16_f32 v14, v14, v16
    v_and_b32 v16, 0xffff0000, v14
    v_lshlrev_b32 v14, 16, v14
    v_add_f32 v16, s25, v16
    v_cvt_pk_bf16_f32 v16, v16, v16
    v_lshlrev_b32 v16, 16, v16
    v_sqrt_f32 v16, v16
    s_mul_i32 s4, s2, 1280
    s_add_u32 s4, s4, {FCG}
    v_cvt_pk_bf16_f32 v20, v14, v16
    v_mov_b32 v21, 1
    s_movk_i32 s6, 160
    v_cmp_gt_u32 vcc, s6, v0
    s_and_saveexec_b64 s[6:7], vcc
    buffer_store_dwordx2 v[20:21], v8, s[8:11], s4 offen sc1
    s_mov_b64 exec, s[6:7]
    s_nop 1
    L_{N}_pe:
    """)
    for i in (3, 5): stamp(k, i)
    k(f"s_branch L_{N}_dall")
    k.label(E)
    k("s_endpgm")
    return k

if __name__ == '__main__':
    import sys
    KN = "interleave_layers__ssm_conv_s4d__glu_gated_glu__prompt_kernel"
    sets1 = {86: XT0, 87: XT1, 88: ST1, 89: FCG1, 90: H, 91: HF1, 92: XT2, 93: 0, 94: CF1, 95: 2}
    sets2 = {86: XT2, 87: XT3, 88: ST3, 89: FCG2, 90: H2, 91: HF2, 92: 0, 93: 1, 94: CF2, 95: 6}
    p = Prog(); p.add_kernel(gen_mega(KN, sets1, sets2))
    t = p.text().replace('.amdgcn_target', f"; @launch grid=(256,1,1) block=(512,1,1) lds={LAYER_LDS}\n.amdgcn_target", 1)
    open(sys.argv[1], 'w').write(t)
```

```python
import asmlib, os
asmlib.STAMPS = bool(os.environ.get('STAMPS'))
from asmlib import *
from layout import *
from gen_k0 import f32hex, LOG2E
from gen_conv import unpack, U0, UP, KC0, KCP, KCH, RED
NPROD = 14; PCH = 19
FLG = 131072
LAYER_LDS = FLG + 256 + 1024
SPIN = 400000
EARLYU = int(os.environ.get('EARLYU', '12'))
RETRY = 200000
RSL = int(os.environ.get('RSL', '3'))
CFD = int(os.environ.get('CFD', '0')); CFS = int(os.environ.get('CFS', '4')); CFR = int(os.environ.get('CFR', '8'))
XSC = os.environ.get('XSC', 'sc1')
NWP = int(os.environ.get('NWP', '18'))
NWP2 = int(os.environ.get('NWP2', '24'))
WDLAG = int(os.environ.get('WDLAG', '6'))
NDI = int(os.environ.get('NDI', '22'))

from gen_k0 import exp_bf16_pair, LOG2E_HI, LOG2E_LO, LN2, INV2PI
SC = ''
def gen_mega(name, sets1, sets2):
    k = Kernel(name, vgpr=256, sgpr=100)
    XA, XB, ST, FCG, HB, HF, XC, CF, slot = 's86', 's87', 's88', 's89', 's90', 's91', 's92', 's94', 's95'
    stamp(k, 0)
    E = "L_mega_end"; N = "m"
    ACC = 16; XF = 64; CSV = 144; FCR = 112
    A2 = 16; HR = 80; WD0 = 168; RES = 128; T = 144; FG = 160
    P = lambda r: f"v[{r}:{r+1}]"
    def wreg(ks):
        if ks < 22: return 168 + 4*ks
        if ks < 30: return 112 + 4*(ks-22)
        return 168 + 4*(ks-30)
    late_w = {}
    for j in range(NWP2, 32): late_w.setdefault(max(3, j - 14) if j < 30 else 12 + j - 30, []).append(j)
    def wpre(ks):
        r = wreg(ks)
        k(f"s_add_u32 s14, s55, {4096*(ks//4)}")
        k(f"buffer_load_dwordx4 v[{r}:{r+3}], v3, s[20:23], s14 offen offset:{1024*(ks&3)} sc1")

    KSC = RED; TS = 90112; WS_ = TS + 8192
    SIDE_AT = int(os.environ.get('SIDE_AT', '7'))
    NTASK = 688 + 172
    def side_issue():
        k(f"""
        v_lshlrev_b32 v116, 4, v1
        v_lshrrev_b32 v117, 4, v1
        v_and_b32 v118, 15, v1
        v_lshrrev_b32 v120, 2, v1
        v_and_b32 v121, 3, v1
        s_mov_b32 s51, 0x00020000
        s_mov_b32 s59, 0x00020000
        s_lshl_b32 s52, s2, 2
        s_add_u32 s52, s52, s45
        s_lshl_b32 s53, s45, 13
        s_add_u32 s53, s53, {WS_}
        s_cmp_lt_u32 s3, 4
        s_cbranch_scc1 L_si_w
        s_mov_b32 s48, s24
        s_mov_b32 s49, s25
        s_mov_b32 s50, {2*MB}
        s_lshl_b32 s4, s52, 11
        buffer_load_dwordx4 v[112:115], v116, s[48:51], s4 offen
        buffer_load_dwordx4 v[160:163], v116, s[48:51], s4 offen offset:1024
        v_lshlrev_b32 v120, 10, v120
        v_lshl_add_u32 v120, v121, 4, v120
        s_lshr_b32 s4, s2, 2
        s_lshl_b32 s4, s4, 15
        s_and_b32 s5, s52, 15
        s_lshl_b32 s5, s5, 6
        s_add_u32 s4, s4, s5
        s_lshl_b32 s53, s45, 11
        s_add_u32 s53, s53, {TS}
        s_mov_b32 m0, s53
        s_add_u32 s5, s4, 16384
        buffer_load_dwordx4 v120, s[48:51], s4 offen lds
        s_add_u32 m0, s53, 1024
        s_mov_b32 s58, 0
        buffer_load_dwordx4 v120, s[48:51], s5 offen lds
        s_mov_b32 s56, s24
        s_mov_b32 s57, s25
        """)
        for t_ in range(4): k("buffer_load_dword v164, v116, s[56:59], 0 offen")
        k(f"""
        s_branch L_si_done
        L_si_w:
        s_mov_b32 s50, {D*F*2}
        s_mov_b32 s58, {D*F*2}
        s_cmp_ge_u32 s52, {NTASK}
        s_cselect_b32 s50, 0, s50
        s_cmp_ge_u32 s52, 688
        s_cbranch_scc1 L_si_wd
        s_mov_b32 s48, s20
        s_mov_b32 s49, s21
        s_mov_b32 s56, s22
        s_mov_b32 s57, s23
        v_mul_u32_u24 v120, {F*2}, v120
        v_lshl_add_u32 v120, v121, 4, v120
        s_and_b32 s4, s52, 15
        s_mul_i32 s4, s4, {32*F*2}
        s_lshr_b32 s5, s52, 4
        s_lshl_b32 s5, s5, 6
        s_add_u32 s4, s4, s5
        """)
        for t_ in range(2):
            k(f"s_add_u32 m0, s53, {2048*t_}")
            k("s_nop 0")
            k("buffer_load_dwordx4 v120, s[48:51], s4 offen lds")
            k(f"s_add_u32 m0, s53, {2048*t_+1024}")
            k("s_nop 0")
            k("buffer_load_dwordx4 v120, s[56:59], s4 offen lds")
            k(f"s_add_u32 s4, s4, {16*F*2}")
        k("s_mov_b32 s58, 0")
        for t_ in range(4): k("buffer_load_dword v164, v116, s[56:59], 0 offen")
        k(f"""
        s_branch L_si_done
        L_si_wd:
        s_mov_b32 s48, s26
        s_mov_b32 s49, s27
        v_lshrrev_b32 v120, 5, v1
        v_and_b32 v121, 31, v1
        v_lshlrev_b32 v120, 10, v120
        v_lshl_add_u32 v120, v121, 4, v120
        s_sub_u32 s4, s52, 688
        s_and_b32 s5, s4, 1
        s_lshr_b32 s4, s4, 1
        s_lshl_b32 s4, s4, 14
        s_lshl_b32 s5, s5, 9
        s_add_u32 s4, s4, s5
        """)
        for t_ in range(8):
            k(f"s_add_u32 m0, s53, {1024*t_}")
            k("s_nop 0")
            k("buffer_load_dwordx4 v120, s[48:51], s4 offen lds")
            k(f"s_add_u32 s4, s4, 2048")
        k.label("L_si_done")
    def side_process():
        k(f"""
        v_lshrrev_b32 v122, 5, v1
        v_lshrrev_b32 v120, 2, v118
        v_and_b32 v121, 3, v118
        v_and_b32 v123, 16, v1
        s_cmp_lt_u32 s3, 4
        s_cbranch_scc1 L_sp_w
        v_mov_b32 v124, 0
        v_mov_b32 v125, 0
        v_mov_b32 v126, 0
        v_mov_b32 v127, 0
        v_mov_b32 v136, 0x3f803f80
        v_lshl_add_u32 v120, v117, 3, v120
        v_lshlrev_b32 v120, 6, v120
        v_lshl_add_u32 v120, v121, 3, v120
        v_add_u32 v120, s53, v120
        s_waitcnt vmcnt(0)
        s_cmp_lg_u32 s54, 7
        s_cbranch_scc1 L_nn3
        s_mov_b64 exec, 1
        global_store_dwordx2 v152, v[154:155], s[98:99] sc1
        s_mov_b64 exec, -1
        L_nn3:
        ds_read_b64_tr_b16 v[128:129], v120
        ds_read_b64_tr_b16 v[130:131], v120 offset:256
        ds_read_b64_tr_b16 v[132:133], v120 offset:32
        ds_read_b64_tr_b16 v[134:135], v120 offset:288
        """)
        for j in range(4):
            k(f"v_dot2_f32_bf16 v124, v{112+j}, v136, v124")
            k(f"v_dot2_f32_bf16 v125, v{112+j}, v{112+j}, v125")
            k(f"v_dot2_f32_bf16 v126, v{160+j}, v136, v126")
            k(f"v_dot2_f32_bf16 v127, v{160+j}, v{160+j}, v127")
        k(f"""
        s_lshr_b32 s4, s2, 2
        s_lshl_b32 s4, s4, 15
        s_and_b32 s5, s52, 15
        s_lshl_b32 s5, s5, 11
        s_add_u32 s4, s4, s5
        s_add_u32 s4, s4, {XT0}
        v_lshlrev_b32 v121, 6, v118
        v_lshl_add_u32 v121, v117, 4, v121
        s_waitcnt lgkmcnt(0)
        buffer_store_dwordx4 v[128:131], v121, s[8:11], s4 offen sc1
        buffer_store_dwordx4 v[132:135], v121, s[8:11], s4 offen offset:1024 sc1
        """)
        for dpp in ("quad_perm:[1,0,3,2] row_mask:0xf bank_mask:0xf", "quad_perm:[2,3,0,1] row_mask:0xf bank_mask:0xf",
                    "row_half_mirror row_mask:0xf bank_mask:0xf", "row_mirror row_mask:0xf bank_mask:0xf",
                    "row_bcast:15 row_mask:0xa bank_mask:0xf", "row_bcast:31 row_mask:0xc bank_mask:0xf"):
            for r in range(4): k(f"v_add_f32 v{124+r}, v{124+r}, v{124+r} {dpp}")
        k(f"""
        s_lshl_b32 s4, s52, 4
        s_add_u32 s4, s4, {ST1}
        v_mov_b32 v138, 0
        v_mov_b32 v139, 0
        v_mov_b32 v140, -1
        v_mov_b32 v141, -1
        s_mov_b32 exec_lo, 0
        s_mov_b32 exec_hi, 0x80000000
        buffer_store_dwordx4 v[124:127], v152, s[8:11], s4 offen sc1
        s_mov_b64 exec, 0xffff
        s_lshl_b32 s4, s52, 7
        s_add_u32 s4, s4, {ZR}
        v_lshlrev_b32 v121, 3, v1
        buffer_store_dwordx2 v[138:139], v121, s[8:11], s4 offen sc1
        s_mov_b64 exec, -1
        v_lshrrev_b32 v122, 1, v118
        v_lshlrev_b32 v122, 15, v122
        v_and_b32 v123, 1, v118
        v_lshl_add_u32 v122, v123, 5, v122
        v_lshl_add_u32 v122, v117, 3, v122
        s_lshl_b32 s4, s2, 7
        s_lshl_b32 s5, s45, 19
        s_add_u32 s4, s4, s5
        s_add_u32 s4, s4, {XT1}
        s_add_u32 s5, s4, 0x40000
        buffer_store_dwordx2 v[140:141], v122, s[8:11], s4 offen sc1
        buffer_store_dwordx2 v[140:141], v122, s[8:11], s4 offen offset:64 sc1
        buffer_store_dwordx2 v[140:141], v122, s[8:11], s5 offen sc1
        buffer_store_dwordx2 v[140:141], v122, s[8:11], s5 offen offset:64 sc1
        s_branch L_sp_done
        L_sp_w:
        s_cmp_ge_u32 s52, {NTASK}
        s_cbranch_scc1 L_sp_done
        s_cmp_ge_u32 s52, 688
        s_cbranch_scc1 L_sp_wd
        v_lshl_add_u32 v120, v122, 3, v120
        v_lshlrev_b32 v120, 6, v120
        v_lshl_add_u32 v120, v121, 3, v120
        v_lshl_add_u32 v120, v123, 6, v120
        v_add_u32 v120, s53, v120
        s_lshr_b32 s4, s52, 4
        s_lshl_b32 s4, s4, 16
        s_and_b32 s5, s52, 15
        s_lshl_b32 s5, s5, 11
        s_add_u32 s4, s4, s5
        s_add_u32 s4, s4, {WGU}
        s_add_u32 s5, s4, 0x8000
        s_waitcnt vmcnt(0)
        """)
        for t_ in range(4):
            ks, hf = t_ >> 1, t_ & 1
            k(f"ds_read_b64_tr_b16 v[{124+4*t_}:{125+4*t_}], v120 offset:{2048*ks + 32*hf}")
            k(f"ds_read_b64_tr_b16 v[{126+4*t_}:{127+4*t_}], v120 offset:{2048*ks + 32*hf + 256}")
        for t_ in range(4):
            ks, hf = t_ >> 1, t_ & 1
            k(f"s_waitcnt lgkmcnt({6-2*t_})")
            k(f"buffer_store_dwordx4 v[{124+4*t_}:{127+4*t_}], v116, s[8:11], s{4+hf} offen offset:{1024*ks} sc1")
        k("v_mov_b32 v140, 0")
        k("v_mov_b32 v141, 0")
        k("v_mov_b32 v142, 0x3f803f80")
        for t_ in range(4):
            for j in range(4): k(f"v_dot2_f32_bf16 v{140+(t_&1)}, v{124+4*t_+j}, v142, v{140+(t_&1)}")
        k(f"""
        s_lshr_b32 s4, s52, 4
        s_lshl_b32 s4, s4, 12
        s_and_b32 s5, s52, 15
        s_lshl_b32 s5, s5, 7
        v_permlane32_swap_b32 v140, v141
        s_add_u32 s4, s4, s5
        s_add_u32 s4, s4, {CSQ}
        v_and_b32 v121, 31, v1
        v_lshlrev_b32 v121, 2, v121
        v_lshl_add_u32 v121, v122, 11, v121
        v_add_f32 v140, v140, v141
        buffer_store_dword v140, v121, s[8:11], s4 offen sc1
        s_branch L_sp_done
        L_sp_wd:
        v_lshl_add_u32 v120, v122, 2, v120
        v_lshlrev_b32 v120, 9, v120
        v_lshl_add_u32 v120, v121, 3, v120
        v_lshl_add_u32 v120, v123, 1, v120
        v_add_u32 v120, s53, v120
        s_sub_u32 s4, s52, 688
        s_and_b32 s5, s4, 1
        s_lshr_b32 s4, s4, 1
        s_lshl_b32 s4, s4, 10
        s_mul_i32 s5, s5, {8*86*1024}
        s_add_u32 s4, s4, s5
        s_add_u32 s4, s4, {WD}
        s_waitcnt vmcnt(0)
        """)
        for h_ in range(2):
            for t_ in range(4):
                k(f"ds_read_b64_tr_b16 v[{168+16*h_+4*t_}:{169+16*h_+4*t_}], v120 offset:{64*(4*h_+t_)}")
                k(f"ds_read_b64_tr_b16 v[{170+16*h_+4*t_}:{171+16*h_+4*t_}], v120 offset:{64*(4*h_+t_) + 4096}")
            for t_ in range(4):
                k(f"s_waitcnt lgkmcnt({6-2*t_})")
                k(f"buffer_store_dwordx4 v[{168+16*h_+4*t_}:{171+16*h_+4*t_}], v116, s[8:11], s4 offen sc1")
                k(f"s_add_u32 s4, s4, {86*1024}")
        k.label("L_sp_done")
    k(f"""
    s_cmp_ge_u32 s2, 256
    s_cbranch_scc1 {E}
    s_load_dwordx8 s[36:43], s[0:1], 8
    s_load_dwordx4 s[12:15], s[0:1], 40
    s_load_dwordx8 s[20:27], s[0:1], 64
    s_load_dwordx4 s[16:19], s[0:1], 96
    s_load_dwordx2 s[28:29], s[0:1], 0
    v_and_b32 v1, 63, v0
    v_lshrrev_b32 v2, 6, v0
    s_mov_b32 s10, {WS_USED}
    v_readfirstlane_b32 s3, v2
    s_mov_b32 s11, 0x00020000
    """)
    if os.environ.get('CPF', '0') == '1':
        k(f"""
        s_getpc_b64 s[4:5]
        L_pc0:
        s_cmp_ge_u32 s2, 64
        s_cbranch_scc1 L_cpf
        v_lshlrev_b32 v4, 7, v0
        v_min_u32 v4, L_mega_end-L_pc0, v4
        global_load_dword v156, v4, s[4:5]
        L_cpf:
        """)
    CHB = 20480; PT = 2048; T16 = 2048 + 4*3072
    k(f"""
    s_lshr_b32 s4, s3, 2
    s_and_b32 s45, s3, 3
    s_lshl_b32 s44, s2, 1
    s_add_u32 s44, s44, s4
    s_mul_i32 s34, s4, {CHB}
    s_add_u32 s34, s34, {KSC}
    v_and_b32 v3, 31, v1
    s_lshl_b32 s4, s44, 7
    s_lshl_b32 s5, s45, 5
    s_add_u32 s4, s4, s5
    v_add_u32 v4, s4, v3
    v_lshlrev_b32 v4, 1, v4
    s_lshl_b32 s5, s44, 1
    v_mov_b32 v5, s5
    v_mov_b32 v158, {FLG+64}
    v_mov_b32 v159, 0
    ds_write_b32 v158, v159 offset:4
    ds_write_b32 v158, v159 offset:8
    s_waitcnt lgkmcnt(0)
    s_barrier
    s_mov_b32 s8, s18
    s_mov_b32 s9, s19
    s_mov_b64 s[46:47], s[12:13]
    s_mov_b64 s[98:99], s[16:17]
    s_mov_b64 s[16:17], s[14:15]
    s_mov_b64 s[96:97], s[26:27]
    s_mov_b64 s[26:27], s[24:25]
    s_mov_b64 s[24:25], s[28:29]
    s_lshl_b32 s54, s2, 3
    s_add_u32 s54, s54, s3
    v_mov_b32 v152, 0
    v_mov_b32 v155, 1
    s_mov_b32 s55, {NONCE}
    s_cmp_lg_u32 s54, 7
    s_cbranch_scc1 L_nn
    buffer_load_dword v154, v152, s[8:11], s55 offen sc1
    L_nn:
    global_load_ushort v6, v4, s[36:37]
    global_load_ushort v10, v5, s[46:47]
    global_load_ushort v7, v4, s[38:39]
    global_load_ushort v8, v4, s[40:41]
    global_load_ushort v9, v4, s[42:43]
    """)
    side_issue()
    k(f"""
    s_mov_b32 s30, {f32hex(LOG2E_HI)}
    s_mov_b32 s31, {f32hex(LOG2E_LO)}
    s_mov_b32 s32, {f32hex(LN2)}
    s_mov_b32 s33, {f32hex(INV2PI)}
    v_and_b32 v0, 255, v0
    v_and_b32 v11, 15, v1
    v_lshrrev_b32 v12, 3, v11
    v_lshlrev_b32 v12, 7, v12
    v_and_b32 v13, 7, v11
    v_add_u32 v12, v12, v13
    v_cvt_f32_u32 v20, v12
    v_lshrrev_b32 v12, 2, v11
    v_lshlrev_b32 v12, 7, v12
    v_and_b32 v13, 3, v11
    v_lshl_add_u32 v12, v13, 1, v12
    v_add_u32 v12, 0x100, v12
    v_subrev_u32 v13, 8, v11
    v_lshrrev_b32 v13, 1, v13
    v_lshlrev_b32 v13, 7, v13
    v_and_b32 v14, 1, v11
    v_lshl_add_u32 v13, v14, 2, v13
    v_add_u32 v13, 0x200, v13
    v_cmp_gt_u32 vcc, 8, v11
    v_lshlrev_b32 v14, 7, v11
    v_add_u32 v14, 0x400, v14
    v_cndmask_b32 v12, v13, v12, vcc
    v_cvt_f32_u32 v21, v12
    v_cvt_f32_u32 v22, v14
    v_lshlrev_b32 v14, 3, v11
    v_cvt_f32_u32 v23, v14
    s_lshl_b32 s5, s45, 9
    s_add_u32 s5, s5, s34
    v_lshl_add_u32 v2, v3, 4, s5
    v_lshrrev_b32 v3, 4, v1
    v_lshl_add_u32 v3, v3, 6, s5
    """)
    for r in range(12): k(f"v_mov_b32 v{24+r}, 0")
    k("s_waitcnt vmcnt(11)")
    k("v_lshlrev_b32 v6, 16, v6")
    k("v_lshlrev_b32 v10, 16, v10")
    exp_bf16_pair(k, [6, 10], 12, 30, 31, 32)
    k(f"""
    s_waitcnt vmcnt(8)
    v_lshlrev_b32 v7, 16, v7
    v_lshlrev_b32 v8, 16, v8
    v_lshlrev_b32 v9, 16, v9
    v_mul_f32 v6, v6, v10
    v_mul_f32 v7, v7, v10
    v_add_f32 v10, v10, v10
    v_mul_f32 v18, v8, v10
    v_mul_f32 v19, v9, v10
    v_mul_f32 v16, s30, v6
    v_max_f32 v12, |v18|, |v19|
    v_mul_f32 v17, s33, v7
    v_sub_f32 v16, 0, v16
    v_max_f32_dpp v12, v12, v12 row_ror:8 row_mask:0xf bank_mask:0xf
    s_nop 1
    v_max_f32_dpp v12, v12, v12 row_ror:4 row_mask:0xf bank_mask:0xf
    s_nop 1
    v_max_f32_dpp v12, v12, v12 row_ror:2 row_mask:0xf bank_mask:0xf
    s_nop 1
    v_max_f32_dpp v12, v12, v12 row_ror:1 row_mask:0xf bank_mask:0xf
    s_nop 1
    v_readlane_b32 s6, v12, 0
    v_readlane_b32 s7, v12, 16
    s_max_u32 s6, s6, s7
    s_lshr_b32 s6, s6, 23
    s_max_u32 s6, s6, 1
    s_min_u32 s6, s6, 252
    s_sub_u32 s7, 253, s6
    s_lshl_b32 s7, s7, 23
    s_add_u32 s35, s6, 1
    s_lshl_b32 s35, s35, 23
    v_mul_f32 v18, s7, v18
    v_mul_f32 v19, s7, v19
    ds_write_b128 v2, v[16:19]
    s_waitcnt lgkmcnt(0)
    """)
    for st in range(8): k(f"ds_read_b128 v[{36+4*st}:{39+4*st}], v3 offset:{256*(st>>2) + 16*(st&3)}")
    k(f"""
    s_cmp_lg_u32 s54, 7
    s_cbranch_scc1 L_nn2
    v_add_u32 v154, 1, v154
    v_max_u32 v154, 1, v154
    s_mov_b64 exec, 1
    buffer_store_dword v154, v152, s[8:11], s55 offen sc1
    s_mov_b64 exec, -1
    L_nn2:
    """)
    stamp(k, 1)
    for st in range(8):
        s_, t = st >> 2, st & 3
        zr, zi, cr, ci = 36+4*st, 37+4*st, 38+4*st, 39+4*st
        Fb = 80 + 16*s_ + t
        if st == SIDE_AT:
            side_process()
            stamp(k, 4)
        k(f"s_waitcnt lgkmcnt({7-st})")
        for c in range(4): k(f"v_mul_f32 v{68+c}, v{zr}, v{20+c}")
        for c in range(4): k(f"v_mul_f32 v{72+c}, v{zi}, v{20+c}")
        for c in range(4): k(f"v_exp_f32 v{68+c}, v{68+c}")
        for c in range(4): k(f"v_fract_f32 v{72+c}, v{72+c}")
        for c in range(4): k(f"v_cos_f32 v{76+c}, v{72+c}")
        for c in range(4): k(f"v_sin_f32 v{4+c}, v{72+c}")
        k(f"v_mul_f32 v8, v71, v{cr}")
        k(f"v_mul_f32 v9, v71, v{ci}")
        for c in range(3): k(f"v_fma_mixlo_f16 v{Fb+4*c}, v{68+c}, v{76+c}, 0")
        k(f"v_mul_f32 v10, v8, v79")
        k(f"v_mul_f32 v11, v8, v7")
        for c in range(3): k(f"v_fma_mixhi_f16 v{Fb+4*c}, v{68+c}, v{4+c}, 0")
        k(f"v_fma_mixlo_f16 v{Fb+12}, -v9, v7, v10")
        if st == 4:
            for c in range(3): k(f"v_mfma_f32_16x16x32_f16 v[{24+4*c}:{27+4*c}], v[{80+4*c}:{83+4*c}], v[92:95], v[{24+4*c}:{27+4*c}]")
        else: k("s_nop 0")
        k(f"v_fma_mixhi_f16 v{Fb+12}, -v9, v79, -v11")
    k(f"""
    s_mul_i32 s5, s45, 3072
    s_add_u32 s5, s5, s34
    s_add_u32 s5, s5, {PT}
    v_lshl_add_u32 v12, v1, 4, s5
    """)
    for c in range(3): k(f"v_mfma_f32_16x16x32_f16 v[{24+4*c}:{27+4*c}], v[{96+4*c}:{99+4*c}], v[108:111], v[{24+4*c}:{27+4*c}]")
    stamp(k, 2)
    k("s_nop 7")
    for r in range(12): k(f"v_mul_f32 v{24+r}, s35, v{24+r}")
    k(f"""
    ds_write_b128 v12, v[24:27]
    ds_write_b128 v12, v[28:31] offset:1024
    ds_write_b128 v12, v[32:35] offset:2048
    v_lshl_add_u32 v12, v0, 4, s34
    v_lshrrev_b32 v13, 4, v1
    v_and_b32 v14, 15, v1
    v_lshl_add_u32 v14, v14, 4, s34
    s_waitcnt lgkmcnt(0)
    s_barrier
    global_load_dwordx2 v[156:157], v152, s[98:99] sc1
    """)
    stamp(k, 3)
    k(f"""
    s_cmp_eq_u32 s45, 3
    s_cbranch_scc1 L_kg_stage2
    ds_read_b128 v[24:27], v12 offset:{PT}
    ds_read_b128 v[28:31], v12 offset:{PT+3072}
    ds_read_b128 v[32:35], v12 offset:{PT+2*3072}
    ds_read_b128 v[36:39], v12 offset:{PT+3*3072}
    s_cmp_eq_u32 s45, 1
    s_cbranch_scc1 L_kg_t1
    s_cmp_eq_u32 s45, 2
    s_cbranch_scc1 L_kg_t2
    v_lshrrev_b32 v15, 1, v13
    v_lshlrev_b32 v15, 8, v15
    v_and_b32 v16, 1, v13
    v_lshl_add_u32 v15, v16, 3, v15
    v_add_u32 v16, v15, v14
    v_add_u32 v17, 2, v16
    v_add_u32 v18, 4, v16
    v_add_u32 v19, 6, v16
    s_branch L_kg_w
    L_kg_t1:
    v_lshlrev_b32 v15, 8, v13
    v_add_u32 v15, 0x200, v15
    v_add_u32 v16, v15, v14
    v_add_u32 v17, 4, v16
    v_add_u32 v18, 8, v16
    v_add_u32 v19, 12, v16
    v_lshlrev_b32 v15, 9, v13
    v_add_u32 v15, v15, v14
    v_add_u32 v20, 8, v15
    v_add_u32 v21, 0x100, v15
    v_add_u32 v22, 0x108, v15
    v_cmp_gt_u32 vcc, 2, v13
    s_nop 1
    v_cndmask_b32 v16, v15, v16, vcc
    v_cndmask_b32 v17, v20, v17, vcc
    v_cndmask_b32 v18, v21, v18, vcc
    v_cndmask_b32 v19, v22, v19, vcc
    s_branch L_kg_w
    L_kg_t2:
    v_lshlrev_b32 v15, 10, v13
    v_add_u32 v15, 0x800, v15
    v_add_u32 v16, v15, v14
    v_add_u32 v17, 0x100, v16
    v_add_u32 v18, 0x200, v16
    v_add_u32 v19, 0x300, v16
    L_kg_w:
    s_waitcnt lgkmcnt(0)
    v_pk_add_f32 v[24:25], v[24:25], v[28:29]
    v_pk_add_f32 v[26:27], v[26:27], v[30:31]
    v_pk_add_f32 v[32:33], v[32:33], v[36:37]
    v_pk_add_f32 v[34:35], v[34:35], v[38:39]
    v_pk_add_f32 v[24:25], v[24:25], v[32:33]
    v_pk_add_f32 v[26:27], v[26:27], v[34:35]
    v_cvt_pk_bf16_f32 v24, v24, v25
    v_cvt_pk_bf16_f32 v26, v26, v27
    ds_write_b16 v16, v24 offset:{T16}
    ds_write_b16_d16_hi v17, v24 offset:{T16}
    ds_write_b16 v18, v26 offset:{T16}
    ds_write_b16_d16_hi v19, v26 offset:{T16}
    L_kg_stage2:
    v_lshlrev_b32 v12, 4, v0
    v_sub_u32 v13, 4094, v12
    """)
    for e in range(10): k(f"v_subrev_u32 v{40+e}, {2*e}, v13")
    k("v_max_i32 v48, 0, v48")
    k("v_max_i32 v49, 0, v49")
    for e in range(10): k(f"v_cvt_f32_u32 v{40+e}, v{40+e}")
    for e in range(0, 10, 2): k(f"v_cvt_pk_bf16_f32 v{52+e}, v{40+e}, v{41+e}")
    for e in range(0, 10, 2):
        if e < 8: k(f"v_and_b32 v{53+e}, 0xffff0000, v{52+e}")
        k(f"v_lshlrev_b32 v{52+e}, 16, v{52+e}")
    for e in range(9): k(f"v_cvt_u32_f32 v{52+e}, v{52+e}")
    for e in range(9): k(f"v_add_u32 v{52+e}, s34, v{52+e}")
    stamp(k, 5)
    k("s_waitcnt lgkmcnt(0)")
    k("s_barrier")
    stamp(k, 6)
    for e in range(9): k(f"ds_read_u16 v{24+e}, v{52+e} offset:{T16}")
    k(f"""
    s_and_b32 s7, s3, 4
    v_mov_b32 v158, {FLG+64}
    v_add_u32 v153, s7, v158
    v_mov_b32 v159, 1
    s_mov_b32 s6, 0
    s_waitcnt vmcnt(0)
    s_mov_b64 exec, 1
    ds_add_rtn_u32 v159, v153, v159 offset:4
    s_waitcnt lgkmcnt(0)
    v_readfirstlane_b32 s7, v159
    s_mov_b64 exec, -1
    s_cmp_lg_u32 s7, 3
    s_cbranch_scc1 L_kg_np
    s_branch L_nc
    L_nq:
    global_load_dwordx2 v[156:157], v152, s[98:99] sc1
    s_add_u32 s6, s6, 1
    s_waitcnt vmcnt(0)
    L_nc:
    v_readfirstlane_b32 s7, v157
    s_cmp_ge_u32 s6, {SPIN}
    s_cbranch_scc1 L_ne
    s_cmp_eq_u32 s7, 1
    s_cbranch_scc0 L_nq
    L_ne:
    ds_write_b32 v158, v156
    s_lshl_b32 s6, s2, 2
    s_add_u32 s6, s6, {PF}
    s_cmp_lt_u32 s3, 4
    s_cselect_b32 s7, {PW-PF}, 0
    s_add_u32 s6, s6, s7
    v_lshlrev_b32 v159, 10, v1
    s_mov_b64 exec, 0xff
    buffer_store_dword v156, v159, s[8:11], s6 offen sc1
    s_mov_b64 exec, -1
    L_kg_np:
    """)
    k(f"""
    s_mul_i32 s5, s44, {KGP}
    s_add_u32 s5, s5, {KG}
    v_mov_b32 v48, 0
    v_mov_b32 v49, 0
    v_mov_b32 v50, 0
    v_mov_b32 v51, 0
    v_add_u32 v13, {KGH}, v12
    v_cmp_ne_u32 vcc, 0xff, v0
    s_waitcnt lgkmcnt(0)
    v_cndmask_b32 v32, 0, v32, vcc
    v_lshl_or_b32 v40, v25, 16, v24
    v_lshl_or_b32 v41, v27, 16, v26
    v_lshl_or_b32 v42, v29, 16, v28
    v_lshl_or_b32 v43, v31, 16, v30
    v_lshl_or_b32 v44, v26, 16, v25
    v_lshl_or_b32 v45, v28, 16, v27
    v_lshl_or_b32 v46, v30, 16, v29
    v_lshl_or_b32 v47, v32, 16, v31
    buffer_store_dwordx4 v[40:43], v12, s[8:11], s5 offen
    buffer_store_dwordx4 v[44:47], v13, s[8:11], s5 offen
    v_cmp_gt_u32 vcc, 2, v0
    s_and_saveexec_b64 s[6:7], vcc
    s_cbranch_execz L_kg_z
    v_add_u32 v12, 4096, v12
    v_add_u32 v13, 4096, v13
    buffer_store_dwordx4 v[48:51], v12, s[8:11], s5 offen
    buffer_store_dwordx4 v[48:51], v13, s[8:11], s5 offen
    L_kg_z:
    s_mov_b64 exec, -1
    """)
    if asmlib.STAMPS:
        for i in range(7, 10): stamp(k, i)
        stamp_flush(k, 0, 10, 3)
        k("s_mov_b64 exec, -1")
    k("s_waitcnt vmcnt(0) lgkmcnt(0)")
    k("s_barrier")
    for r, v in sets1.items(): k(f"s_mov_b32 s{r}, {v}")
    k.label("L_layer")
    stamp(k, 0)
    k(f"""
    v_mbcnt_lo_u32_b32 v1, -1, 0
    v_mbcnt_hi_u32_b32 v1, -1, v1
    s_lshl_b32 s4, s3, 6
    v_add_u32 v0, s4, v1
    v_lshlrev_b32 v3, 4, v1
    s_lshl_b32 s4, s2, 1
    s_lshr_b32 s5, s3, 2
    s_and_b32 s6, s3, 3
    s_add_u32 s7, s4, s5
    s_mul_i32 s28, s7, {KGP}
    s_add_u32 s28, s28, {KG}
    s_bitcmp1_b32 s6, 0
    s_cselect_b32 s13, 0, {KGH}
    s_add_u32 s28, s28, s13
    s_cmp_lt_u32 s6, 2
    s_cselect_b32 s13, 4, 0
    s_add_u32 s28, s28, s13
    s_mul_i32 s13, s5, {KCH}
    s_mul_i32 s14, s6, {KCP}
    s_add_u32 s13, s13, s14
    s_add_u32 s13, s13, {KC0}
    s_mov_b32 m0, s13
    s_lshl_b32 s12, s7, 1
    """)
    for c in range(4): k(f"buffer_load_dwordx4 v3, s[8:11], s28 offen offset:{1024*c} lds")
    k(f"""
    v_mov_b32 v9, s12
    global_load_ushort v52, v9, s[16:17]
    v_lshlrev_b32 v4, 3, v0
    v_lshlrev_b32 v53, 5, v0
    v_lshrrev_b32 v54, 3, v0
    v_and_b32 v7, 7, v0
    v_lshlrev_b32 v54, 15, v54
    v_lshl_add_u32 v54, v7, 3, v54
    v_and_b32 v7, 15, v1
    v_lshrrev_b32 v8, 4, v1
    v_lshlrev_b32 v6, 5, v7
    v_lshl_add_u32 v6, v8, 3, v6
    v_lshrrev_b32 v5, 1, v7
    v_lshlrev_b32 v5, 15, v5
    v_and_b32 v9, 1, v7
    v_lshl_add_u32 v5, v9, 5, v5
    v_lshl_add_u32 v5, v8, 3, v5
    s_lshl_b32 s30, s4, 6
    s_add_u32 s30, s30, {XA}
    s_lshl_b32 s12, s7, 6
    s_lshl_b32 s14, s6, 19
    s_add_u32 s12, s12, s14
    s_add_u32 s26, s12, {XB}
    s_add_u32 s27, s26, 0x40000
    s_add_u32 s31, s12, {XA}
    s_add_u32 s32, s31, 0x40000
    v_mov_b32 v12, 0
    v_mov_b32 v13, 0
    v_mov_b32 v14, 0
    v_mov_b32 v15, 0
    s_add_u32 s13, s13, 4096
    v_add_u32 v9, s13, v3
    s_mul_i32 s13, s5, {UP}
    v_add_u32 v10, s13, v3
    v_cmp_gt_u32 vcc, 2, v1
    s_and_saveexec_b64 s[28:29], vcc
    ds_write_b128 v9, v[12:15]
    s_mov_b64 exec, s[28:29]
    v_cmp_gt_u32 vcc, 30, v1
    s_and_saveexec_b64 s[28:29], vcc
    ds_write_b128 v10, v[12:15]
    s_mov_b64 exec, s[28:29]
    v_and_b32 v9, 3, v7
    v_mul_u32_u24 v9, {KCP}, v9
    v_lshrrev_b32 v10, 2, v7
    v_lshlrev_b32 v10, 3, v10
    v_sub_u32 v9, v9, v10
    v_lshl_add_u32 v9, v8, 4, v9
    s_mul_i32 s13, s5, {KCH}
    s_add_u32 s13, s13, {KC0+24}
    s_lshl_b32 s14, s6, 7
    s_sub_u32 s13, s13, s14
    v_add_u32 v10, s13, v9
    v_lshlrev_b32 v11, 5, v7
    v_lshl_add_u32 v11, v8, 4, v11
    s_mul_i32 s13, s5, {UP}
    s_add_u32 s13, s13, 384
    s_sub_u32 s13, s13, s14
    v_add_u32 v11, s13, v11
    s_mov_b32 s24, {f32hex(1.0/512)}
    s_mov_b32 s25, {f32hex(1e-5)}
    """)
    for r in range(32): k(f"v_mov_b32 v{16+r}, 0")
    k(f"""
    s_and_b32 s52, s2, 7
    s_lshr_b32 s53, s2, 3
    s_mul_i32 s55, s52, 30
    s_add_u32 s55, s55, s53
    s_sub_u32 s55, s55, 2
    s_cmp_ge_u32 s52, 6
    s_cselect_b32 s53, 1, 0
    s_add_u32 s55, s55, s53
    s_cmp_eq_u32 s52, 7
    s_cselect_b32 s53, 1, 0
    s_add_u32 s55, s55, s53
    s_cmp_ge_u32 s55, 88
    s_cselect_b32 s54, 88, 0
    s_cselect_b32 s53, 4, 0
    s_sub_u32 s12, s55, s54
    s_lshr_b32 s52, s12, 2
    s_and_b32 s12, s12, 3
    s_add_u32 s53, s53, s12
    s_sub_u32 s12, s55, 176
    s_mul_i32 s13, s12, 171
    s_lshr_b32 s13, s13, 9
    s_mul_i32 s54, s13, 3
    s_sub_u32 s54, s12, s54
    s_add_u32 s54, s54, 8
    s_cmp_ge_u32 s55, 176
    s_cselect_b32 s52, s13, s52
    s_cselect_b32 s53, s54, s53
    s_lshl_b32 s54, s53, 3
    s_add_u32 s54, s54, s3
    s_lshl_b32 s55, s54, 15
    s_add_u32 s55, s55, {WGU}
    s_mov_b32 s20, s18
    s_mov_b32 s21, s19
    s_mov_b32 s23, 0x00020000
    s_cmp_lt_u32 s2, {NPROD}
    s_cselect_b32 s22, 0, s10
    s_cselect_b32 s55, 0, s55
    v_mov_b32 v9, {FLG}
    ds_write_b128 v9, v[12:15]
    ds_write_b128 v9, v[12:15] offset:16
    ds_write_b128 v9, v[12:15] offset:32
    ds_write_b128 v9, v[12:15] offset:48
    """)
    k(f"""
    s_cmp_lg_u32 s3, 0
    s_cbranch_scc1 L_in_d
    s_mov_b32 s13, 0
    v_mov_b32 v56, {FLG+64}
    ds_read_b32 v60, v56
    s_and_b32 s15, s2, 7
    s_lshl_b32 s15, s15, 10
    s_cmp_eq_u32 s93, 1
    s_cselect_b32 s14, 0, {PF-LF}
    s_add_u32 s15, s15, s14
    s_add_u32 s15, s15, {LF}
    s_waitcnt lgkmcnt(0)
    L_in_b:
    buffer_load_dwordx4 v[56:59], v3, s[8:11], s15 offen sc1
    s_add_u32 s13, s13, 1
    s_waitcnt vmcnt(0)
    v_xor_b32 v56, v56, v60
    v_xor_b32 v57, v57, v60
    v_xor_b32 v58, v58, v60
    v_xor_b32 v59, v59, v60
    v_or3_b32 v56, v56, v57, v58
    v_or_b32 v56, v56, v59
    v_cmp_ne_u32 vcc, 0, v56
    s_cmp_eq_u64 vcc, 0
    s_cbranch_scc1 L_in_d
    s_cmp_ge_u32 s13, {SPIN}
    s_cbranch_scc1 L_in_d
    s_sleep {CFS}
    s_branch L_in_b
    L_in_d:
    s_barrier
    """)
    stamp(k, 1)
    k(f"""
    buffer_load_dwordx4 v[64:67], v53, s[8:11], {ST} offen sc1
    buffer_load_dwordx4 v[68:71], v53, s[8:11], {ST} offen offset:16 sc1
    buffer_load_dwordx2 v[72:73], v54, s[8:11], s30 offen sc1
    buffer_load_dwordx2 v[74:75], v54, s[8:11], s30 offen offset:64 sc1
    buffer_load_dwordx2 v[48:49], v5, s[8:11], s31 offen sc1
    buffer_load_dwordx2 v[50:51], v5, s[8:11], s32 offen sc1
    """)
    k("s_waitcnt vmcnt(4)")
    for r in range(4):
        k(f"v_mul_f32 v{64+2*r}, s24, v{64+2*r}")
        k(f"v_mul_f32 v{65+2*r}, s24, v{65+2*r}")
    for r in range(4): k(f"v_fma_f32 v{65+2*r}, -v{64+2*r}, v{64+2*r}, v{65+2*r}")
    for r in range(4): k(f"v_max_f32 v{65+2*r}, 0, v{65+2*r}")
    k("v_cvt_pk_bf16_f32 v76, v64, v66")
    k("v_cvt_pk_bf16_f32 v77, v68, v70")
    k("v_cvt_pk_bf16_f32 v78, v65, v67")
    k("v_cvt_pk_bf16_f32 v79, v69, v71")
    unpack(k, 84, 85, 78); unpack(k, 86, 87, 79); unpack(k, 80, 81, 76); unpack(k, 82, 83, 77)
    for r in range(4): k(f"v_add_f32 v{84+r}, s25, v{84+r}")
    k("v_cvt_pk_bf16_f32 v78, v84, v85")
    k("v_cvt_pk_bf16_f32 v79, v86, v87")
    unpack(k, 84, 85, 78); unpack(k, 86, 87, 79)
    for r in range(4): k(f"v_sqrt_f32 v{84+r}, v{84+r}")
    k("s_waitcnt vmcnt(2)")
    for ch in range(2): unpack(k, 88+4*ch, 89+4*ch, 72+2*ch); unpack(k, 90+4*ch, 91+4*ch, 73+2*ch)
    k("v_cvt_pk_bf16_f32 v78, v84, v85")
    k("v_cvt_pk_bf16_f32 v79, v86, v87")
    for ch in range(2):
        for j in (0, 2): k(f"v_pk_add_f32 {P(88+4*ch+j)}, {P(88+4*ch+j)}, {P(80+j)} neg_lo:[0,1] neg_hi:[0,1]")
    unpack(k, 84, 85, 78); unpack(k, 86, 87, 79)
    for ch in range(2):
        k(f"v_cvt_pk_bf16_f32 v{72+2*ch}, v{88+4*ch}, v{89+4*ch}")
        k(f"v_cvt_pk_bf16_f32 v{73+2*ch}, v{90+4*ch}, v{91+4*ch}")
    for r in range(4): k(f"v_rcp_f32 v{84+r}, v{84+r}")
    for ch in range(2): unpack(k, 88+4*ch, 89+4*ch, 72+2*ch); unpack(k, 90+4*ch, 91+4*ch, 73+2*ch)
    for ch in range(2):
        for j in (0, 2): k(f"v_pk_mul_f32 {P(88+4*ch+j)}, {P(88+4*ch+j)}, {P(84+j)}")
    for ch in range(2):
        k(f"v_cvt_pk_bf16_f32 v{72+2*ch}, v{88+4*ch}, v{89+4*ch}")
        k(f"v_cvt_pk_bf16_f32 v{73+2*ch}, v{90+4*ch}, v{91+4*ch}")
        k(f"ds_write_b64 v4, v[{72+2*ch}:{73+2*ch}] offset:{480 + ch*UP}")
    k(f"""
    s_lshl_b32 s13, s93, 3
    s_add_u32 s13, s13, s3
    s_cmp_lg_u32 s13, 1
    s_cbranch_scc1 L_pw_d
    s_mov_b32 s13, 0
    v_mov_b32 v56, {FLG+64}
    ds_read_b32 v60, v56
    s_and_b32 s15, s2, 7
    s_lshl_b32 s15, s15, 10
    s_add_u32 s15, s15, {PW}
    s_waitcnt lgkmcnt(0)
    L_pw_b:
    buffer_load_dwordx4 v[56:59], v3, s[8:11], s15 offen sc1
    s_add_u32 s13, s13, 1
    s_waitcnt vmcnt(0)
    v_xor_b32 v56, v56, v60
    v_xor_b32 v57, v57, v60
    v_xor_b32 v58, v58, v60
    v_xor_b32 v59, v59, v60
    v_or3_b32 v56, v56, v57, v58
    v_or_b32 v56, v56, v59
    v_cmp_ne_u32 vcc, 0, v56
    s_cmp_eq_u64 vcc, 0
    s_cbranch_scc1 L_pw_d
    s_cmp_ge_u32 s13, {SPIN}
    s_cbranch_scc1 L_pw_d
    s_sleep {CFS}
    s_branch L_pw_b
    L_pw_d:
    s_lshl_b32 s13, s93, 3
    s_add_u32 s13, s13, s3
    s_lshl_b32 s14, s2, 4
    s_add_u32 s13, s13, s14
    s_cmp_lg_u32 s13, 1
    s_cbranch_scc1 L_dz
    s_mov_b64 exec, 1
    global_store_dwordx2 v12, v[12:13], s[98:99] sc1
    s_mov_b64 exec, -1
    L_dz:
    """)
    k("s_waitcnt vmcnt(0) lgkmcnt(0)")
    k("s_barrier")
    stamp(k, 7)
    lg = Q(k, 'lgkmcnt', 15)
    pool = [56+4*i for i in range(27)]
    reg = {}
    def ld(i0p, kind, s):
        r = pool.pop(0); reg[(i0p, kind, s)] = r
        if kind == 'A':
            off = 64*(63 - i0p - 8*s)
            lg.issue(f"ds_read_b64 v[{r}:{r+1}], v10 offset:{off}", (i0p, kind, s))
            lg.issue(f"ds_read_b64 v[{r+2}:{r+3}], v10 offset:{off+8}", (i0p, kind, s))
        else:
            lg.issue(f"ds_read_b128 v[{r}:{r+3}], v11 offset:{512*s + 64*(1-i0p)}", (i0p, kind, s))
    order = [(i, kd, s) for i in range(2) for s in range(8) for kd in 'AB']
    mf = []
    for i in range(2):
        for m in range(8):
            for s in range(8):
                for w in range(8):
                    if s + w <= 7 and max(s, w) == m: mf.append((i, s, w))
    last_use = {}
    for n, (i, s, w) in enumerate(mf):
        last_use[(i, 'A', s)] = n; last_use[(i, 'B', w)] = n
    li = 0; npre = 0
    for _ in range(8): ld(*order[li]); li += 1
    k(f"""
    v_mov_b32 v164, -1
    v_mov_b32 v165, -1
    v_mov_b32 v166, -1
    v_mov_b32 v167, -1
    s_mov_b32 s48, s18
    s_mov_b32 s49, s19
    s_mov_b32 s51, 0x00020000
    s_cmp_eq_u32 s93, 1
    s_cselect_b32 s50, 0, s10
    s_add_u32 s15, s26, {4*MB}
    buffer_store_dwordx2 v[164:165], v5, s[48:51], s15 offen sc1
    s_add_u32 s15, s27, {4*MB}
    buffer_store_dwordx2 v[164:165], v5, s[48:51], s15 offen sc1
    s_nop 1
    """)
    freed = [(12, 164)]
    for n, (i, s, w) in enumerate(mf):
        while (i, 'A', s) not in reg or (i, 'B', w) not in reg:
            ld(*order[li]); li += 1
        lg.need((i, 'A', s), (i, 'B', w))
        c = s + w; a = reg[(i, 'A', s)]; b = reg[(i, 'B', w)]
        k(f"v_mfma_f32_16x16x32_bf16 v[{16+4*c}:{19+4*c}], v[{a}:{a+3}], v[{b}:{b+3}], v[{16+4*c}:{19+4*c}]")
        for key in [(i, 'A', s), (i, 'B', w)]:
            if last_use[key] == n: freed.append((n+3, reg[key]))
        while freed and freed[0][0] <= n: pool.append(freed.pop(0)[1])
        if n % 3 == 1 and npre < NWP: wpre(npre); npre += 1
        if li < len(order) and pool and (lg.n - lg.done) <= 12:
            ld(*order[li]); li += 1
    assert li == len(order) and npre == NWP
    k(f"""
    s_lshl_b32 s13, s5, 15
    s_lshl_b32 s14, s6, 10
    s_add_u32 s13, s13, s14
    s_add_u32 s13, s13, {RED}
    v_add_u32 v9, s13, v3
    s_lshl_b32 s13, s5, 15
    s_lshl_b32 s14, s6, 13
    s_add_u32 s13, s13, s14
    s_add_u32 s13, s13, {RED}
    v_add_u32 v12, s13, v3
    s_mul_i32 s13, s5, {UP}
    s_lshl_b32 s14, s6, 10
    s_add_u32 s13, s13, s14
    s_add_u32 s13, s13, 480
    v_add_u32 v13, s13, v6
    ds_read_b64 v[88:89], v13
    ds_read_b64 v[90:91], v13 offset:512
    """)
    for p in range(4):
        if p < 3:
            k(f"s_cmp_lg_u32 s6, {p}")
            k(f"s_cbranch_scc1 L_{N}_rv{p+1}")
        for c in range(8):
            if c in (2*p, 2*p+1): continue
            k(f"ds_write_b128 v9, v[{16+4*c}:{19+4*c}] offset:{4096*c}")
        for r in range(8): k(f"v_mov_b32 v{56+r}, v{16+8*p+r}")
        others = [q for q in range(4) if q != p]
        for j, q in enumerate(others): k(f"v_add_u32 v{92+j}, {1024*q}, v12")
        if p < 3:
            k(f"s_branch L_{N}_ep")
            k.label(f"L_{N}_rv{p+1}")
    k.label(f"L_{N}_ep")
    k("s_waitcnt lgkmcnt(6)")
    k("v_lshlrev_b32 v52, 16, v52")
    k("v_mov_b32 v53, v52")
    for j in range(4): unpack(k, 96+2*j, 97+2*j, 88+j)
    for j in range(4): k(f"v_pk_mul_f32 {P(96+2*j)}, {P(96+2*j)}, v[52:53]")
    for j in range(4): k(f"v_cvt_pk_bf16_f32 v{88+j}, v{96+2*j}, v{97+2*j}")
    k("s_waitcnt lgkmcnt(0)")
    k("s_barrier")
    for t in range(2):
        for j in range(3): k(f"ds_read_b128 v[{64+12*t+4*j}:{67+12*t+4*j}], v{92+j} offset:{4096*t}")
    for j in range(4): unpack(k, 96+2*j, 97+2*j, 88+j)
    for j in range(4): unpack(k, 104+2*j, 105+2*j, 48+j)
    for t in range(2):
        k(f"s_waitcnt lgkmcnt({3-3*t})")
        for j in (0, 2):
            k(f"v_pk_add_f32 {P(56+4*t+j)}, {P(56+4*t+j)}, {P(64+12*t+j)}")
            k(f"v_pk_add_f32 {P(68+12*t+j)}, {P(68+12*t+j)}, {P(72+12*t+j)}")
        for j in (0, 2): k(f"v_pk_add_f32 {P(56+4*t+j)}, {P(56+4*t+j)}, {P(68+12*t+j)}")
    for j in range(4): k(f"v_cvt_pk_bf16_f32 v{64+j}, v{56+2*j}, v{57+2*j}")
    for j in range(4): unpack(k, 56+2*j, 57+2*j, 64+j)
    for j in range(4): k(f"v_pk_add_f32 {P(56+2*j)}, {P(56+2*j)}, {P(96+2*j)}")
    for j in range(4): k(f"v_cvt_pk_bf16_f32 v{64+j}, v{56+2*j}, v{57+2*j}")
    for j in range(4): unpack(k, 56+2*j, 57+2*j, 64+j)
    for j in range(4): k(f"v_pk_add_f32 {P(56+2*j)}, {P(56+2*j)}, {P(104+2*j)}")
    for j in range(4): k(f"v_cvt_pk_bf16_f32 v{64+j}, v{56+2*j}, v{57+2*j}")
    for j in range(4): k(f"v_min_u32 v{64+j}, -2, v{64+j}")
    k("buffer_store_dwordx2 v[64:65], v5, s[8:11], s26 offen sc1")
    k("buffer_store_dwordx2 v[66:67], v5, s[8:11], s27 offen sc1")
    vm = Q(k, 'vmcnt', 63); lg = Q(k, 'lgkmcnt', 15)
    def unit(p):
        for i in range(3):
            k(f"s_add_u32 m0, s25, {p*24576 + i*1024}")
            k(f"s_add_u32 s14, s12, {i*32768 + p*8192}")
            vm.issue(f"buffer_load_dwordx4 v3, {'s[8:11]' if i == 0 else 's[48:51]'}, s14 offen sc1 lds", f"U{p}")
    def wl(ks):
        r = wreg(ks)
        k(f"s_add_u32 s14, s55, {4096*(ks//4)}")
        vm.issue(f"buffer_load_dwordx4 v[{r}:{r+3}], v3, s[8:11], s14 offen offset:{1024*(ks&3)} sc1", f"W{ks}")
    for ks in range(NWP): vm.tags[f"W{ks}"] = 0
    def csdot(ks): pass
    def csl():
        k("v_lshlrev_b32 v13, 2, v1")
        k("s_lshl_b32 s14, s6, 11")
        k(f"s_add_u32 s14, s14, {CSQ}")
        for j in range(8): vm.issue(f"buffer_load_dword v{CSV+8+j}, v13, s[8:11], s14 offen offset:{256*j} sc1", "CS")
    def css():
        vm.need("CS")
        for st in (1, 2):
            for j in range(0, 8, 2*st): k(f"v_add_f32 v{CSV+8+j}, v{CSV+8+j}, v{CSV+8+j+st}")
        k(f"v_add_f32 v166, v{CSV+8}, v{CSV+12}")
        k("v_mov_b32 v167, 0")
    def signal(p):
        V = CSV
        vm.need(f"U{p}")
        k.label(f"L_vf{p}")
        for i in range(3): k(f"ds_read_b128 v[{V+4*i}:{V+4*i+3}], v5 offset:{(p&1)*24576 + 1024*i}")
        k(f"v_mov_b32 v6, {p+1}")
        k("s_waitcnt lgkmcnt(0)")
        lg.reset()
        for i in range(0, 12, 3): k(f"v_max3_u32 v{V+i}, v{V+i}, v{V+i+1}, v{V+i+2}")
        k(f"v_max3_u32 v{V}, v{V}, v{V+3}, v{V+6}")
        k(f"v_max_u32 v{V}, v{V}, v{V+9}")
        k(f"v_cmp_eq_u32 vcc, -1, v{V}")
        k("s_cmp_eq_u64 vcc, 0")
        k(f"s_cbranch_scc1 L_vo{p}")
        k("s_add_u32 s13, s13, 1")
        k(f"s_cmp_ge_u32 s13, {RETRY}")
        k(f"s_cbranch_scc1 L_vo{p}")
        k(f"s_sleep {RSL}")
        for i in range(3):
            k(f"s_add_u32 m0, s25, {p*24576 + i*1024}")
            k(f"s_add_u32 s14, s12, {i*32768 + p*8192}")
            k(f"buffer_load_dwordx4 v3, {'s[8:11]' if i == 0 else 's[48:51]'}, s14 offen sc1 lds")
        k("s_waitcnt vmcnt(0)")
        k(f"s_branch L_vf{p}")
        k.label(f"L_vo{p}")
        lg.issue("ds_write_b32 v2, v6", "sig")
        if p == 1: k("v_add_u32 v5, 49152, v5")
    def dsetup():
        k(f"""
    s_and_b32 s30, s2, 7
    s_lshr_b32 s31, s2, 3
    s_lshl_b32 s30, s30, 2
    s_lshr_b32 s12, s31, 3
    s_add_u32 s30, s30, s12
    s_and_b32 s31, s31, 7
    s_bfe_u32 s12, s3, 0x10001
    s_lshl_b32 s32, s31, 1
    s_add_u32 s32, s32, s12
    s_and_b32 s12, s3, 1
    s_lshl_b32 s33, s30, 1
    s_add_u32 s33, s33, s12
    s_xor_b32 s12, s32, 1
    s_mul_i32 s34, s32, {86*1024}
    s_mul_i32 s35, s12, {86*1024}
    s_xor_b32 s12, s33, 1
    s_mul_i32 s36, s33, {86*1024}
    s_mul_i32 s37, s12, {86*1024}
    s_lshl_b32 s12, s3, 10
    s_add_u32 s13, s12, {WD}
    s_add_u32 s34, s34, s13
    s_add_u32 s35, s35, s13
    s_add_u32 s13, s12, {HB}
    s_add_u32 s36, s36, s13
    s_add_u32 s37, s37, s13
    s_cmp_ge_u32 s3, 6
    s_cselect_b32 s22, 0, s10
        """)
    def wdl(n, i, vm=None):
        r = WD0 + 8*n + 4*i
        k(f"s_add_u32 s14, s{34+i}, {8192*n}")
        srd = "s[20:23]" if n == 10 else "s[8:11]"
        ins = f"buffer_load_dwordx4 v[{r}:{r+3}], v3, {srd}, s14 offen sc1"
        if vm: vm.issue(ins, "WD")
        else: k(ins)
    wdq = [(n, i) for n in range(11) for i in range(2)]
    k("s_waitcnt vmcnt(0)")
    k("s_barrier")
    stamp(k, 8)
    k(f"""
    v_mov_b32 v4, {FLG}
    v_lshrrev_b32 v7, 5, v1
    s_cmp_lt_u32 s2, {NPROD}
    s_cbranch_scc1 L_{N}_prod
    """)
    dsetup()
    k(f"""
    s_mov_b32 s4, s52
    s_mov_b32 s5, s53
    s_mov_b32 s6, s54
    s_mul_i32 s12, s4, 98304
    s_lshl_b32 s13, s3, 10
    s_add_u32 s12, s12, s13
    s_add_u32 s12, s12, {XB}
    s_mul_i32 s25, s3, 3072
    v_add_u32 v5, s25, v3
    s_cmp_eq_u32 s4, 21
    s_cselect_b32 s50, 0, s10
    """)
    k("s_mov_b32 s13, 0")
    if EARLYU == 0: unit(0)
    for ks in range(NWP, NWP2): wl(ks)
    csl()
    k(f"""
    v_and_b32 v6, 15, v1
    v_lshrrev_b32 v12, 2, v6
    v_lshl_add_u32 v12, v7, 3, v12
    v_lshlrev_b32 v12, 6, v12
    v_and_b32 v8, 3, v6
    v_lshl_add_u32 v12, v8, 3, v12
    v_and_b32 v8, 16, v1
    v_lshl_add_u32 v12, v8, 1, v12
    v_add_u32 v14, 49152, v12
    s_lshl_b32 s15, s3, 2
    v_add_u32 v2, s15, v4
    s_mov_b32 s28, 0
    s_mov_b32 s29, 0
    """)
    for r in range(48): k(f"v_mov_b32 v{ACC+r}, 0")
    for ks in range(NWP2):
        if ks == EARLYU and EARLYU > 0: unit(0)
        if ks < NWP: csdot(ks)
    css()
    signal(0)
    stamp(k, 2)
    unit(1); unit(2); unit(3)
    def poll(half, need, tag):
        c = 28 + half
        k(f"""
        s_cmp_ge_u32 s{c}, {need}
        s_cbranch_scc1 L_{N}_pd{tag}
        L_{N}_pl{tag}:
        ds_read_b128 v[8:11], v4 offset:{16*half}
        s_waitcnt lgkmcnt(0)
        v_min_u32 v8, v8, v9
        v_min3_u32 v8, v8, v10, v11
        s_nop 0
        v_readfirstlane_b32 s{c}, v8
        s_cmp_ge_u32 s{c}, {need}
        s_cbranch_scc0 L_{N}_pl{tag}
        L_{N}_pd{tag}:
        """)
    def xr(ks, lb, h):
        b = 12 if ks < 16 else 14
        r = XF+12*(ks&3)+4*lb+2*h
        lg.issue(f"ds_read_b64_tr_b16 v[{r}:{r+1}], v{b} offset:{3072*(ks%16)+1024*lb+256*h}", f"x{ks}_{lb}")
    poll(0, 1, "a")
    for st in range(2):
        for lb in range(3): xr(st, lb, 0); xr(st, lb, 1)
    FCK = int(os.environ.get('FCK', '27'))
    for ks in range(32):
        if ks+2 < 32 and (ks+2) % 4 == 0: poll(((ks+2)//4) & 1, (ks+2)//8 + 1, f"m{ks}")
        vm.need(f"W{ks}")
        if ks == 0: stamp(k, 4)
        if ks in (2, 5, 8): signal({2:1, 5:2, 8:3}[ks])
        w = wreg(ks)
        for lb in range(3):
            lg.need(f"x{ks}_{lb}")
            a = ACC+16*lb; x = XF+12*(ks&3)+4*lb
            k(f"v_mfma_f32_32x32x16_bf16 v[{a}:{a+15}], v[{w}:{w+3}], v[{x}:{x+3}], v[{a}:{a+15}]")
            if ks+2 < 32: xr(ks+2, lb, 0); xr(ks+2, lb, 1)
        if ks >= NWP: csdot(ks)
        for j in late_w.get(ks, []): wl(j)
        j = ks - WDLAG
        if 2 <= j < NDI: wdl(j >> 1, j & 1, vm=vm)
        if ks == FCK:
            k(f"""
            v_and_b32 v15, 31, v1
            v_lshlrev_b32 v15, 3, v15
            s_mul_i32 s15, s4, 768
            s_add_u32 s15, s15, {FCG}
            s_cmp_eq_u32 s4, 21
            s_cselect_b32 s47, 0, 256
            s_add_u32 s48, s15, s47
            s_add_u32 s49, s48, s47
            s_mov_b32 s47, s15
            """)
            for lb in range(3): vm.issue(f"buffer_load_dwordx2 v[{FG+2*lb}:{FG+2*lb+1}], v15, s[8:11], s{47+lb} offen sc1", "FG")
    stamp(k, 3)
    k(f"""
    s_cmp_ge_u32 s6, 86
    s_cbranch_scc1 L_{N}_drest
    s_mov_b32 s26, {f32hex(-LOG2E)}
    s_mov_b32 s27, 0
    v_add_f32 v166, v166, v167
    s_lshl_b32 s12, s3, 7
    s_add_u32 s12, s12, {FLG+256}
    v_mov_b32 v167, v166
    v_and_b32 v8, 31, v1
    v_lshl_add_u32 v8, v8, 2, s12
    v_permlane32_swap_b32 v166, v167
    v_lshl_add_u32 v9, v7, 4, s12
    v_add_f32 v166, v166, v167
    ds_write_b32 v8, v166
    ds_read_b128 v[{CSV}:{CSV+3}], v9
    ds_read_b128 v[{CSV+4}:{CSV+7}], v9 offset:32
    ds_read_b128 v[{CSV+8}:{CSV+11}], v9 offset:64
    ds_read_b128 v[{CSV+12}:{CSV+15}], v9 offset:96
    """)
    vm.need("FG")
    k(f"""
    s_branch L_{N}_gc
    L_{N}_gp:
    s_sleep 4
    """)
    for lb in range(3): k(f"buffer_load_dwordx2 v[{FG+2*lb}:{FG+2*lb+1}], v15, s[8:11], s{47+lb} offen sc1")
    k(f"""
    s_add_u32 s27, s27, 1
    s_waitcnt vmcnt(0)
    L_{N}_gc:
    v_and_b32 v8, v{FG+1}, v{FG+3}
    v_and_b32 v8, v8, v{FG+5}
    v_cmp_ne_u32 vcc, 1, v8
    s_cmp_eq_u64 vcc, 0
    s_cbranch_scc1 L_{N}_gd
    s_cmp_lt_u32 s27, {SPIN}
    s_cbranch_scc1 L_{N}_gp
    L_{N}_gd:
    """)
    for lb in range(3):
        c = FCR+6*lb
        k(f"v_and_b32 v{c+4}, 0xffff0000, v{FG+2*lb}")
        k(f"v_lshlrev_b32 v{c}, 16, v{FG+2*lb}")
    for lb in range(3): k(f"v_rcp_f32 v{FCR+6*lb+2}, v{FCR+6*lb+4}")
    for lb in range(3):
        c = FCR+6*lb
        k(f"v_sub_f32 v{c+1}, 0, v{c}")
        k(f"v_sub_f32 v{c}, 0, v{c}")
        k(f"v_mov_b32 v{c+5}, v{c+4}")
        k(f"v_mul_f32 v{c+3}, s26, v{c+2}")
        k(f"v_mul_f32 v{c+2}, s26, v{c+2}")
    k(f"""
    s_mul_i32 s15, s4, {3*86*1024}
    s_lshl_b32 s12, s6, 10
    s_add_u32 s15, s15, s12
    s_add_u32 s15, s15, {HB}
    s_waitcnt lgkmcnt(0)
    """)
    for lb in range(3):
        g = ACC+16*lb; u = g+8; c = FCR+6*lb; o = XF+4*lb
        for j in range(0, 8, 2): k(f"v_pk_fma_f32 {P(g+j)}, {P(CSV+j)}, {P(c)}, {P(g+j)}")
        for j in range(0, 8, 2): k(f"v_pk_mul_f32 {P(g+j)}, {P(g+j)}, {P(c+2)}")
        for j in range(8):
            k(f"v_exp_f32 v{g+j}, v{g+j}")
        for j in range(0, 8, 2): k(f"v_pk_fma_f32 {P(u+j)}, {P(CSV+8+j)}, {P(c)}, {P(u+j)}")
        for j in range(0, 8, 2): k(f"v_pk_fma_f32 {P(g+j)}, {P(g+j)}, {P(c+4)}, {P(c+4)}")
        for j in range(8):
            k(f"v_rcp_f32 v{g+j}, v{g+j}")
        k("s_nop 0")
        for j in range(0, 8, 2): k(f"v_pk_mul_f32 {P(u+j)}, {P(u+j)}, {P(g+j)}")
        for j in range(4): k(f"v_cvt_pk_bf16_f32 v{o+j}, v{u+2*j}, v{u+2*j+1}")
        k(f"buffer_store_dwordx4 v[{o}:{o+3}], v3, s[8:11], s15 offen sc1")
        if lb == 0:
            k(f"s_cmp_eq_u32 s4, 21")
            k(f"s_cbranch_scc1 L_{N}_pub")
        k(f"s_add_u32 s15, s15, {86*1024}")
    k(f"""
    L_{N}_pub:
    s_waitcnt vmcnt(0)
    """)
    stamp(k, 5)
    k(f"s_branch L_{N}_drest")
    k.label(f"L_{N}_dall")
    dsetup()
    for (n, i) in wdq[2:NDI]: wdl(n, i)
    k.label(f"L_{N}_drest")
    k(f"""
    s_waitcnt lgkmcnt(0)
    s_barrier
    s_cmp_lg_u32 s3, 0
    s_cbranch_scc1 L_hf_np
    s_cmp_lt_u32 s2, {NPROD}
    s_cbranch_scc1 L_hf_np
    s_lshl_b32 s15, s4, 9
    s_lshl_b32 s12, s5, 2
    s_add_u32 s15, s15, s12
    s_add_u32 s15, s15, {HF}
    v_lshlrev_b32 v8, 7, v1
    v_mov_b32 v9, 1
    s_mov_b64 exec, 15
    buffer_store_dword v9, v8, s[8:11], s15 offen sc1
    s_mov_b64 exec, -1
    L_hf_np:
    """)
    for (n, i) in wdq[:2] + wdq[NDI:]: wdl(n, i)
    for r in range(64): k(f"v_mov_b32 v{A2+r}, 0")
    k(f"""
    s_lshl_b32 s12, s30, 1
    s_mul_i32 s13, s12, 171
    s_lshr_b32 s13, s13, 9
    s_add_u32 s12, s12, 1
    s_mul_i32 s12, s12, 171
    s_lshr_b32 s12, s12, 9
    s_lshl_b32 s13, s13, 9
    s_lshl_b32 s12, s12, 9
    s_and_b32 s38, s31, 3
    s_lshl_b32 s38, s38, 7
    s_add_u32 s38, s38, {HF}
    v_and_b32 v8, 15, v1
    v_and_b32 v9, 16, v1
    v_mov_b32 v10, s13
    v_mov_b32 v11, s12
    v_cmp_eq_u32 vcc, 0, v9
    v_cmp_gt_u32 s[26:27], 11, v8
    s_nop 0
    v_cndmask_b32 v10, v11, v10, vcc
    v_lshl_add_u32 v10, v8, 2, v10
    v_and_b32 v6, 31, v1
    v_lshlrev_b32 v5, 8, v7
    v_lshl_add_u32 v5, v6, 1, v5
    s_lshl_b32 s24, s32, 11
    s_lshl_b32 s25, s33, 15
    s_add_u32 s24, s24, s25
    s_lshr_b32 s12, s3, 2
    s_lshl_b32 s12, s12, 10
    s_add_u32 s24, s24, s12
    s_add_u32 s25, s24, {XC}
    s_add_u32 s24, s24, {XB}
    """)
    k(f"""
    s_mov_b32 s13, 0
    s_cmp_eq_u32 s3, 0
    s_cbranch_scc0 L_{N}_hw
    L_{N}_hq:
    buffer_load_dword v12, v10, s[8:11], s38 offen sc1
    s_add_u32 s13, s13, 1
    s_waitcnt vmcnt(0)
    v_cmp_ne_u32 vcc, 1, v12
    s_and_b64 vcc, vcc, s[26:27]
    s_cbranch_scc0 L_{N}_hr
    s_cmp_ge_u32 s13, {SPIN}
    s_cbranch_scc1 L_{N}_hr
    s_sleep 3
    s_branch L_{N}_hq
    L_{N}_hr:
    v_mov_b32 v12, 1
    ds_write_b32 v4, v12 offset:48
    s_branch L_{N}_hd
    L_{N}_hw:
    ds_read_b32 v12, v4 offset:48
    s_waitcnt lgkmcnt(0)
    v_readfirstlane_b32 s12, v12
    s_cmp_eq_u32 s12, 1
    s_cbranch_scc1 L_{N}_hd
    s_sleep 1
    s_branch L_{N}_hw
    L_{N}_hd:
    s_mov_b32 s22, {WS_USED}
    v_mov_b32 v12, v3
    """)
    stamp(k, 6)
    vm = Q(k, 'vmcnt', 63)
    HD = 6
    def hload(n):
        if n == 10:
            k("s_cmp_ge_u32 s3, 6")
            k("s_cselect_b32 s22, 0, s22")
        for i in range(2):
            r = HR + 8*(n % HD) + 4*i
            vm.issue(f"buffer_load_dwordx4 v[{r}:{r+3}], v12, s[20:23], s{36+i} offen sc1", f"S{n}")
        k("v_add_u32 v12, 8192, v12")
    for n in range(HD): hload(n)
    for n in range(8):
        q, r = n >> 2, n & 3
        vm.issue(f"buffer_load_ushort v{RES+n}, v5, s[8:11], s24 offen offset:{(8*q+r)*64} sc1", "RES")
    k("s_and_b32 s13, s3, 3")
    for a in range(4):
        k(f"""
        s_xor_b32 s12, s13, {a}
        s_lshl_b32 s12, s12, 14
        s_lshl_b32 s15, s3, 11
        s_add_u32 s12, s12, s15
        v_add_u32 v{8+a}, s12, v3
        """)
    k(f"""
    s_lshl_b32 s12, s3, 14
    v_add_u32 v13, s12, v3
    v_add_u32 v14, 0x10000, v8
    v_add_u32 v15, 0x10000, v9
    v_add_u32 v0, 0x10000, v10
    v_add_u32 v2, 0x10000, v11
    """)
    for n in range(11):
        vm.need(f"S{n}")
        for ad in range(2):
            for al in range(2):
                a = A2 + 16*(2*ad+al); w = WD0+8*n+4*ad; h = HR+8*(n % HD)+4*al
                k(f"v_mfma_f32_32x32x16_bf16 v[{a}:{a+15}], v[{w}:{w+3}], v[{h}:{h+3}], v[{a}:{a+15}]")
        if n >= 1 and n-1+HD < 11: hload(n-1+HD)
    k("s_nop 3")
    lg = Q(k, 'lgkmcnt', 15)
    hi = [14, 15, 0, 2]
    for n in range(8): k(f"v_lshlrev_b32 v{RES+n}, 16, v{RES+n}")
    for a in range(4):
        for q in range(4):
            ad = (8+a) if q < 2 else hi[a]
            lg.issue(f"ds_write_b128 v{ad}, v[{A2+16*a+4*q}:{A2+16*a+4*q+3}] offset:{1024*(q&1)}", "rw")
    lg.drain()
    k("s_barrier")
    FV = 16
    for q in range(2):
        for s_ in range(8):
            lg.issue(f"ds_read_b128 v[{FV+32*q+4*s_}:{FV+32*q+4*s_+3}], v13 offset:{2048*s_+1024*q}", f"rr{q}_{s_}")
    for q in range(2):
        b = FV+32*q
        for st in (1, 2, 4):
            for s_ in range(0, 8, 2*st):
                lg.need(f"rr{q}_{min(7, s_+2*st-1)}")
                for j in (0, 2): k(f"v_pk_add_f32 {P(b+4*s_+j)}, {P(b+4*s_+j)}, {P(b+4*(s_+st)+j)}")
        k(f"v_cvt_pk_bf16_f32 v{T+2*q}, v{b}, v{b+1}")
        k(f"v_cvt_pk_bf16_f32 v{T+2*q+1}, v{b+2}, v{b+3}")
        unpack(k, b, b+1, T+2*q); unpack(k, b+2, b+3, T+2*q+1)
        for j in (0, 2): k(f"v_pk_add_f32 {P(b+j)}, {P(b+j)}, {P(RES+4*q+j)}")
        k(f"v_cvt_pk_bf16_f32 v{T+2*q}, v{b}, v{b+1}")
        k(f"v_cvt_pk_bf16_f32 v{T+2*q+1}, v{b+2}, v{b+3}")
    k("s_cmp_eq_u32 s93, 1")
    k(f"s_cbranch_scc1 L_{N}_out")
    k(f"""
    v_mov_b32 v14, 0x3f803f80
    s_lshl_b32 s12, s3, 14
    v_add_u32 v8, s12, v5
    v_mov_b32 v12, 0
    v_mov_b32 v9, 0
    """)
    for q in range(2):
        for r in range(4):
            op = "ds_write_b16_d16_hi" if r & 1 else "ds_write_b16"
            k(f"{op} v8, v{T+2*q+(r>>1)} offset:{(8*q+r)*64}")
    k("ds_read_b128 v[16:19], v13")
    for q in range(2):
        for j in range(2):
            k(f"v_dot2_f32_bf16 v12, v{T+2*q+j}, v14, v12")
            k(f"v_dot2_f32_bf16 v9, v{T+2*q+j}, v{T+2*q+j}, v9")
    k(f"""
    v_lshlrev_b32 v5, 3, v6
    v_lshl_add_u32 v5, v7, 2, v5
    s_lshl_b32 s12, s33, 8
    v_permlane32_swap_b32 v12, v9
    s_add_u32 s12, s12, {ST3}
    s_waitcnt lgkmcnt(0)
    buffer_store_dwordx4 v[16:19], v3, s[8:11], s25 offen sc1
    v_add_f32 v12, v12, v9
    buffer_atomic_add_f32 v12, v5, s[8:11], s12 offen
    s_lshl_b32 s12, s2, 2
    s_add_u32 s12, s12, {LF}
    v_lshlrev_b32 v8, 10, v1
    ds_read_b32 v9, v4 offset:64
    """)
    stamp(k, 9)
    k(f"""
    s_waitcnt vmcnt(0) lgkmcnt(0)
    s_barrier
    s_cmp_lg_u32 s3, 0
    s_cbranch_scc1 L_lf_np
    s_mov_b64 exec, 0xff
    buffer_store_dword v9, v8, s[8:11], s12 offen sc1
    s_mov_b64 exec, -1
    L_lf_np:
    """)
    stamp_flush(k, slot, 10, 3)
    k("s_mov_b64 exec, -1")
    for r, v in sets2.items(): k(f"s_mov_b32 s{r}, {v}")
    k(f"""
    s_branch L_layer
    L_{N}_out:
    s_mov_b32 s28, s96
    s_mov_b32 s29, s97
    s_mov_b32 s30, {2048*512*2}
    s_mov_b32 s31, 0x00020000
    v_lshlrev_b32 v5, 10, v6
    v_lshl_add_u32 v5, v7, 4, v5
    s_lshl_b32 s25, s33, 15
    s_lshl_b32 s12, s32, 6
    s_add_u32 s25, s25, s12
    s_lshr_b32 s12, s3, 2
    s_lshl_b32 s12, s12, 5
    s_add_u32 s25, s25, s12
    v_permlane32_swap_b32 v{T}, v{T+2}
    v_permlane32_swap_b32 v{T+1}, v{T+3}
    buffer_store_dwordx4 v[{T}:{T+3}], v5, s[28:31], s25 offen
    """)
    stamp(k, 9)
    stamp_flush(k, slot, 10, 3)
    k(f"s_branch {E}")
    k.label(f"L_{N}_prod")
    k(f"""
    s_mul_i32 s4, s2, 5
    s_min_u32 s4, s4, 60
    s_lshl_b32 s12, s4, 15
    s_lshl_b32 s13, s3, 10
    s_add_u32 s12, s12, s13
    s_mov_b32 s26, {2*MB}
    s_mov_b32 s27, 0x00020000
    s_add_u32 s24, s18, {XB}
    s_addc_u32 s25, s19, 0
    s_lshl_b32 s5, s3, 14
    v_and_b32 v6, 15, v1
    v_lshrrev_b32 v12, 2, v6
    v_lshl_add_u32 v12, v7, 3, v12
    v_lshlrev_b32 v12, 6, v12
    v_and_b32 v8, 3, v6
    v_lshl_add_u32 v12, v8, 3, v12
    v_and_b32 v8, 16, v1
    v_lshl_add_u32 v12, v8, 1, v12
    v_add_u32 v12, s5, v12
    v_mov_b32 v13, 0x3f803f80
    """)
    for r in range(10): k(f"v_mov_b32 v{16+r}, 0")
    k("s_mov_b32 s13, 0")
    pv = Q(k, 'vmcnt', 63); pl = Q(k, 'lgkmcnt', 15)
    def pdma(n):
        k(f"s_add_u32 m0, s5, {1024*(n % 16)}")
        k(f"s_add_u32 s14, s12, {(n >> 2)*32768 + (n & 3)*8192}")
        pv.issue(f"buffer_load_dwordx4 v3, s[24:27], s14 offen sc1 lds", f"d{n}")
    def prd(n):
        pv.need(f"d{n}")
        r = 32 + 4*(n % 4)
        pl.issue(f"ds_read_b64_tr_b16 v[{r}:{r+1}], v12 offset:{1024*(n%16)}", f"r{n}")
        pl.issue(f"ds_read_b64_tr_b16 v[{r+2}:{r+3}], v12 offset:{1024*(n%16)+256}", f"r{n}")
    def dots(n):
        r = 32 + 4*(n % 8); lb = n >> 2
        for e in range(4):
            k(f"v_dot2_f32_bf16 v{16+2*lb}, v{r+e}, v13, v{16+2*lb}")
            k(f"v_dot2_f32_bf16 v{17+2*lb}, v{r+e}, v{r+e}, v{17+2*lb}")
    def prd8(n):
        pv.need(f"d{n}")
        r = 32 + 4*(n % 8)
        pl.issue(f"ds_read_b64_tr_b16 v[{r}:{r+1}], v12 offset:{1024*(n%16)}", f"r{n}")
        pl.issue(f"ds_read_b64_tr_b16 v[{r+2}:{r+3}], v12 offset:{1024*(n%16)+256}", f"r{n}")
    def bcheck(lb):
        k("s_nop 2")
        k.label(f"L_pv{lb}")
        k(f"v_cmp_u_f32 vcc, v{17+2*lb}, v{17+2*lb}")
        k("s_cmp_eq_u64 vcc, 0")
        k(f"s_cbranch_scc1 L_po{lb}")
        k("s_add_u32 s13, s13, 1")
        k(f"s_cmp_ge_u32 s13, {RETRY}")
        k(f"s_cbranch_scc1 L_po{lb}")
        k(f"s_sleep {RSL}")
        for n in range(4*lb, 4*lb+4):
            k(f"s_add_u32 m0, s5, {1024*(n % 16)}")
            k(f"s_add_u32 s14, s12, {(n >> 2)*32768 + (n & 3)*8192}")
            k(f"buffer_load_dwordx4 v3, s[24:27], s14 offen sc1 lds")
        k(f"v_mov_b32 v{16+2*lb}, 0")
        k(f"v_mov_b32 v{17+2*lb}, 0")
        k("s_waitcnt vmcnt(0) lgkmcnt(0)")
        for n in range(4*lb, 4*lb+4):
            r = 64 + 4*(n & 3)
            k(f"ds_read_b64_tr_b16 v[{r}:{r+1}], v12 offset:{1024*(n%16)}")
            k(f"ds_read_b64_tr_b16 v[{r+2}:{r+3}], v12 offset:{1024*(n%16)+256}")
        k("s_waitcnt lgkmcnt(0)")
        for r in range(64, 80):
            k(f"v_dot2_f32_bf16 v{16+2*lb}, v{r}, v13, v{16+2*lb}")
            k(f"v_dot2_f32_bf16 v{17+2*lb}, v{r}, v{r}, v{17+2*lb}")
        k("s_nop 2")
        k(f"s_branch L_pv{lb}")
        k.label(f"L_po{lb}")
    for n in range(4): pdma(n)
    for n in range(4): prd8(n)
    for n in range(4): pl.need(f"r{n}"); dots(n)
    bcheck(0)
    stamp(k, 2)
    for n in range(4, 20): pdma(n)
    prd8(4); prd8(5); prd8(6)
    for n in range(4, 20):
        if n+3 < 20: prd8(n+3)
        pl.need(f"r{n}"); dots(n)
        if n % 4 == 3: bcheck(n >> 2)
    k("s_nop 2")
    for lb in range(5): k(f"v_permlane32_swap_b32 v{16+2*lb}, v{17+2*lb}")
    for lb in range(5): k(f"v_add_f32 v{16+2*lb}, v{16+2*lb}, v{17+2*lb}")
    k(f"""
    v_and_b32 v8, 31, v1
    v_lshlrev_b32 v8, 3, v8
    v_lshl_add_u32 v8, v7, 2, v8
    v_add_u32 v8, s5, v8
    """)
    for lb in range(5): k(f"ds_write_b32 v8, v{16+2*lb} offset:{256*lb}")
    k(f"""
    s_waitcnt lgkmcnt(0)
    s_barrier
    s_cmp_ge_u32 s3, 3
    s_cbranch_scc1 L_{N}_pe
    v_lshlrev_b32 v8, 3, v0
    v_add_u32 v9, 0x10000, v8
    """)
    for w in range(8): k(f"ds_read_b64 v[{32+2*w}:{33+2*w}], v{8 + (w >> 2)} offset:{16384*(w & 3)}")
    k("s_waitcnt lgkmcnt(0)")
    for st in (1, 2, 4):
        for w in range(0, 8, 2*st): k(f"v_pk_add_f32 {P(32+2*w)}, {P(32+2*w)}, {P(32+2*(w+st))}")
    k(f"""
    s_mov_b32 s24, {f32hex(1.0/512)}
    s_mov_b32 s25, {f32hex(1e-5)}
    v_mul_f32 v14, s24, v32
    v_mul_f32 v16, s24, v33
    v_fma_f32 v16, -v14, v14, v16
    v_max_f32 v16, 0, v16
    v_cvt_pk_bf16_f32 v14, v14, v16
    v_and_b32 v16, 0xffff0000, v14
    v_lshlrev_b32 v14, 16, v14
    v_add_f32 v16, s25, v16
    v_cvt_pk_bf16_f32 v16, v16, v16
    v_lshlrev_b32 v16, 16, v16
    v_sqrt_f32 v16, v16
    s_mul_i32 s4, s2, 1280
    s_add_u32 s4, s4, {FCG}
    v_cvt_pk_bf16_f32 v20, v14, v16
    v_mov_b32 v21, 1
    s_movk_i32 s6, 160
    v_cmp_gt_u32 vcc, s6, v0
    s_and_saveexec_b64 s[6:7], vcc
    buffer_store_dwordx2 v[20:21], v8, s[8:11], s4 offen sc1
    s_mov_b64 exec, s[6:7]
    s_nop 1
    L_{N}_pe:
    """)
    for i in (3, 5): stamp(k, i)
    k(f"s_branch L_{N}_dall")
    k.label(E)
    k("s_endpgm")
    return k

if __name__ == '__main__':
    import sys
    KN = "interleave_layers__ssm_conv_s4d__glu_gated_glu__prompt_kernel"
    sets1 = {86: XT0, 87: XT1, 88: ST1, 89: FCG1, 90: H, 91: HF1, 92: XT2, 93: 0, 94: CF1, 95: 2}
    sets2 = {86: XT2, 87: XT3, 88: ST3, 89: FCG2, 90: H2, 91: HF2, 92: 0, 93: 1, 94: CF2, 95: 6}
    p = Prog(); p.add_kernel(gen_mega(KN, sets1, sets2))
    t = p.text().replace('.amdgcn_target', f"; @launch grid=(256,1,1) block=(512,1,1) lds={LAYER_LDS}\n.amdgcn_target", 1)
    open(sys.argv[1], 'w').write(t)
```

```python
import asmlib, os
asmlib.STAMPS = bool(os.environ.get('STAMPS'))
from asmlib import *
from layout import *
from gen_k0 import f32hex, LOG2E
from gen_conv import unpack, U0, UP, KC0, KCP, KCH, RED
NPROD = 14; PCH = 19
FLG = 131072
LAYER_LDS = FLG + 256 + 1024
SPIN = 400000
LATEU = int(os.environ.get('LATEU', '0'))
EARLYU = int(os.environ.get('EARLYU', '12'))
RETRY = 200000
RSL = int(os.environ.get('RSL', '3'))
CFD = int(os.environ.get('CFD', '0')); CFS = int(os.environ.get('CFS', '4')); CFR = int(os.environ.get('CFR', '8'))
XSC = os.environ.get('XSC', 'sc1')
NWP = int(os.environ.get('NWP', '18'))
NWP2 = int(os.environ.get('NWP2', '24'))
WDLAG = int(os.environ.get('WDLAG', '6'))
NDI = int(os.environ.get('NDI', '22'))

from gen_k0 import exp_bf16_pair, LOG2E_HI, LOG2E_LO, LN2, INV2PI
SC = ''
def gen_mega(name, sets1, sets2):
    k = Kernel(name, vgpr=256, sgpr=100)
    XA, XB, ST, FCG, HB, HF, XC, CF, slot = 's86', 's87', 's88', 's89', 's90', 's91', 's92', 's94', 's95'
    stamp(k, 0)
    E = "L_mega_end"; N = "m"
    ACC = 16; XF = 64; CSV = 144; FCR = 112
    A2 = 16; HR = 80; WD0 = 168; RES = 128; T = 144; FG = 160
    P = lambda r: f"v[{r}:{r+1}]"
    def wreg(ks):
        if ks < 22: return 168 + 4*ks
        if ks < 30: return 112 + 4*(ks-22)
        return 168 + 4*(ks-30)
    late_w = {}
    for j in range(NWP2, 32): late_w.setdefault(max(3, j - 14) if j < 30 else 12 + j - 30, []).append(j)
    def wpre(ks):
        r = wreg(ks)
        k(f"s_add_u32 s14, s55, {4096*(ks//4)}")
        k(f"buffer_load_dwordx4 v[{r}:{r+3}], v3, s[20:23], s14 offen offset:{1024*(ks&3)} sc1")

    KSC = RED; TS = 90112; WS_ = TS + 8192
    SIDE_AT = int(os.environ.get('SIDE_AT', '7'))
    NTASK = 688 + 172
    def side_issue():
        k(f"""
        v_lshlrev_b32 v116, 4, v1
        v_lshrrev_b32 v117, 4, v1
        v_and_b32 v118, 15, v1
        v_lshrrev_b32 v120, 2, v1
        v_and_b32 v121, 3, v1
        s_mov_b32 s51, 0x00020000
        s_mov_b32 s59, 0x00020000
        s_lshl_b32 s52, s2, 2
        s_add_u32 s52, s52, s45
        s_lshl_b32 s53, s45, 13
        s_add_u32 s53, s53, {WS_}
        s_cmp_lt_u32 s3, 4
        s_cbranch_scc1 L_si_w
        s_mov_b32 s48, s24
        s_mov_b32 s49, s25
        s_mov_b32 s50, {2*MB}
        s_lshl_b32 s4, s52, 11
        buffer_load_dwordx4 v[112:115], v116, s[48:51], s4 offen
        buffer_load_dwordx4 v[160:163], v116, s[48:51], s4 offen offset:1024
        v_lshlrev_b32 v120, 10, v120
        v_lshl_add_u32 v120, v121, 4, v120
        s_lshr_b32 s4, s2, 2
        s_lshl_b32 s4, s4, 15
        s_and_b32 s5, s52, 15
        s_lshl_b32 s5, s5, 6
        s_add_u32 s4, s4, s5
        s_lshl_b32 s53, s45, 11
        s_add_u32 s53, s53, {TS}
        s_mov_b32 m0, s53
        s_add_u32 s5, s4, 16384
        buffer_load_dwordx4 v120, s[48:51], s4 offen lds
        s_add_u32 m0, s53, 1024
        s_mov_b32 s58, 0
        buffer_load_dwordx4 v120, s[48:51], s5 offen lds
        s_mov_b32 s56, s24
        s_mov_b32 s57, s25
        """)
        for t_ in range(4): k("buffer_load_dword v164, v116, s[56:59], 0 offen")
        k(f"""
        s_branch L_si_done
        L_si_w:
        s_mov_b32 s50, {D*F*2}
        s_mov_b32 s58, {D*F*2}
        s_cmp_ge_u32 s52, {NTASK}
        s_cselect_b32 s50, 0, s50
        s_cmp_ge_u32 s52, 688
        s_cbranch_scc1 L_si_wd
        s_mov_b32 s48, s20
        s_mov_b32 s49, s21
        s_mov_b32 s56, s22
        s_mov_b32 s57, s23
        v_mul_u32_u24 v120, {F*2}, v120
        v_lshl_add_u32 v120, v121, 4, v120
        s_and_b32 s4, s52, 15
        s_mul_i32 s4, s4, {32*F*2}
        s_lshr_b32 s5, s52, 4
        s_lshl_b32 s5, s5, 6
        s_add_u32 s4, s4, s5
        """)
        for t_ in range(2):
            k(f"s_add_u32 m0, s53, {2048*t_}")
            k("s_nop 0")
            k("buffer_load_dwordx4 v120, s[48:51], s4 offen lds")
            k(f"s_add_u32 m0, s53, {2048*t_+1024}")
            k("s_nop 0")
            k("buffer_load_dwordx4 v120, s[56:59], s4 offen lds")
            k(f"s_add_u32 s4, s4, {16*F*2}")
        k("s_mov_b32 s58, 0")
        for t_ in range(4): k("buffer_load_dword v164, v116, s[56:59], 0 offen")
        k(f"""
        s_branch L_si_done
        L_si_wd:
        s_mov_b32 s48, s26
        s_mov_b32 s49, s27
        v_lshrrev_b32 v120, 5, v1
        v_and_b32 v121, 31, v1
        v_lshlrev_b32 v120, 10, v120
        v_lshl_add_u32 v120, v121, 4, v120
        s_sub_u32 s4, s52, 688
        s_and_b32 s5, s4, 1
        s_lshr_b32 s4, s4, 1
        s_lshl_b32 s4, s4, 14
        s_lshl_b32 s5, s5, 9
        s_add_u32 s4, s4, s5
        """)
        for t_ in range(8):
            k(f"s_add_u32 m0, s53, {1024*t_}")
            k("s_nop 0")
            k("buffer_load_dwordx4 v120, s[48:51], s4 offen lds")
            k(f"s_add_u32 s4, s4, 2048")
        k.label("L_si_done")
    def side_process():
        k(f"""
        v_lshrrev_b32 v122, 5, v1
        v_lshrrev_b32 v120, 2, v118
        v_and_b32 v121, 3, v118
        v_and_b32 v123, 16, v1
        s_cmp_lt_u32 s3, 4
        s_cbranch_scc1 L_sp_w
        v_mov_b32 v124, 0
        v_mov_b32 v125, 0
        v_mov_b32 v126, 0
        v_mov_b32 v127, 0
        v_mov_b32 v136, 0x3f803f80
        v_lshl_add_u32 v120, v117, 3, v120
        v_lshlrev_b32 v120, 6, v120
        v_lshl_add_u32 v120, v121, 3, v120
        v_add_u32 v120, s53, v120
        s_waitcnt vmcnt(0)
        s_cmp_lg_u32 s54, 7
        s_cbranch_scc1 L_nn3
        s_mov_b64 exec, 1
        global_store_dwordx2 v152, v[154:155], s[98:99] sc1
        s_mov_b64 exec, -1
        L_nn3:
        ds_read_b64_tr_b16 v[128:129], v120
        ds_read_b64_tr_b16 v[130:131], v120 offset:256
        ds_read_b64_tr_b16 v[132:133], v120 offset:32
        ds_read_b64_tr_b16 v[134:135], v120 offset:288
        """)
        for j in range(4):
            k(f"v_dot2_f32_bf16 v124, v{112+j}, v136, v124")
            k(f"v_dot2_f32_bf16 v125, v{112+j}, v{112+j}, v125")
            k(f"v_dot2_f32_bf16 v126, v{160+j}, v136, v126")
            k(f"v_dot2_f32_bf16 v127, v{160+j}, v{160+j}, v127")
        k(f"""
        s_lshr_b32 s4, s2, 2
        s_lshl_b32 s4, s4, 15
        s_and_b32 s5, s52, 15
        s_lshl_b32 s5, s5, 11
        s_add_u32 s4, s4, s5
        s_add_u32 s4, s4, {XT0}
        v_lshlrev_b32 v121, 6, v118
        v_lshl_add_u32 v121, v117, 4, v121
        s_waitcnt lgkmcnt(0)
        buffer_store_dwordx4 v[128:131], v121, s[8:11], s4 offen sc1
        buffer_store_dwordx4 v[132:135], v121, s[8:11], s4 offen offset:1024 sc1
        """)
        for dpp in ("quad_perm:[1,0,3,2] row_mask:0xf bank_mask:0xf", "quad_perm:[2,3,0,1] row_mask:0xf bank_mask:0xf",
                    "row_half_mirror row_mask:0xf bank_mask:0xf", "row_mirror row_mask:0xf bank_mask:0xf",
                    "row_bcast:15 row_mask:0xa bank_mask:0xf", "row_bcast:31 row_mask:0xc bank_mask:0xf"):
            for r in range(4): k(f"v_add_f32 v{124+r}, v{124+r}, v{124+r} {dpp}")
        k(f"""
        s_lshl_b32 s4, s52, 4
        s_add_u32 s4, s4, {ST1}
        v_mov_b32 v138, 0
        v_mov_b32 v139, 0
        v_mov_b32 v140, -1
        v_mov_b32 v141, -1
        s_mov_b32 exec_lo, 0
        s_mov_b32 exec_hi, 0x80000000
        buffer_store_dwordx4 v[124:127], v152, s[8:11], s4 offen sc1
        s_mov_b64 exec, 0xffff
        s_lshl_b32 s4, s52, 7
        s_add_u32 s4, s4, {ZR}
        v_lshlrev_b32 v121, 3, v1
        buffer_store_dwordx2 v[138:139], v121, s[8:11], s4 offen sc1
        s_mov_b64 exec, -1
        v_lshrrev_b32 v122, 1, v118
        v_lshlrev_b32 v122, 15, v122
        v_and_b32 v123, 1, v118
        v_lshl_add_u32 v122, v123, 5, v122
        v_lshl_add_u32 v122, v117, 3, v122
        s_lshl_b32 s4, s2, 7
        s_lshl_b32 s5, s45, 19
        s_add_u32 s4, s4, s5
        s_add_u32 s4, s4, {XT1}
        s_add_u32 s5, s4, 0x40000
        buffer_store_dwordx2 v[140:141], v122, s[8:11], s4 offen sc1
        buffer_store_dwordx2 v[140:141], v122, s[8:11], s4 offen offset:64 sc1
        buffer_store_dwordx2 v[140:141], v122, s[8:11], s5 offen sc1
        buffer_store_dwordx2 v[140:141], v122, s[8:11], s5 offen offset:64 sc1
        s_branch L_sp_done
        L_sp_w:
        s_cmp_ge_u32 s52, {NTASK}
        s_cbranch_scc1 L_sp_done
        s_cmp_ge_u32 s52, 688
        s_cbranch_scc1 L_sp_wd
        v_lshl_add_u32 v120, v122, 3, v120
        v_lshlrev_b32 v120, 6, v120
        v_lshl_add_u32 v120, v121, 3, v120
        v_lshl_add_u32 v120, v123, 6, v120
        v_add_u32 v120, s53, v120
        s_lshr_b32 s4, s52, 4
        s_lshl_b32 s4, s4, 16
        s_and_b32 s5, s52, 15
        s_lshl_b32 s5, s5, 11
        s_add_u32 s4, s4, s5
        s_add_u32 s4, s4, {WGU}
        s_add_u32 s5, s4, 0x8000
        s_waitcnt vmcnt(0)
        """)
        for t_ in range(4):
            ks, hf = t_ >> 1, t_ & 1
            k(f"ds_read_b64_tr_b16 v[{124+4*t_}:{125+4*t_}], v120 offset:{2048*ks + 32*hf}")
            k(f"ds_read_b64_tr_b16 v[{126+4*t_}:{127+4*t_}], v120 offset:{2048*ks + 32*hf + 256}")
        for t_ in range(4):
            ks, hf = t_ >> 1, t_ & 1
            k(f"s_waitcnt lgkmcnt({6-2*t_})")
            k(f"buffer_store_dwordx4 v[{124+4*t_}:{127+4*t_}], v116, s[8:11], s{4+hf} offen offset:{1024*ks} sc1")
        k("v_mov_b32 v140, 0")
        k("v_mov_b32 v141, 0")
        k("v_mov_b32 v142, 0x3f803f80")
        for t_ in range(4):
            for j in range(4): k(f"v_dot2_f32_bf16 v{140+(t_&1)}, v{124+4*t_+j}, v142, v{140+(t_&1)}")
        k(f"""
        s_lshr_b32 s4, s52, 4
        s_lshl_b32 s4, s4, 12
        s_and_b32 s5, s52, 15
        s_lshl_b32 s5, s5, 7
        v_permlane32_swap_b32 v140, v141
        s_add_u32 s4, s4, s5
        s_add_u32 s4, s4, {CSQ}
        v_and_b32 v121, 31, v1
        v_lshlrev_b32 v121, 2, v121
        v_lshl_add_u32 v121, v122, 11, v121
        v_add_f32 v140, v140, v141
        buffer_store_dword v140, v121, s[8:11], s4 offen sc1
        s_branch L_sp_done
        L_sp_wd:
        v_lshl_add_u32 v120, v122, 2, v120
        v_lshlrev_b32 v120, 9, v120
        v_lshl_add_u32 v120, v121, 3, v120
        v_lshl_add_u32 v120, v123, 1, v120
        v_add_u32 v120, s53, v120
        s_sub_u32 s4, s52, 688
        s_and_b32 s5, s4, 1
        s_lshr_b32 s4, s4, 1
        s_lshl_b32 s4, s4, 10
        s_mul_i32 s5, s5, {8*86*1024}
        s_add_u32 s4, s4, s5
        s_add_u32 s4, s4, {WD}
        s_waitcnt vmcnt(0)
        """)
        for h_ in range(2):
            for t_ in range(4):
                k(f"ds_read_b64_tr_b16 v[{168+16*h_+4*t_}:{169+16*h_+4*t_}], v120 offset:{64*(4*h_+t_)}")
                k(f"ds_read_b64_tr_b16 v[{170+16*h_+4*t_}:{171+16*h_+4*t_}], v120 offset:{64*(4*h_+t_) + 4096}")
            for t_ in range(4):
                k(f"s_waitcnt lgkmcnt({6-2*t_})")
                k(f"buffer_store_dwordx4 v[{168+16*h_+4*t_}:{171+16*h_+4*t_}], v116, s[8:11], s4 offen sc1")
                k(f"s_add_u32 s4, s4, {86*1024}")
        k.label("L_sp_done")
    k(f"""
    s_cmp_ge_u32 s2, 256
    s_cbranch_scc1 {E}
    s_load_dwordx8 s[36:43], s[0:1], 8
    s_load_dwordx4 s[12:15], s[0:1], 40
    s_load_dwordx8 s[20:27], s[0:1], 64
    s_load_dwordx4 s[16:19], s[0:1], 96
    s_load_dwordx2 s[28:29], s[0:1], 0
    v_and_b32 v1, 63, v0
    v_lshrrev_b32 v2, 6, v0
    s_mov_b32 s10, {WS_USED}
    v_readfirstlane_b32 s3, v2
    s_mov_b32 s11, 0x00020000
    """)
    if os.environ.get('CPF', '0') == '1':
        k(f"""
        s_getpc_b64 s[4:5]
        L_pc0:
        s_cmp_ge_u32 s2, 64
        s_cbranch_scc1 L_cpf
        v_lshlrev_b32 v4, 7, v0
        v_min_u32 v4, L_mega_end-L_pc0, v4
        global_load_dword v156, v4, s[4:5]
        L_cpf:
        """)
    CHB = 20480; PT = 2048; T16 = 2048 + 4*3072
    k(f"""
    s_lshr_b32 s4, s3, 2
    s_and_b32 s45, s3, 3
    s_lshl_b32 s44, s2, 1
    s_add_u32 s44, s44, s4
    s_mul_i32 s34, s4, {CHB}
    s_add_u32 s34, s34, {KSC}
    v_and_b32 v3, 31, v1
    s_lshl_b32 s4, s44, 7
    s_lshl_b32 s5, s45, 5
    s_add_u32 s4, s4, s5
    v_add_u32 v4, s4, v3
    v_lshlrev_b32 v4, 1, v4
    s_lshl_b32 s5, s44, 1
    v_mov_b32 v5, s5
    v_mov_b32 v158, {FLG+64}
    v_mov_b32 v159, 0
    ds_write_b32 v158, v159 offset:4
    ds_write_b32 v158, v159 offset:8
    s_waitcnt lgkmcnt(0)
    s_barrier
    s_mov_b32 s8, s18
    s_mov_b32 s9, s19
    s_mov_b64 s[46:47], s[12:13]
    s_mov_b64 s[98:99], s[16:17]
    s_mov_b64 s[16:17], s[14:15]
    s_mov_b64 s[96:97], s[26:27]
    s_mov_b64 s[26:27], s[24:25]
    s_mov_b64 s[24:25], s[28:29]
    s_lshl_b32 s54, s2, 3
    s_add_u32 s54, s54, s3
    v_mov_b32 v152, 0
    v_mov_b32 v155, 1
    s_mov_b32 s55, {NONCE}
    s_cmp_lg_u32 s54, 7
    s_cbranch_scc1 L_nn
    buffer_load_dword v154, v152, s[8:11], s55 offen sc1
    L_nn:
    global_load_ushort v6, v4, s[36:37]
    global_load_ushort v10, v5, s[46:47]
    global_load_ushort v7, v4, s[38:39]
    global_load_ushort v8, v4, s[40:41]
    global_load_ushort v9, v4, s[42:43]
    """)
    side_issue()
    k(f"""
    s_mov_b32 s30, {f32hex(LOG2E_HI)}
    s_mov_b32 s31, {f32hex(LOG2E_LO)}
    s_mov_b32 s32, {f32hex(LN2)}
    s_mov_b32 s33, {f32hex(INV2PI)}
    v_and_b32 v0, 255, v0
    v_and_b32 v11, 15, v1
    v_lshrrev_b32 v12, 3, v11
    v_lshlrev_b32 v12, 7, v12
    v_and_b32 v13, 7, v11
    v_add_u32 v12, v12, v13
    v_cvt_f32_u32 v20, v12
    v_lshrrev_b32 v12, 2, v11
    v_lshlrev_b32 v12, 7, v12
    v_and_b32 v13, 3, v11
    v_lshl_add_u32 v12, v13, 1, v12
    v_add_u32 v12, 0x100, v12
    v_subrev_u32 v13, 8, v11
    v_lshrrev_b32 v13, 1, v13
    v_lshlrev_b32 v13, 7, v13
    v_and_b32 v14, 1, v11
    v_lshl_add_u32 v13, v14, 2, v13
    v_add_u32 v13, 0x200, v13
    v_cmp_gt_u32 vcc, 8, v11
    v_lshlrev_b32 v14, 7, v11
    v_add_u32 v14, 0x400, v14
    v_cndmask_b32 v12, v13, v12, vcc
    v_cvt_f32_u32 v21, v12
    v_cvt_f32_u32 v22, v14
    v_lshlrev_b32 v14, 3, v11
    v_cvt_f32_u32 v23, v14
    s_lshl_b32 s5, s45, 9
    s_add_u32 s5, s5, s34
    v_lshl_add_u32 v2, v3, 4, s5
    v_lshrrev_b32 v3, 4, v1
    v_lshl_add_u32 v3, v3, 6, s5
    """)
    for r in range(12): k(f"v_mov_b32 v{24+r}, 0")
    k("s_waitcnt vmcnt(11)")
    k("v_lshlrev_b32 v6, 16, v6")
    k("v_lshlrev_b32 v10, 16, v10")
    exp_bf16_pair(k, [6, 10], 12, 30, 31, 32)
    k(f"""
    s_waitcnt vmcnt(8)
    v_lshlrev_b32 v7, 16, v7
    v_lshlrev_b32 v8, 16, v8
    v_lshlrev_b32 v9, 16, v9
    v_mul_f32 v6, v6, v10
    v_mul_f32 v7, v7, v10
    v_add_f32 v10, v10, v10
    v_mul_f32 v18, v8, v10
    v_mul_f32 v19, v9, v10
    v_mul_f32 v16, s30, v6
    v_max_f32 v12, |v18|, |v19|
    v_mul_f32 v17, s33, v7
    v_sub_f32 v16, 0, v16
    v_max_f32_dpp v12, v12, v12 row_ror:8 row_mask:0xf bank_mask:0xf
    s_nop 1
    v_max_f32_dpp v12, v12, v12 row_ror:4 row_mask:0xf bank_mask:0xf
    s_nop 1
    v_max_f32_dpp v12, v12, v12 row_ror:2 row_mask:0xf bank_mask:0xf
    s_nop 1
    v_max_f32_dpp v12, v12, v12 row_ror:1 row_mask:0xf bank_mask:0xf
    s_nop 1
    v_readlane_b32 s6, v12, 0
    v_readlane_b32 s7, v12, 16
    s_max_u32 s6, s6, s7
    s_lshr_b32 s6, s6, 23
    s_max_u32 s6, s6, 1
    s_min_u32 s6, s6, 252
    s_sub_u32 s7, 253, s6
    s_lshl_b32 s7, s7, 23
    s_add_u32 s35, s6, 1
    s_lshl_b32 s35, s35, 23
    v_mul_f32 v18, s7, v18
    v_mul_f32 v19, s7, v19
    ds_write_b128 v2, v[16:19]
    s_waitcnt lgkmcnt(0)
    """)
    for st in range(8): k(f"ds_read_b128 v[{36+4*st}:{39+4*st}], v3 offset:{256*(st>>2) + 16*(st&3)}")
    k(f"""
    s_cmp_lg_u32 s54, 7
    s_cbranch_scc1 L_nn2
    v_add_u32 v154, 1, v154
    v_max_u32 v154, 1, v154
    s_mov_b64 exec, 1
    buffer_store_dword v154, v152, s[8:11], s55 offen sc1
    s_mov_b64 exec, -1
    L_nn2:
    """)
    stamp(k, 1)
    for st in range(8):
        s_, t = st >> 2, st & 3
        zr, zi, cr, ci = 36+4*st, 37+4*st, 38+4*st, 39+4*st
        Fb = 80 + 16*s_ + t
        if st == SIDE_AT:
            side_process()
            stamp(k, 4)
        k(f"s_waitcnt lgkmcnt({7-st})")
        for c in range(4): k(f"v_mul_f32 v{68+c}, v{zr}, v{20+c}")
        for c in range(4): k(f"v_mul_f32 v{72+c}, v{zi}, v{20+c}")
        for c in range(4): k(f"v_exp_f32 v{68+c}, v{68+c}")
        for c in range(4): k(f"v_fract_f32 v{72+c}, v{72+c}")
        for c in range(4): k(f"v_cos_f32 v{76+c}, v{72+c}")
        for c in range(4): k(f"v_sin_f32 v{4+c}, v{72+c}")
        k(f"v_mul_f32 v8, v71, v{cr}")
        k(f"v_mul_f32 v9, v71, v{ci}")
        for c in range(3): k(f"v_fma_mixlo_f16 v{Fb+4*c}, v{68+c}, v{76+c}, 0")
        k(f"v_mul_f32 v10, v8, v79")
        k(f"v_mul_f32 v11, v8, v7")
        for c in range(3): k(f"v_fma_mixhi_f16 v{Fb+4*c}, v{68+c}, v{4+c}, 0")
        k(f"v_fma_mixlo_f16 v{Fb+12}, -v9, v7, v10")
        if st == 4:
            for c in range(3): k(f"v_mfma_f32_16x16x32_f16 v[{24+4*c}:{27+4*c}], v[{80+4*c}:{83+4*c}], v[92:95], v[{24+4*c}:{27+4*c}]")
        else: k("s_nop 0")
        k(f"v_fma_mixhi_f16 v{Fb+12}, -v9, v79, -v11")
    k(f"""
    s_mul_i32 s5, s45, 3072
    s_add_u32 s5, s5, s34
    s_add_u32 s5, s5, {PT}
    v_lshl_add_u32 v12, v1, 4, s5
    """)
    for c in range(3): k(f"v_mfma_f32_16x16x32_f16 v[{24+4*c}:{27+4*c}], v[{96+4*c}:{99+4*c}], v[108:111], v[{24+4*c}:{27+4*c}]")
    stamp(k, 2)
    k("s_nop 7")
    for r in range(12): k(f"v_mul_f32 v{24+r}, s35, v{24+r}")
    k(f"""
    ds_write_b128 v12, v[24:27]
    ds_write_b128 v12, v[28:31] offset:1024
    ds_write_b128 v12, v[32:35] offset:2048
    v_lshl_add_u32 v12, v0, 4, s34
    v_lshrrev_b32 v13, 4, v1
    v_and_b32 v14, 15, v1
    v_lshl_add_u32 v14, v14, 4, s34
    s_waitcnt lgkmcnt(0)
    s_barrier
    global_load_dwordx2 v[156:157], v152, s[98:99] sc1
    """)
    stamp(k, 3)
    k(f"""
    s_cmp_eq_u32 s45, 3
    s_cbranch_scc1 L_kg_stage2
    ds_read_b128 v[24:27], v12 offset:{PT}
    ds_read_b128 v[28:31], v12 offset:{PT+3072}
    ds_read_b128 v[32:35], v12 offset:{PT+2*3072}
    ds_read_b128 v[36:39], v12 offset:{PT+3*3072}
    s_cmp_eq_u32 s45, 1
    s_cbranch_scc1 L_kg_t1
    s_cmp_eq_u32 s45, 2
    s_cbranch_scc1 L_kg_t2
    v_lshrrev_b32 v15, 1, v13
    v_lshlrev_b32 v15, 8, v15
    v_and_b32 v16, 1, v13
    v_lshl_add_u32 v15, v16, 3, v15
    v_add_u32 v16, v15, v14
    v_add_u32 v17, 2, v16
    v_add_u32 v18, 4, v16
    v_add_u32 v19, 6, v16
    s_branch L_kg_w
    L_kg_t1:
    v_lshlrev_b32 v15, 8, v13
    v_add_u32 v15, 0x200, v15
    v_add_u32 v16, v15, v14
    v_add_u32 v17, 4, v16
    v_add_u32 v18, 8, v16
    v_add_u32 v19, 12, v16
    v_lshlrev_b32 v15, 9, v13
    v_add_u32 v15, v15, v14
    v_add_u32 v20, 8, v15
    v_add_u32 v21, 0x100, v15
    v_add_u32 v22, 0x108, v15
    v_cmp_gt_u32 vcc, 2, v13
    s_nop 1
    v_cndmask_b32 v16, v15, v16, vcc
    v_cndmask_b32 v17, v20, v17, vcc
    v_cndmask_b32 v18, v21, v18, vcc
    v_cndmask_b32 v19, v22, v19, vcc
    s_branch L_kg_w
    L_kg_t2:
    v_lshlrev_b32 v15, 10, v13
    v_add_u32 v15, 0x800, v15
    v_add_u32 v16, v15, v14
    v_add_u32 v17, 0x100, v16
    v_add_u32 v18, 0x200, v16
    v_add_u32 v19, 0x300, v16
    L_kg_w:
    s_waitcnt lgkmcnt(0)
    v_pk_add_f32 v[24:25], v[24:25], v[28:29]
    v_pk_add_f32 v[26:27], v[26:27], v[30:31]
    v_pk_add_f32 v[32:33], v[32:33], v[36:37]
    v_pk_add_f32 v[34:35], v[34:35], v[38:39]
    v_pk_add_f32 v[24:25], v[24:25], v[32:33]
    v_pk_add_f32 v[26:27], v[26:27], v[34:35]
    v_cvt_pk_bf16_f32 v24, v24, v25
    v_cvt_pk_bf16_f32 v26, v26, v27
    ds_write_b16 v16, v24 offset:{T16}
    ds_write_b16_d16_hi v17, v24 offset:{T16}
    ds_write_b16 v18, v26 offset:{T16}
    ds_write_b16_d16_hi v19, v26 offset:{T16}
    L_kg_stage2:
    v_lshlrev_b32 v12, 4, v0
    v_sub_u32 v13, 4094, v12
    """)
    for e in range(10): k(f"v_subrev_u32 v{40+e}, {2*e}, v13")
    k("v_max_i32 v48, 0, v48")
    k("v_max_i32 v49, 0, v49")
    for e in range(10): k(f"v_cvt_f32_u32 v{40+e}, v{40+e}")
    for e in range(0, 10, 2): k(f"v_cvt_pk_bf16_f32 v{52+e}, v{40+e}, v{41+e}")
    for e in range(0, 10, 2):
        if e < 8: k(f"v_and_b32 v{53+e}, 0xffff0000, v{52+e}")
        k(f"v_lshlrev_b32 v{52+e}, 16, v{52+e}")
    for e in range(9): k(f"v_cvt_u32_f32 v{52+e}, v{52+e}")
    for e in range(9): k(f"v_add_u32 v{52+e}, s34, v{52+e}")
    stamp(k, 5)
    k("s_waitcnt lgkmcnt(0)")
    k("s_barrier")
    stamp(k, 6)
    for e in range(9): k(f"ds_read_u16 v{24+e}, v{52+e} offset:{T16}")
    k(f"""
    s_and_b32 s7, s3, 4
    v_mov_b32 v158, {FLG+64}
    v_add_u32 v153, s7, v158
    v_mov_b32 v159, 1
    s_mov_b32 s6, 0
    s_waitcnt vmcnt(0)
    s_mov_b64 exec, 1
    ds_add_rtn_u32 v159, v153, v159 offset:4
    s_waitcnt lgkmcnt(0)
    v_readfirstlane_b32 s7, v159
    s_mov_b64 exec, -1
    s_cmp_lg_u32 s7, 3
    s_cbranch_scc1 L_kg_np
    s_branch L_nc
    L_nq:
    global_load_dwordx2 v[156:157], v152, s[98:99] sc1
    s_add_u32 s6, s6, 1
    s_waitcnt vmcnt(0)
    L_nc:
    v_readfirstlane_b32 s7, v157
    s_cmp_ge_u32 s6, {SPIN}
    s_cbranch_scc1 L_ne
    s_cmp_eq_u32 s7, 1
    s_cbranch_scc0 L_nq
    L_ne:
    ds_write_b32 v158, v156
    s_lshl_b32 s6, s2, 2
    s_add_u32 s6, s6, {PF}
    s_cmp_lt_u32 s3, 4
    s_cselect_b32 s7, {PW-PF}, 0
    s_add_u32 s6, s6, s7
    v_lshlrev_b32 v159, 10, v1
    s_mov_b64 exec, 0xff
    buffer_store_dword v156, v159, s[8:11], s6 offen sc1
    s_mov_b64 exec, -1
    L_kg_np:
    """)
    k(f"""
    s_mul_i32 s5, s44, {KGP}
    s_add_u32 s5, s5, {KG}
    v_mov_b32 v48, 0
    v_mov_b32 v49, 0
    v_mov_b32 v50, 0
    v_mov_b32 v51, 0
    v_add_u32 v13, {KGH}, v12
    v_cmp_ne_u32 vcc, 0xff, v0
    s_waitcnt lgkmcnt(0)
    v_cndmask_b32 v32, 0, v32, vcc
    v_lshl_or_b32 v40, v25, 16, v24
    v_lshl_or_b32 v41, v27, 16, v26
    v_lshl_or_b32 v42, v29, 16, v28
    v_lshl_or_b32 v43, v31, 16, v30
    v_lshl_or_b32 v44, v26, 16, v25
    v_lshl_or_b32 v45, v28, 16, v27
    v_lshl_or_b32 v46, v30, 16, v29
    v_lshl_or_b32 v47, v32, 16, v31
    buffer_store_dwordx4 v[40:43], v12, s[8:11], s5 offen
    buffer_store_dwordx4 v[44:47], v13, s[8:11], s5 offen
    v_cmp_gt_u32 vcc, 2, v0
    s_and_saveexec_b64 s[6:7], vcc
    s_cbranch_execz L_kg_z
    v_add_u32 v12, 4096, v12
    v_add_u32 v13, 4096, v13
    buffer_store_dwordx4 v[48:51], v12, s[8:11], s5 offen
    buffer_store_dwordx4 v[48:51], v13, s[8:11], s5 offen
    L_kg_z:
    s_mov_b64 exec, -1
    """)
    if asmlib.STAMPS:
        for i in range(7, 10): stamp(k, i)
        stamp_flush(k, 0, 10, 3)
        k("s_mov_b64 exec, -1")
    k("s_waitcnt vmcnt(0) lgkmcnt(0)")
    k("s_barrier")
    for r, v in sets1.items(): k(f"s_mov_b32 s{r}, {v}")
    k.label("L_layer")
    stamp(k, 0)
    k(f"""
    v_mbcnt_lo_u32_b32 v1, -1, 0
    v_mbcnt_hi_u32_b32 v1, -1, v1
    s_lshl_b32 s4, s3, 6
    v_add_u32 v0, s4, v1
    v_lshlrev_b32 v3, 4, v1
    s_lshl_b32 s4, s2, 1
    s_lshr_b32 s5, s3, 2
    s_and_b32 s6, s3, 3
    s_add_u32 s7, s4, s5
    s_mul_i32 s28, s7, {KGP}
    s_add_u32 s28, s28, {KG}
    s_bitcmp1_b32 s6, 0
    s_cselect_b32 s13, 0, {KGH}
    s_add_u32 s28, s28, s13
    s_cmp_lt_u32 s6, 2
    s_cselect_b32 s13, 4, 0
    s_add_u32 s28, s28, s13
    s_mul_i32 s13, s5, {KCH}
    s_mul_i32 s14, s6, {KCP}
    s_add_u32 s13, s13, s14
    s_add_u32 s13, s13, {KC0}
    s_mov_b32 m0, s13
    s_lshl_b32 s12, s7, 1
    """)
    for c in range(4): k(f"buffer_load_dwordx4 v3, s[8:11], s28 offen offset:{1024*c} lds")
    k(f"""
    v_mov_b32 v9, s12
    global_load_ushort v52, v9, s[16:17]
    v_lshlrev_b32 v4, 3, v0
    v_lshlrev_b32 v53, 5, v0
    v_lshrrev_b32 v54, 3, v0
    v_and_b32 v7, 7, v0
    v_lshlrev_b32 v54, 15, v54
    v_lshl_add_u32 v54, v7, 3, v54
    v_and_b32 v7, 15, v1
    v_lshrrev_b32 v8, 4, v1
    v_lshlrev_b32 v6, 5, v7
    v_lshl_add_u32 v6, v8, 3, v6
    v_lshrrev_b32 v5, 1, v7
    v_lshlrev_b32 v5, 15, v5
    v_and_b32 v9, 1, v7
    v_lshl_add_u32 v5, v9, 5, v5
    v_lshl_add_u32 v5, v8, 3, v5
    s_lshl_b32 s30, s4, 6
    s_add_u32 s30, s30, {XA}
    s_lshl_b32 s12, s7, 6
    s_lshl_b32 s14, s6, 19
    s_add_u32 s12, s12, s14
    s_add_u32 s26, s12, {XB}
    s_add_u32 s27, s26, 0x40000
    s_add_u32 s31, s12, {XA}
    s_add_u32 s32, s31, 0x40000
    v_mov_b32 v12, 0
    v_mov_b32 v13, 0
    v_mov_b32 v14, 0
    v_mov_b32 v15, 0
    s_add_u32 s13, s13, 4096
    v_add_u32 v9, s13, v3
    s_mul_i32 s13, s5, {UP}
    v_add_u32 v10, s13, v3
    v_cmp_gt_u32 vcc, 2, v1
    s_and_saveexec_b64 s[28:29], vcc
    ds_write_b128 v9, v[12:15]
    s_mov_b64 exec, s[28:29]
    v_cmp_gt_u32 vcc, 30, v1
    s_and_saveexec_b64 s[28:29], vcc
    ds_write_b128 v10, v[12:15]
    s_mov_b64 exec, s[28:29]
    v_and_b32 v9, 3, v7
    v_mul_u32_u24 v9, {KCP}, v9
    v_lshrrev_b32 v10, 2, v7
    v_lshlrev_b32 v10, 3, v10
    v_sub_u32 v9, v9, v10
    v_lshl_add_u32 v9, v8, 4, v9
    s_mul_i32 s13, s5, {KCH}
    s_add_u32 s13, s13, {KC0+24}
    s_lshl_b32 s14, s6, 7
    s_sub_u32 s13, s13, s14
    v_add_u32 v10, s13, v9
    v_lshlrev_b32 v11, 5, v7
    v_lshl_add_u32 v11, v8, 4, v11
    s_mul_i32 s13, s5, {UP}
    s_add_u32 s13, s13, 384
    s_sub_u32 s13, s13, s14
    v_add_u32 v11, s13, v11
    s_mov_b32 s24, {f32hex(1.0/512)}
    s_mov_b32 s25, {f32hex(1e-5)}
    """)
    for r in range(32): k(f"v_mov_b32 v{16+r}, 0")
    k(f"""
    s_and_b32 s52, s2, 7
    s_lshr_b32 s53, s2, 3
    s_mul_i32 s55, s52, 30
    s_add_u32 s55, s55, s53
    s_sub_u32 s55, s55, 2
    s_cmp_ge_u32 s52, 6
    s_cselect_b32 s53, 1, 0
    s_add_u32 s55, s55, s53
    s_cmp_eq_u32 s52, 7
    s_cselect_b32 s53, 1, 0
    s_add_u32 s55, s55, s53
    s_cmp_ge_u32 s55, 88
    s_cselect_b32 s54, 88, 0
    s_cselect_b32 s53, 4, 0
    s_sub_u32 s12, s55, s54
    s_lshr_b32 s52, s12, 2
    s_and_b32 s12, s12, 3
    s_add_u32 s53, s53, s12
    s_sub_u32 s12, s55, 176
    s_mul_i32 s13, s12, 171
    s_lshr_b32 s13, s13, 9
    s_mul_i32 s54, s13, 3
    s_sub_u32 s54, s12, s54
    s_add_u32 s54, s54, 8
    s_cmp_ge_u32 s55, 176
    s_cselect_b32 s52, s13, s52
    s_cselect_b32 s53, s54, s53
    s_lshl_b32 s54, s53, 3
    s_add_u32 s54, s54, s3
    s_lshl_b32 s55, s54, 15
    s_add_u32 s55, s55, {WGU}
    s_mov_b32 s20, s18
    s_mov_b32 s21, s19
    s_mov_b32 s23, 0x00020000
    s_cmp_lt_u32 s2, {NPROD}
    s_cselect_b32 s22, 0, s10
    s_cselect_b32 s55, 0, s55
    v_mov_b32 v9, {FLG}
    ds_write_b128 v9, v[12:15]
    ds_write_b128 v9, v[12:15] offset:16
    ds_write_b128 v9, v[12:15] offset:32
    ds_write_b128 v9, v[12:15] offset:48
    """)
    k(f"""
    s_cmp_lg_u32 s3, 0
    s_cbranch_scc1 L_in_d
    s_mov_b32 s13, 0
    v_mov_b32 v56, {FLG+64}
    ds_read_b32 v60, v56
    s_and_b32 s15, s2, 7
    s_lshl_b32 s15, s15, 10
    s_cmp_eq_u32 s93, 1
    s_cselect_b32 s14, 0, {PF-LF}
    s_add_u32 s15, s15, s14
    s_add_u32 s15, s15, {LF}
    s_waitcnt lgkmcnt(0)
    L_in_b:
    buffer_load_dwordx4 v[56:59], v3, s[8:11], s15 offen sc1
    s_add_u32 s13, s13, 1
    s_waitcnt vmcnt(0)
    v_xor_b32 v56, v56, v60
    v_xor_b32 v57, v57, v60
    v_xor_b32 v58, v58, v60
    v_xor_b32 v59, v59, v60
    v_or3_b32 v56, v56, v57, v58
    v_or_b32 v56, v56, v59
    v_cmp_ne_u32 vcc, 0, v56
    s_cmp_eq_u64 vcc, 0
    s_cbranch_scc1 L_in_d
    s_cmp_ge_u32 s13, {SPIN}
    s_cbranch_scc1 L_in_d
    s_sleep {CFS}
    s_branch L_in_b
    L_in_d:
    s_barrier
    """)
    stamp(k, 1)
    k(f"""
    buffer_load_dwordx4 v[64:67], v53, s[8:11], {ST} offen sc1
    buffer_load_dwordx4 v[68:71], v53, s[8:11], {ST} offen offset:16 sc1
    buffer_load_dwordx2 v[72:73], v54, s[8:11], s30 offen sc1
    buffer_load_dwordx2 v[74:75], v54, s[8:11], s30 offen offset:64 sc1
    buffer_load_dwordx2 v[48:49], v5, s[8:11], s31 offen sc1
    buffer_load_dwordx2 v[50:51], v5, s[8:11], s32 offen sc1
    """)
    k("s_waitcnt vmcnt(4)")
    for r in range(4):
        k(f"v_mul_f32 v{64+2*r}, s24, v{64+2*r}")
        k(f"v_mul_f32 v{65+2*r}, s24, v{65+2*r}")
    for r in range(4): k(f"v_fma_f32 v{65+2*r}, -v{64+2*r}, v{64+2*r}, v{65+2*r}")
    for r in range(4): k(f"v_max_f32 v{65+2*r}, 0, v{65+2*r}")
    k("v_cvt_pk_bf16_f32 v76, v64, v66")
    k("v_cvt_pk_bf16_f32 v77, v68, v70")
    k("v_cvt_pk_bf16_f32 v78, v65, v67")
    k("v_cvt_pk_bf16_f32 v79, v69, v71")
    unpack(k, 84, 85, 78); unpack(k, 86, 87, 79); unpack(k, 80, 81, 76); unpack(k, 82, 83, 77)
    for r in range(4): k(f"v_add_f32 v{84+r}, s25, v{84+r}")
    k("v_cvt_pk_bf16_f32 v78, v84, v85")
    k("v_cvt_pk_bf16_f32 v79, v86, v87")
    unpack(k, 84, 85, 78); unpack(k, 86, 87, 79)
    for r in range(4): k(f"v_sqrt_f32 v{84+r}, v{84+r}")
    k("s_waitcnt vmcnt(2)")
    for ch in range(2): unpack(k, 88+4*ch, 89+4*ch, 72+2*ch); unpack(k, 90+4*ch, 91+4*ch, 73+2*ch)
    k("v_cvt_pk_bf16_f32 v78, v84, v85")
    k("v_cvt_pk_bf16_f32 v79, v86, v87")
    for ch in range(2):
        for j in (0, 2): k(f"v_pk_add_f32 {P(88+4*ch+j)}, {P(88+4*ch+j)}, {P(80+j)} neg_lo:[0,1] neg_hi:[0,1]")
    unpack(k, 84, 85, 78); unpack(k, 86, 87, 79)
    for ch in range(2):
        k(f"v_cvt_pk_bf16_f32 v{72+2*ch}, v{88+4*ch}, v{89+4*ch}")
        k(f"v_cvt_pk_bf16_f32 v{73+2*ch}, v{90+4*ch}, v{91+4*ch}")
    for r in range(4): k(f"v_rcp_f32 v{84+r}, v{84+r}")
    for ch in range(2): unpack(k, 88+4*ch, 89+4*ch, 72+2*ch); unpack(k, 90+4*ch, 91+4*ch, 73+2*ch)
    for ch in range(2):
        for j in (0, 2): k(f"v_pk_mul_f32 {P(88+4*ch+j)}, {P(88+4*ch+j)}, {P(84+j)}")
    for ch in range(2):
        k(f"v_cvt_pk_bf16_f32 v{72+2*ch}, v{88+4*ch}, v{89+4*ch}")
        k(f"v_cvt_pk_bf16_f32 v{73+2*ch}, v{90+4*ch}, v{91+4*ch}")
        k(f"ds_write_b64 v4, v[{72+2*ch}:{73+2*ch}] offset:{480 + ch*UP}")
    k(f"""
    s_lshl_b32 s13, s93, 3
    s_add_u32 s13, s13, s3
    s_cmp_lg_u32 s13, 1
    s_cbranch_scc1 L_pw_d
    s_mov_b32 s13, 0
    v_mov_b32 v56, {FLG+64}
    ds_read_b32 v60, v56
    s_and_b32 s15, s2, 7
    s_lshl_b32 s15, s15, 10
    s_add_u32 s15, s15, {PW}
    s_waitcnt lgkmcnt(0)
    L_pw_b:
    buffer_load_dwordx4 v[56:59], v3, s[8:11], s15 offen sc1
    s_add_u32 s13, s13, 1
    s_waitcnt vmcnt(0)
    v_xor_b32 v56, v56, v60
    v_xor_b32 v57, v57, v60
    v_xor_b32 v58, v58, v60
    v_xor_b32 v59, v59, v60
    v_or3_b32 v56, v56, v57, v58
    v_or_b32 v56, v56, v59
    v_cmp_ne_u32 vcc, 0, v56
    s_cmp_eq_u64 vcc, 0
    s_cbranch_scc1 L_pw_d
    s_cmp_ge_u32 s13, {SPIN}
    s_cbranch_scc1 L_pw_d
    s_sleep {CFS}
    s_branch L_pw_b
    L_pw_d:
    s_lshl_b32 s13, s93, 3
    s_add_u32 s13, s13, s3
    s_lshl_b32 s14, s2, 4
    s_add_u32 s13, s13, s14
    s_cmp_lg_u32 s13, 1
    s_cbranch_scc1 L_dz
    s_mov_b64 exec, 1
    global_store_dwordx2 v12, v[12:13], s[98:99] sc1
    s_mov_b64 exec, -1
    L_dz:
    """)
    k("s_waitcnt vmcnt(0) lgkmcnt(0)")
    k("s_barrier")
    stamp(k, 7)
    lg = Q(k, 'lgkmcnt', 15)
    pool = [56+4*i for i in range(27)]
    reg = {}
    def ld(i0p, kind, s):
        r = pool.pop(0); reg[(i0p, kind, s)] = r
        if kind == 'A':
            off = 64*(63 - i0p - 8*s)
            lg.issue(f"ds_read_b64 v[{r}:{r+1}], v10 offset:{off}", (i0p, kind, s))
            lg.issue(f"ds_read_b64 v[{r+2}:{r+3}], v10 offset:{off+8}", (i0p, kind, s))
        else:
            lg.issue(f"ds_read_b128 v[{r}:{r+3}], v11 offset:{512*s + 64*(1-i0p)}", (i0p, kind, s))
    order = [(i, kd, s) for i in range(2) for s in range(8) for kd in 'AB']
    mf = []
    for i in range(2):
        for m in range(8):
            for s in range(8):
                for w in range(8):
                    if s + w <= 7 and max(s, w) == m: mf.append((i, s, w))
    last_use = {}
    for n, (i, s, w) in enumerate(mf):
        last_use[(i, 'A', s)] = n; last_use[(i, 'B', w)] = n
    li = 0; npre = 0
    for _ in range(8): ld(*order[li]); li += 1
    k(f"""
    v_mov_b32 v164, -1
    v_mov_b32 v165, -1
    v_mov_b32 v166, -1
    v_mov_b32 v167, -1
    s_mov_b32 s48, s18
    s_mov_b32 s49, s19
    s_mov_b32 s51, 0x00020000
    s_cmp_eq_u32 s93, 1
    s_cselect_b32 s50, 0, s10
    s_add_u32 s15, s26, {4*MB}
    buffer_store_dwordx2 v[164:165], v5, s[48:51], s15 offen sc1
    s_add_u32 s15, s27, {4*MB}
    buffer_store_dwordx2 v[164:165], v5, s[48:51], s15 offen sc1
    s_nop 1
    """)
    freed = [(12, 164)]
    for n, (i, s, w) in enumerate(mf):
        while (i, 'A', s) not in reg or (i, 'B', w) not in reg:
            ld(*order[li]); li += 1
        lg.need((i, 'A', s), (i, 'B', w))
        c = s + w; a = reg[(i, 'A', s)]; b = reg[(i, 'B', w)]
        k(f"v_mfma_f32_16x16x32_bf16 v[{16+4*c}:{19+4*c}], v[{a}:{a+3}], v[{b}:{b+3}], v[{16+4*c}:{19+4*c}]")
        for key in [(i, 'A', s), (i, 'B', w)]:
            if last_use[key] == n: freed.append((n+3, reg[key]))
        while freed and freed[0][0] <= n: pool.append(freed.pop(0)[1])
        if n % 3 == 1 and npre < NWP: wpre(npre); npre += 1
        if li < len(order) and pool and (lg.n - lg.done) <= 12:
            ld(*order[li]); li += 1
    assert li == len(order) and npre == NWP
    k(f"""
    s_lshl_b32 s13, s5, 15
    s_lshl_b32 s14, s6, 10
    s_add_u32 s13, s13, s14
    s_add_u32 s13, s13, {RED}
    v_add_u32 v9, s13, v3
    s_lshl_b32 s13, s5, 15
    s_lshl_b32 s14, s6, 13
    s_add_u32 s13, s13, s14
    s_add_u32 s13, s13, {RED}
    v_add_u32 v12, s13, v3
    s_mul_i32 s13, s5, {UP}
    s_lshl_b32 s14, s6, 10
    s_add_u32 s13, s13, s14
    s_add_u32 s13, s13, 480
    v_add_u32 v13, s13, v6
    ds_read_b64 v[88:89], v13
    ds_read_b64 v[90:91], v13 offset:512
    """)
    for p in range(4):
        if p < 3:
            k(f"s_cmp_lg_u32 s6, {p}")
            k(f"s_cbranch_scc1 L_{N}_rv{p+1}")
        for c in range(8):
            if c in (2*p, 2*p+1): continue
            k(f"ds_write_b128 v9, v[{16+4*c}:{19+4*c}] offset:{4096*c}")
        for r in range(8): k(f"v_mov_b32 v{56+r}, v{16+8*p+r}")
        others = [q for q in range(4) if q != p]
        for j, q in enumerate(others): k(f"v_add_u32 v{92+j}, {1024*q}, v12")
        if p < 3:
            k(f"s_branch L_{N}_ep")
            k.label(f"L_{N}_rv{p+1}")
    k.label(f"L_{N}_ep")
    k("s_waitcnt lgkmcnt(6)")
    k("v_lshlrev_b32 v52, 16, v52")
    k("v_mov_b32 v53, v52")
    for j in range(4): unpack(k, 96+2*j, 97+2*j, 88+j)
    for j in range(4): k(f"v_pk_mul_f32 {P(96+2*j)}, {P(96+2*j)}, v[52:53]")
    for j in range(4): k(f"v_cvt_pk_bf16_f32 v{88+j}, v{96+2*j}, v{97+2*j}")
    k("s_waitcnt lgkmcnt(0)")
    k("s_barrier")
    for t in range(2):
        for j in range(3): k(f"ds_read_b128 v[{64+12*t+4*j}:{67+12*t+4*j}], v{92+j} offset:{4096*t}")
    for j in range(4): unpack(k, 96+2*j, 97+2*j, 88+j)
    for j in range(4): unpack(k, 104+2*j, 105+2*j, 48+j)
    for t in range(2):
        k(f"s_waitcnt lgkmcnt({3-3*t})")
        for j in (0, 2):
            k(f"v_pk_add_f32 {P(56+4*t+j)}, {P(56+4*t+j)}, {P(64+12*t+j)}")
            k(f"v_pk_add_f32 {P(68+12*t+j)}, {P(68+12*t+j)}, {P(72+12*t+j)}")
        for j in (0, 2): k(f"v_pk_add_f32 {P(56+4*t+j)}, {P(56+4*t+j)}, {P(68+12*t+j)}")
    for j in range(4): k(f"v_cvt_pk_bf16_f32 v{64+j}, v{56+2*j}, v{57+2*j}")
    for j in range(4): unpack(k, 56+2*j, 57+2*j, 64+j)
    for j in range(4): k(f"v_pk_add_f32 {P(56+2*j)}, {P(56+2*j)}, {P(96+2*j)}")
    for j in range(4): k(f"v_cvt_pk_bf16_f32 v{64+j}, v{56+2*j}, v{57+2*j}")
    for j in range(4): unpack(k, 56+2*j, 57+2*j, 64+j)
    for j in range(4): k(f"v_pk_add_f32 {P(56+2*j)}, {P(56+2*j)}, {P(104+2*j)}")
    for j in range(4): k(f"v_cvt_pk_bf16_f32 v{64+j}, v{56+2*j}, v{57+2*j}")
    for j in range(4): k(f"v_min_u32 v{64+j}, -2, v{64+j}")
    k("buffer_store_dwordx2 v[64:65], v5, s[8:11], s26 offen sc1")
    k("buffer_store_dwordx2 v[66:67], v5, s[8:11], s27 offen sc1")
    vm = Q(k, 'vmcnt', 63); lg = Q(k, 'lgkmcnt', 15)
    def unit(p):
        for i in range(3):
            k(f"s_add_u32 m0, s25, {p*24576 + i*1024}")
            k(f"s_add_u32 s14, s12, {i*32768 + p*8192}")
            vm.issue(f"buffer_load_dwordx4 v3, {'s[8:11]' if i == 0 else 's[48:51]'}, s14 offen sc1 lds", f"U{p}")
    def wl(ks):
        r = wreg(ks)
        k(f"s_add_u32 s14, s55, {4096*(ks//4)}")
        vm.issue(f"buffer_load_dwordx4 v[{r}:{r+3}], v3, s[8:11], s14 offen offset:{1024*(ks&3)} sc1", f"W{ks}")
    for ks in range(NWP): vm.tags[f"W{ks}"] = 0
    def csdot(ks): pass
    def csl():
        k("v_lshlrev_b32 v13, 2, v1")
        k("s_lshl_b32 s14, s6, 11")
        k(f"s_add_u32 s14, s14, {CSQ}")
        for j in range(8): vm.issue(f"buffer_load_dword v{CSV+8+j}, v13, s[8:11], s14 offen offset:{256*j} sc1", "CS")
    def css():
        vm.need("CS")
        for st in (1, 2):
            for j in range(0, 8, 2*st): k(f"v_add_f32 v{CSV+8+j}, v{CSV+8+j}, v{CSV+8+j+st}")
        k(f"v_add_f32 v166, v{CSV+8}, v{CSV+12}")
        k("v_mov_b32 v167, 0")
    def signal(p):
        V = CSV
        vm.need(f"U{p}")
        k.label(f"L_vf{p}")
        for i in range(3): k(f"ds_read_b128 v[{V+4*i}:{V+4*i+3}], v5 offset:{(p&1)*24576 + 1024*i}")
        k(f"v_mov_b32 v6, {p+1}")
        k("s_waitcnt lgkmcnt(0)")
        lg.reset()
        for i in range(0, 12, 3): k(f"v_max3_u32 v{V+i}, v{V+i}, v{V+i+1}, v{V+i+2}")
        k(f"v_max3_u32 v{V}, v{V}, v{V+3}, v{V+6}")
        k(f"v_max_u32 v{V}, v{V}, v{V+9}")
        k(f"v_cmp_eq_u32 vcc, -1, v{V}")
        k("s_cmp_eq_u64 vcc, 0")
        k(f"s_cbranch_scc1 L_vo{p}")
        k("s_add_u32 s13, s13, 1")
        k(f"s_cmp_ge_u32 s13, {RETRY}")
        k(f"s_cbranch_scc1 L_vo{p}")
        k(f"s_sleep {RSL}")
        for i in range(3):
            k(f"s_add_u32 m0, s25, {p*24576 + i*1024}")
            k(f"s_add_u32 s14, s12, {i*32768 + p*8192}")
            k(f"buffer_load_dwordx4 v3, {'s[8:11]' if i == 0 else 's[48:51]'}, s14 offen sc1 lds")
        k("s_waitcnt vmcnt(0)")
        k(f"s_branch L_vf{p}")
        k.label(f"L_vo{p}")
        lg.issue("ds_write_b32 v2, v6", "sig")
        if p == 1: k("v_add_u32 v5, 49152, v5")
    def dsetup():
        k(f"""
    s_and_b32 s30, s2, 7
    s_lshr_b32 s31, s2, 3
    s_lshl_b32 s30, s30, 2
    s_lshr_b32 s12, s31, 3
    s_add_u32 s30, s30, s12
    s_and_b32 s31, s31, 7
    s_bfe_u32 s12, s3, 0x10001
    s_lshl_b32 s32, s31, 1
    s_add_u32 s32, s32, s12
    s_and_b32 s12, s3, 1
    s_lshl_b32 s33, s30, 1
    s_add_u32 s33, s33, s12
    s_xor_b32 s12, s32, 1
    s_mul_i32 s34, s32, {86*1024}
    s_mul_i32 s35, s12, {86*1024}
    s_xor_b32 s12, s33, 1
    s_mul_i32 s36, s33, {86*1024}
    s_mul_i32 s37, s12, {86*1024}
    s_lshl_b32 s12, s3, 10
    s_add_u32 s13, s12, {WD}
    s_add_u32 s34, s34, s13
    s_add_u32 s35, s35, s13
    s_add_u32 s13, s12, {HB}
    s_add_u32 s36, s36, s13
    s_add_u32 s37, s37, s13
    s_cmp_ge_u32 s3, 6
    s_cselect_b32 s22, 0, s10
        """)
    def wdl(n, i, vm=None):
        r = WD0 + 8*n + 4*i
        k(f"s_add_u32 s14, s{34+i}, {8192*n}")
        srd = "s[20:23]" if n == 10 else "s[8:11]"
        ins = f"buffer_load_dwordx4 v[{r}:{r+3}], v3, {srd}, s14 offen sc1"
        if vm: vm.issue(ins, "WD")
        else: k(ins)
    wdq = [(n, i) for n in range(11) for i in range(2)]
    k("s_waitcnt vmcnt(0)")
    k("s_barrier")
    stamp(k, 8)
    k(f"""
    v_mov_b32 v4, {FLG}
    v_lshrrev_b32 v7, 5, v1
    s_cmp_lt_u32 s2, {NPROD}
    s_cbranch_scc1 L_{N}_prod
    """)
    dsetup()
    k(f"""
    s_mov_b32 s4, s52
    s_mov_b32 s5, s53
    s_mov_b32 s6, s54
    s_mul_i32 s12, s4, 98304
    s_lshl_b32 s13, s3, 10
    s_add_u32 s12, s12, s13
    s_add_u32 s12, s12, {XB}
    s_mul_i32 s25, s3, 3072
    v_add_u32 v5, s25, v3
    s_cmp_eq_u32 s4, 21
    s_cselect_b32 s50, 0, s10
    """)
    k("s_mov_b32 s13, 0")
    if EARLYU == 0: unit(0)
    for ks in range(NWP, NWP2): wl(ks)
    csl()
    k(f"""
    v_and_b32 v6, 15, v1
    v_lshrrev_b32 v12, 2, v6
    v_lshl_add_u32 v12, v7, 3, v12
    v_lshlrev_b32 v12, 6, v12
    v_and_b32 v8, 3, v6
    v_lshl_add_u32 v12, v8, 3, v12
    v_and_b32 v8, 16, v1
    v_lshl_add_u32 v12, v8, 1, v12
    v_add_u32 v14, 49152, v12
    s_lshl_b32 s15, s3, 2
    v_add_u32 v2, s15, v4
    s_mov_b32 s28, 0
    s_mov_b32 s29, 0
    """)
    for r in range(48): k(f"v_mov_b32 v{ACC+r}, 0")
    for ks in range(NWP2):
        if ks == EARLYU and EARLYU > 0 and not LATEU: unit(0)
        if ks < NWP: csdot(ks)
    css()
    if LATEU: unit(0)
    if LATEU == 2: unit(1)
    signal(0)
    stamp(k, 2)
    if LATEU != 2: unit(1)
    unit(2); unit(3)
    def poll(half, need, tag):
        c = 28 + half
        k(f"""
        s_cmp_ge_u32 s{c}, {need}
        s_cbranch_scc1 L_{N}_pd{tag}
        L_{N}_pl{tag}:
        ds_read_b128 v[8:11], v4 offset:{16*half}
        s_waitcnt lgkmcnt(0)
        v_min_u32 v8, v8, v9
        v_min3_u32 v8, v8, v10, v11
        s_nop 0
        v_readfirstlane_b32 s{c}, v8
        s_cmp_ge_u32 s{c}, {need}
        s_cbranch_scc0 L_{N}_pl{tag}
        L_{N}_pd{tag}:
        """)
    def xr(ks, lb, h):
        b = 12 if ks < 16 else 14
        r = XF+12*(ks&3)+4*lb+2*h
        lg.issue(f"ds_read_b64_tr_b16 v[{r}:{r+1}], v{b} offset:{3072*(ks%16)+1024*lb+256*h}", f"x{ks}_{lb}")
    poll(0, 1, "a")
    for st in range(2):
        for lb in range(3): xr(st, lb, 0); xr(st, lb, 1)
    FCK = int(os.environ.get('FCK', '27'))
    for ks in range(32):
        if ks+2 < 32 and (ks+2) % 4 == 0: poll(((ks+2)//4) & 1, (ks+2)//8 + 1, f"m{ks}")
        vm.need(f"W{ks}")
        if ks == 0: stamp(k, 4)
        if ks in (2, 5, 8): signal({2:1, 5:2, 8:3}[ks])
        w = wreg(ks)
        for lb in range(3):
            lg.need(f"x{ks}_{lb}")
            a = ACC+16*lb; x = XF+12*(ks&3)+4*lb
            k(f"v_mfma_f32_32x32x16_bf16 v[{a}:{a+15}], v[{w}:{w+3}], v[{x}:{x+3}], v[{a}:{a+15}]")
            if ks+2 < 32: xr(ks+2, lb, 0); xr(ks+2, lb, 1)
        if ks >= NWP: csdot(ks)
        for j in late_w.get(ks, []): wl(j)
        j = ks - WDLAG
        if 2 <= j < NDI: wdl(j >> 1, j & 1, vm=vm)
        if ks == FCK:
            k(f"""
            v_and_b32 v15, 31, v1
            v_lshlrev_b32 v15, 3, v15
            s_mul_i32 s15, s4, 768
            s_add_u32 s15, s15, {FCG}
            s_cmp_eq_u32 s4, 21
            s_cselect_b32 s47, 0, 256
            s_add_u32 s48, s15, s47
            s_add_u32 s49, s48, s47
            s_mov_b32 s47, s15
            """)
            for lb in range(3): vm.issue(f"buffer_load_dwordx2 v[{FG+2*lb}:{FG+2*lb+1}], v15, s[8:11], s{47+lb} offen sc1", "FG")
    stamp(k, 3)
    k(f"""
    s_cmp_ge_u32 s6, 86
    s_cbranch_scc1 L_{N}_drest
    s_mov_b32 s26, {f32hex(-LOG2E)}
    s_mov_b32 s27, 0
    v_add_f32 v166, v166, v167
    s_lshl_b32 s12, s3, 7
    s_add_u32 s12, s12, {FLG+256}
    v_mov_b32 v167, v166
    v_and_b32 v8, 31, v1
    v_lshl_add_u32 v8, v8, 2, s12
    v_permlane32_swap_b32 v166, v167
    v_lshl_add_u32 v9, v7, 4, s12
    v_add_f32 v166, v166, v167
    ds_write_b32 v8, v166
    ds_read_b128 v[{CSV}:{CSV+3}], v9
    ds_read_b128 v[{CSV+4}:{CSV+7}], v9 offset:32
    ds_read_b128 v[{CSV+8}:{CSV+11}], v9 offset:64
    ds_read_b128 v[{CSV+12}:{CSV+15}], v9 offset:96
    """)
    vm.need("FG")
    k(f"""
    s_branch L_{N}_gc
    L_{N}_gp:
    s_sleep 4
    """)
    for lb in range(3): k(f"buffer_load_dwordx2 v[{FG+2*lb}:{FG+2*lb+1}], v15, s[8:11], s{47+lb} offen sc1")
    k(f"""
    s_add_u32 s27, s27, 1
    s_waitcnt vmcnt(0)
    L_{N}_gc:
    v_and_b32 v8, v{FG+1}, v{FG+3}
    v_and_b32 v8, v8, v{FG+5}
    v_cmp_ne_u32 vcc, 1, v8
    s_cmp_eq_u64 vcc, 0
    s_cbranch_scc1 L_{N}_gd
    s_cmp_lt_u32 s27, {SPIN}
    s_cbranch_scc1 L_{N}_gp
    L_{N}_gd:
    """)
    for lb in range(3):
        c = FCR+6*lb
        k(f"v_and_b32 v{c+4}, 0xffff0000, v{FG+2*lb}")
        k(f"v_lshlrev_b32 v{c}, 16, v{FG+2*lb}")
    for lb in range(3): k(f"v_rcp_f32 v{FCR+6*lb+2}, v{FCR+6*lb+4}")
    for lb in range(3):
        c = FCR+6*lb
        k(f"v_sub_f32 v{c+1}, 0, v{c}")
        k(f"v_sub_f32 v{c}, 0, v{c}")
        k(f"v_mov_b32 v{c+5}, v{c+4}")
        k(f"v_mul_f32 v{c+3}, s26, v{c+2}")
        k(f"v_mul_f32 v{c+2}, s26, v{c+2}")
    k(f"""
    s_mul_i32 s15, s4, {3*86*1024}
    s_lshl_b32 s12, s6, 10
    s_add_u32 s15, s15, s12
    s_add_u32 s15, s15, {HB}
    s_waitcnt lgkmcnt(0)
    """)
    for lb in range(3):
        g = ACC+16*lb; u = g+8; c = FCR+6*lb; o = XF+4*lb
        for j in range(0, 8, 2): k(f"v_pk_fma_f32 {P(g+j)}, {P(CSV+j)}, {P(c)}, {P(g+j)}")
        for j in range(0, 8, 2): k(f"v_pk_mul_f32 {P(g+j)}, {P(g+j)}, {P(c+2)}")
        for j in range(8):
            k(f"v_exp_f32 v{g+j}, v{g+j}")
        for j in range(0, 8, 2): k(f"v_pk_fma_f32 {P(u+j)}, {P(CSV+8+j)}, {P(c)}, {P(u+j)}")
        for j in range(0, 8, 2): k(f"v_pk_fma_f32 {P(g+j)}, {P(g+j)}, {P(c+4)}, {P(c+4)}")
        for j in range(8):
            k(f"v_rcp_f32 v{g+j}, v{g+j}")
        k("s_nop 0")
        for j in range(0, 8, 2): k(f"v_pk_mul_f32 {P(u+j)}, {P(u+j)}, {P(g+j)}")
        for j in range(4): k(f"v_cvt_pk_bf16_f32 v{o+j}, v{u+2*j}, v{u+2*j+1}")
        k(f"buffer_store_dwordx4 v[{o}:{o+3}], v3, s[8:11], s15 offen sc1")
        if lb == 0:
            k(f"s_cmp_eq_u32 s4, 21")
            k(f"s_cbranch_scc1 L_{N}_pub")
        k(f"s_add_u32 s15, s15, {86*1024}")
    k(f"""
    L_{N}_pub:
    s_waitcnt vmcnt(0)
    """)
    stamp(k, 5)
    k(f"s_branch L_{N}_drest")
    k.label(f"L_{N}_dall")
    dsetup()
    for (n, i) in wdq[2:NDI]: wdl(n, i)
    k.label(f"L_{N}_drest")
    k(f"""
    s_waitcnt lgkmcnt(0)
    s_barrier
    s_cmp_lg_u32 s3, 0
    s_cbranch_scc1 L_hf_np
    s_cmp_lt_u32 s2, {NPROD}
    s_cbranch_scc1 L_hf_np
    s_lshl_b32 s15, s4, 9
    s_lshl_b32 s12, s5, 2
    s_add_u32 s15, s15, s12
    s_add_u32 s15, s15, {HF}
    v_lshlrev_b32 v8, 7, v1
    v_mov_b32 v9, 1
    s_mov_b64 exec, 15
    buffer_store_dword v9, v8, s[8:11], s15 offen sc1
    s_mov_b64 exec, -1
    L_hf_np:
    """)
    for (n, i) in wdq[:2] + wdq[NDI:]: wdl(n, i)
    for r in range(64): k(f"v_mov_b32 v{A2+r}, 0")
    k(f"""
    s_lshl_b32 s12, s30, 1
    s_mul_i32 s13, s12, 171
    s_lshr_b32 s13, s13, 9
    s_add_u32 s12, s12, 1
    s_mul_i32 s12, s12, 171
    s_lshr_b32 s12, s12, 9
    s_lshl_b32 s13, s13, 9
    s_lshl_b32 s12, s12, 9
    s_and_b32 s38, s31, 3
    s_lshl_b32 s38, s38, 7
    s_add_u32 s38, s38, {HF}
    v_and_b32 v8, 15, v1
    v_and_b32 v9, 16, v1
    v_mov_b32 v10, s13
    v_mov_b32 v11, s12
    v_cmp_eq_u32 vcc, 0, v9
    v_cmp_gt_u32 s[26:27], 11, v8
    s_nop 0
    v_cndmask_b32 v10, v11, v10, vcc
    v_lshl_add_u32 v10, v8, 2, v10
    v_and_b32 v6, 31, v1
    v_lshlrev_b32 v5, 8, v7
    v_lshl_add_u32 v5, v6, 1, v5
    s_lshl_b32 s24, s32, 11
    s_lshl_b32 s25, s33, 15
    s_add_u32 s24, s24, s25
    s_lshr_b32 s12, s3, 2
    s_lshl_b32 s12, s12, 10
    s_add_u32 s24, s24, s12
    s_add_u32 s25, s24, {XC}
    s_add_u32 s24, s24, {XB}
    """)
    k(f"""
    s_mov_b32 s13, 0
    s_cmp_eq_u32 s3, 0
    s_cbranch_scc0 L_{N}_hr
    L_{N}_hq:
    buffer_load_dword v12, v10, s[8:11], s38 offen sc1
    s_add_u32 s13, s13, 1
    s_waitcnt vmcnt(0)
    v_cmp_ne_u32 vcc, 1, v12
    s_and_b64 vcc, vcc, s[26:27]
    s_cbranch_scc0 L_{N}_hr
    s_cmp_ge_u32 s13, {SPIN}
    s_cbranch_scc1 L_{N}_hr
    s_sleep 1
    s_branch L_{N}_hq
    L_{N}_hr:
    s_barrier
    L_{N}_hd:
    s_mov_b32 s22, {WS_USED}
    v_mov_b32 v12, v3
    """)
    stamp(k, 6)
    vm = Q(k, 'vmcnt', 63)
    HD = 6
    def hload(n):
        if n == 10:
            k("s_cmp_ge_u32 s3, 6")
            k("s_cselect_b32 s22, 0, s22")
        for i in range(2):
            r = HR + 8*(n % HD) + 4*i
            vm.issue(f"buffer_load_dwordx4 v[{r}:{r+3}], v12, s[20:23], s{36+i} offen sc1", f"S{n}")
        k("v_add_u32 v12, 8192, v12")
    for n in range(HD): hload(n)
    for n in range(8):
        q, r = n >> 2, n & 3
        vm.issue(f"buffer_load_ushort v{RES+n}, v5, s[8:11], s24 offen offset:{(8*q+r)*64} sc1", "RES")
    k("s_and_b32 s13, s3, 3")
    for a in range(4):
        k(f"""
        s_xor_b32 s12, s13, {a}
        s_lshl_b32 s12, s12, 14
        s_lshl_b32 s15, s3, 11
        s_add_u32 s12, s12, s15
        v_add_u32 v{8+a}, s12, v3
        """)
    k(f"""
    s_lshl_b32 s12, s3, 14
    v_add_u32 v13, s12, v3
    v_add_u32 v14, 0x10000, v8
    v_add_u32 v15, 0x10000, v9
    v_add_u32 v0, 0x10000, v10
    v_add_u32 v2, 0x10000, v11
    """)
    for n in range(11):
        vm.need(f"S{n}")
        for ad in range(2):
            for al in range(2):
                a = A2 + 16*(2*ad+al); w = WD0+8*n+4*ad; h = HR+8*(n % HD)+4*al
                k(f"v_mfma_f32_32x32x16_bf16 v[{a}:{a+15}], v[{w}:{w+3}], v[{h}:{h+3}], v[{a}:{a+15}]")
        if n >= 1 and n-1+HD < 11: hload(n-1+HD)
    k("s_nop 3")
    lg = Q(k, 'lgkmcnt', 15)
    hi = [14, 15, 0, 2]
    for n in range(8): k(f"v_lshlrev_b32 v{RES+n}, 16, v{RES+n}")
    for a in range(4):
        for q in range(4):
            ad = (8+a) if q < 2 else hi[a]
            lg.issue(f"ds_write_b128 v{ad}, v[{A2+16*a+4*q}:{A2+16*a+4*q+3}] offset:{1024*(q&1)}", "rw")
    lg.drain()
    k("s_barrier")
    FV = 16
    for q in range(2):
        for s_ in range(8):
            lg.issue(f"ds_read_b128 v[{FV+32*q+4*s_}:{FV+32*q+4*s_+3}], v13 offset:{2048*s_+1024*q}", f"rr{q}_{s_}")
    for q in range(2):
        b = FV+32*q
        for st in (1, 2, 4):
            for s_ in range(0, 8, 2*st):
                lg.need(f"rr{q}_{min(7, s_+2*st-1)}")
                for j in (0, 2): k(f"v_pk_add_f32 {P(b+4*s_+j)}, {P(b+4*s_+j)}, {P(b+4*(s_+st)+j)}")
        k(f"v_cvt_pk_bf16_f32 v{T+2*q}, v{b}, v{b+1}")
        k(f"v_cvt_pk_bf16_f32 v{T+2*q+1}, v{b+2}, v{b+3}")
        unpack(k, b, b+1, T+2*q); unpack(k, b+2, b+3, T+2*q+1)
        for j in (0, 2): k(f"v_pk_add_f32 {P(b+j)}, {P(b+j)}, {P(RES+4*q+j)}")
        k(f"v_cvt_pk_bf16_f32 v{T+2*q}, v{b}, v{b+1}")
        k(f"v_cvt_pk_bf16_f32 v{T+2*q+1}, v{b+2}, v{b+3}")
    k("s_cmp_eq_u32 s93, 1")
    k(f"s_cbranch_scc1 L_{N}_out")
    k(f"""
    v_mov_b32 v14, 0x3f803f80
    s_lshl_b32 s12, s3, 14
    v_add_u32 v8, s12, v5
    v_mov_b32 v12, 0
    v_mov_b32 v9, 0
    """)
    for q in range(2):
        for r in range(4):
            op = "ds_write_b16_d16_hi" if r & 1 else "ds_write_b16"
            k(f"{op} v8, v{T+2*q+(r>>1)} offset:{(8*q+r)*64}")
    k("ds_read_b128 v[16:19], v13")
    for q in range(2):
        for j in range(2):
            k(f"v_dot2_f32_bf16 v12, v{T+2*q+j}, v14, v12")
            k(f"v_dot2_f32_bf16 v9, v{T+2*q+j}, v{T+2*q+j}, v9")
    k(f"""
    v_lshlrev_b32 v5, 3, v6
    v_lshl_add_u32 v5, v7, 2, v5
    s_lshl_b32 s12, s33, 8
    v_permlane32_swap_b32 v12, v9
    s_add_u32 s12, s12, {ST3}
    s_waitcnt lgkmcnt(0)
    buffer_store_dwordx4 v[16:19], v3, s[8:11], s25 offen sc1
    v_add_f32 v12, v12, v9
    buffer_atomic_add_f32 v12, v5, s[8:11], s12 offen
    s_lshl_b32 s12, s2, 2
    s_add_u32 s12, s12, {LF}
    v_lshlrev_b32 v8, 10, v1
    ds_read_b32 v9, v4 offset:64
    """)
    stamp(k, 9)
    k(f"""
    s_waitcnt vmcnt(0) lgkmcnt(0)
    s_barrier
    s_cmp_lg_u32 s3, 0
    s_cbranch_scc1 L_lf_np
    s_mov_b64 exec, 0xff
    buffer_store_dword v9, v8, s[8:11], s12 offen sc1
    s_mov_b64 exec, -1
    L_lf_np:
    """)
    stamp_flush(k, slot, 10, 3)
    k("s_mov_b64 exec, -1")
    for r, v in sets2.items(): k(f"s_mov_b32 s{r}, {v}")
    k(f"""
    s_branch L_layer
    L_{N}_out:
    s_mov_b32 s28, s96
    s_mov_b32 s29, s97
    s_mov_b32 s30, {2048*512*2}
    s_mov_b32 s31, 0x00020000
    v_lshlrev_b32 v5, 10, v6
    v_lshl_add_u32 v5, v7, 4, v5
    s_lshl_b32 s25, s33, 15
    s_lshl_b32 s12, s32, 6
    s_add_u32 s25, s25, s12
    s_lshr_b32 s12, s3, 2
    s_lshl_b32 s12, s12, 5
    s_add_u32 s25, s25, s12
    v_permlane32_swap_b32 v{T}, v{T+2}
    v_permlane32_swap_b32 v{T+1}, v{T+3}
    buffer_store_dwordx4 v[{T}:{T+3}], v5, s[28:31], s25 offen
    """)
    stamp(k, 9)
    stamp_flush(k, slot, 10, 3)
    k(f"s_branch {E}")
    k.label(f"L_{N}_prod")
    k(f"""
    s_mul_i32 s4, s2, 5
    s_min_u32 s4, s4, 60
    s_lshl_b32 s12, s4, 15
    s_lshl_b32 s13, s3, 10
    s_add_u32 s12, s12, s13
    s_mov_b32 s26, {2*MB}
    s_mov_b32 s27, 0x00020000
    s_add_u32 s24, s18, {XB}
    s_addc_u32 s25, s19, 0
    s_lshl_b32 s5, s3, 14
    v_and_b32 v6, 15, v1
    v_lshrrev_b32 v12, 2, v6
    v_lshl_add_u32 v12, v7, 3, v12
    v_lshlrev_b32 v12, 6, v12
    v_and_b32 v8, 3, v6
    v_lshl_add_u32 v12, v8, 3, v12
    v_and_b32 v8, 16, v1
    v_lshl_add_u32 v12, v8, 1, v12
    v_add_u32 v12, s5, v12
    v_mov_b32 v13, 0x3f803f80
    """)
    for r in range(10): k(f"v_mov_b32 v{16+r}, 0")
    k("s_mov_b32 s13, 0")
    pv = Q(k, 'vmcnt', 63); pl = Q(k, 'lgkmcnt', 15)
    def pdma(n):
        k(f"s_add_u32 m0, s5, {1024*(n % 16)}")
        k(f"s_add_u32 s14, s12, {(n >> 2)*32768 + (n & 3)*8192}")
        pv.issue(f"buffer_load_dwordx4 v3, s[24:27], s14 offen sc1 lds", f"d{n}")
    def prd(n):
        pv.need(f"d{n}")
        r = 32 + 4*(n % 4)
        pl.issue(f"ds_read_b64_tr_b16 v[{r}:{r+1}], v12 offset:{1024*(n%16)}", f"r{n}")
        pl.issue(f"ds_read_b64_tr_b16 v[{r+2}:{r+3}], v12 offset:{1024*(n%16)+256}", f"r{n}")
    def dots(n):
        r = 32 + 4*(n % 8); lb = n >> 2
        for e in range(4):
            k(f"v_dot2_f32_bf16 v{16+2*lb}, v{r+e}, v13, v{16+2*lb}")
            k(f"v_dot2_f32_bf16 v{17+2*lb}, v{r+e}, v{r+e}, v{17+2*lb}")
    def prd8(n):
        pv.need(f"d{n}")
        r = 32 + 4*(n % 8)
        pl.issue(f"ds_read_b64_tr_b16 v[{r}:{r+1}], v12 offset:{1024*(n%16)}", f"r{n}")
        pl.issue(f"ds_read_b64_tr_b16 v[{r+2}:{r+3}], v12 offset:{1024*(n%16)+256}", f"r{n}")
    def bcheck(lb):
        k("s_nop 2")
        k.label(f"L_pv{lb}")
        k(f"v_cmp_u_f32 vcc, v{17+2*lb}, v{17+2*lb}")
        k("s_cmp_eq_u64 vcc, 0")
        k(f"s_cbranch_scc1 L_po{lb}")
        k("s_add_u32 s13, s13, 1")
        k(f"s_cmp_ge_u32 s13, {RETRY}")
        k(f"s_cbranch_scc1 L_po{lb}")
        k(f"s_sleep {RSL}")
        for n in range(4*lb, 4*lb+4):
            k(f"s_add_u32 m0, s5, {1024*(n % 16)}")
            k(f"s_add_u32 s14, s12, {(n >> 2)*32768 + (n & 3)*8192}")
            k(f"buffer_load_dwordx4 v3, s[24:27], s14 offen sc1 lds")
        k(f"v_mov_b32 v{16+2*lb}, 0")
        k(f"v_mov_b32 v{17+2*lb}, 0")
        k("s_waitcnt vmcnt(0) lgkmcnt(0)")
        for n in range(4*lb, 4*lb+4):
            r = 64 + 4*(n & 3)
            k(f"ds_read_b64_tr_b16 v[{r}:{r+1}], v12 offset:{1024*(n%16)}")
            k(f"ds_read_b64_tr_b16 v[{r+2}:{r+3}], v12 offset:{1024*(n%16)+256}")
        k("s_waitcnt lgkmcnt(0)")
        for r in range(64, 80):
            k(f"v_dot2_f32_bf16 v{16+2*lb}, v{r}, v13, v{16+2*lb}")
            k(f"v_dot2_f32_bf16 v{17+2*lb}, v{r}, v{r}, v{17+2*lb}")
        k("s_nop 2")
        k(f"s_branch L_pv{lb}")
        k.label(f"L_po{lb}")
    for n in range(4): pdma(n)
    for n in range(4): prd8(n)
    for n in range(4): pl.need(f"r{n}"); dots(n)
    bcheck(0)
    stamp(k, 2)
    for n in range(4, 20): pdma(n)
    prd8(4); prd8(5); prd8(6)
    for n in range(4, 20):
        if n+3 < 20: prd8(n+3)
        pl.need(f"r{n}"); dots(n)
        if n % 4 == 3: bcheck(n >> 2)
    k("s_nop 2")
    for lb in range(5): k(f"v_permlane32_swap_b32 v{16+2*lb}, v{17+2*lb}")
    for lb in range(5): k(f"v_add_f32 v{16+2*lb}, v{16+2*lb}, v{17+2*lb}")
    k(f"""
    v_and_b32 v8, 31, v1
    v_lshlrev_b32 v8, 3, v8
    v_lshl_add_u32 v8, v7, 2, v8
    v_add_u32 v8, s5, v8
    """)
    for lb in range(5): k(f"ds_write_b32 v8, v{16+2*lb} offset:{256*lb}")
    k(f"""
    s_waitcnt lgkmcnt(0)
    s_barrier
    s_cmp_ge_u32 s3, 3
    s_cbranch_scc1 L_{N}_pe
    v_lshlrev_b32 v8, 3, v0
    v_add_u32 v9, 0x10000, v8
    """)
    for w in range(8): k(f"ds_read_b64 v[{32+2*w}:{33+2*w}], v{8 + (w >> 2)} offset:{16384*(w & 3)}")
    k("s_waitcnt lgkmcnt(0)")
    for st in (1, 2, 4):
        for w in range(0, 8, 2*st): k(f"v_pk_add_f32 {P(32+2*w)}, {P(32+2*w)}, {P(32+2*(w+st))}")
    k(f"""
    s_mov_b32 s24, {f32hex(1.0/512)}
    s_mov_b32 s25, {f32hex(1e-5)}
    v_mul_f32 v14, s24, v32
    v_mul_f32 v16, s24, v33
    v_fma_f32 v16, -v14, v14, v16
    v_max_f32 v16, 0, v16
    v_cvt_pk_bf16_f32 v14, v14, v16
    v_and_b32 v16, 0xffff0000, v14
    v_lshlrev_b32 v14, 16, v14
    v_add_f32 v16, s25, v16
    v_cvt_pk_bf16_f32 v16, v16, v16
    v_lshlrev_b32 v16, 16, v16
    v_sqrt_f32 v16, v16
    s_mul_i32 s4, s2, 1280
    s_add_u32 s4, s4, {FCG}
    v_cvt_pk_bf16_f32 v20, v14, v16
    v_mov_b32 v21, 1
    s_movk_i32 s6, 160
    v_cmp_gt_u32 vcc, s6, v0
    s_and_saveexec_b64 s[6:7], vcc
    buffer_store_dwordx2 v[20:21], v8, s[8:11], s4 offen sc1
    s_mov_b64 exec, s[6:7]
    s_nop 1
    L_{N}_pe:
    """)
    for i in (3, 5): stamp(k, i)
    k(f"s_branch L_{N}_dall")
    k.label(E)
    k("s_endpgm")
    return k

if __name__ == '__main__':
    import sys
    KN = "interleave_layers__ssm_conv_s4d__glu_gated_glu__prompt_kernel"
    sets1 = {86: XT0, 87: XT1, 88: ST1, 89: FCG1, 90: H, 91: HF1, 92: XT2, 93: 0, 94: CF1, 95: 2}
    sets2 = {86: XT2, 87: XT3, 88: ST3, 89: FCG2, 90: H2, 91: HF2, 92: 0, 93: 1, 94: CF2, 95: 6}
    p = Prog(); p.add_kernel(gen_mega(KN, sets1, sets2))
    t = p.text().replace('.amdgcn_target', f"; @launch grid=(256,1,1) block=(512,1,1) lds={LAYER_LDS}\n.amdgcn_target", 1)
    open(sys.argv[1], 'w').write(t)
```

```python
import asmlib, os
asmlib.STAMPS = bool(os.environ.get('STAMPS'))
from asmlib import *
from layout import *
from gen_k0 import f32hex, LOG2E
from gen_conv import unpack, U0, UP, KC0, KCP, KCH, RED
NPROD = 14; PCH = 19
FLG = 131072
LAYER_LDS = FLG + 256 + 1024
SPIN = 400000
LATEU = int(os.environ.get('LATEU', '0'))
EARLYU = int(os.environ.get('EARLYU', '12'))
RETRY = 200000
RSL = int(os.environ.get('RSL', '3'))
CFD = int(os.environ.get('CFD', '0')); CFS = int(os.environ.get('CFS', '4')); CFR = int(os.environ.get('CFR', '8'))
XSC = os.environ.get('XSC', 'sc1')
NWP = int(os.environ.get('NWP', '18'))
NWP2 = int(os.environ.get('NWP2', '24'))
WDLAG = int(os.environ.get('WDLAG', '6'))
NDI = int(os.environ.get('NDI', '22'))

from gen_k0 import exp_bf16_pair, LOG2E_HI, LOG2E_LO, LN2, INV2PI
SC = ''
def gen_mega(name, sets1, sets2):
    k = Kernel(name, vgpr=256, sgpr=100)
    XA, XB, ST, FCG, HB, HF, XC, CF, slot = 's86', 's87', 's88', 's89', 's90', 's91', 's92', 's94', 's95'
    stamp(k, 0)
    E = "L_mega_end"; N = "m"
    ACC = 16; XF = 64; CSV = 144; FCR = 112
    A2 = 16; HR = 80; WD0 = 168; RES = 128; T = 144; FG = 160
    P = lambda r: f"v[{r}:{r+1}]"
    def wreg(ks):
        if ks < 22: return 168 + 4*ks
        if ks < 30: return 112 + 4*(ks-22)
        return 168 + 4*(ks-30)
    late_w = {}
    for j in range(NWP2, 32): late_w.setdefault(max(3, j - 14) if j < 30 else 12 + j - 30, []).append(j)
    def wpre(ks):
        r = wreg(ks)
        k(f"s_add_u32 s14, s55, {4096*(ks//4)}")
        k(f"buffer_load_dwordx4 v[{r}:{r+3}], v3, s[20:23], s14 offen offset:{1024*(ks&3)} sc1")

    KSC = RED; TS = 90112; WS_ = TS + 8192
    SIDE_AT = int(os.environ.get('SIDE_AT', '7'))
    NTASK = 688 + 172
    def side_issue():
        k(f"""
        v_lshlrev_b32 v116, 4, v1
        v_lshrrev_b32 v117, 4, v1
        v_and_b32 v118, 15, v1
        v_lshrrev_b32 v120, 2, v1
        v_and_b32 v121, 3, v1
        s_mov_b32 s51, 0x00020000
        s_mov_b32 s59, 0x00020000
        s_lshl_b32 s52, s2, 2
        s_add_u32 s52, s52, s45
        s_lshl_b32 s53, s45, 13
        s_add_u32 s53, s53, {WS_}
        s_cmp_lt_u32 s3, 4
        s_cbranch_scc1 L_si_w
        s_mov_b32 s48, s24
        s_mov_b32 s49, s25
        s_mov_b32 s50, {2*MB}
        s_lshl_b32 s4, s52, 11
        buffer_load_dwordx4 v[112:115], v116, s[48:51], s4 offen
        buffer_load_dwordx4 v[160:163], v116, s[48:51], s4 offen offset:1024
        v_lshlrev_b32 v120, 10, v120
        v_lshl_add_u32 v120, v121, 4, v120
        s_lshr_b32 s4, s2, 2
        s_lshl_b32 s4, s4, 15
        s_and_b32 s5, s52, 15
        s_lshl_b32 s5, s5, 6
        s_add_u32 s4, s4, s5
        s_lshl_b32 s53, s45, 11
        s_add_u32 s53, s53, {TS}
        s_mov_b32 m0, s53
        s_add_u32 s5, s4, 16384
        buffer_load_dwordx4 v120, s[48:51], s4 offen lds
        s_add_u32 m0, s53, 1024
        s_mov_b32 s58, 0
        buffer_load_dwordx4 v120, s[48:51], s5 offen lds
        s_mov_b32 s56, s24
        s_mov_b32 s57, s25
        """)
        for t_ in range(4): k("buffer_load_dword v164, v116, s[56:59], 0 offen")
        k(f"""
        s_branch L_si_done
        L_si_w:
        s_mov_b32 s50, {D*F*2}
        s_mov_b32 s58, {D*F*2}
        s_cmp_ge_u32 s52, {NTASK}
        s_cselect_b32 s50, 0, s50
        s_cmp_ge_u32 s52, 688
        s_cbranch_scc1 L_si_wd
        s_mov_b32 s48, s20
        s_mov_b32 s49, s21
        s_mov_b32 s56, s22
        s_mov_b32 s57, s23
        v_mul_u32_u24 v120, {F*2}, v120
        v_lshl_add_u32 v120, v121, 4, v120
        s_and_b32 s4, s52, 15
        s_mul_i32 s4, s4, {32*F*2}
        s_lshr_b32 s5, s52, 4
        s_lshl_b32 s5, s5, 6
        s_add_u32 s4, s4, s5
        """)
        for t_ in range(2):
            k(f"s_add_u32 m0, s53, {2048*t_}")
            k("s_nop 0")
            k("buffer_load_dwordx4 v120, s[48:51], s4 offen lds")
            k(f"s_add_u32 m0, s53, {2048*t_+1024}")
            k("s_nop 0")
            k("buffer_load_dwordx4 v120, s[56:59], s4 offen lds")
            k(f"s_add_u32 s4, s4, {16*F*2}")
        k("s_mov_b32 s58, 0")
        for t_ in range(4): k("buffer_load_dword v164, v116, s[56:59], 0 offen")
        k(f"""
        s_branch L_si_done
        L_si_wd:
        s_mov_b32 s48, s26
        s_mov_b32 s49, s27
        v_lshrrev_b32 v120, 5, v1
        v_and_b32 v121, 31, v1
        v_lshlrev_b32 v120, 10, v120
        v_lshl_add_u32 v120, v121, 4, v120
        s_sub_u32 s4, s52, 688
        s_and_b32 s5, s4, 1
        s_lshr_b32 s4, s4, 1
        s_lshl_b32 s4, s4, 14
        s_lshl_b32 s5, s5, 9
        s_add_u32 s4, s4, s5
        """)
        for t_ in range(8):
            k(f"s_add_u32 m0, s53, {1024*t_}")
            k("s_nop 0")
            k("buffer_load_dwordx4 v120, s[48:51], s4 offen lds")
            k(f"s_add_u32 s4, s4, 2048")
        k.label("L_si_done")
    def side_process():
        k(f"""
        v_lshrrev_b32 v122, 5, v1
        v_lshrrev_b32 v120, 2, v118
        v_and_b32 v121, 3, v118
        v_and_b32 v123, 16, v1
        s_cmp_lt_u32 s3, 4
        s_cbranch_scc1 L_sp_w
        v_mov_b32 v124, 0
        v_mov_b32 v125, 0
        v_mov_b32 v126, 0
        v_mov_b32 v127, 0
        v_mov_b32 v136, 0x3f803f80
        v_lshl_add_u32 v120, v117, 3, v120
        v_lshlrev_b32 v120, 6, v120
        v_lshl_add_u32 v120, v121, 3, v120
        v_add_u32 v120, s53, v120
        s_waitcnt vmcnt(0)
        s_cmp_lg_u32 s54, 7
        s_cbranch_scc1 L_nn3
        s_mov_b64 exec, 1
        global_store_dwordx2 v152, v[154:155], s[98:99] sc1
        s_mov_b64 exec, -1
        L_nn3:
        ds_read_b64_tr_b16 v[128:129], v120
        ds_read_b64_tr_b16 v[130:131], v120 offset:256
        ds_read_b64_tr_b16 v[132:133], v120 offset:32
        ds_read_b64_tr_b16 v[134:135], v120 offset:288
        """)
        for j in range(4):
            k(f"v_dot2_f32_bf16 v124, v{112+j}, v136, v124")
            k(f"v_dot2_f32_bf16 v125, v{112+j}, v{112+j}, v125")
            k(f"v_dot2_f32_bf16 v126, v{160+j}, v136, v126")
            k(f"v_dot2_f32_bf16 v127, v{160+j}, v{160+j}, v127")
        k(f"""
        s_lshr_b32 s4, s2, 2
        s_lshl_b32 s4, s4, 15
        s_and_b32 s5, s52, 15
        s_lshl_b32 s5, s5, 11
        s_add_u32 s4, s4, s5
        s_add_u32 s4, s4, {XT0}
        v_lshlrev_b32 v121, 6, v118
        v_lshl_add_u32 v121, v117, 4, v121
        s_waitcnt lgkmcnt(0)
        buffer_store_dwordx4 v[128:131], v121, s[8:11], s4 offen sc1
        buffer_store_dwordx4 v[132:135], v121, s[8:11], s4 offen offset:1024 sc1
        """)
        for dpp in ("quad_perm:[1,0,3,2] row_mask:0xf bank_mask:0xf", "quad_perm:[2,3,0,1] row_mask:0xf bank_mask:0xf",
                    "row_half_mirror row_mask:0xf bank_mask:0xf", "row_mirror row_mask:0xf bank_mask:0xf",
                    "row_bcast:15 row_mask:0xa bank_mask:0xf", "row_bcast:31 row_mask:0xc bank_mask:0xf"):
            for r in range(4): k(f"v_add_f32 v{124+r}, v{124+r}, v{124+r} {dpp}")
        k(f"""
        s_lshl_b32 s4, s52, 4
        s_add_u32 s4, s4, {ST1}
        v_mov_b32 v138, 0
        v_mov_b32 v139, 0
        v_mov_b32 v140, -1
        v_mov_b32 v141, -1
        s_mov_b32 exec_lo, 0
        s_mov_b32 exec_hi, 0x80000000
        buffer_store_dwordx4 v[124:127], v152, s[8:11], s4 offen sc1
        s_mov_b64 exec, 0xffff
        s_lshl_b32 s4, s52, 7
        s_add_u32 s4, s4, {ZR}
        v_lshlrev_b32 v121, 3, v1
        buffer_store_dwordx2 v[138:139], v121, s[8:11], s4 offen sc1
        s_mov_b64 exec, -1
        v_lshrrev_b32 v122, 1, v118
        v_lshlrev_b32 v122, 15, v122
        v_and_b32 v123, 1, v118
        v_lshl_add_u32 v122, v123, 5, v122
        v_lshl_add_u32 v122, v117, 3, v122
        s_lshl_b32 s4, s2, 7
        s_lshl_b32 s5, s45, 19
        s_add_u32 s4, s4, s5
        s_add_u32 s4, s4, {XT1}
        s_add_u32 s5, s4, 0x40000
        buffer_store_dwordx2 v[140:141], v122, s[8:11], s4 offen sc1
        buffer_store_dwordx2 v[140:141], v122, s[8:11], s4 offen offset:64 sc1
        buffer_store_dwordx2 v[140:141], v122, s[8:11], s5 offen sc1
        buffer_store_dwordx2 v[140:141], v122, s[8:11], s5 offen offset:64 sc1
        s_branch L_sp_done
        L_sp_w:
        s_cmp_ge_u32 s52, {NTASK}
        s_cbranch_scc1 L_sp_done
        s_cmp_ge_u32 s52, 688
        s_cbranch_scc1 L_sp_wd
        v_lshl_add_u32 v120, v122, 3, v120
        v_lshlrev_b32 v120, 6, v120
        v_lshl_add_u32 v120, v121, 3, v120
        v_lshl_add_u32 v120, v123, 6, v120
        v_add_u32 v120, s53, v120
        s_lshr_b32 s4, s52, 4
        s_lshl_b32 s4, s4, 16
        s_and_b32 s5, s52, 15
        s_lshl_b32 s5, s5, 11
        s_add_u32 s4, s4, s5
        s_add_u32 s4, s4, {WGU}
        s_add_u32 s5, s4, 0x8000
        s_waitcnt vmcnt(0)
        """)
        for t_ in range(4):
            ks, hf = t_ >> 1, t_ & 1
            k(f"ds_read_b64_tr_b16 v[{124+4*t_}:{125+4*t_}], v120 offset:{2048*ks + 32*hf}")
            k(f"ds_read_b64_tr_b16 v[{126+4*t_}:{127+4*t_}], v120 offset:{2048*ks + 32*hf + 256}")
        for t_ in range(4):
            ks, hf = t_ >> 1, t_ & 1
            k(f"s_waitcnt lgkmcnt({6-2*t_})")
            k(f"buffer_store_dwordx4 v[{124+4*t_}:{127+4*t_}], v116, s[8:11], s{4+hf} offen offset:{1024*ks} sc1")
        k("v_mov_b32 v140, 0")
        k("v_mov_b32 v141, 0")
        k("v_mov_b32 v142, 0x3f803f80")
        for t_ in range(4):
            for j in range(4): k(f"v_dot2_f32_bf16 v{140+(t_&1)}, v{124+4*t_+j}, v142, v{140+(t_&1)}")
        k(f"""
        s_lshr_b32 s4, s52, 4
        s_lshl_b32 s4, s4, 12
        s_and_b32 s5, s52, 15
        s_lshl_b32 s5, s5, 7
        v_permlane32_swap_b32 v140, v141
        s_add_u32 s4, s4, s5
        s_add_u32 s4, s4, {CSQ}
        v_and_b32 v121, 31, v1
        v_lshlrev_b32 v121, 2, v121
        v_lshl_add_u32 v121, v122, 11, v121
        v_add_f32 v140, v140, v141
        buffer_store_dword v140, v121, s[8:11], s4 offen sc1
        s_branch L_sp_done
        L_sp_wd:
        v_lshl_add_u32 v120, v122, 2, v120
        v_lshlrev_b32 v120, 9, v120
        v_lshl_add_u32 v120, v121, 3, v120
        v_lshl_add_u32 v120, v123, 1, v120
        v_add_u32 v120, s53, v120
        s_sub_u32 s4, s52, 688
        s_and_b32 s5, s4, 1
        s_lshr_b32 s4, s4, 1
        s_lshl_b32 s4, s4, 10
        s_mul_i32 s5, s5, {8*86*1024}
        s_add_u32 s4, s4, s5
        s_add_u32 s4, s4, {WD}
        s_waitcnt vmcnt(0)
        """)
        for h_ in range(2):
            for t_ in range(4):
                k(f"ds_read_b64_tr_b16 v[{168+16*h_+4*t_}:{169+16*h_+4*t_}], v120 offset:{64*(4*h_+t_)}")
                k(f"ds_read_b64_tr_b16 v[{170+16*h_+4*t_}:{171+16*h_+4*t_}], v120 offset:{64*(4*h_+t_) + 4096}")
            for t_ in range(4):
                k(f"s_waitcnt lgkmcnt({6-2*t_})")
                k(f"buffer_store_dwordx4 v[{168+16*h_+4*t_}:{171+16*h_+4*t_}], v116, s[8:11], s4 offen sc1")
                k(f"s_add_u32 s4, s4, {86*1024}")
        k.label("L_sp_done")
    k(f"""
    s_cmp_ge_u32 s2, 256
    s_cbranch_scc1 {E}
    s_load_dwordx8 s[36:43], s[0:1], 8
    s_load_dwordx4 s[12:15], s[0:1], 40
    s_load_dwordx8 s[20:27], s[0:1], 64
    s_load_dwordx4 s[16:19], s[0:1], 96
    s_load_dwordx2 s[28:29], s[0:1], 0
    v_and_b32 v1, 63, v0
    v_lshrrev_b32 v2, 6, v0
    s_mov_b32 s10, {WS_USED}
    v_readfirstlane_b32 s3, v2
    s_mov_b32 s11, 0x00020000
    """)
    if os.environ.get('CPF', '0') == '1':
        k(f"""
        s_getpc_b64 s[4:5]
        L_pc0:
        s_cmp_ge_u32 s2, 64
        s_cbranch_scc1 L_cpf
        v_lshlrev_b32 v4, 7, v0
        v_min_u32 v4, L_mega_end-L_pc0, v4
        global_load_dword v156, v4, s[4:5]
        L_cpf:
        """)
    CHB = 20480; PT = 2048; T16 = 2048 + 4*3072
    k(f"""
    s_lshr_b32 s4, s3, 2
    s_and_b32 s45, s3, 3
    s_lshl_b32 s44, s2, 1
    s_add_u32 s44, s44, s4
    s_mul_i32 s34, s4, {CHB}
    s_add_u32 s34, s34, {KSC}
    v_and_b32 v3, 31, v1
    s_lshl_b32 s4, s44, 7
    s_lshl_b32 s5, s45, 5
    s_add_u32 s4, s4, s5
    v_add_u32 v4, s4, v3
    v_lshlrev_b32 v4, 1, v4
    s_lshl_b32 s5, s44, 1
    v_mov_b32 v5, s5
    v_mov_b32 v158, {FLG+64}
    v_mov_b32 v159, 0
    ds_write_b32 v158, v159 offset:4
    ds_write_b32 v158, v159 offset:8
    s_waitcnt lgkmcnt(0)
    s_barrier
    s_mov_b32 s8, s18
    s_mov_b32 s9, s19
    s_mov_b64 s[46:47], s[12:13]
    s_mov_b64 s[98:99], s[16:17]
    s_mov_b64 s[16:17], s[14:15]
    s_mov_b64 s[96:97], s[26:27]
    s_mov_b64 s[26:27], s[24:25]
    s_mov_b64 s[24:25], s[28:29]
    s_lshl_b32 s54, s2, 3
    s_add_u32 s54, s54, s3
    v_mov_b32 v152, 0
    v_mov_b32 v155, 1
    s_mov_b32 s55, {NONCE}
    s_cmp_lg_u32 s54, 7
    s_cbranch_scc1 L_nn
    buffer_load_dword v154, v152, s[8:11], s55 offen sc1
    L_nn:
    global_load_ushort v6, v4, s[36:37]
    global_load_ushort v10, v5, s[46:47]
    global_load_ushort v7, v4, s[38:39]
    global_load_ushort v8, v4, s[40:41]
    global_load_ushort v9, v4, s[42:43]
    """)
    side_issue()
    k(f"""
    s_mov_b32 s30, {f32hex(LOG2E_HI)}
    s_mov_b32 s31, {f32hex(LOG2E_LO)}
    s_mov_b32 s32, {f32hex(LN2)}
    s_mov_b32 s33, {f32hex(INV2PI)}
    v_and_b32 v0, 255, v0
    v_and_b32 v11, 15, v1
    v_lshrrev_b32 v12, 3, v11
    v_lshlrev_b32 v12, 7, v12
    v_and_b32 v13, 7, v11
    v_add_u32 v12, v12, v13
    v_cvt_f32_u32 v20, v12
    v_lshrrev_b32 v12, 2, v11
    v_lshlrev_b32 v12, 7, v12
    v_and_b32 v13, 3, v11
    v_lshl_add_u32 v12, v13, 1, v12
    v_add_u32 v12, 0x100, v12
    v_subrev_u32 v13, 8, v11
    v_lshrrev_b32 v13, 1, v13
    v_lshlrev_b32 v13, 7, v13
    v_and_b32 v14, 1, v11
    v_lshl_add_u32 v13, v14, 2, v13
    v_add_u32 v13, 0x200, v13
    v_cmp_gt_u32 vcc, 8, v11
    v_lshlrev_b32 v14, 7, v11
    v_add_u32 v14, 0x400, v14
    v_cndmask_b32 v12, v13, v12, vcc
    v_cvt_f32_u32 v21, v12
    v_cvt_f32_u32 v22, v14
    v_lshlrev_b32 v14, 3, v11
    v_cvt_f32_u32 v23, v14
    s_lshl_b32 s5, s45, 9
    s_add_u32 s5, s5, s34
    v_lshl_add_u32 v2, v3, 4, s5
    v_lshrrev_b32 v3, 4, v1
    v_lshl_add_u32 v3, v3, 6, s5
    """)
    for r in range(12): k(f"v_mov_b32 v{24+r}, 0")
    k("s_waitcnt vmcnt(11)")
    k("v_lshlrev_b32 v6, 16, v6")
    k("v_lshlrev_b32 v10, 16, v10")
    exp_bf16_pair(k, [6, 10], 12, 30, 31, 32)
    k(f"""
    s_waitcnt vmcnt(8)
    v_lshlrev_b32 v7, 16, v7
    v_lshlrev_b32 v8, 16, v8
    v_lshlrev_b32 v9, 16, v9
    v_mul_f32 v6, v6, v10
    v_mul_f32 v7, v7, v10
    v_add_f32 v10, v10, v10
    v_mul_f32 v18, v8, v10
    v_mul_f32 v19, v9, v10
    v_mul_f32 v16, s30, v6
    v_max_f32 v12, |v18|, |v19|
    v_mul_f32 v17, s33, v7
    v_sub_f32 v16, 0, v16
    v_max_f32_dpp v12, v12, v12 row_ror:8 row_mask:0xf bank_mask:0xf
    s_nop 1
    v_max_f32_dpp v12, v12, v12 row_ror:4 row_mask:0xf bank_mask:0xf
    s_nop 1
    v_max_f32_dpp v12, v12, v12 row_ror:2 row_mask:0xf bank_mask:0xf
    s_nop 1
    v_max_f32_dpp v12, v12, v12 row_ror:1 row_mask:0xf bank_mask:0xf
    s_nop 1
    v_readlane_b32 s6, v12, 0
    v_readlane_b32 s7, v12, 16
    s_max_u32 s6, s6, s7
    s_lshr_b32 s6, s6, 23
    s_max_u32 s6, s6, 1
    s_min_u32 s6, s6, 252
    s_sub_u32 s7, 253, s6
    s_lshl_b32 s7, s7, 23
    s_add_u32 s35, s6, 1
    s_lshl_b32 s35, s35, 23
    v_mul_f32 v18, s7, v18
    v_mul_f32 v19, s7, v19
    ds_write_b128 v2, v[16:19]
    s_waitcnt lgkmcnt(0)
    """)
    for st in range(8): k(f"ds_read_b128 v[{36+4*st}:{39+4*st}], v3 offset:{256*(st>>2) + 16*(st&3)}")
    k(f"""
    s_cmp_lg_u32 s54, 7
    s_cbranch_scc1 L_nn2
    v_add_u32 v154, 1, v154
    v_max_u32 v154, 1, v154
    s_mov_b64 exec, 1
    buffer_store_dword v154, v152, s[8:11], s55 offen sc1
    s_mov_b64 exec, -1
    L_nn2:
    """)
    stamp(k, 1)
    for st in range(8):
        s_, t = st >> 2, st & 3
        zr, zi, cr, ci = 36+4*st, 37+4*st, 38+4*st, 39+4*st
        Fb = 80 + 16*s_ + t
        if st == SIDE_AT:
            side_process()
            stamp(k, 4)
        k(f"s_waitcnt lgkmcnt({7-st})")
        for c in range(4): k(f"v_mul_f32 v{68+c}, v{zr}, v{20+c}")
        for c in range(4): k(f"v_mul_f32 v{72+c}, v{zi}, v{20+c}")
        for c in range(4): k(f"v_exp_f32 v{68+c}, v{68+c}")
        for c in range(4): k(f"v_fract_f32 v{72+c}, v{72+c}")
        for c in range(4): k(f"v_cos_f32 v{76+c}, v{72+c}")
        for c in range(4): k(f"v_sin_f32 v{4+c}, v{72+c}")
        k(f"v_mul_f32 v8, v71, v{cr}")
        k(f"v_mul_f32 v9, v71, v{ci}")
        for c in range(3): k(f"v_fma_mixlo_f16 v{Fb+4*c}, v{68+c}, v{76+c}, 0")
        k(f"v_mul_f32 v10, v8, v79")
        k(f"v_mul_f32 v11, v8, v7")
        for c in range(3): k(f"v_fma_mixhi_f16 v{Fb+4*c}, v{68+c}, v{4+c}, 0")
        k(f"v_fma_mixlo_f16 v{Fb+12}, -v9, v7, v10")
        if st == 4:
            for c in range(3): k(f"v_mfma_f32_16x16x32_f16 v[{24+4*c}:{27+4*c}], v[{80+4*c}:{83+4*c}], v[92:95], v[{24+4*c}:{27+4*c}]")
        else: k("s_nop 0")
        k(f"v_fma_mixhi_f16 v{Fb+12}, -v9, v79, -v11")
    k(f"""
    s_mul_i32 s5, s45, 3072
    s_add_u32 s5, s5, s34
    s_add_u32 s5, s5, {PT}
    v_lshl_add_u32 v12, v1, 4, s5
    """)
    for c in range(3): k(f"v_mfma_f32_16x16x32_f16 v[{24+4*c}:{27+4*c}], v[{96+4*c}:{99+4*c}], v[108:111], v[{24+4*c}:{27+4*c}]")
    stamp(k, 2)
    k("s_nop 7")
    for r in range(12): k(f"v_mul_f32 v{24+r}, s35, v{24+r}")
    k(f"""
    ds_write_b128 v12, v[24:27]
    ds_write_b128 v12, v[28:31] offset:1024
    ds_write_b128 v12, v[32:35] offset:2048
    v_lshl_add_u32 v12, v0, 4, s34
    v_lshrrev_b32 v13, 4, v1
    v_and_b32 v14, 15, v1
    v_lshl_add_u32 v14, v14, 4, s34
    s_waitcnt lgkmcnt(0)
    s_barrier
    global_load_dwordx2 v[156:157], v152, s[98:99] sc1
    """)
    stamp(k, 3)
    k(f"""
    s_cmp_eq_u32 s45, 3
    s_cbranch_scc1 L_kg_stage2
    ds_read_b128 v[24:27], v12 offset:{PT}
    ds_read_b128 v[28:31], v12 offset:{PT+3072}
    ds_read_b128 v[32:35], v12 offset:{PT+2*3072}
    ds_read_b128 v[36:39], v12 offset:{PT+3*3072}
    s_cmp_eq_u32 s45, 1
    s_cbranch_scc1 L_kg_t1
    s_cmp_eq_u32 s45, 2
    s_cbranch_scc1 L_kg_t2
    v_lshrrev_b32 v15, 1, v13
    v_lshlrev_b32 v15, 8, v15
    v_and_b32 v16, 1, v13
    v_lshl_add_u32 v15, v16, 3, v15
    v_add_u32 v16, v15, v14
    v_add_u32 v17, 2, v16
    v_add_u32 v18, 4, v16
    v_add_u32 v19, 6, v16
    s_branch L_kg_w
    L_kg_t1:
    v_lshlrev_b32 v15, 8, v13
    v_add_u32 v15, 0x200, v15
    v_add_u32 v16, v15, v14
    v_add_u32 v17, 4, v16
    v_add_u32 v18, 8, v16
    v_add_u32 v19, 12, v16
    v_lshlrev_b32 v15, 9, v13
    v_add_u32 v15, v15, v14
    v_add_u32 v20, 8, v15
    v_add_u32 v21, 0x100, v15
    v_add_u32 v22, 0x108, v15
    v_cmp_gt_u32 vcc, 2, v13
    s_nop 1
    v_cndmask_b32 v16, v15, v16, vcc
    v_cndmask_b32 v17, v20, v17, vcc
    v_cndmask_b32 v18, v21, v18, vcc
    v_cndmask_b32 v19, v22, v19, vcc
    s_branch L_kg_w
    L_kg_t2:
    v_lshlrev_b32 v15, 10, v13
    v_add_u32 v15, 0x800, v15
    v_add_u32 v16, v15, v14
    v_add_u32 v17, 0x100, v16
    v_add_u32 v18, 0x200, v16
    v_add_u32 v19, 0x300, v16
    L_kg_w:
    s_waitcnt lgkmcnt(0)
    v_pk_add_f32 v[24:25], v[24:25], v[28:29]
    v_pk_add_f32 v[26:27], v[26:27], v[30:31]
    v_pk_add_f32 v[32:33], v[32:33], v[36:37]
    v_pk_add_f32 v[34:35], v[34:35], v[38:39]
    v_pk_add_f32 v[24:25], v[24:25], v[32:33]
    v_pk_add_f32 v[26:27], v[26:27], v[34:35]
    v_cvt_pk_bf16_f32 v24, v24, v25
    v_cvt_pk_bf16_f32 v26, v26, v27
    ds_write_b16 v16, v24 offset:{T16}
    ds_write_b16_d16_hi v17, v24 offset:{T16}
    ds_write_b16 v18, v26 offset:{T16}
    ds_write_b16_d16_hi v19, v26 offset:{T16}
    L_kg_stage2:
    v_lshlrev_b32 v12, 4, v0
    v_sub_u32 v13, 4094, v12
    """)
    for e in range(10): k(f"v_subrev_u32 v{40+e}, {2*e}, v13")
    k("v_max_i32 v48, 0, v48")
    k("v_max_i32 v49, 0, v49")
    for e in range(10): k(f"v_cvt_f32_u32 v{40+e}, v{40+e}")
    for e in range(0, 10, 2): k(f"v_cvt_pk_bf16_f32 v{52+e}, v{40+e}, v{41+e}")
    for e in range(0, 10, 2):
        if e < 8: k(f"v_and_b32 v{53+e}, 0xffff0000, v{52+e}")
        k(f"v_lshlrev_b32 v{52+e}, 16, v{52+e}")
    for e in range(9): k(f"v_cvt_u32_f32 v{52+e}, v{52+e}")
    for e in range(9): k(f"v_add_u32 v{52+e}, s34, v{52+e}")
    stamp(k, 5)
    k("s_waitcnt lgkmcnt(0)")
    k("s_barrier")
    stamp(k, 6)
    for e in range(9): k(f"ds_read_u16 v{24+e}, v{52+e} offset:{T16}")
    k(f"""
    s_and_b32 s7, s3, 4
    v_mov_b32 v158, {FLG+64}
    v_add_u32 v153, s7, v158
    v_mov_b32 v159, 1
    s_mov_b32 s6, 0
    s_waitcnt vmcnt(0)
    s_mov_b64 exec, 1
    ds_add_rtn_u32 v159, v153, v159 offset:4
    s_waitcnt lgkmcnt(0)
    v_readfirstlane_b32 s7, v159
    s_mov_b64 exec, -1
    s_cmp_lg_u32 s7, 3
    s_cbranch_scc1 L_kg_np
    s_branch L_nc
    L_nq:
    global_load_dwordx2 v[156:157], v152, s[98:99] sc1
    s_add_u32 s6, s6, 1
    s_waitcnt vmcnt(0)
    L_nc:
    v_readfirstlane_b32 s7, v157
    s_cmp_ge_u32 s6, {SPIN}
    s_cbranch_scc1 L_ne
    s_cmp_eq_u32 s7, 1
    s_cbranch_scc0 L_nq
    L_ne:
    ds_write_b32 v158, v156
    s_lshl_b32 s6, s2, 2
    s_add_u32 s6, s6, {PF}
    s_cmp_lt_u32 s3, 4
    s_cselect_b32 s7, {PW-PF}, 0
    s_add_u32 s6, s6, s7
    v_lshlrev_b32 v159, 10, v1
    s_mov_b64 exec, 0xff
    buffer_store_dword v156, v159, s[8:11], s6 offen sc1
    s_mov_b64 exec, -1
    L_kg_np:
    """)
    k(f"""
    s_mul_i32 s5, s44, {KGP}
    s_add_u32 s5, s5, {KG}
    v_mov_b32 v48, 0
    v_mov_b32 v49, 0
    v_mov_b32 v50, 0
    v_mov_b32 v51, 0
    v_add_u32 v13, {KGH}, v12
    v_cmp_ne_u32 vcc, 0xff, v0
    s_waitcnt lgkmcnt(0)
    v_cndmask_b32 v32, 0, v32, vcc
    v_lshl_or_b32 v40, v25, 16, v24
    v_lshl_or_b32 v41, v27, 16, v26
    v_lshl_or_b32 v42, v29, 16, v28
    v_lshl_or_b32 v43, v31, 16, v30
    v_lshl_or_b32 v44, v26, 16, v25
    v_lshl_or_b32 v45, v28, 16, v27
    v_lshl_or_b32 v46, v30, 16, v29
    v_lshl_or_b32 v47, v32, 16, v31
    buffer_store_dwordx4 v[40:43], v12, s[8:11], s5 offen
    buffer_store_dwordx4 v[44:47], v13, s[8:11], s5 offen
    v_cmp_gt_u32 vcc, 2, v0
    s_and_saveexec_b64 s[6:7], vcc
    s_cbranch_execz L_kg_z
    v_add_u32 v12, 4096, v12
    v_add_u32 v13, 4096, v13
    buffer_store_dwordx4 v[48:51], v12, s[8:11], s5 offen
    buffer_store_dwordx4 v[48:51], v13, s[8:11], s5 offen
    L_kg_z:
    s_mov_b64 exec, -1
    """)
    if asmlib.STAMPS:
        for i in range(7, 10): stamp(k, i)
        stamp_flush(k, 0, 10, 3)
        k("s_mov_b64 exec, -1")
    k("s_waitcnt vmcnt(0) lgkmcnt(0)")
    k("s_barrier")
    for r, v in sets1.items(): k(f"s_mov_b32 s{r}, {v}")
    k.label("L_layer")
    stamp(k, 0)
    k(f"""
    v_mbcnt_lo_u32_b32 v1, -1, 0
    v_mbcnt_hi_u32_b32 v1, -1, v1
    s_lshl_b32 s4, s3, 6
    v_add_u32 v0, s4, v1
    v_lshlrev_b32 v3, 4, v1
    s_lshl_b32 s4, s2, 1
    s_lshr_b32 s5, s3, 2
    s_and_b32 s6, s3, 3
    s_add_u32 s7, s4, s5
    s_mul_i32 s28, s7, {KGP}
    s_add_u32 s28, s28, {KG}
    s_bitcmp1_b32 s6, 0
    s_cselect_b32 s13, 0, {KGH}
    s_add_u32 s28, s28, s13
    s_cmp_lt_u32 s6, 2
    s_cselect_b32 s13, 4, 0
    s_add_u32 s28, s28, s13
    s_mul_i32 s13, s5, {KCH}
    s_mul_i32 s14, s6, {KCP}
    s_add_u32 s13, s13, s14
    s_add_u32 s13, s13, {KC0}
    s_mov_b32 m0, s13
    s_lshl_b32 s12, s7, 1
    """)
    for c in range(4): k(f"buffer_load_dwordx4 v3, s[8:11], s28 offen offset:{1024*c} lds")
    k(f"""
    v_mov_b32 v9, s12
    global_load_ushort v52, v9, s[16:17]
    v_lshlrev_b32 v4, 3, v0
    v_lshlrev_b32 v53, 5, v0
    v_lshrrev_b32 v54, 3, v0
    v_and_b32 v7, 7, v0
    v_lshlrev_b32 v54, 15, v54
    v_lshl_add_u32 v54, v7, 3, v54
    v_and_b32 v7, 15, v1
    v_lshrrev_b32 v8, 4, v1
    v_lshlrev_b32 v6, 5, v7
    v_lshl_add_u32 v6, v8, 3, v6
    v_lshrrev_b32 v5, 1, v7
    v_lshlrev_b32 v5, 15, v5
    v_and_b32 v9, 1, v7
    v_lshl_add_u32 v5, v9, 5, v5
    v_lshl_add_u32 v5, v8, 3, v5
    s_lshl_b32 s30, s4, 6
    s_add_u32 s30, s30, {XA}
    s_lshl_b32 s12, s7, 6
    s_lshl_b32 s14, s6, 19
    s_add_u32 s12, s12, s14
    s_add_u32 s26, s12, {XB}
    s_add_u32 s27, s26, 0x40000
    s_add_u32 s31, s12, {XA}
    s_add_u32 s32, s31, 0x40000
    v_mov_b32 v12, 0
    v_mov_b32 v13, 0
    v_mov_b32 v14, 0
    v_mov_b32 v15, 0
    s_add_u32 s13, s13, 4096
    v_add_u32 v9, s13, v3
    s_mul_i32 s13, s5, {UP}
    v_add_u32 v10, s13, v3
    v_cmp_gt_u32 vcc, 2, v1
    s_and_saveexec_b64 s[28:29], vcc
    ds_write_b128 v9, v[12:15]
    s_mov_b64 exec, s[28:29]
    v_cmp_gt_u32 vcc, 30, v1
    s_and_saveexec_b64 s[28:29], vcc
    ds_write_b128 v10, v[12:15]
    s_mov_b64 exec, s[28:29]
    v_and_b32 v9, 3, v7
    v_mul_u32_u24 v9, {KCP}, v9
    v_lshrrev_b32 v10, 2, v7
    v_lshlrev_b32 v10, 3, v10
    v_sub_u32 v9, v9, v10
    v_lshl_add_u32 v9, v8, 4, v9
    s_mul_i32 s13, s5, {KCH}
    s_add_u32 s13, s13, {KC0+24}
    s_lshl_b32 s14, s6, 7
    s_sub_u32 s13, s13, s14
    v_add_u32 v10, s13, v9
    v_lshlrev_b32 v11, 5, v7
    v_lshl_add_u32 v11, v8, 4, v11
    s_mul_i32 s13, s5, {UP}
    s_add_u32 s13, s13, 384
    s_sub_u32 s13, s13, s14
    v_add_u32 v11, s13, v11
    s_mov_b32 s24, {f32hex(1.0/512)}
    s_mov_b32 s25, {f32hex(1e-5)}
    """)
    for r in range(32): k(f"v_mov_b32 v{16+r}, 0")
    k(f"""
    s_and_b32 s52, s2, 7
    s_lshr_b32 s53, s2, 3
    s_mul_i32 s55, s52, 30
    s_add_u32 s55, s55, s53
    s_sub_u32 s55, s55, 2
    s_cmp_ge_u32 s52, 6
    s_cselect_b32 s53, 1, 0
    s_add_u32 s55, s55, s53
    s_cmp_eq_u32 s52, 7
    s_cselect_b32 s53, 1, 0
    s_add_u32 s55, s55, s53
    s_cmp_ge_u32 s55, 88
    s_cselect_b32 s54, 88, 0
    s_cselect_b32 s53, 4, 0
    s_sub_u32 s12, s55, s54
    s_lshr_b32 s52, s12, 2
    s_and_b32 s12, s12, 3
    s_add_u32 s53, s53, s12
    s_sub_u32 s12, s55, 176
    s_mul_i32 s13, s12, 171
    s_lshr_b32 s13, s13, 9
    s_mul_i32 s54, s13, 3
    s_sub_u32 s54, s12, s54
    s_add_u32 s54, s54, 8
    s_cmp_ge_u32 s55, 176
    s_cselect_b32 s52, s13, s52
    s_cselect_b32 s53, s54, s53
    s_lshl_b32 s54, s53, 3
    s_add_u32 s54, s54, s3
    s_lshl_b32 s55, s54, 15
    s_add_u32 s55, s55, {WGU}
    s_mov_b32 s20, s18
    s_mov_b32 s21, s19
    s_mov_b32 s23, 0x00020000
    s_cmp_lt_u32 s2, {NPROD}
    s_cselect_b32 s22, 0, s10
    s_cselect_b32 s55, 0, s55
    v_mov_b32 v9, {FLG}
    ds_write_b128 v9, v[12:15]
    ds_write_b128 v9, v[12:15] offset:16
    ds_write_b128 v9, v[12:15] offset:32
    ds_write_b128 v9, v[12:15] offset:48
    """)
    k(f"""
    s_cmp_lg_u32 s3, 0
    s_cbranch_scc1 L_in_d
    s_mov_b32 s13, 0
    v_mov_b32 v56, {FLG+64}
    ds_read_b32 v60, v56
    s_and_b32 s15, s2, 7
    s_lshl_b32 s15, s15, 10
    s_cmp_eq_u32 s93, 1
    s_cselect_b32 s14, 0, {PF-LF}
    s_add_u32 s15, s15, s14
    s_add_u32 s15, s15, {LF}
    s_waitcnt lgkmcnt(0)
    L_in_b:
    buffer_load_dwordx4 v[56:59], v3, s[8:11], s15 offen sc1
    s_add_u32 s13, s13, 1
    s_waitcnt vmcnt(0)
    v_xor_b32 v56, v56, v60
    v_xor_b32 v57, v57, v60
    v_xor_b32 v58, v58, v60
    v_xor_b32 v59, v59, v60
    v_or3_b32 v56, v56, v57, v58
    v_or_b32 v56, v56, v59
    v_cmp_ne_u32 vcc, 0, v56
    s_cmp_eq_u64 vcc, 0
    s_cbranch_scc1 L_in_d
    s_cmp_ge_u32 s13, {SPIN}
    s_cbranch_scc1 L_in_d
    s_sleep {CFS}
    s_branch L_in_b
    L_in_d:
    s_barrier
    """)
    stamp(k, 1)
    k(f"""
    buffer_load_dwordx4 v[64:67], v53, s[8:11], {ST} offen sc1
    buffer_load_dwordx4 v[68:71], v53, s[8:11], {ST} offen offset:16 sc1
    buffer_load_dwordx2 v[72:73], v54, s[8:11], s30 offen sc1
    buffer_load_dwordx2 v[74:75], v54, s[8:11], s30 offen offset:64 sc1
    buffer_load_dwordx2 v[48:49], v5, s[8:11], s31 offen sc1
    buffer_load_dwordx2 v[50:51], v5, s[8:11], s32 offen sc1
    """)
    k("s_waitcnt vmcnt(4)")
    for r in range(4):
        k(f"v_mul_f32 v{64+2*r}, s24, v{64+2*r}")
        k(f"v_mul_f32 v{65+2*r}, s24, v{65+2*r}")
    for r in range(4): k(f"v_fma_f32 v{65+2*r}, -v{64+2*r}, v{64+2*r}, v{65+2*r}")
    for r in range(4): k(f"v_max_f32 v{65+2*r}, 0, v{65+2*r}")
    k("v_cvt_pk_bf16_f32 v76, v64, v66")
    k("v_cvt_pk_bf16_f32 v77, v68, v70")
    k("v_cvt_pk_bf16_f32 v78, v65, v67")
    k("v_cvt_pk_bf16_f32 v79, v69, v71")
    unpack(k, 84, 85, 78); unpack(k, 86, 87, 79); unpack(k, 80, 81, 76); unpack(k, 82, 83, 77)
    for r in range(4): k(f"v_add_f32 v{84+r}, s25, v{84+r}")
    k("v_cvt_pk_bf16_f32 v78, v84, v85")
    k("v_cvt_pk_bf16_f32 v79, v86, v87")
    unpack(k, 84, 85, 78); unpack(k, 86, 87, 79)
    for r in range(4): k(f"v_sqrt_f32 v{84+r}, v{84+r}")
    k("s_waitcnt vmcnt(2)")
    for ch in range(2): unpack(k, 88+4*ch, 89+4*ch, 72+2*ch); unpack(k, 90+4*ch, 91+4*ch, 73+2*ch)
    k("v_cvt_pk_bf16_f32 v78, v84, v85")
    k("v_cvt_pk_bf16_f32 v79, v86, v87")
    for ch in range(2):
        for j in (0, 2): k(f"v_pk_add_f32 {P(88+4*ch+j)}, {P(88+4*ch+j)}, {P(80+j)} neg_lo:[0,1] neg_hi:[0,1]")
    unpack(k, 84, 85, 78); unpack(k, 86, 87, 79)
    for ch in range(2):
        k(f"v_cvt_pk_bf16_f32 v{72+2*ch}, v{88+4*ch}, v{89+4*ch}")
        k(f"v_cvt_pk_bf16_f32 v{73+2*ch}, v{90+4*ch}, v{91+4*ch}")
    for r in range(4): k(f"v_rcp_f32 v{84+r}, v{84+r}")
    for ch in range(2): unpack(k, 88+4*ch, 89+4*ch, 72+2*ch); unpack(k, 90+4*ch, 91+4*ch, 73+2*ch)
    for ch in range(2):
        for j in (0, 2): k(f"v_pk_mul_f32 {P(88+4*ch+j)}, {P(88+4*ch+j)}, {P(84+j)}")
    for ch in range(2):
        k(f"v_cvt_pk_bf16_f32 v{72+2*ch}, v{88+4*ch}, v{89+4*ch}")
        k(f"v_cvt_pk_bf16_f32 v{73+2*ch}, v{90+4*ch}, v{91+4*ch}")
        k(f"ds_write_b64 v4, v[{72+2*ch}:{73+2*ch}] offset:{480 + ch*UP}")
    k(f"""
    s_lshl_b32 s13, s93, 3
    s_add_u32 s13, s13, s3
    s_cmp_lg_u32 s13, 1
    s_cbranch_scc1 L_pw_d
    s_mov_b32 s13, 0
    v_mov_b32 v56, {FLG+64}
    ds_read_b32 v60, v56
    s_and_b32 s15, s2, 7
    s_lshl_b32 s15, s15, 10
    s_add_u32 s15, s15, {PW}
    s_waitcnt lgkmcnt(0)
    L_pw_b:
    buffer_load_dwordx4 v[56:59], v3, s[8:11], s15 offen sc1
    s_add_u32 s13, s13, 1
    s_waitcnt vmcnt(0)
    v_xor_b32 v56, v56, v60
    v_xor_b32 v57, v57, v60
    v_xor_b32 v58, v58, v60
    v_xor_b32 v59, v59, v60
    v_or3_b32 v56, v56, v57, v58
    v_or_b32 v56, v56, v59
    v_cmp_ne_u32 vcc, 0, v56
    s_cmp_eq_u64 vcc, 0
    s_cbranch_scc1 L_pw_d
    s_cmp_ge_u32 s13, {SPIN}
    s_cbranch_scc1 L_pw_d
    s_sleep {CFS}
    s_branch L_pw_b
    L_pw_d:
    s_lshl_b32 s13, s93, 3
    s_add_u32 s13, s13, s3
    s_lshl_b32 s14, s2, 4
    s_add_u32 s13, s13, s14
    s_cmp_lg_u32 s13, 1
    s_cbranch_scc1 L_dz
    s_mov_b64 exec, 1
    global_store_dwordx2 v12, v[12:13], s[98:99] sc1
    s_mov_b64 exec, -1
    L_dz:
    """)
    k("s_waitcnt vmcnt(0) lgkmcnt(0)")
    k("s_barrier")
    stamp(k, 7)
    lg = Q(k, 'lgkmcnt', 15)
    pool = [56+4*i for i in range(27)]
    reg = {}
    def ld(i0p, kind, s):
        r = pool.pop(0); reg[(i0p, kind, s)] = r
        if kind == 'A':
            off = 64*(63 - i0p - 8*s)
            lg.issue(f"ds_read_b64 v[{r}:{r+1}], v10 offset:{off}", (i0p, kind, s))
            lg.issue(f"ds_read_b64 v[{r+2}:{r+3}], v10 offset:{off+8}", (i0p, kind, s))
        else:
            lg.issue(f"ds_read_b128 v[{r}:{r+3}], v11 offset:{512*s + 64*(1-i0p)}", (i0p, kind, s))
    order = [(i, kd, s) for i in range(2) for s in range(8) for kd in 'AB']
    mf = []
    for i in range(2):
        for m in range(8):
            for s in range(8):
                for w in range(8):
                    if s + w <= 7 and max(s, w) == m: mf.append((i, s, w))
    last_use = {}
    for n, (i, s, w) in enumerate(mf):
        last_use[(i, 'A', s)] = n; last_use[(i, 'B', w)] = n
    li = 0; npre = 0
    for _ in range(8): ld(*order[li]); li += 1
    k(f"""
    v_mov_b32 v164, -1
    v_mov_b32 v165, -1
    v_mov_b32 v166, -1
    v_mov_b32 v167, -1
    s_mov_b32 s48, s18
    s_mov_b32 s49, s19
    s_mov_b32 s51, 0x00020000
    s_cmp_eq_u32 s93, 1
    s_cselect_b32 s50, 0, s10
    s_add_u32 s15, s26, {4*MB}
    buffer_store_dwordx2 v[164:165], v5, s[48:51], s15 offen sc1
    s_add_u32 s15, s27, {4*MB}
    buffer_store_dwordx2 v[164:165], v5, s[48:51], s15 offen sc1
    s_nop 1
    """)
    freed = [(12, 164)]
    for n, (i, s, w) in enumerate(mf):
        while (i, 'A', s) not in reg or (i, 'B', w) not in reg:
            ld(*order[li]); li += 1
        lg.need((i, 'A', s), (i, 'B', w))
        c = s + w; a = reg[(i, 'A', s)]; b = reg[(i, 'B', w)]
        k(f"v_mfma_f32_16x16x32_bf16 v[{16+4*c}:{19+4*c}], v[{a}:{a+3}], v[{b}:{b+3}], v[{16+4*c}:{19+4*c}]")
        for key in [(i, 'A', s), (i, 'B', w)]:
            if last_use[key] == n: freed.append((n+3, reg[key]))
        while freed and freed[0][0] <= n: pool.append(freed.pop(0)[1])
        if n % 3 == 1 and npre < NWP: wpre(npre); npre += 1
        if li < len(order) and pool and (lg.n - lg.done) <= 12:
            ld(*order[li]); li += 1
    assert li == len(order) and npre == NWP
    k(f"""
    s_lshl_b32 s13, s5, 15
    s_lshl_b32 s14, s6, 10
    s_add_u32 s13, s13, s14
    s_add_u32 s13, s13, {RED}
    v_add_u32 v9, s13, v3
    s_lshl_b32 s13, s5, 15
    s_lshl_b32 s14, s6, 13
    s_add_u32 s13, s13, s14
    s_add_u32 s13, s13, {RED}
    v_add_u32 v12, s13, v3
    s_mul_i32 s13, s5, {UP}
    s_lshl_b32 s14, s6, 10
    s_add_u32 s13, s13, s14
    s_add_u32 s13, s13, 480
    v_add_u32 v13, s13, v6
    ds_read_b64 v[88:89], v13
    ds_read_b64 v[90:91], v13 offset:512
    """)
    for p in range(4):
        if p < 3:
            k(f"s_cmp_lg_u32 s6, {p}")
            k(f"s_cbranch_scc1 L_{N}_rv{p+1}")
        for c in range(8):
            if c in (2*p, 2*p+1): continue
            k(f"ds_write_b128 v9, v[{16+4*c}:{19+4*c}] offset:{4096*c}")
        for r in range(8): k(f"v_mov_b32 v{56+r}, v{16+8*p+r}")
        others = [q for q in range(4) if q != p]
        for j, q in enumerate(others): k(f"v_add_u32 v{92+j}, {1024*q}, v12")
        if p < 3:
            k(f"s_branch L_{N}_ep")
            k.label(f"L_{N}_rv{p+1}")
    k.label(f"L_{N}_ep")
    k("s_waitcnt lgkmcnt(6)")
    k("v_lshlrev_b32 v52, 16, v52")
    k("v_mov_b32 v53, v52")
    for j in range(4): unpack(k, 96+2*j, 97+2*j, 88+j)
    for j in range(4): k(f"v_pk_mul_f32 {P(96+2*j)}, {P(96+2*j)}, v[52:53]")
    for j in range(4): k(f"v_cvt_pk_bf16_f32 v{88+j}, v{96+2*j}, v{97+2*j}")
    k("s_waitcnt lgkmcnt(0)")
    k("s_barrier")
    for t in range(2):
        for j in range(3): k(f"ds_read_b128 v[{64+12*t+4*j}:{67+12*t+4*j}], v{92+j} offset:{4096*t}")
    for j in range(4): unpack(k, 96+2*j, 97+2*j, 88+j)
    for j in range(4): unpack(k, 104+2*j, 105+2*j, 48+j)
    for t in range(2):
        k(f"s_waitcnt lgkmcnt({3-3*t})")
        for j in (0, 2):
            k(f"v_pk_add_f32 {P(56+4*t+j)}, {P(56+4*t+j)}, {P(64+12*t+j)}")
            k(f"v_pk_add_f32 {P(68+12*t+j)}, {P(68+12*t+j)}, {P(72+12*t+j)}")
        for j in (0, 2): k(f"v_pk_add_f32 {P(56+4*t+j)}, {P(56+4*t+j)}, {P(68+12*t+j)}")
    for j in range(4): k(f"v_cvt_pk_bf16_f32 v{64+j}, v{56+2*j}, v{57+2*j}")
    for j in range(4): unpack(k, 56+2*j, 57+2*j, 64+j)
    for j in range(4): k(f"v_pk_add_f32 {P(56+2*j)}, {P(56+2*j)}, {P(96+2*j)}")
    for j in range(4): k(f"v_cvt_pk_bf16_f32 v{64+j}, v{56+2*j}, v{57+2*j}")
    for j in range(4): unpack(k, 56+2*j, 57+2*j, 64+j)
    for j in range(4): k(f"v_pk_add_f32 {P(56+2*j)}, {P(56+2*j)}, {P(104+2*j)}")
    for j in range(4): k(f"v_cvt_pk_bf16_f32 v{64+j}, v{56+2*j}, v{57+2*j}")
    for j in range(4): k(f"v_min_u32 v{64+j}, -2, v{64+j}")
    k("buffer_store_dwordx2 v[64:65], v5, s[8:11], s26 offen sc1")
    k("buffer_store_dwordx2 v[66:67], v5, s[8:11], s27 offen sc1")
    vm = Q(k, 'vmcnt', 63); lg = Q(k, 'lgkmcnt', 15)
    def unit(p):
        for i in range(3):
            k(f"s_add_u32 m0, s25, {p*24576 + i*1024}")
            k(f"s_add_u32 s14, s12, {i*32768 + p*8192}")
            vm.issue(f"buffer_load_dwordx4 v3, {'s[8:11]' if i == 0 else 's[48:51]'}, s14 offen sc1 lds", f"U{p}")
    def wl(ks):
        r = wreg(ks)
        k(f"s_add_u32 s14, s55, {4096*(ks//4)}")
        vm.issue(f"buffer_load_dwordx4 v[{r}:{r+3}], v3, s[8:11], s14 offen offset:{1024*(ks&3)} sc1", f"W{ks}")
    for ks in range(NWP): vm.tags[f"W{ks}"] = 0
    def csdot(ks): pass
    def csl():
        k("v_lshlrev_b32 v13, 2, v1")
        k("s_lshl_b32 s14, s6, 11")
        k(f"s_add_u32 s14, s14, {CSQ}")
        for j in range(8): vm.issue(f"buffer_load_dword v{CSV+8+j}, v13, s[8:11], s14 offen offset:{256*j} sc1", "CS")
    def css():
        vm.need("CS")
        for st in (1, 2):
            for j in range(0, 8, 2*st): k(f"v_add_f32 v{CSV+8+j}, v{CSV+8+j}, v{CSV+8+j+st}")
        k(f"v_add_f32 v166, v{CSV+8}, v{CSV+12}")
        k("v_mov_b32 v167, 0")
    def signal(p):
        V = CSV
        vm.need(f"U{p}")
        k.label(f"L_vf{p}")
        for i in range(3): k(f"ds_read_b128 v[{V+4*i}:{V+4*i+3}], v5 offset:{(p&1)*24576 + 1024*i}")
        k(f"v_mov_b32 v6, {p+1}")
        k("s_waitcnt lgkmcnt(0)")
        lg.reset()
        for i in range(0, 12, 3): k(f"v_max3_u32 v{V+i}, v{V+i}, v{V+i+1}, v{V+i+2}")
        k(f"v_max3_u32 v{V}, v{V}, v{V+3}, v{V+6}")
        k(f"v_max_u32 v{V}, v{V}, v{V+9}")
        k(f"v_cmp_eq_u32 vcc, -1, v{V}")
        k("s_cmp_eq_u64 vcc, 0")
        k(f"s_cbranch_scc1 L_vo{p}")
        k("s_add_u32 s13, s13, 1")
        k(f"s_cmp_ge_u32 s13, {RETRY}")
        k(f"s_cbranch_scc1 L_vo{p}")
        k(f"s_sleep {RSL}")
        for i in range(3):
            k(f"s_add_u32 m0, s25, {p*24576 + i*1024}")
            k(f"s_add_u32 s14, s12, {i*32768 + p*8192}")
            k(f"buffer_load_dwordx4 v3, {'s[8:11]' if i == 0 else 's[48:51]'}, s14 offen sc1 lds")
        k("s_waitcnt vmcnt(0)")
        k(f"s_branch L_vf{p}")
        k.label(f"L_vo{p}")
        lg.issue("ds_write_b32 v2, v6", "sig")
        if p == 1: k("v_add_u32 v5, 49152, v5")
    def dsetup():
        k(f"""
    s_and_b32 s30, s2, 7
    s_lshr_b32 s31, s2, 3
    s_lshl_b32 s30, s30, 2
    s_lshr_b32 s12, s31, 3
    s_add_u32 s30, s30, s12
    s_and_b32 s31, s31, 7
    s_bfe_u32 s12, s3, 0x10001
    s_lshl_b32 s32, s31, 1
    s_add_u32 s32, s32, s12
    s_and_b32 s12, s3, 1
    s_lshl_b32 s33, s30, 1
    s_add_u32 s33, s33, s12
    s_xor_b32 s12, s32, 1
    s_mul_i32 s34, s32, {86*1024}
    s_mul_i32 s35, s12, {86*1024}
    s_xor_b32 s12, s33, 1
    s_mul_i32 s36, s33, {86*1024}
    s_mul_i32 s37, s12, {86*1024}
    s_lshl_b32 s12, s3, 10
    s_add_u32 s13, s12, {WD}
    s_add_u32 s34, s34, s13
    s_add_u32 s35, s35, s13
    s_add_u32 s13, s12, {HB}
    s_add_u32 s36, s36, s13
    s_add_u32 s37, s37, s13
    s_cmp_ge_u32 s3, 6
    s_cselect_b32 s22, 0, s10
        """)
    def wdl(n, i, vm=None):
        r = WD0 + 8*n + 4*i
        k(f"s_add_u32 s14, s{34+i}, {8192*n}")
        srd = "s[20:23]" if n == 10 else "s[8:11]"
        ins = f"buffer_load_dwordx4 v[{r}:{r+3}], v3, {srd}, s14 offen sc1"
        if vm: vm.issue(ins, "WD")
        else: k(ins)
    wdq = [(n, i) for n in range(11) for i in range(2)]
    k("s_waitcnt vmcnt(0)")
    k("s_barrier")
    stamp(k, 8)
    k(f"""
    v_mov_b32 v4, {FLG}
    v_lshrrev_b32 v7, 5, v1
    s_cmp_lt_u32 s2, {NPROD}
    s_cbranch_scc1 L_{N}_prod
    """)
    dsetup()
    k(f"""
    s_mov_b32 s4, s52
    s_mov_b32 s5, s53
    s_mov_b32 s6, s54
    s_mul_i32 s12, s4, 98304
    s_lshl_b32 s13, s3, 10
    s_add_u32 s12, s12, s13
    s_add_u32 s12, s12, {XB}
    s_mul_i32 s25, s3, 3072
    v_add_u32 v5, s25, v3
    s_cmp_eq_u32 s4, 21
    s_cselect_b32 s50, 0, s10
    """)
    k("s_mov_b32 s13, 0")
    if EARLYU == 0: unit(0)
    for ks in range(NWP, NWP2): wl(ks)
    csl()
    k(f"""
    v_and_b32 v6, 15, v1
    v_lshrrev_b32 v12, 2, v6
    v_lshl_add_u32 v12, v7, 3, v12
    v_lshlrev_b32 v12, 6, v12
    v_and_b32 v8, 3, v6
    v_lshl_add_u32 v12, v8, 3, v12
    v_and_b32 v8, 16, v1
    v_lshl_add_u32 v12, v8, 1, v12
    v_add_u32 v14, 49152, v12
    s_lshl_b32 s15, s3, 2
    v_add_u32 v2, s15, v4
    s_mov_b32 s28, 0
    s_mov_b32 s29, 0
    """)
    for r in range(48): k(f"v_mov_b32 v{ACC+r}, 0")
    for ks in range(NWP2):
        if ks == EARLYU and EARLYU > 0 and not LATEU: unit(0)
        if ks < NWP: csdot(ks)
    css()
    if LATEU: unit(0)
    if LATEU >= 2: unit(1)
    if LATEU >= 3: unit(2)
    if LATEU >= 4: unit(3)
    signal(0)
    stamp(k, 2)
    if LATEU < 2: unit(1)
    if LATEU < 3: unit(2)
    if LATEU < 4: unit(3)
    def poll(half, need, tag):
        c = 28 + half
        k(f"""
        s_cmp_ge_u32 s{c}, {need}
        s_cbranch_scc1 L_{N}_pd{tag}
        L_{N}_pl{tag}:
        ds_read_b128 v[8:11], v4 offset:{16*half}
        s_waitcnt lgkmcnt(0)
        v_min_u32 v8, v8, v9
        v_min3_u32 v8, v8, v10, v11
        s_nop 0
        v_readfirstlane_b32 s{c}, v8
        s_cmp_ge_u32 s{c}, {need}
        s_cbranch_scc0 L_{N}_pl{tag}
        L_{N}_pd{tag}:
        """)
    def xr(ks, lb, h):
        b = 12 if ks < 16 else 14
        r = XF+12*(ks&3)+4*lb+2*h
        lg.issue(f"ds_read_b64_tr_b16 v[{r}:{r+1}], v{b} offset:{3072*(ks%16)+1024*lb+256*h}", f"x{ks}_{lb}")
    poll(0, 1, "a")
    for st in range(2):
        for lb in range(3): xr(st, lb, 0); xr(st, lb, 1)
    FCK = int(os.environ.get('FCK', '27'))
    for ks in range(32):
        if ks+2 < 32 and (ks+2) % 4 == 0: poll(((ks+2)//4) & 1, (ks+2)//8 + 1, f"m{ks}")
        vm.need(f"W{ks}")
        if ks == 0: stamp(k, 4)
        if ks in (2, 5, 8): signal({2:1, 5:2, 8:3}[ks])
        w = wreg(ks)
        for lb in range(3):
            lg.need(f"x{ks}_{lb}")
            a = ACC+16*lb; x = XF+12*(ks&3)+4*lb
            k(f"v_mfma_f32_32x32x16_bf16 v[{a}:{a+15}], v[{w}:{w+3}], v[{x}:{x+3}], v[{a}:{a+15}]")
            if ks+2 < 32: xr(ks+2, lb, 0); xr(ks+2, lb, 1)
        if ks >= NWP: csdot(ks)
        for j in late_w.get(ks, []): wl(j)
        j = ks - WDLAG
        if 2 <= j < NDI: wdl(j >> 1, j & 1, vm=vm)
        if ks == FCK:
            k(f"""
            v_and_b32 v15, 31, v1
            v_lshlrev_b32 v15, 3, v15
            s_mul_i32 s15, s4, 768
            s_add_u32 s15, s15, {FCG}
            s_cmp_eq_u32 s4, 21
            s_cselect_b32 s47, 0, 256
            s_add_u32 s48, s15, s47
            s_add_u32 s49, s48, s47
            s_mov_b32 s47, s15
            """)
            for lb in range(3): vm.issue(f"buffer_load_dwordx2 v[{FG+2*lb}:{FG+2*lb+1}], v15, s[8:11], s{47+lb} offen sc1", "FG")
    stamp(k, 3)
    k(f"""
    s_cmp_ge_u32 s6, 86
    s_cbranch_scc1 L_{N}_drest
    s_mov_b32 s26, {f32hex(-LOG2E)}
    s_mov_b32 s27, 0
    v_add_f32 v166, v166, v167
    s_lshl_b32 s12, s3, 7
    s_add_u32 s12, s12, {FLG+256}
    v_mov_b32 v167, v166
    v_and_b32 v8, 31, v1
    v_lshl_add_u32 v8, v8, 2, s12
    v_permlane32_swap_b32 v166, v167
    v_lshl_add_u32 v9, v7, 4, s12
    v_add_f32 v166, v166, v167
    ds_write_b32 v8, v166
    ds_read_b128 v[{CSV}:{CSV+3}], v9
    ds_read_b128 v[{CSV+4}:{CSV+7}], v9 offset:32
    ds_read_b128 v[{CSV+8}:{CSV+11}], v9 offset:64
    ds_read_b128 v[{CSV+12}:{CSV+15}], v9 offset:96
    """)
    vm.need("FG")
    k(f"""
    s_branch L_{N}_gc
    L_{N}_gp:
    s_sleep 4
    """)
    for lb in range(3): k(f"buffer_load_dwordx2 v[{FG+2*lb}:{FG+2*lb+1}], v15, s[8:11], s{47+lb} offen sc1")
    k(f"""
    s_add_u32 s27, s27, 1
    s_waitcnt vmcnt(0)
    L_{N}_gc:
    v_and_b32 v8, v{FG+1}, v{FG+3}
    v_and_b32 v8, v8, v{FG+5}
    v_cmp_ne_u32 vcc, 1, v8
    s_cmp_eq_u64 vcc, 0
    s_cbranch_scc1 L_{N}_gd
    s_cmp_lt_u32 s27, {SPIN}
    s_cbranch_scc1 L_{N}_gp
    L_{N}_gd:
    """)
    for lb in range(3):
        c = FCR+6*lb
        k(f"v_and_b32 v{c+4}, 0xffff0000, v{FG+2*lb}")
        k(f"v_lshlrev_b32 v{c}, 16, v{FG+2*lb}")
    for lb in range(3): k(f"v_rcp_f32 v{FCR+6*lb+2}, v{FCR+6*lb+4}")
    for lb in range(3):
        c = FCR+6*lb
        k(f"v_sub_f32 v{c+1}, 0, v{c}")
        k(f"v_sub_f32 v{c}, 0, v{c}")
        k(f"v_mov_b32 v{c+5}, v{c+4}")
        k(f"v_mul_f32 v{c+3}, s26, v{c+2}")
        k(f"v_mul_f32 v{c+2}, s26, v{c+2}")
    k(f"""
    s_mul_i32 s15, s4, {3*86*1024}
    s_lshl_b32 s12, s6, 10
    s_add_u32 s15, s15, s12
    s_add_u32 s15, s15, {HB}
    s_waitcnt lgkmcnt(0)
    """)
    for lb in range(3):
        g = ACC+16*lb; u = g+8; c = FCR+6*lb; o = XF+4*lb
        for j in range(0, 8, 2): k(f"v_pk_fma_f32 {P(g+j)}, {P(CSV+j)}, {P(c)}, {P(g+j)}")
        for j in range(0, 8, 2): k(f"v_pk_mul_f32 {P(g+j)}, {P(g+j)}, {P(c+2)}")
        for j in range(8):
            k(f"v_exp_f32 v{g+j}, v{g+j}")
        for j in range(0, 8, 2): k(f"v_pk_fma_f32 {P(u+j)}, {P(CSV+8+j)}, {P(c)}, {P(u+j)}")
        for j in range(0, 8, 2): k(f"v_pk_fma_f32 {P(g+j)}, {P(g+j)}, {P(c+4)}, {P(c+4)}")
        for j in range(8):
            k(f"v_rcp_f32 v{g+j}, v{g+j}")
        k("s_nop 0")
        for j in range(0, 8, 2): k(f"v_pk_mul_f32 {P(u+j)}, {P(u+j)}, {P(g+j)}")
        for j in range(4): k(f"v_cvt_pk_bf16_f32 v{o+j}, v{u+2*j}, v{u+2*j+1}")
        k(f"buffer_store_dwordx4 v[{o}:{o+3}], v3, s[8:11], s15 offen sc1")
        if lb == 0:
            k(f"s_cmp_eq_u32 s4, 21")
            k(f"s_cbranch_scc1 L_{N}_pub")
        k(f"s_add_u32 s15, s15, {86*1024}")
    k(f"""
    L_{N}_pub:
    s_waitcnt vmcnt(0)
    """)
    stamp(k, 5)
    k(f"s_branch L_{N}_drest")
    k.label(f"L_{N}_dall")
    dsetup()
    for (n, i) in wdq[2:NDI]: wdl(n, i)
    k.label(f"L_{N}_drest")
    k(f"""
    s_waitcnt lgkmcnt(0)
    s_barrier
    s_cmp_lg_u32 s3, 0
    s_cbranch_scc1 L_hf_np
    s_cmp_lt_u32 s2, {NPROD}
    s_cbranch_scc1 L_hf_np
    s_lshl_b32 s15, s4, 9
    s_lshl_b32 s12, s5, 2
    s_add_u32 s15, s15, s12
    s_add_u32 s15, s15, {HF}
    v_lshlrev_b32 v8, 7, v1
    v_mov_b32 v9, 1
    s_mov_b64 exec, 15
    buffer_store_dword v9, v8, s[8:11], s15 offen sc1
    s_mov_b64 exec, -1
    L_hf_np:
    """)
    for (n, i) in wdq[:2] + wdq[NDI:]: wdl(n, i)
    for r in range(64): k(f"v_mov_b32 v{A2+r}, 0")
    k(f"""
    s_lshl_b32 s12, s30, 1
    s_mul_i32 s13, s12, 171
    s_lshr_b32 s13, s13, 9
    s_add_u32 s12, s12, 1
    s_mul_i32 s12, s12, 171
    s_lshr_b32 s12, s12, 9
    s_lshl_b32 s13, s13, 9
    s_lshl_b32 s12, s12, 9
    s_and_b32 s38, s31, 3
    s_lshl_b32 s38, s38, 7
    s_add_u32 s38, s38, {HF}
    v_and_b32 v8, 15, v1
    v_and_b32 v9, 16, v1
    v_mov_b32 v10, s13
    v_mov_b32 v11, s12
    v_cmp_eq_u32 vcc, 0, v9
    v_cmp_gt_u32 s[26:27], 11, v8
    s_nop 0
    v_cndmask_b32 v10, v11, v10, vcc
    v_lshl_add_u32 v10, v8, 2, v10
    v_and_b32 v6, 31, v1
    v_lshlrev_b32 v5, 8, v7
    v_lshl_add_u32 v5, v6, 1, v5
    s_lshl_b32 s24, s32, 11
    s_lshl_b32 s25, s33, 15
    s_add_u32 s24, s24, s25
    s_lshr_b32 s12, s3, 2
    s_lshl_b32 s12, s12, 10
    s_add_u32 s24, s24, s12
    s_add_u32 s25, s24, {XC}
    s_add_u32 s24, s24, {XB}
    """)
    k(f"""
    s_mov_b32 s13, 0
    s_cmp_eq_u32 s3, 0
    s_cbranch_scc0 L_{N}_hr
    L_{N}_hq:
    buffer_load_dword v12, v10, s[8:11], s38 offen sc1
    s_add_u32 s13, s13, 1
    s_waitcnt vmcnt(0)
    v_cmp_ne_u32 vcc, 1, v12
    s_and_b64 vcc, vcc, s[26:27]
    s_cbranch_scc0 L_{N}_hr
    s_cmp_ge_u32 s13, {SPIN}
    s_cbranch_scc1 L_{N}_hr
    s_sleep 1
    s_branch L_{N}_hq
    L_{N}_hr:
    s_barrier
    L_{N}_hd:
    s_mov_b32 s22, {WS_USED}
    v_mov_b32 v12, v3
    """)
    stamp(k, 6)
    vm = Q(k, 'vmcnt', 63)
    HD = 6
    def hload(n):
        if n == 10:
            k("s_cmp_ge_u32 s3, 6")
            k("s_cselect_b32 s22, 0, s22")
        for i in range(2):
            r = HR + 8*(n % HD) + 4*i
            vm.issue(f"buffer_load_dwordx4 v[{r}:{r+3}], v12, s[20:23], s{36+i} offen sc1", f"S{n}")
        k("v_add_u32 v12, 8192, v12")
    for n in range(HD): hload(n)
    for n in range(8):
        q, r = n >> 2, n & 3
        vm.issue(f"buffer_load_ushort v{RES+n}, v5, s[8:11], s24 offen offset:{(8*q+r)*64} sc1", "RES")
    k("s_and_b32 s13, s3, 3")
    for a in range(4):
        k(f"""
        s_xor_b32 s12, s13, {a}
        s_lshl_b32 s12, s12, 14
        s_lshl_b32 s15, s3, 11
        s_add_u32 s12, s12, s15
        v_add_u32 v{8+a}, s12, v3
        """)
    k(f"""
    s_lshl_b32 s12, s3, 14
    v_add_u32 v13, s12, v3
    v_add_u32 v14, 0x10000, v8
    v_add_u32 v15, 0x10000, v9
    v_add_u32 v0, 0x10000, v10
    v_add_u32 v2, 0x10000, v11
    """)
    for n in range(11):
        vm.need(f"S{n}")
        for ad in range(2):
            for al in range(2):
                a = A2 + 16*(2*ad+al); w = WD0+8*n+4*ad; h = HR+8*(n % HD)+4*al
                k(f"v_mfma_f32_32x32x16_bf16 v[{a}:{a+15}], v[{w}:{w+3}], v[{h}:{h+3}], v[{a}:{a+15}]")
        if n >= 1 and n-1+HD < 11: hload(n-1+HD)
    k("s_nop 3")
    lg = Q(k, 'lgkmcnt', 15)
    hi = [14, 15, 0, 2]
    for n in range(8): k(f"v_lshlrev_b32 v{RES+n}, 16, v{RES+n}")
    for a in range(4):
        for q in range(4):
            ad = (8+a) if q < 2 else hi[a]
            lg.issue(f"ds_write_b128 v{ad}, v[{A2+16*a+4*q}:{A2+16*a+4*q+3}] offset:{1024*(q&1)}", "rw")
    lg.drain()
    k("s_barrier")
    FV = 16
    for q in range(2):
        for s_ in range(8):
            lg.issue(f"ds_read_b128 v[{FV+32*q+4*s_}:{FV+32*q+4*s_+3}], v13 offset:{2048*s_+1024*q}", f"rr{q}_{s_}")
    for q in range(2):
        b = FV+32*q
        for st in (1, 2, 4):
            for s_ in range(0, 8, 2*st):
                lg.need(f"rr{q}_{min(7, s_+2*st-1)}")
                for j in (0, 2): k(f"v_pk_add_f32 {P(b+4*s_+j)}, {P(b+4*s_+j)}, {P(b+4*(s_+st)+j)}")
        k(f"v_cvt_pk_bf16_f32 v{T+2*q}, v{b}, v{b+1}")
        k(f"v_cvt_pk_bf16_f32 v{T+2*q+1}, v{b+2}, v{b+3}")
        unpack(k, b, b+1, T+2*q); unpack(k, b+2, b+3, T+2*q+1)
        for j in (0, 2): k(f"v_pk_add_f32 {P(b+j)}, {P(b+j)}, {P(RES+4*q+j)}")
        k(f"v_cvt_pk_bf16_f32 v{T+2*q}, v{b}, v{b+1}")
        k(f"v_cvt_pk_bf16_f32 v{T+2*q+1}, v{b+2}, v{b+3}")
    k("s_cmp_eq_u32 s93, 1")
    k(f"s_cbranch_scc1 L_{N}_out")
    k(f"""
    v_mov_b32 v14, 0x3f803f80
    s_lshl_b32 s12, s3, 14
    v_add_u32 v8, s12, v5
    v_mov_b32 v12, 0
    v_mov_b32 v9, 0
    """)
    for q in range(2):
        for r in range(4):
            op = "ds_write_b16_d16_hi" if r & 1 else "ds_write_b16"
            k(f"{op} v8, v{T+2*q+(r>>1)} offset:{(8*q+r)*64}")
    k("ds_read_b128 v[16:19], v13")
    for q in range(2):
        for j in range(2):
            k(f"v_dot2_f32_bf16 v12, v{T+2*q+j}, v14, v12")
            k(f"v_dot2_f32_bf16 v9, v{T+2*q+j}, v{T+2*q+j}, v9")
    k(f"""
    v_lshlrev_b32 v5, 3, v6
    v_lshl_add_u32 v5, v7, 2, v5
    s_lshl_b32 s12, s33, 8
    v_permlane32_swap_b32 v12, v9
    s_add_u32 s12, s12, {ST3}
    s_waitcnt lgkmcnt(0)
    buffer_store_dwordx4 v[16:19], v3, s[8:11], s25 offen sc1
    v_add_f32 v12, v12, v9
    buffer_atomic_add_f32 v12, v5, s[8:11], s12 offen
    s_lshl_b32 s12, s2, 2
    s_add_u32 s12, s12, {LF}
    v_lshlrev_b32 v8, 10, v1
    ds_read_b32 v9, v4 offset:64
    """)
    stamp(k, 9)
    k(f"""
    s_waitcnt vmcnt(0) lgkmcnt(0)
    s_barrier
    s_cmp_lg_u32 s3, 0
    s_cbranch_scc1 L_lf_np
    s_mov_b64 exec, 0xff
    buffer_store_dword v9, v8, s[8:11], s12 offen sc1
    s_mov_b64 exec, -1
    L_lf_np:
    """)
    stamp_flush(k, slot, 10, 3)
    k("s_mov_b64 exec, -1")
    for r, v in sets2.items(): k(f"s_mov_b32 s{r}, {v}")
    k(f"""
    s_branch L_layer
    L_{N}_out:
    s_mov_b32 s28, s96
    s_mov_b32 s29, s97
    s_mov_b32 s30, {2048*512*2}
    s_mov_b32 s31, 0x00020000
    v_lshlrev_b32 v5, 10, v6
    v_lshl_add_u32 v5, v7, 4, v5
    s_lshl_b32 s25, s33, 15
    s_lshl_b32 s12, s32, 6
    s_add_u32 s25, s25, s12
    s_lshr_b32 s12, s3, 2
    s_lshl_b32 s12, s12, 5
    s_add_u32 s25, s25, s12
    v_permlane32_swap_b32 v{T}, v{T+2}
    v_permlane32_swap_b32 v{T+1}, v{T+3}
    buffer_store_dwordx4 v[{T}:{T+3}], v5, s[28:31], s25 offen
    """)
    stamp(k, 9)
    stamp_flush(k, slot, 10, 3)
    k(f"s_branch {E}")
    k.label(f"L_{N}_prod")
    k(f"""
    s_mul_i32 s4, s2, 5
    s_min_u32 s4, s4, 60
    s_lshl_b32 s12, s4, 15
    s_lshl_b32 s13, s3, 10
    s_add_u32 s12, s12, s13
    s_mov_b32 s26, {2*MB}
    s_mov_b32 s27, 0x00020000
    s_add_u32 s24, s18, {XB}
    s_addc_u32 s25, s19, 0
    s_lshl_b32 s5, s3, 14
    v_and_b32 v6, 15, v1
    v_lshrrev_b32 v12, 2, v6
    v_lshl_add_u32 v12, v7, 3, v12
    v_lshlrev_b32 v12, 6, v12
    v_and_b32 v8, 3, v6
    v_lshl_add_u32 v12, v8, 3, v12
    v_and_b32 v8, 16, v1
    v_lshl_add_u32 v12, v8, 1, v12
    v_add_u32 v12, s5, v12
    v_mov_b32 v13, 0x3f803f80
    """)
    for r in range(10): k(f"v_mov_b32 v{16+r}, 0")
    k("s_mov_b32 s13, 0")
    pv = Q(k, 'vmcnt', 63); pl = Q(k, 'lgkmcnt', 15)
    def pdma(n):
        k(f"s_add_u32 m0, s5, {1024*(n % 16)}")
        k(f"s_add_u32 s14, s12, {(n >> 2)*32768 + (n & 3)*8192}")
        pv.issue(f"buffer_load_dwordx4 v3, s[24:27], s14 offen sc1 lds", f"d{n}")
    def prd(n):
        pv.need(f"d{n}")
        r = 32 + 4*(n % 4)
        pl.issue(f"ds_read_b64_tr_b16 v[{r}:{r+1}], v12 offset:{1024*(n%16)}", f"r{n}")
        pl.issue(f"ds_read_b64_tr_b16 v[{r+2}:{r+3}], v12 offset:{1024*(n%16)+256}", f"r{n}")
    def dots(n):
        r = 32 + 4*(n % 8); lb = n >> 2
        for e in range(4):
            k(f"v_dot2_f32_bf16 v{16+2*lb}, v{r+e}, v13, v{16+2*lb}")
            k(f"v_dot2_f32_bf16 v{17+2*lb}, v{r+e}, v{r+e}, v{17+2*lb}")
    def prd8(n):
        pv.need(f"d{n}")
        r = 32 + 4*(n % 8)
        pl.issue(f"ds_read_b64_tr_b16 v[{r}:{r+1}], v12 offset:{1024*(n%16)}", f"r{n}")
        pl.issue(f"ds_read_b64_tr_b16 v[{r+2}:{r+3}], v12 offset:{1024*(n%16)+256}", f"r{n}")
    def bcheck(lb):
        k("s_nop 2")
        k.label(f"L_pv{lb}")
        k(f"v_cmp_u_f32 vcc, v{17+2*lb}, v{17+2*lb}")
        k("s_cmp_eq_u64 vcc, 0")
        k(f"s_cbranch_scc1 L_po{lb}")
        k("s_add_u32 s13, s13, 1")
        k(f"s_cmp_ge_u32 s13, {RETRY}")
        k(f"s_cbranch_scc1 L_po{lb}")
        k(f"s_sleep {RSL}")
        for n in range(4*lb, 4*lb+4):
            k(f"s_add_u32 m0, s5, {1024*(n % 16)}")
            k(f"s_add_u32 s14, s12, {(n >> 2)*32768 + (n & 3)*8192}")
            k(f"buffer_load_dwordx4 v3, s[24:27], s14 offen sc1 lds")
        k(f"v_mov_b32 v{16+2*lb}, 0")
        k(f"v_mov_b32 v{17+2*lb}, 0")
        k("s_waitcnt vmcnt(0) lgkmcnt(0)")
        for n in range(4*lb, 4*lb+4):
            r = 64 + 4*(n & 3)
            k(f"ds_read_b64_tr_b16 v[{r}:{r+1}], v12 offset:{1024*(n%16)}")
            k(f"ds_read_b64_tr_b16 v[{r+2}:{r+3}], v12 offset:{1024*(n%16)+256}")
        k("s_waitcnt lgkmcnt(0)")
        for r in range(64, 80):
            k(f"v_dot2_f32_bf16 v{16+2*lb}, v{r}, v13, v{16+2*lb}")
            k(f"v_dot2_f32_bf16 v{17+2*lb}, v{r}, v{r}, v{17+2*lb}")
        k("s_nop 2")
        k(f"s_branch L_pv{lb}")
        k.label(f"L_po{lb}")
    for n in range(4): pdma(n)
    for n in range(4): prd8(n)
    for n in range(4): pl.need(f"r{n}"); dots(n)
    bcheck(0)
    stamp(k, 2)
    for n in range(4, 20): pdma(n)
    prd8(4); prd8(5); prd8(6)
    for n in range(4, 20):
        if n+3 < 20: prd8(n+3)
        pl.need(f"r{n}"); dots(n)
        if n % 4 == 3: bcheck(n >> 2)
    k("s_nop 2")
    for lb in range(5): k(f"v_permlane32_swap_b32 v{16+2*lb}, v{17+2*lb}")
    for lb in range(5): k(f"v_add_f32 v{16+2*lb}, v{16+2*lb}, v{17+2*lb}")
    k(f"""
    v_and_b32 v8, 31, v1
    v_lshlrev_b32 v8, 3, v8
    v_lshl_add_u32 v8, v7, 2, v8
    v_add_u32 v8, s5, v8
    """)
    for lb in range(5): k(f"ds_write_b32 v8, v{16+2*lb} offset:{256*lb}")
    k(f"""
    s_waitcnt lgkmcnt(0)
    s_barrier
    s_cmp_ge_u32 s3, 3
    s_cbranch_scc1 L_{N}_pe
    v_lshlrev_b32 v8, 3, v0
    v_add_u32 v9, 0x10000, v8
    """)
    for w in range(8): k(f"ds_read_b64 v[{32+2*w}:{33+2*w}], v{8 + (w >> 2)} offset:{16384*(w & 3)}")
    k("s_waitcnt lgkmcnt(0)")
    for st in (1, 2, 4):
        for w in range(0, 8, 2*st): k(f"v_pk_add_f32 {P(32+2*w)}, {P(32+2*w)}, {P(32+2*(w+st))}")
    k(f"""
    s_mov_b32 s24, {f32hex(1.0/512)}
    s_mov_b32 s25, {f32hex(1e-5)}
    v_mul_f32 v14, s24, v32
    v_mul_f32 v16, s24, v33
    v_fma_f32 v16, -v14, v14, v16
    v_max_f32 v16, 0, v16
    v_cvt_pk_bf16_f32 v14, v14, v16
    v_and_b32 v16, 0xffff0000, v14
    v_lshlrev_b32 v14, 16, v14
    v_add_f32 v16, s25, v16
    v_cvt_pk_bf16_f32 v16, v16, v16
    v_lshlrev_b32 v16, 16, v16
    v_sqrt_f32 v16, v16
    s_mul_i32 s4, s2, 1280
    s_add_u32 s4, s4, {FCG}
    v_cvt_pk_bf16_f32 v20, v14, v16
    v_mov_b32 v21, 1
    s_movk_i32 s6, 160
    v_cmp_gt_u32 vcc, s6, v0
    s_and_saveexec_b64 s[6:7], vcc
    buffer_store_dwordx2 v[20:21], v8, s[8:11], s4 offen sc1
    s_mov_b64 exec, s[6:7]
    s_nop 1
    L_{N}_pe:
    """)
    for i in (3, 5): stamp(k, i)
    k(f"s_branch L_{N}_dall")
    k.label(E)
    k("s_endpgm")
    return k

if __name__ == '__main__':
    import sys
    KN = "interleave_layers__ssm_conv_s4d__glu_gated_glu__prompt_kernel"
    sets1 = {86: XT0, 87: XT1, 88: ST1, 89: FCG1, 90: H, 91: HF1, 92: XT2, 93: 0, 94: CF1, 95: 2}
    sets2 = {86: XT2, 87: XT3, 88: ST3, 89: FCG2, 90: H2, 91: HF2, 92: 0, 93: 1, 94: CF2, 95: 6}
    p = Prog(); p.add_kernel(gen_mega(KN, sets1, sets2))
    t = p.text().replace('.amdgcn_target', f"; @launch grid=(256,1,1) block=(512,1,1) lds={LAYER_LDS}\n.amdgcn_target", 1)
    open(sys.argv[1], 'w').write(t)
```

```python
import asmlib, os
asmlib.STAMPS = bool(os.environ.get('STAMPS'))
from asmlib import *
from layout import *
from gen_k0 import f32hex, LOG2E
from gen_conv import unpack, U0, UP, KC0, KCP, KCH, RED
NPROD = 14; PCH = 19
FLG = 131072
LAYER_LDS = FLG + 256 + 1024
SPIN = 400000
LATEU = int(os.environ.get('LATEU', '2'))
EARLYU = int(os.environ.get('EARLYU', '12'))
RETRY = 200000
RSL = int(os.environ.get('RSL', '3'))
CFD = int(os.environ.get('CFD', '0')); CFS = int(os.environ.get('CFS', '4')); CFR = int(os.environ.get('CFR', '8'))
XSC = os.environ.get('XSC', 'sc1')
NWP = int(os.environ.get('NWP', '22'))
NWP2 = int(os.environ.get('NWP2', '22'))
WDLAG = int(os.environ.get('WDLAG', '6'))
NDI = int(os.environ.get('NDI', '22'))

from gen_k0 import exp_bf16_pair, LOG2E_HI, LOG2E_LO, LN2, INV2PI
SC = ''
def gen_mega(name, sets1, sets2):
    k = Kernel(name, vgpr=256, sgpr=100)
    XA, XB, ST, FCG, HB, HF, XC, CF, slot = 's86', 's87', 's88', 's89', 's90', 's91', 's92', 's94', 's95'
    stamp(k, 0)
    E = "L_mega_end"; N = "m"
    ACC = 16; XF = 64; CSV = 144; FCR = 112
    A2 = 16; HR = 80; WD0 = 168; RES = 128; T = 144; FG = 160
    P = lambda r: f"v[{r}:{r+1}]"
    def wreg(ks):
        if ks < 22: return 168 + 4*ks
        if ks < 30: return 112 + 4*(ks-22)
        return 168 + 4*(ks-30)
    late_w = {}
    for j in range(NWP2, 32): late_w.setdefault(max(3, j - 14) if j < 30 else 12 + j - 30, []).append(j)
    def wpre(ks):
        r = wreg(ks)
        k(f"s_add_u32 s14, s55, {4096*(ks//4)}")
        k(f"buffer_load_dwordx4 v[{r}:{r+3}], v3, s[20:23], s14 offen offset:{1024*(ks&3)} sc1")

    KSC = RED; TS = 90112; WS_ = TS + 8192
    SIDE_AT = int(os.environ.get('SIDE_AT', '7'))
    NTASK = 688 + 172
    def side_issue():
        k(f"""
        v_lshlrev_b32 v116, 4, v1
        v_lshrrev_b32 v117, 4, v1
        v_and_b32 v118, 15, v1
        v_lshrrev_b32 v120, 2, v1
        v_and_b32 v121, 3, v1
        s_mov_b32 s51, 0x00020000
        s_mov_b32 s59, 0x00020000
        s_lshl_b32 s52, s2, 2
        s_add_u32 s52, s52, s45
        s_lshl_b32 s53, s45, 13
        s_add_u32 s53, s53, {WS_}
        s_cmp_lt_u32 s3, 4
        s_cbranch_scc1 L_si_w
        s_mov_b32 s48, s24
        s_mov_b32 s49, s25
        s_mov_b32 s50, {2*MB}
        s_lshl_b32 s4, s52, 11
        buffer_load_dwordx4 v[112:115], v116, s[48:51], s4 offen
        buffer_load_dwordx4 v[160:163], v116, s[48:51], s4 offen offset:1024
        v_lshlrev_b32 v120, 10, v120
        v_lshl_add_u32 v120, v121, 4, v120
        s_lshr_b32 s4, s2, 2
        s_lshl_b32 s4, s4, 15
        s_and_b32 s5, s52, 15
        s_lshl_b32 s5, s5, 6
        s_add_u32 s4, s4, s5
        s_lshl_b32 s53, s45, 11
        s_add_u32 s53, s53, {TS}
        s_mov_b32 m0, s53
        s_add_u32 s5, s4, 16384
        buffer_load_dwordx4 v120, s[48:51], s4 offen lds
        s_add_u32 m0, s53, 1024
        s_mov_b32 s58, 0
        buffer_load_dwordx4 v120, s[48:51], s5 offen lds
        s_mov_b32 s56, s24
        s_mov_b32 s57, s25
        """)
        for t_ in range(4): k("buffer_load_dword v164, v116, s[56:59], 0 offen")
        k(f"""
        s_branch L_si_done
        L_si_w:
        s_mov_b32 s50, {D*F*2}
        s_mov_b32 s58, {D*F*2}
        s_cmp_ge_u32 s52, {NTASK}
        s_cselect_b32 s50, 0, s50
        s_cmp_ge_u32 s52, 688
        s_cbranch_scc1 L_si_wd
        s_mov_b32 s48, s20
        s_mov_b32 s49, s21
        s_mov_b32 s56, s22
        s_mov_b32 s57, s23
        v_mul_u32_u24 v120, {F*2}, v120
        v_lshl_add_u32 v120, v121, 4, v120
        s_and_b32 s4, s52, 15
        s_mul_i32 s4, s4, {32*F*2}
        s_lshr_b32 s5, s52, 4
        s_lshl_b32 s5, s5, 6
        s_add_u32 s4, s4, s5
        """)
        for t_ in range(2):
            k(f"s_add_u32 m0, s53, {2048*t_}")
            k("s_nop 0")
            k("buffer_load_dwordx4 v120, s[48:51], s4 offen lds")
            k(f"s_add_u32 m0, s53, {2048*t_+1024}")
            k("s_nop 0")
            k("buffer_load_dwordx4 v120, s[56:59], s4 offen lds")
            k(f"s_add_u32 s4, s4, {16*F*2}")
        k("s_mov_b32 s58, 0")
        for t_ in range(4): k("buffer_load_dword v164, v116, s[56:59], 0 offen")
        k(f"""
        s_branch L_si_done
        L_si_wd:
        s_mov_b32 s48, s26
        s_mov_b32 s49, s27
        v_lshrrev_b32 v120, 5, v1
        v_and_b32 v121, 31, v1
        v_lshlrev_b32 v120, 10, v120
        v_lshl_add_u32 v120, v121, 4, v120
        s_sub_u32 s4, s52, 688
        s_and_b32 s5, s4, 1
        s_lshr_b32 s4, s4, 1
        s_lshl_b32 s4, s4, 14
        s_lshl_b32 s5, s5, 9
        s_add_u32 s4, s4, s5
        """)
        for t_ in range(8):
            k(f"s_add_u32 m0, s53, {1024*t_}")
            k("s_nop 0")
            k("buffer_load_dwordx4 v120, s[48:51], s4 offen lds")
            k(f"s_add_u32 s4, s4, 2048")
        k.label("L_si_done")
    def side_process():
        k(f"""
        v_lshrrev_b32 v122, 5, v1
        v_lshrrev_b32 v120, 2, v118
        v_and_b32 v121, 3, v118
        v_and_b32 v123, 16, v1
        s_cmp_lt_u32 s3, 4
        s_cbranch_scc1 L_sp_w
        v_mov_b32 v124, 0
        v_mov_b32 v125, 0
        v_mov_b32 v126, 0
        v_mov_b32 v127, 0
        v_mov_b32 v136, 0x3f803f80
        v_lshl_add_u32 v120, v117, 3, v120
        v_lshlrev_b32 v120, 6, v120
        v_lshl_add_u32 v120, v121, 3, v120
        v_add_u32 v120, s53, v120
        s_waitcnt vmcnt(0)
        s_cmp_lg_u32 s54, 7
        s_cbranch_scc1 L_nn3
        s_mov_b64 exec, 1
        global_store_dwordx2 v152, v[154:155], s[98:99] sc1
        s_mov_b64 exec, -1
        L_nn3:
        ds_read_b64_tr_b16 v[128:129], v120
        ds_read_b64_tr_b16 v[130:131], v120 offset:256
        ds_read_b64_tr_b16 v[132:133], v120 offset:32
        ds_read_b64_tr_b16 v[134:135], v120 offset:288
        """)
        for j in range(4):
            k(f"v_dot2_f32_bf16 v124, v{112+j}, v136, v124")
            k(f"v_dot2_f32_bf16 v125, v{112+j}, v{112+j}, v125")
            k(f"v_dot2_f32_bf16 v126, v{160+j}, v136, v126")
            k(f"v_dot2_f32_bf16 v127, v{160+j}, v{160+j}, v127")
        k(f"""
        s_lshr_b32 s4, s2, 2
        s_lshl_b32 s4, s4, 15
        s_and_b32 s5, s52, 15
        s_lshl_b32 s5, s5, 11
        s_add_u32 s4, s4, s5
        s_add_u32 s4, s4, {XT0}
        v_lshlrev_b32 v121, 6, v118
        v_lshl_add_u32 v121, v117, 4, v121
        s_waitcnt lgkmcnt(0)
        buffer_store_dwordx4 v[128:131], v121, s[8:11], s4 offen sc1
        buffer_store_dwordx4 v[132:135], v121, s[8:11], s4 offen offset:1024 sc1
        """)
        for dpp in ("quad_perm:[1,0,3,2] row_mask:0xf bank_mask:0xf", "quad_perm:[2,3,0,1] row_mask:0xf bank_mask:0xf",
                    "row_half_mirror row_mask:0xf bank_mask:0xf", "row_mirror row_mask:0xf bank_mask:0xf",
                    "row_bcast:15 row_mask:0xa bank_mask:0xf", "row_bcast:31 row_mask:0xc bank_mask:0xf"):
            for r in range(4): k(f"v_add_f32 v{124+r}, v{124+r}, v{124+r} {dpp}")
        k(f"""
        s_lshl_b32 s4, s52, 4
        s_add_u32 s4, s4, {ST1}
        v_mov_b32 v138, 0
        v_mov_b32 v139, 0
        v_mov_b32 v140, -1
        v_mov_b32 v141, -1
        s_mov_b32 exec_lo, 0
        s_mov_b32 exec_hi, 0x80000000
        buffer_store_dwordx4 v[124:127], v152, s[8:11], s4 offen sc1
        s_mov_b64 exec, 0xffff
        s_lshl_b32 s4, s52, 7
        s_add_u32 s4, s4, {ZR}
        v_lshlrev_b32 v121, 3, v1
        buffer_store_dwordx2 v[138:139], v121, s[8:11], s4 offen sc1
        s_mov_b64 exec, -1
        v_lshrrev_b32 v122, 1, v118
        v_lshlrev_b32 v122, 15, v122
        v_and_b32 v123, 1, v118
        v_lshl_add_u32 v122, v123, 5, v122
        v_lshl_add_u32 v122, v117, 3, v122
        s_lshl_b32 s4, s2, 7
        s_lshl_b32 s5, s45, 19
        s_add_u32 s4, s4, s5
        s_add_u32 s4, s4, {XT1}
        s_add_u32 s5, s4, 0x40000
        buffer_store_dwordx2 v[140:141], v122, s[8:11], s4 offen sc1
        buffer_store_dwordx2 v[140:141], v122, s[8:11], s4 offen offset:64 sc1
        buffer_store_dwordx2 v[140:141], v122, s[8:11], s5 offen sc1
        buffer_store_dwordx2 v[140:141], v122, s[8:11], s5 offen offset:64 sc1
        s_branch L_sp_done
        L_sp_w:
        s_cmp_ge_u32 s52, {NTASK}
        s_cbranch_scc1 L_sp_done
        s_cmp_ge_u32 s52, 688
        s_cbranch_scc1 L_sp_wd
        v_lshl_add_u32 v120, v122, 3, v120
        v_lshlrev_b32 v120, 6, v120
        v_lshl_add_u32 v120, v121, 3, v120
        v_lshl_add_u32 v120, v123, 6, v120
        v_add_u32 v120, s53, v120
        s_lshr_b32 s4, s52, 4
        s_lshl_b32 s4, s4, 16
        s_and_b32 s5, s52, 15
        s_lshl_b32 s5, s5, 11
        s_add_u32 s4, s4, s5
        s_add_u32 s4, s4, {WGU}
        s_add_u32 s5, s4, 0x8000
        s_waitcnt vmcnt(0)
        """)
        for t_ in range(4):
            ks, hf = t_ >> 1, t_ & 1
            k(f"ds_read_b64_tr_b16 v[{124+4*t_}:{125+4*t_}], v120 offset:{2048*ks + 32*hf}")
            k(f"ds_read_b64_tr_b16 v[{126+4*t_}:{127+4*t_}], v120 offset:{2048*ks + 32*hf + 256}")
        for t_ in range(4):
            ks, hf = t_ >> 1, t_ & 1
            k(f"s_waitcnt lgkmcnt({6-2*t_})")
            k(f"buffer_store_dwordx4 v[{124+4*t_}:{127+4*t_}], v116, s[8:11], s{4+hf} offen offset:{1024*ks} sc1")
        k("v_mov_b32 v140, 0")
        k("v_mov_b32 v141, 0")
        k("v_mov_b32 v142, 0x3f803f80")
        for t_ in range(4):
            for j in range(4): k(f"v_dot2_f32_bf16 v{140+(t_&1)}, v{124+4*t_+j}, v142, v{140+(t_&1)}")
        k(f"""
        s_lshr_b32 s4, s52, 4
        s_lshl_b32 s4, s4, 12
        s_and_b32 s5, s52, 15
        s_lshl_b32 s5, s5, 7
        v_permlane32_swap_b32 v140, v141
        s_add_u32 s4, s4, s5
        s_add_u32 s4, s4, {CSQ}
        v_and_b32 v121, 31, v1
        v_lshlrev_b32 v121, 2, v121
        v_lshl_add_u32 v121, v122, 11, v121
        v_add_f32 v140, v140, v141
        buffer_store_dword v140, v121, s[8:11], s4 offen sc1
        s_branch L_sp_done
        L_sp_wd:
        v_lshl_add_u32 v120, v122, 2, v120
        v_lshlrev_b32 v120, 9, v120
        v_lshl_add_u32 v120, v121, 3, v120
        v_lshl_add_u32 v120, v123, 1, v120
        v_add_u32 v120, s53, v120
        s_sub_u32 s4, s52, 688
        s_and_b32 s5, s4, 1
        s_lshr_b32 s4, s4, 1
        s_lshl_b32 s4, s4, 10
        s_mul_i32 s5, s5, {8*86*1024}
        s_add_u32 s4, s4, s5
        s_add_u32 s4, s4, {WD}
        s_waitcnt vmcnt(0)
        """)
        for h_ in range(2):
            for t_ in range(4):
                k(f"ds_read_b64_tr_b16 v[{168+16*h_+4*t_}:{169+16*h_+4*t_}], v120 offset:{64*(4*h_+t_)}")
                k(f"ds_read_b64_tr_b16 v[{170+16*h_+4*t_}:{171+16*h_+4*t_}], v120 offset:{64*(4*h_+t_) + 4096}")
            for t_ in range(4):
                k(f"s_waitcnt lgkmcnt({6-2*t_})")
                k(f"buffer_store_dwordx4 v[{168+16*h_+4*t_}:{171+16*h_+4*t_}], v116, s[8:11], s4 offen sc1")
                k(f"s_add_u32 s4, s4, {86*1024}")
        k.label("L_sp_done")
    k(f"""
    s_cmp_ge_u32 s2, 256
    s_cbranch_scc1 {E}
    s_load_dwordx8 s[36:43], s[0:1], 8
    s_load_dwordx4 s[12:15], s[0:1], 40
    s_load_dwordx8 s[20:27], s[0:1], 64
    s_load_dwordx4 s[16:19], s[0:1], 96
    s_load_dwordx2 s[28:29], s[0:1], 0
    v_and_b32 v1, 63, v0
    v_lshrrev_b32 v2, 6, v0
    s_mov_b32 s10, {WS_USED}
    v_readfirstlane_b32 s3, v2
    s_mov_b32 s11, 0x00020000
    """)
    if os.environ.get('CPF', '0') == '1':
        k(f"""
        s_getpc_b64 s[4:5]
        L_pc0:
        s_cmp_ge_u32 s2, 64
        s_cbranch_scc1 L_cpf
        v_lshlrev_b32 v4, 7, v0
        v_min_u32 v4, L_mega_end-L_pc0, v4
        global_load_dword v156, v4, s[4:5]
        L_cpf:
        """)
    CHB = 20480; PT = 2048; T16 = 2048 + 4*3072
    k(f"""
    s_lshr_b32 s4, s3, 2
    s_and_b32 s45, s3, 3
    s_lshl_b32 s44, s2, 1
    s_add_u32 s44, s44, s4
    s_mul_i32 s34, s4, {CHB}
    s_add_u32 s34, s34, {KSC}
    v_and_b32 v3, 31, v1
    s_lshl_b32 s4, s44, 7
    s_lshl_b32 s5, s45, 5
    s_add_u32 s4, s4, s5
    v_add_u32 v4, s4, v3
    v_lshlrev_b32 v4, 1, v4
    s_lshl_b32 s5, s44, 1
    v_mov_b32 v5, s5
    v_mov_b32 v158, {FLG+64}
    v_mov_b32 v159, 0
    ds_write_b32 v158, v159 offset:4
    ds_write_b32 v158, v159 offset:8
    s_waitcnt lgkmcnt(0)
    s_barrier
    s_mov_b32 s8, s18
    s_mov_b32 s9, s19
    s_mov_b64 s[46:47], s[12:13]
    s_mov_b64 s[98:99], s[16:17]
    s_mov_b64 s[16:17], s[14:15]
    s_mov_b64 s[96:97], s[26:27]
    s_mov_b64 s[26:27], s[24:25]
    s_mov_b64 s[24:25], s[28:29]
    s_lshl_b32 s54, s2, 3
    s_add_u32 s54, s54, s3
    v_mov_b32 v152, 0
    v_mov_b32 v155, 1
    s_mov_b32 s55, {NONCE}
    s_cmp_lg_u32 s54, 7
    s_cbranch_scc1 L_nn
    buffer_load_dword v154, v152, s[8:11], s55 offen sc1
    L_nn:
    global_load_ushort v6, v4, s[36:37]
    global_load_ushort v10, v5, s[46:47]
    global_load_ushort v7, v4, s[38:39]
    global_load_ushort v8, v4, s[40:41]
    global_load_ushort v9, v4, s[42:43]
    """)
    side_issue()
    k(f"""
    s_mov_b32 s30, {f32hex(LOG2E_HI)}
    s_mov_b32 s31, {f32hex(LOG2E_LO)}
    s_mov_b32 s32, {f32hex(LN2)}
    s_mov_b32 s33, {f32hex(INV2PI)}
    v_and_b32 v0, 255, v0
    v_and_b32 v11, 15, v1
    v_lshrrev_b32 v12, 3, v11
    v_lshlrev_b32 v12, 7, v12
    v_and_b32 v13, 7, v11
    v_add_u32 v12, v12, v13
    v_cvt_f32_u32 v20, v12
    v_lshrrev_b32 v12, 2, v11
    v_lshlrev_b32 v12, 7, v12
    v_and_b32 v13, 3, v11
    v_lshl_add_u32 v12, v13, 1, v12
    v_add_u32 v12, 0x100, v12
    v_subrev_u32 v13, 8, v11
    v_lshrrev_b32 v13, 1, v13
    v_lshlrev_b32 v13, 7, v13
    v_and_b32 v14, 1, v11
    v_lshl_add_u32 v13, v14, 2, v13
    v_add_u32 v13, 0x200, v13
    v_cmp_gt_u32 vcc, 8, v11
    v_lshlrev_b32 v14, 7, v11
    v_add_u32 v14, 0x400, v14
    v_cndmask_b32 v12, v13, v12, vcc
    v_cvt_f32_u32 v21, v12
    v_cvt_f32_u32 v22, v14
    v_lshlrev_b32 v14, 3, v11
    v_cvt_f32_u32 v23, v14
    s_lshl_b32 s5, s45, 9
    s_add_u32 s5, s5, s34
    v_lshl_add_u32 v2, v3, 4, s5
    v_lshrrev_b32 v3, 4, v1
    v_lshl_add_u32 v3, v3, 6, s5
    """)
    for r in range(12): k(f"v_mov_b32 v{24+r}, 0")
    k("s_waitcnt vmcnt(11)")
    k("v_lshlrev_b32 v6, 16, v6")
    k("v_lshlrev_b32 v10, 16, v10")
    exp_bf16_pair(k, [6, 10], 12, 30, 31, 32)
    k(f"""
    s_waitcnt vmcnt(8)
    v_lshlrev_b32 v7, 16, v7
    v_lshlrev_b32 v8, 16, v8
    v_lshlrev_b32 v9, 16, v9
    v_mul_f32 v6, v6, v10
    v_mul_f32 v7, v7, v10
    v_add_f32 v10, v10, v10
    v_mul_f32 v18, v8, v10
    v_mul_f32 v19, v9, v10
    v_mul_f32 v16, s30, v6
    v_max_f32 v12, |v18|, |v19|
    v_mul_f32 v17, s33, v7
    v_sub_f32 v16, 0, v16
    v_max_f32_dpp v12, v12, v12 row_ror:8 row_mask:0xf bank_mask:0xf
    s_nop 1
    v_max_f32_dpp v12, v12, v12 row_ror:4 row_mask:0xf bank_mask:0xf
    s_nop 1
    v_max_f32_dpp v12, v12, v12 row_ror:2 row_mask:0xf bank_mask:0xf
    s_nop 1
    v_max_f32_dpp v12, v12, v12 row_ror:1 row_mask:0xf bank_mask:0xf
    s_nop 1
    v_readlane_b32 s6, v12, 0
    v_readlane_b32 s7, v12, 16
    s_max_u32 s6, s6, s7
    s_lshr_b32 s6, s6, 23
    s_max_u32 s6, s6, 1
    s_min_u32 s6, s6, 252
    s_sub_u32 s7, 253, s6
    s_lshl_b32 s7, s7, 23
    s_add_u32 s35, s6, 1
    s_lshl_b32 s35, s35, 23
    v_mul_f32 v18, s7, v18
    v_mul_f32 v19, s7, v19
    ds_write_b128 v2, v[16:19]
    s_waitcnt lgkmcnt(0)
    """)
    for st in range(8): k(f"ds_read_b128 v[{36+4*st}:{39+4*st}], v3 offset:{256*(st>>2) + 16*(st&3)}")
    k(f"""
    s_cmp_lg_u32 s54, 7
    s_cbranch_scc1 L_nn2
    v_add_u32 v154, 1, v154
    v_max_u32 v154, 1, v154
    s_mov_b64 exec, 1
    buffer_store_dword v154, v152, s[8:11], s55 offen sc1
    s_mov_b64 exec, -1
    L_nn2:
    """)
    stamp(k, 1)
    for st in range(8):
        s_, t = st >> 2, st & 3
        zr, zi, cr, ci = 36+4*st, 37+4*st, 38+4*st, 39+4*st
        Fb = 80 + 16*s_ + t
        if st == SIDE_AT:
            side_process()
            stamp(k, 4)
        k(f"s_waitcnt lgkmcnt({7-st})")
        for c in range(4): k(f"v_mul_f32 v{68+c}, v{zr}, v{20+c}")
        for c in range(4): k(f"v_mul_f32 v{72+c}, v{zi}, v{20+c}")
        for c in range(4): k(f"v_exp_f32 v{68+c}, v{68+c}")
        for c in range(4): k(f"v_fract_f32 v{72+c}, v{72+c}")
        for c in range(4): k(f"v_cos_f32 v{76+c}, v{72+c}")
        for c in range(4): k(f"v_sin_f32 v{4+c}, v{72+c}")
        k(f"v_mul_f32 v8, v71, v{cr}")
        k(f"v_mul_f32 v9, v71, v{ci}")
        for c in range(3): k(f"v_fma_mixlo_f16 v{Fb+4*c}, v{68+c}, v{76+c}, 0")
        k(f"v_mul_f32 v10, v8, v79")
        k(f"v_mul_f32 v11, v8, v7")
        for c in range(3): k(f"v_fma_mixhi_f16 v{Fb+4*c}, v{68+c}, v{4+c}, 0")
        k(f"v_fma_mixlo_f16 v{Fb+12}, -v9, v7, v10")
        if st == 4:
            for c in range(3): k(f"v_mfma_f32_16x16x32_f16 v[{24+4*c}:{27+4*c}], v[{80+4*c}:{83+4*c}], v[92:95], v[{24+4*c}:{27+4*c}]")
        else: k("s_nop 0")
        k(f"v_fma_mixhi_f16 v{Fb+12}, -v9, v79, -v11")
    k(f"""
    s_mul_i32 s5, s45, 3072
    s_add_u32 s5, s5, s34
    s_add_u32 s5, s5, {PT}
    v_lshl_add_u32 v12, v1, 4, s5
    """)
    for c in range(3): k(f"v_mfma_f32_16x16x32_f16 v[{24+4*c}:{27+4*c}], v[{96+4*c}:{99+4*c}], v[108:111], v[{24+4*c}:{27+4*c}]")
    stamp(k, 2)
    k("s_nop 7")
    for r in range(12): k(f"v_mul_f32 v{24+r}, s35, v{24+r}")
    k(f"""
    ds_write_b128 v12, v[24:27]
    ds_write_b128 v12, v[28:31] offset:1024
    ds_write_b128 v12, v[32:35] offset:2048
    v_lshl_add_u32 v12, v0, 4, s34
    v_lshrrev_b32 v13, 4, v1
    v_and_b32 v14, 15, v1
    v_lshl_add_u32 v14, v14, 4, s34
    s_waitcnt lgkmcnt(0)
    s_barrier
    global_load_dwordx2 v[156:157], v152, s[98:99] sc1
    """)
    stamp(k, 3)
    k(f"""
    s_cmp_eq_u32 s45, 3
    s_cbranch_scc1 L_kg_stage2
    ds_read_b128 v[24:27], v12 offset:{PT}
    ds_read_b128 v[28:31], v12 offset:{PT+3072}
    ds_read_b128 v[32:35], v12 offset:{PT+2*3072}
    ds_read_b128 v[36:39], v12 offset:{PT+3*3072}
    s_cmp_eq_u32 s45, 1
    s_cbranch_scc1 L_kg_t1
    s_cmp_eq_u32 s45, 2
    s_cbranch_scc1 L_kg_t2
    v_lshrrev_b32 v15, 1, v13
    v_lshlrev_b32 v15, 8, v15
    v_and_b32 v16, 1, v13
    v_lshl_add_u32 v15, v16, 3, v15
    v_add_u32 v16, v15, v14
    v_add_u32 v17, 2, v16
    v_add_u32 v18, 4, v16
    v_add_u32 v19, 6, v16
    s_branch L_kg_w
    L_kg_t1:
    v_lshlrev_b32 v15, 8, v13
    v_add_u32 v15, 0x200, v15
    v_add_u32 v16, v15, v14
    v_add_u32 v17, 4, v16
    v_add_u32 v18, 8, v16
    v_add_u32 v19, 12, v16
    v_lshlrev_b32 v15, 9, v13
    v_add_u32 v15, v15, v14
    v_add_u32 v20, 8, v15
    v_add_u32 v21, 0x100, v15
    v_add_u32 v22, 0x108, v15
    v_cmp_gt_u32 vcc, 2, v13
    s_nop 1
    v_cndmask_b32 v16, v15, v16, vcc
    v_cndmask_b32 v17, v20, v17, vcc
    v_cndmask_b32 v18, v21, v18, vcc
    v_cndmask_b32 v19, v22, v19, vcc
    s_branch L_kg_w
    L_kg_t2:
    v_lshlrev_b32 v15, 10, v13
    v_add_u32 v15, 0x800, v15
    v_add_u32 v16, v15, v14
    v_add_u32 v17, 0x100, v16
    v_add_u32 v18, 0x200, v16
    v_add_u32 v19, 0x300, v16
    L_kg_w:
    s_waitcnt lgkmcnt(0)
    v_pk_add_f32 v[24:25], v[24:25], v[28:29]
    v_pk_add_f32 v[26:27], v[26:27], v[30:31]
    v_pk_add_f32 v[32:33], v[32:33], v[36:37]
    v_pk_add_f32 v[34:35], v[34:35], v[38:39]
    v_pk_add_f32 v[24:25], v[24:25], v[32:33]
    v_pk_add_f32 v[26:27], v[26:27], v[34:35]
    v_cvt_pk_bf16_f32 v24, v24, v25
    v_cvt_pk_bf16_f32 v26, v26, v27
    ds_write_b16 v16, v24 offset:{T16}
    ds_write_b16_d16_hi v17, v24 offset:{T16}
    ds_write_b16 v18, v26 offset:{T16}
    ds_write_b16_d16_hi v19, v26 offset:{T16}
    L_kg_stage2:
    v_lshlrev_b32 v12, 4, v0
    v_sub_u32 v13, 4094, v12
    """)
    for e in range(10): k(f"v_subrev_u32 v{40+e}, {2*e}, v13")
    k("v_max_i32 v48, 0, v48")
    k("v_max_i32 v49, 0, v49")
    for e in range(10): k(f"v_cvt_f32_u32 v{40+e}, v{40+e}")
    for e in range(0, 10, 2): k(f"v_cvt_pk_bf16_f32 v{52+e}, v{40+e}, v{41+e}")
    for e in range(0, 10, 2):
        if e < 8: k(f"v_and_b32 v{53+e}, 0xffff0000, v{52+e}")
        k(f"v_lshlrev_b32 v{52+e}, 16, v{52+e}")
    for e in range(9): k(f"v_cvt_u32_f32 v{52+e}, v{52+e}")
    for e in range(9): k(f"v_add_u32 v{52+e}, s34, v{52+e}")
    stamp(k, 5)
    k("s_waitcnt lgkmcnt(0)")
    k("s_barrier")
    stamp(k, 6)
    for e in range(9): k(f"ds_read_u16 v{24+e}, v{52+e} offset:{T16}")
    k(f"""
    s_and_b32 s7, s3, 4
    v_mov_b32 v158, {FLG+64}
    v_add_u32 v153, s7, v158
    v_mov_b32 v159, 1
    s_mov_b32 s6, 0
    s_waitcnt vmcnt(0)
    s_mov_b64 exec, 1
    ds_add_rtn_u32 v159, v153, v159 offset:4
    s_waitcnt lgkmcnt(0)
    v_readfirstlane_b32 s7, v159
    s_mov_b64 exec, -1
    s_cmp_lg_u32 s7, 3
    s_cbranch_scc1 L_kg_np
    s_branch L_nc
    L_nq:
    global_load_dwordx2 v[156:157], v152, s[98:99] sc1
    s_add_u32 s6, s6, 1
    s_waitcnt vmcnt(0)
    L_nc:
    v_readfirstlane_b32 s7, v157
    s_cmp_ge_u32 s6, {SPIN}
    s_cbranch_scc1 L_ne
    s_cmp_eq_u32 s7, 1
    s_cbranch_scc0 L_nq
    L_ne:
    ds_write_b32 v158, v156
    s_lshl_b32 s6, s2, 2
    s_add_u32 s6, s6, {PF}
    s_cmp_lt_u32 s3, 4
    s_cselect_b32 s7, {PW-PF}, 0
    s_add_u32 s6, s6, s7
    v_lshlrev_b32 v159, 10, v1
    s_mov_b64 exec, 0xff
    buffer_store_dword v156, v159, s[8:11], s6 offen sc1
    s_mov_b64 exec, -1
    L_kg_np:
    """)
    k(f"""
    s_mul_i32 s5, s44, {KGP}
    s_add_u32 s5, s5, {KG}
    v_mov_b32 v48, 0
    v_mov_b32 v49, 0
    v_mov_b32 v50, 0
    v_mov_b32 v51, 0
    v_add_u32 v13, {KGH}, v12
    v_cmp_ne_u32 vcc, 0xff, v0
    s_nop 0
    s_waitcnt lgkmcnt(0)
    v_cndmask_b32 v32, 0, v32, vcc
    v_lshl_or_b32 v40, v25, 16, v24
    v_lshl_or_b32 v41, v27, 16, v26
    v_lshl_or_b32 v42, v29, 16, v28
    v_lshl_or_b32 v43, v31, 16, v30
    v_lshl_or_b32 v44, v26, 16, v25
    v_lshl_or_b32 v45, v28, 16, v27
    v_lshl_or_b32 v46, v30, 16, v29
    v_lshl_or_b32 v47, v32, 16, v31
    buffer_store_dwordx4 v[40:43], v12, s[8:11], s5 offen
    buffer_store_dwordx4 v[44:47], v13, s[8:11], s5 offen
    v_cmp_gt_u32 vcc, 2, v0
    s_and_saveexec_b64 s[6:7], vcc
    s_cbranch_execz L_kg_z
    v_add_u32 v12, 4096, v12
    v_add_u32 v13, 4096, v13
    buffer_store_dwordx4 v[48:51], v12, s[8:11], s5 offen
    buffer_store_dwordx4 v[48:51], v13, s[8:11], s5 offen
    L_kg_z:
    s_mov_b64 exec, -1
    """)
    if asmlib.STAMPS:
        for i in range(7, 10): stamp(k, i)
        stamp_flush(k, 0, 10, 3)
        k("s_mov_b64 exec, -1")
    k("s_waitcnt vmcnt(0) lgkmcnt(0)")
    k("s_barrier")
    for r, v in sets1.items(): k(f"s_mov_b32 s{r}, {v}")
    k.label("L_layer")
    stamp(k, 0)
    k(f"""
    v_mbcnt_lo_u32_b32 v1, -1, 0
    v_mbcnt_hi_u32_b32 v1, -1, v1
    s_lshl_b32 s4, s3, 6
    v_add_u32 v0, s4, v1
    v_lshlrev_b32 v3, 4, v1
    s_lshl_b32 s4, s2, 1
    s_lshr_b32 s5, s3, 2
    s_and_b32 s6, s3, 3
    s_add_u32 s7, s4, s5
    s_mul_i32 s28, s7, {KGP}
    s_add_u32 s28, s28, {KG}
    s_bitcmp1_b32 s6, 0
    s_cselect_b32 s13, 0, {KGH}
    s_add_u32 s28, s28, s13
    s_cmp_lt_u32 s6, 2
    s_cselect_b32 s13, 4, 0
    s_add_u32 s28, s28, s13
    s_mul_i32 s13, s5, {KCH}
    s_mul_i32 s14, s6, {KCP}
    s_add_u32 s13, s13, s14
    s_add_u32 s13, s13, {KC0}
    s_mov_b32 m0, s13
    s_lshl_b32 s12, s7, 1
    """)
    for c in range(4): k(f"buffer_load_dwordx4 v3, s[8:11], s28 offen offset:{1024*c} lds")
    k(f"""
    v_mov_b32 v9, s12
    global_load_ushort v52, v9, s[16:17]
    v_lshlrev_b32 v4, 3, v0
    v_lshlrev_b32 v53, 5, v0
    v_lshrrev_b32 v54, 3, v0
    v_and_b32 v7, 7, v0
    v_lshlrev_b32 v54, 15, v54
    v_lshl_add_u32 v54, v7, 3, v54
    v_and_b32 v7, 15, v1
    v_lshrrev_b32 v8, 4, v1
    v_lshlrev_b32 v6, 5, v7
    v_lshl_add_u32 v6, v8, 3, v6
    v_lshrrev_b32 v5, 1, v7
    v_lshlrev_b32 v5, 15, v5
    v_and_b32 v9, 1, v7
    v_lshl_add_u32 v5, v9, 5, v5
    v_lshl_add_u32 v5, v8, 3, v5
    s_lshl_b32 s30, s4, 6
    s_add_u32 s30, s30, {XA}
    s_lshl_b32 s12, s7, 6
    s_lshl_b32 s14, s6, 19
    s_add_u32 s12, s12, s14
    s_add_u32 s26, s12, {XB}
    s_add_u32 s27, s26, 0x40000
    s_add_u32 s31, s12, {XA}
    s_add_u32 s32, s31, 0x40000
    v_mov_b32 v12, 0
    v_mov_b32 v13, 0
    v_mov_b32 v14, 0
    v_mov_b32 v15, 0
    s_add_u32 s13, s13, 4096
    v_add_u32 v9, s13, v3
    s_mul_i32 s13, s5, {UP}
    v_add_u32 v10, s13, v3
    v_cmp_gt_u32 vcc, 2, v1
    s_and_saveexec_b64 s[28:29], vcc
    ds_write_b128 v9, v[12:15]
    s_mov_b64 exec, s[28:29]
    v_cmp_gt_u32 vcc, 30, v1
    s_and_saveexec_b64 s[28:29], vcc
    ds_write_b128 v10, v[12:15]
    s_mov_b64 exec, s[28:29]
    v_and_b32 v9, 3, v7
    v_mul_u32_u24 v9, {KCP}, v9
    v_lshrrev_b32 v10, 2, v7
    v_lshlrev_b32 v10, 3, v10
    v_sub_u32 v9, v9, v10
    v_lshl_add_u32 v9, v8, 4, v9
    s_mul_i32 s13, s5, {KCH}
    s_add_u32 s13, s13, {KC0+24}
    s_lshl_b32 s14, s6, 7
    s_sub_u32 s13, s13, s14
    v_add_u32 v10, s13, v9
    v_lshlrev_b32 v11, 5, v7
    v_lshl_add_u32 v11, v8, 4, v11
    s_mul_i32 s13, s5, {UP}
    s_add_u32 s13, s13, 384
    s_sub_u32 s13, s13, s14
    v_add_u32 v11, s13, v11
    s_mov_b32 s24, {f32hex(1.0/512)}
    s_mov_b32 s25, {f32hex(1e-5)}
    """)
    for r in range(32): k(f"v_mov_b32 v{16+r}, 0")
    k(f"""
    s_and_b32 s52, s2, 7
    s_lshr_b32 s53, s2, 3
    s_mul_i32 s55, s52, 30
    s_add_u32 s55, s55, s53
    s_sub_u32 s55, s55, 2
    s_cmp_ge_u32 s52, 6
    s_cselect_b32 s53, 1, 0
    s_add_u32 s55, s55, s53
    s_cmp_eq_u32 s52, 7
    s_cselect_b32 s53, 1, 0
    s_add_u32 s55, s55, s53
    s_cmp_ge_u32 s55, 88
    s_cselect_b32 s54, 88, 0
    s_cselect_b32 s53, 4, 0
    s_sub_u32 s12, s55, s54
    s_lshr_b32 s52, s12, 2
    s_and_b32 s12, s12, 3
    s_add_u32 s53, s53, s12
    s_sub_u32 s12, s55, 176
    s_mul_i32 s13, s12, 171
    s_lshr_b32 s13, s13, 9
    s_mul_i32 s54, s13, 3
    s_sub_u32 s54, s12, s54
    s_add_u32 s54, s54, 8
    s_cmp_ge_u32 s55, 176
    s_cselect_b32 s52, s13, s52
    s_cselect_b32 s53, s54, s53
    s_lshl_b32 s54, s53, 3
    s_add_u32 s54, s54, s3
    s_lshl_b32 s55, s54, 15
    s_add_u32 s55, s55, {WGU}
    s_mov_b32 s20, s18
    s_mov_b32 s21, s19
    s_mov_b32 s23, 0x00020000
    s_cmp_lt_u32 s2, {NPROD}
    s_cselect_b32 s22, 0, s10
    s_cselect_b32 s55, 0, s55
    v_mov_b32 v9, {FLG}
    ds_write_b128 v9, v[12:15]
    ds_write_b128 v9, v[12:15] offset:16
    ds_write_b128 v9, v[12:15] offset:32
    ds_write_b128 v9, v[12:15] offset:48
    """)
    k(f"""
    s_cmp_lg_u32 s3, 0
    s_cbranch_scc1 L_in_d
    s_mov_b32 s13, 0
    v_mov_b32 v56, {FLG+64}
    ds_read_b32 v60, v56
    s_and_b32 s15, s2, 7
    s_lshl_b32 s15, s15, 10
    s_cmp_eq_u32 s93, 1
    s_cselect_b32 s14, 0, {PF-LF}
    s_add_u32 s15, s15, s14
    s_add_u32 s15, s15, {LF}
    s_waitcnt lgkmcnt(0)
    L_in_b:
    buffer_load_dwordx4 v[56:59], v3, s[8:11], s15 offen sc1
    s_add_u32 s13, s13, 1
    s_waitcnt vmcnt(0)
    v_xor_b32 v56, v56, v60
    v_xor_b32 v57, v57, v60
    v_xor_b32 v58, v58, v60
    v_xor_b32 v59, v59, v60
    v_or3_b32 v56, v56, v57, v58
    v_or_b32 v56, v56, v59
    v_cmp_ne_u32 vcc, 0, v56
    s_cmp_eq_u64 vcc, 0
    s_cbranch_scc1 L_in_d
    s_cmp_ge_u32 s13, {SPIN}
    s_cbranch_scc1 L_in_d
    s_sleep {CFS}
    s_branch L_in_b
    L_in_d:
    s_barrier
    """)
    stamp(k, 1)
    k(f"""
    buffer_load_dwordx4 v[64:67], v53, s[8:11], {ST} offen sc1
    buffer_load_dwordx4 v[68:71], v53, s[8:11], {ST} offen offset:16 sc1
    buffer_load_dwordx2 v[72:73], v54, s[8:11], s30 offen sc1
    buffer_load_dwordx2 v[74:75], v54, s[8:11], s30 offen offset:64 sc1
    buffer_load_dwordx2 v[48:49], v5, s[8:11], s31 offen sc1
    buffer_load_dwordx2 v[50:51], v5, s[8:11], s32 offen sc1
    """)
    k("s_waitcnt vmcnt(4)")
    for r in range(4):
        k(f"v_mul_f32 v{64+2*r}, s24, v{64+2*r}")
        k(f"v_mul_f32 v{65+2*r}, s24, v{65+2*r}")
    for r in range(4): k(f"v_fma_f32 v{65+2*r}, -v{64+2*r}, v{64+2*r}, v{65+2*r}")
    for r in range(4): k(f"v_max_f32 v{65+2*r}, 0, v{65+2*r}")
    k("v_cvt_pk_bf16_f32 v76, v64, v66")
    k("v_cvt_pk_bf16_f32 v77, v68, v70")
    k("v_cvt_pk_bf16_f32 v78, v65, v67")
    k("v_cvt_pk_bf16_f32 v79, v69, v71")
    unpack(k, 84, 85, 78); unpack(k, 86, 87, 79); unpack(k, 80, 81, 76); unpack(k, 82, 83, 77)
    for r in range(4): k(f"v_add_f32 v{84+r}, s25, v{84+r}")
    k("v_cvt_pk_bf16_f32 v78, v84, v85")
    k("v_cvt_pk_bf16_f32 v79, v86, v87")
    unpack(k, 84, 85, 78); unpack(k, 86, 87, 79)
    for r in range(4): k(f"v_sqrt_f32 v{84+r}, v{84+r}")
    k("s_waitcnt vmcnt(2)")
    for ch in range(2): unpack(k, 88+4*ch, 89+4*ch, 72+2*ch); unpack(k, 90+4*ch, 91+4*ch, 73+2*ch)
    k("v_cvt_pk_bf16_f32 v78, v84, v85")
    k("v_cvt_pk_bf16_f32 v79, v86, v87")
    for ch in range(2):
        for j in (0, 2): k(f"v_pk_add_f32 {P(88+4*ch+j)}, {P(88+4*ch+j)}, {P(80+j)} neg_lo:[0,1] neg_hi:[0,1]")
    unpack(k, 84, 85, 78); unpack(k, 86, 87, 79)
    for ch in range(2):
        k(f"v_cvt_pk_bf16_f32 v{72+2*ch}, v{88+4*ch}, v{89+4*ch}")
        k(f"v_cvt_pk_bf16_f32 v{73+2*ch}, v{90+4*ch}, v{91+4*ch}")
    for r in range(4): k(f"v_rcp_f32 v{84+r}, v{84+r}")
    for ch in range(2): unpack(k, 88+4*ch, 89+4*ch, 72+2*ch); unpack(k, 90+4*ch, 91+4*ch, 73+2*ch)
    for ch in range(2):
        for j in (0, 2): k(f"v_pk_mul_f32 {P(88+4*ch+j)}, {P(88+4*ch+j)}, {P(84+j)}")
    for ch in range(2):
        k(f"v_cvt_pk_bf16_f32 v{72+2*ch}, v{88+4*ch}, v{89+4*ch}")
        k(f"v_cvt_pk_bf16_f32 v{73+2*ch}, v{90+4*ch}, v{91+4*ch}")
        k(f"ds_write_b64 v4, v[{72+2*ch}:{73+2*ch}] offset:{480 + ch*UP}")
    k(f"""
    s_lshl_b32 s13, s93, 3
    s_add_u32 s13, s13, s3
    s_cmp_lg_u32 s13, 1
    s_cbranch_scc1 L_pw_d
    s_mov_b32 s13, 0
    v_mov_b32 v56, {FLG+64}
    ds_read_b32 v60, v56
    s_and_b32 s15, s2, 7
    s_lshl_b32 s15, s15, 10
    s_add_u32 s15, s15, {PW}
    s_waitcnt lgkmcnt(0)
    L_pw_b:
    buffer_load_dwordx4 v[56:59], v3, s[8:11], s15 offen sc1
    s_add_u32 s13, s13, 1
    s_waitcnt vmcnt(0)
    v_xor_b32 v56, v56, v60
    v_xor_b32 v57, v57, v60
    v_xor_b32 v58, v58, v60
    v_xor_b32 v59, v59, v60
    v_or3_b32 v56, v56, v57, v58
    v_or_b32 v56, v56, v59
    v_cmp_ne_u32 vcc, 0, v56
    s_cmp_eq_u64 vcc, 0
    s_cbranch_scc1 L_pw_d
    s_cmp_ge_u32 s13, {SPIN}
    s_cbranch_scc1 L_pw_d
    s_sleep {CFS}
    s_branch L_pw_b
    L_pw_d:
    s_lshl_b32 s13, s93, 3
    s_add_u32 s13, s13, s3
    s_lshl_b32 s14, s2, 4
    s_add_u32 s13, s13, s14
    s_cmp_lg_u32 s13, 1
    s_cbranch_scc1 L_dz
    s_mov_b64 exec, 1
    global_store_dwordx2 v12, v[12:13], s[98:99] sc1
    s_mov_b64 exec, -1
    L_dz:
    """)
    k("s_waitcnt vmcnt(0) lgkmcnt(0)")
    k("s_barrier")
    stamp(k, 7)
    lg = Q(k, 'lgkmcnt', 15)
    pool = [56+4*i for i in range(27)]
    reg = {}
    def ld(i0p, kind, s):
        r = pool.pop(0); reg[(i0p, kind, s)] = r
        if kind == 'A':
            off = 64*(63 - i0p - 8*s)
            lg.issue(f"ds_read_b64 v[{r}:{r+1}], v10 offset:{off}", (i0p, kind, s))
            lg.issue(f"ds_read_b64 v[{r+2}:{r+3}], v10 offset:{off+8}", (i0p, kind, s))
        else:
            lg.issue(f"ds_read_b128 v[{r}:{r+3}], v11 offset:{512*s + 64*(1-i0p)}", (i0p, kind, s))
    order = [(i, kd, s) for i in range(2) for s in range(8) for kd in 'AB']
    mf = []
    for i in range(2):
        for m in range(8):
            for s in range(8):
                for w in range(8):
                    if s + w <= 7 and max(s, w) == m: mf.append((i, s, w))
    last_use = {}
    for n, (i, s, w) in enumerate(mf):
        last_use[(i, 'A', s)] = n; last_use[(i, 'B', w)] = n
    li = 0; npre = 0
    for _ in range(8): ld(*order[li]); li += 1
    k(f"""
    v_mov_b32 v164, -1
    v_mov_b32 v165, -1
    v_mov_b32 v166, -1
    v_mov_b32 v167, -1
    s_mov_b32 s48, s18
    s_mov_b32 s49, s19
    s_mov_b32 s51, 0x00020000
    s_cmp_eq_u32 s93, 1
    s_cselect_b32 s50, 0, s10
    s_add_u32 s15, s26, {4*MB}
    buffer_store_dwordx2 v[164:165], v5, s[48:51], s15 offen sc1
    s_add_u32 s15, s27, {4*MB}
    buffer_store_dwordx2 v[164:165], v5, s[48:51], s15 offen sc1
    s_nop 1
    """)
    freed = [(12, 164)]
    for n, (i, s, w) in enumerate(mf):
        while (i, 'A', s) not in reg or (i, 'B', w) not in reg:
            ld(*order[li]); li += 1
        lg.need((i, 'A', s), (i, 'B', w))
        c = s + w; a = reg[(i, 'A', s)]; b = reg[(i, 'B', w)]
        k(f"v_mfma_f32_16x16x32_bf16 v[{16+4*c}:{19+4*c}], v[{a}:{a+3}], v[{b}:{b+3}], v[{16+4*c}:{19+4*c}]")
        for key in [(i, 'A', s), (i, 'B', w)]:
            if last_use[key] == n: freed.append((n+3, reg[key]))
        while freed and freed[0][0] <= n: pool.append(freed.pop(0)[1])
        if n % 3 == 1 and npre < NWP: wpre(npre); npre += 1
        if li < len(order) and pool and (lg.n - lg.done) <= 12:
            ld(*order[li]); li += 1
    assert li == len(order) and npre == NWP
    k(f"""
    s_lshl_b32 s13, s5, 15
    s_lshl_b32 s14, s6, 10
    s_add_u32 s13, s13, s14
    s_add_u32 s13, s13, {RED}
    v_add_u32 v9, s13, v3
    s_lshl_b32 s13, s5, 15
    s_lshl_b32 s14, s6, 13
    s_add_u32 s13, s13, s14
    s_add_u32 s13, s13, {RED}
    v_add_u32 v12, s13, v3
    s_mul_i32 s13, s5, {UP}
    s_lshl_b32 s14, s6, 10
    s_add_u32 s13, s13, s14
    s_add_u32 s13, s13, 480
    v_add_u32 v13, s13, v6
    ds_read_b64 v[88:89], v13
    ds_read_b64 v[90:91], v13 offset:512
    """)
    for p in range(4):
        if p < 3:
            k(f"s_cmp_lg_u32 s6, {p}")
            k(f"s_cbranch_scc1 L_{N}_rv{p+1}")
        for c in range(8):
            if c in (2*p, 2*p+1): continue
            k(f"ds_write_b128 v9, v[{16+4*c}:{19+4*c}] offset:{4096*c}")
        for r in range(8): k(f"v_mov_b32 v{56+r}, v{16+8*p+r}")
        others = [q for q in range(4) if q != p]
        for j, q in enumerate(others): k(f"v_add_u32 v{92+j}, {1024*q}, v12")
        if p < 3:
            k(f"s_branch L_{N}_ep")
            k.label(f"L_{N}_rv{p+1}")
    k.label(f"L_{N}_ep")
    k("s_waitcnt lgkmcnt(6)")
    k("v_lshlrev_b32 v52, 16, v52")
    k("v_mov_b32 v53, v52")
    for j in range(4): unpack(k, 96+2*j, 97+2*j, 88+j)
    for j in range(4): k(f"v_pk_mul_f32 {P(96+2*j)}, {P(96+2*j)}, v[52:53]")
    for j in range(4): k(f"v_cvt_pk_bf16_f32 v{88+j}, v{96+2*j}, v{97+2*j}")
    k("s_waitcnt lgkmcnt(0)")
    k("s_barrier")
    for t in range(2):
        for j in range(3): k(f"ds_read_b128 v[{64+12*t+4*j}:{67+12*t+4*j}], v{92+j} offset:{4096*t}")
    for j in range(4): unpack(k, 96+2*j, 97+2*j, 88+j)
    for j in range(4): unpack(k, 104+2*j, 105+2*j, 48+j)
    for t in range(2):
        k(f"s_waitcnt lgkmcnt({3-3*t})")
        for j in (0, 2):
            k(f"v_pk_add_f32 {P(56+4*t+j)}, {P(56+4*t+j)}, {P(64+12*t+j)}")
            k(f"v_pk_add_f32 {P(68+12*t+j)}, {P(68+12*t+j)}, {P(72+12*t+j)}")
        for j in (0, 2): k(f"v_pk_add_f32 {P(56+4*t+j)}, {P(56+4*t+j)}, {P(68+12*t+j)}")
    for j in range(4): k(f"v_cvt_pk_bf16_f32 v{64+j}, v{56+2*j}, v{57+2*j}")
    for j in range(4): unpack(k, 56+2*j, 57+2*j, 64+j)
    for j in range(4): k(f"v_pk_add_f32 {P(56+2*j)}, {P(56+2*j)}, {P(96+2*j)}")
    for j in range(4): k(f"v_cvt_pk_bf16_f32 v{64+j}, v{56+2*j}, v{57+2*j}")
    for j in range(4): unpack(k, 56+2*j, 57+2*j, 64+j)
    for j in range(4): k(f"v_pk_add_f32 {P(56+2*j)}, {P(56+2*j)}, {P(104+2*j)}")
    for j in range(4): k(f"v_cvt_pk_bf16_f32 v{64+j}, v{56+2*j}, v{57+2*j}")
    for j in range(4): k(f"v_min_u32 v{64+j}, -2, v{64+j}")
    k("buffer_store_dwordx2 v[64:65], v5, s[8:11], s26 offen sc1")
    k("buffer_store_dwordx2 v[66:67], v5, s[8:11], s27 offen sc1")
    vm = Q(k, 'vmcnt', 63); lg = Q(k, 'lgkmcnt', 15)
    def unit(p):
        for i in range(3):
            k(f"s_add_u32 m0, s25, {p*24576 + i*1024}")
            k(f"s_add_u32 s14, s12, {i*32768 + p*8192}")
            vm.issue(f"buffer_load_dwordx4 v3, {'s[8:11]' if i == 0 else 's[48:51]'}, s14 offen sc1 lds", f"U{p}")
    def wl(ks):
        r = wreg(ks)
        k(f"s_add_u32 s14, s55, {4096*(ks//4)}")
        vm.issue(f"buffer_load_dwordx4 v[{r}:{r+3}], v3, s[8:11], s14 offen offset:{1024*(ks&3)} sc1", f"W{ks}")
    for ks in range(NWP): vm.tags[f"W{ks}"] = 0
    def csdot(ks): pass
    def csl():
        k("v_lshlrev_b32 v13, 2, v1")
        k("s_lshl_b32 s14, s6, 11")
        k(f"s_add_u32 s14, s14, {CSQ}")
        for j in range(8): vm.issue(f"buffer_load_dword v{CSV+8+j}, v13, s[8:11], s14 offen offset:{256*j} sc1", "CS")
    def css():
        vm.need("CS")
        for st in (1, 2):
            for j in range(0, 8, 2*st): k(f"v_add_f32 v{CSV+8+j}, v{CSV+8+j}, v{CSV+8+j+st}")
        k(f"v_add_f32 v166, v{CSV+8}, v{CSV+12}")
        k("v_mov_b32 v167, 0")
    def signal(p):
        V = CSV
        vm.need(f"U{p}")
        k.label(f"L_vf{p}")
        for i in range(3): k(f"ds_read_b128 v[{V+4*i}:{V+4*i+3}], v5 offset:{(p&1)*24576 + 1024*i}")
        k(f"v_mov_b32 v6, {p+1}")
        k("s_waitcnt lgkmcnt(0)")
        lg.reset()
        for i in range(0, 12, 3): k(f"v_max3_u32 v{V+i}, v{V+i}, v{V+i+1}, v{V+i+2}")
        k(f"v_max3_u32 v{V}, v{V}, v{V+3}, v{V+6}")
        k(f"v_max_u32 v{V}, v{V}, v{V+9}")
        k(f"v_cmp_eq_u32 vcc, -1, v{V}")
        k("s_cmp_eq_u64 vcc, 0")
        k(f"s_cbranch_scc1 L_vo{p}")
        k("s_add_u32 s13, s13, 1")
        k(f"s_cmp_ge_u32 s13, {RETRY}")
        k(f"s_cbranch_scc1 L_vo{p}")
        k(f"s_sleep {RSL}")
        for i in range(3):
            k(f"s_add_u32 m0, s25, {p*24576 + i*1024}")
            k(f"s_add_u32 s14, s12, {i*32768 + p*8192}")
            k(f"buffer_load_dwordx4 v3, {'s[8:11]' if i == 0 else 's[48:51]'}, s14 offen sc1 lds")
        k("s_waitcnt vmcnt(0)")
        k(f"s_branch L_vf{p}")
        k.label(f"L_vo{p}")
        lg.issue("ds_write_b32 v2, v6", "sig")
        if p == 1: k("v_add_u32 v5, 49152, v5")
    def dsetup():
        k(f"""
    s_and_b32 s30, s2, 7
    s_lshr_b32 s31, s2, 3
    s_lshl_b32 s30, s30, 2
    s_lshr_b32 s12, s31, 3
    s_add_u32 s30, s30, s12
    s_and_b32 s31, s31, 7
    s_bfe_u32 s12, s3, 0x10001
    s_lshl_b32 s32, s31, 1
    s_add_u32 s32, s32, s12
    s_and_b32 s12, s3, 1
    s_lshl_b32 s33, s30, 1
    s_add_u32 s33, s33, s12
    s_xor_b32 s12, s32, 1
    s_mul_i32 s34, s32, {86*1024}
    s_mul_i32 s35, s12, {86*1024}
    s_xor_b32 s12, s33, 1
    s_mul_i32 s36, s33, {86*1024}
    s_mul_i32 s37, s12, {86*1024}
    s_lshl_b32 s12, s3, 10
    s_add_u32 s13, s12, {WD}
    s_add_u32 s34, s34, s13
    s_add_u32 s35, s35, s13
    s_add_u32 s13, s12, {HB}
    s_add_u32 s36, s36, s13
    s_add_u32 s37, s37, s13
    s_cmp_ge_u32 s3, 6
    s_cselect_b32 s22, 0, s10
        """)
    def wdl(n, i, vm=None):
        r = WD0 + 8*n + 4*i
        k(f"s_add_u32 s14, s{34+i}, {8192*n}")
        srd = "s[20:23]" if n == 10 else "s[8:11]"
        ins = f"buffer_load_dwordx4 v[{r}:{r+3}], v3, {srd}, s14 offen sc1"
        if vm: vm.issue(ins, "WD")
        else: k(ins)
    wdq = [(n, i) for n in range(11) for i in range(2)]
    k("s_waitcnt vmcnt(0)")
    k("s_barrier")
    stamp(k, 8)
    k(f"""
    v_mov_b32 v4, {FLG}
    v_lshrrev_b32 v7, 5, v1
    s_cmp_lt_u32 s2, {NPROD}
    s_cbranch_scc1 L_{N}_prod
    """)
    dsetup()
    k(f"""
    s_mov_b32 s4, s52
    s_mov_b32 s5, s53
    s_mov_b32 s6, s54
    s_mul_i32 s12, s4, 98304
    s_lshl_b32 s13, s3, 10
    s_add_u32 s12, s12, s13
    s_add_u32 s12, s12, {XB}
    s_mul_i32 s25, s3, 3072
    v_add_u32 v5, s25, v3
    s_cmp_eq_u32 s4, 21
    s_cselect_b32 s50, 0, s10
    """)
    k("s_mov_b32 s13, 0")
    if EARLYU == 0: unit(0)
    for ks in range(NWP, NWP2): wl(ks)
    csl()
    k(f"""
    v_and_b32 v6, 15, v1
    v_lshrrev_b32 v12, 2, v6
    v_lshl_add_u32 v12, v7, 3, v12
    v_lshlrev_b32 v12, 6, v12
    v_and_b32 v8, 3, v6
    v_lshl_add_u32 v12, v8, 3, v12
    v_and_b32 v8, 16, v1
    v_lshl_add_u32 v12, v8, 1, v12
    v_add_u32 v14, 49152, v12
    s_lshl_b32 s15, s3, 2
    v_add_u32 v2, s15, v4
    s_mov_b32 s28, 0
    s_mov_b32 s29, 0
    """)
    for r in range(48): k(f"v_mov_b32 v{ACC+r}, 0")
    for ks in range(NWP2):
        if ks == EARLYU and EARLYU > 0 and not LATEU: unit(0)
        if ks < NWP: csdot(ks)
    css()
    if LATEU: unit(0)
    if LATEU >= 2: unit(1)
    if LATEU >= 3: unit(2)
    if LATEU >= 4: unit(3)
    signal(0)
    stamp(k, 2)
    if LATEU < 2: unit(1)
    if LATEU < 3: unit(2)
    if LATEU < 4: unit(3)
    def poll(half, need, tag):
        c = 28 + half
        k(f"""
        s_cmp_ge_u32 s{c}, {need}
        s_cbranch_scc1 L_{N}_pd{tag}
        L_{N}_pl{tag}:
        ds_read_b128 v[8:11], v4 offset:{16*half}
        s_waitcnt lgkmcnt(0)
        v_min_u32 v8, v8, v9
        v_min3_u32 v8, v8, v10, v11
        s_nop 0
        v_readfirstlane_b32 s{c}, v8
        s_cmp_ge_u32 s{c}, {need}
        s_cbranch_scc0 L_{N}_pl{tag}
        L_{N}_pd{tag}:
        """)
    def xr(ks, lb, h):
        b = 12 if ks < 16 else 14
        r = XF+12*(ks&3)+4*lb+2*h
        lg.issue(f"ds_read_b64_tr_b16 v[{r}:{r+1}], v{b} offset:{3072*(ks%16)+1024*lb+256*h}", f"x{ks}_{lb}")
    poll(0, 1, "a")
    for st in range(2):
        for lb in range(3): xr(st, lb, 0); xr(st, lb, 1)
    FCK = int(os.environ.get('FCK', '27'))
    for ks in range(32):
        if ks+2 < 32 and (ks+2) % 4 == 0: poll(((ks+2)//4) & 1, (ks+2)//8 + 1, f"m{ks}")
        vm.need(f"W{ks}")
        if ks == 0: stamp(k, 4)
        if ks in (2, 5, 8): signal({2:1, 5:2, 8:3}[ks])
        w = wreg(ks)
        for lb in range(3):
            lg.need(f"x{ks}_{lb}")
            a = ACC+16*lb; x = XF+12*(ks&3)+4*lb
            k(f"v_mfma_f32_32x32x16_bf16 v[{a}:{a+15}], v[{w}:{w+3}], v[{x}:{x+3}], v[{a}:{a+15}]")
            if ks+2 < 32: xr(ks+2, lb, 0); xr(ks+2, lb, 1)
        if ks >= NWP: csdot(ks)
        for j in late_w.get(ks, []): wl(j)
        j = ks - WDLAG
        if 2 <= j < NDI: wdl(j >> 1, j & 1, vm=vm)
        if ks == FCK:
            k(f"""
            v_and_b32 v15, 31, v1
            v_lshlrev_b32 v15, 3, v15
            s_mul_i32 s15, s4, 768
            s_add_u32 s15, s15, {FCG}
            s_cmp_eq_u32 s4, 21
            s_cselect_b32 s47, 0, 256
            s_add_u32 s48, s15, s47
            s_add_u32 s49, s48, s47
            s_mov_b32 s47, s15
            """)
            for lb in range(3): vm.issue(f"buffer_load_dwordx2 v[{FG+2*lb}:{FG+2*lb+1}], v15, s[8:11], s{47+lb} offen sc1", "FG")
    stamp(k, 3)
    k(f"""
    s_cmp_ge_u32 s6, 86
    s_cbranch_scc1 L_{N}_drest
    s_mov_b32 s26, {f32hex(-LOG2E)}
    s_mov_b32 s27, 0
    v_add_f32 v166, v166, v167
    s_lshl_b32 s12, s3, 7
    s_add_u32 s12, s12, {FLG+256}
    v_mov_b32 v167, v166
    v_and_b32 v8, 31, v1
    v_lshl_add_u32 v8, v8, 2, s12
    v_permlane32_swap_b32 v166, v167
    v_lshl_add_u32 v9, v7, 4, s12
    v_add_f32 v166, v166, v167
    ds_write_b32 v8, v166
    ds_read_b128 v[{CSV}:{CSV+3}], v9
    ds_read_b128 v[{CSV+4}:{CSV+7}], v9 offset:32
    ds_read_b128 v[{CSV+8}:{CSV+11}], v9 offset:64
    ds_read_b128 v[{CSV+12}:{CSV+15}], v9 offset:96
    """)
    vm.need("FG")
    k(f"""
    s_branch L_{N}_gc
    L_{N}_gp:
    s_sleep 4
    """)
    for lb in range(3): k(f"buffer_load_dwordx2 v[{FG+2*lb}:{FG+2*lb+1}], v15, s[8:11], s{47+lb} offen sc1")
    k(f"""
    s_add_u32 s27, s27, 1
    s_waitcnt vmcnt(0)
    L_{N}_gc:
    v_and_b32 v8, v{FG+1}, v{FG+3}
    v_and_b32 v8, v8, v{FG+5}
    v_cmp_ne_u32 vcc, 1, v8
    s_cmp_eq_u64 vcc, 0
    s_cbranch_scc1 L_{N}_gd
    s_cmp_lt_u32 s27, {SPIN}
    s_cbranch_scc1 L_{N}_gp
    L_{N}_gd:
    """)
    for lb in range(3):
        c = FCR+6*lb
        k(f"v_and_b32 v{c+4}, 0xffff0000, v{FG+2*lb}")
        k(f"v_lshlrev_b32 v{c}, 16, v{FG+2*lb}")
    for lb in range(3): k(f"v_rcp_f32 v{FCR+6*lb+2}, v{FCR+6*lb+4}")
    for lb in range(3):
        c = FCR+6*lb
        k(f"v_sub_f32 v{c+1}, 0, v{c}")
        k(f"v_sub_f32 v{c}, 0, v{c}")
        k(f"v_mov_b32 v{c+5}, v{c+4}")
        k(f"v_mul_f32 v{c+3}, s26, v{c+2}")
        k(f"v_mul_f32 v{c+2}, s26, v{c+2}")
    k(f"""
    s_mul_i32 s15, s4, {3*86*1024}
    s_lshl_b32 s12, s6, 10
    s_add_u32 s15, s15, s12
    s_add_u32 s15, s15, {HB}
    s_waitcnt lgkmcnt(0)
    """)
    for lb in range(3):
        g = ACC+16*lb; u = g+8; c = FCR+6*lb; o = XF+4*lb
        for j in range(0, 8, 2): k(f"v_pk_fma_f32 {P(g+j)}, {P(CSV+j)}, {P(c)}, {P(g+j)}")
        for j in range(0, 8, 2): k(f"v_pk_mul_f32 {P(g+j)}, {P(g+j)}, {P(c+2)}")
        for j in range(8):
            k(f"v_exp_f32 v{g+j}, v{g+j}")
        for j in range(0, 8, 2): k(f"v_pk_fma_f32 {P(u+j)}, {P(CSV+8+j)}, {P(c)}, {P(u+j)}")
        for j in range(0, 8, 2): k(f"v_pk_fma_f32 {P(g+j)}, {P(g+j)}, {P(c+4)}, {P(c+4)}")
        for j in range(8):
            k(f"v_rcp_f32 v{g+j}, v{g+j}")
        k("s_nop 0")
        for j in range(0, 8, 2): k(f"v_pk_mul_f32 {P(u+j)}, {P(u+j)}, {P(g+j)}")
        for j in range(4): k(f"v_cvt_pk_bf16_f32 v{o+j}, v{u+2*j}, v{u+2*j+1}")
        k(f"buffer_store_dwordx4 v[{o}:{o+3}], v3, s[8:11], s15 offen sc1")
        if lb == 0:
            k(f"s_cmp_eq_u32 s4, 21")
            k(f"s_cbranch_scc1 L_{N}_pub")
        k(f"s_add_u32 s15, s15, {86*1024}")
    k(f"""
    L_{N}_pub:
    s_waitcnt vmcnt(0)
    """)
    stamp(k, 5)
    k(f"s_branch L_{N}_drest")
    k.label(f"L_{N}_dall")
    dsetup()
    for (n, i) in wdq[2:NDI]: wdl(n, i)
    k.label(f"L_{N}_drest")
    k(f"""
    s_waitcnt lgkmcnt(0)
    s_barrier
    s_cmp_lg_u32 s3, 0
    s_cbranch_scc1 L_hf_np
    s_cmp_lt_u32 s2, {NPROD}
    s_cbranch_scc1 L_hf_np
    s_lshl_b32 s15, s4, 9
    s_lshl_b32 s12, s5, 2
    s_add_u32 s15, s15, s12
    s_add_u32 s15, s15, {HF}
    v_lshlrev_b32 v8, 7, v1
    v_mov_b32 v9, 1
    s_mov_b64 exec, 15
    buffer_store_dword v9, v8, s[8:11], s15 offen sc1
    s_mov_b64 exec, -1
    L_hf_np:
    """)
    for (n, i) in wdq[:2] + wdq[NDI:]: wdl(n, i)
    for r in range(64): k(f"v_mov_b32 v{A2+r}, 0")
    k(f"""
    s_lshl_b32 s12, s30, 1
    s_mul_i32 s13, s12, 171
    s_lshr_b32 s13, s13, 9
    s_add_u32 s12, s12, 1
    s_mul_i32 s12, s12, 171
    s_lshr_b32 s12, s12, 9
    s_lshl_b32 s13, s13, 9
    s_lshl_b32 s12, s12, 9
    s_and_b32 s38, s31, 3
    s_lshl_b32 s38, s38, 7
    s_add_u32 s38, s38, {HF}
    v_and_b32 v8, 15, v1
    v_and_b32 v9, 16, v1
    v_mov_b32 v10, s13
    v_mov_b32 v11, s12
    v_cmp_eq_u32 vcc, 0, v9
    v_cmp_gt_u32 s[26:27], 11, v8
    s_nop 0
    v_cndmask_b32 v10, v11, v10, vcc
    v_lshl_add_u32 v10, v8, 2, v10
    v_and_b32 v6, 31, v1
    v_lshlrev_b32 v5, 8, v7
    v_lshl_add_u32 v5, v6, 1, v5
    s_lshl_b32 s24, s32, 11
    s_lshl_b32 s25, s33, 15
    s_add_u32 s24, s24, s25
    s_lshr_b32 s12, s3, 2
    s_lshl_b32 s12, s12, 10
    s_add_u32 s24, s24, s12
    s_add_u32 s25, s24, {XC}
    s_add_u32 s24, s24, {XB}
    """)
    k(f"""
    s_mov_b32 s13, 0
    s_cmp_eq_u32 s3, 0
    s_cbranch_scc0 L_{N}_hr
    L_{N}_hq:
    buffer_load_dword v12, v10, s[8:11], s38 offen sc1
    s_add_u32 s13, s13, 1
    s_waitcnt vmcnt(0)
    v_cmp_ne_u32 vcc, 1, v12
    s_and_b64 vcc, vcc, s[26:27]
    s_cbranch_scc0 L_{N}_hr
    s_cmp_ge_u32 s13, {SPIN}
    s_cbranch_scc1 L_{N}_hr
    s_sleep 1
    s_branch L_{N}_hq
    L_{N}_hr:
    s_barrier
    L_{N}_hd:
    s_mov_b32 s22, {WS_USED}
    v_mov_b32 v12, v3
    """)
    stamp(k, 6)
    vm = Q(k, 'vmcnt', 63)
    HD = 6
    def hload(n):
        if n == 10:
            k("s_cmp_ge_u32 s3, 6")
            k("s_cselect_b32 s22, 0, s22")
        for i in range(2):
            r = HR + 8*(n % HD) + 4*i
            vm.issue(f"buffer_load_dwordx4 v[{r}:{r+3}], v12, s[20:23], s{36+i} offen sc1", f"S{n}")
        k("v_add_u32 v12, 8192, v12")
    for n in range(HD): hload(n)
    for n in range(8):
        q, r = n >> 2, n & 3
        vm.issue(f"buffer_load_ushort v{RES+n}, v5, s[8:11], s24 offen offset:{(8*q+r)*64} sc1", "RES")
    k("s_and_b32 s13, s3, 3")
    for a in range(4):
        k(f"""
        s_xor_b32 s12, s13, {a}
        s_lshl_b32 s12, s12, 14
        s_lshl_b32 s15, s3, 11
        s_add_u32 s12, s12, s15
        v_add_u32 v{8+a}, s12, v3
        """)
    k(f"""
    s_lshl_b32 s12, s3, 14
    v_add_u32 v13, s12, v3
    v_add_u32 v14, 0x10000, v8
    v_add_u32 v15, 0x10000, v9
    v_add_u32 v0, 0x10000, v10
    v_add_u32 v2, 0x10000, v11
    """)
    for n in range(11):
        vm.need(f"S{n}")
        for ad in range(2):
            for al in range(2):
                a = A2 + 16*(2*ad+al); w = WD0+8*n+4*ad; h = HR+8*(n % HD)+4*al
                k(f"v_mfma_f32_32x32x16_bf16 v[{a}:{a+15}], v[{w}:{w+3}], v[{h}:{h+3}], v[{a}:{a+15}]")
        if n >= 1 and n-1+HD < 11: hload(n-1+HD)
    k("s_nop 3")
    lg = Q(k, 'lgkmcnt', 15)
    hi = [14, 15, 0, 2]
    for n in range(8): k(f"v_lshlrev_b32 v{RES+n}, 16, v{RES+n}")
    for a in range(4):
        for q in range(4):
            ad = (8+a) if q < 2 else hi[a]
            lg.issue(f"ds_write_b128 v{ad}, v[{A2+16*a+4*q}:{A2+16*a+4*q+3}] offset:{1024*(q&1)}", "rw")
    lg.drain()
    k("s_barrier")
    FV = 16
    for q in range(2):
        for s_ in range(8):
            lg.issue(f"ds_read_b128 v[{FV+32*q+4*s_}:{FV+32*q+4*s_+3}], v13 offset:{2048*s_+1024*q}", f"rr{q}_{s_}")
    for q in range(2):
        b = FV+32*q
        for st in (1, 2, 4):
            for s_ in range(0, 8, 2*st):
                lg.need(f"rr{q}_{min(7, s_+2*st-1)}")
                for j in (0, 2): k(f"v_pk_add_f32 {P(b+4*s_+j)}, {P(b+4*s_+j)}, {P(b+4*(s_+st)+j)}")
        k(f"v_cvt_pk_bf16_f32 v{T+2*q}, v{b}, v{b+1}")
        k(f"v_cvt_pk_bf16_f32 v{T+2*q+1}, v{b+2}, v{b+3}")
        unpack(k, b, b+1, T+2*q); unpack(k, b+2, b+3, T+2*q+1)
        for j in (0, 2): k(f"v_pk_add_f32 {P(b+j)}, {P(b+j)}, {P(RES+4*q+j)}")
        k(f"v_cvt_pk_bf16_f32 v{T+2*q}, v{b}, v{b+1}")
        k(f"v_cvt_pk_bf16_f32 v{T+2*q+1}, v{b+2}, v{b+3}")
    k("s_cmp_eq_u32 s93, 1")
    k(f"s_cbranch_scc1 L_{N}_out")
    k(f"""
    v_mov_b32 v14, 0x3f803f80
    s_lshl_b32 s12, s3, 14
    v_add_u32 v8, s12, v5
    v_mov_b32 v12, 0
    v_mov_b32 v9, 0
    """)
    for q in range(2):
        for r in range(4):
            op = "ds_write_b16_d16_hi" if r & 1 else "ds_write_b16"
            k(f"{op} v8, v{T+2*q+(r>>1)} offset:{(8*q+r)*64}")
    k("ds_read_b128 v[16:19], v13")
    for q in range(2):
        for j in range(2):
            k(f"v_dot2_f32_bf16 v12, v{T+2*q+j}, v14, v12")
            k(f"v_dot2_f32_bf16 v9, v{T+2*q+j}, v{T+2*q+j}, v9")
    k(f"""
    v_lshlrev_b32 v5, 3, v6
    v_lshl_add_u32 v5, v7, 2, v5
    s_lshl_b32 s12, s33, 8
    v_permlane32_swap_b32 v12, v9
    s_add_u32 s12, s12, {ST3}
    s_waitcnt lgkmcnt(0)
    buffer_store_dwordx4 v[16:19], v3, s[8:11], s25 offen sc1
    v_add_f32 v12, v12, v9
    buffer_atomic_add_f32 v12, v5, s[8:11], s12 offen
    s_lshl_b32 s12, s2, 2
    s_add_u32 s12, s12, {LF}
    v_lshlrev_b32 v8, 10, v1
    ds_read_b32 v9, v4 offset:64
    """)
    stamp(k, 9)
    k(f"""
    s_waitcnt vmcnt(0) lgkmcnt(0)
    s_barrier
    s_cmp_lg_u32 s3, 0
    s_cbranch_scc1 L_lf_np
    s_mov_b64 exec, 0xff
    buffer_store_dword v9, v8, s[8:11], s12 offen sc1
    s_mov_b64 exec, -1
    L_lf_np:
    """)
    stamp_flush(k, slot, 10, 3)
    k("s_mov_b64 exec, -1")
    for r, v in sets2.items(): k(f"s_mov_b32 s{r}, {v}")
    k(f"""
    s_branch L_layer
    L_{N}_out:
    s_mov_b32 s28, s96
    s_mov_b32 s29, s97
    s_mov_b32 s30, {2048*512*2}
    s_mov_b32 s31, 0x00020000
    v_lshlrev_b32 v5, 10, v6
    v_lshl_add_u32 v5, v7, 4, v5
    s_lshl_b32 s25, s33, 15
    s_lshl_b32 s12, s32, 6
    s_add_u32 s25, s25, s12
    s_lshr_b32 s12, s3, 2
    s_lshl_b32 s12, s12, 5
    s_add_u32 s25, s25, s12
    v_permlane32_swap_b32 v{T}, v{T+2}
    v_permlane32_swap_b32 v{T+1}, v{T+3}
    buffer_store_dwordx4 v[{T}:{T+3}], v5, s[28:31], s25 offen
    """)
    stamp(k, 9)
    stamp_flush(k, slot, 10, 3)
    k(f"s_branch {E}")
    k.label(f"L_{N}_prod")
    k(f"""
    s_mul_i32 s4, s2, 5
    s_min_u32 s4, s4, 60
    s_lshl_b32 s12, s4, 15
    s_lshl_b32 s13, s3, 10
    s_add_u32 s12, s12, s13
    s_mov_b32 s26, {2*MB}
    s_mov_b32 s27, 0x00020000
    s_add_u32 s24, s18, {XB}
    s_addc_u32 s25, s19, 0
    s_lshl_b32 s5, s3, 14
    v_and_b32 v6, 15, v1
    v_lshrrev_b32 v12, 2, v6
    v_lshl_add_u32 v12, v7, 3, v12
    v_lshlrev_b32 v12, 6, v12
    v_and_b32 v8, 3, v6
    v_lshl_add_u32 v12, v8, 3, v12
    v_and_b32 v8, 16, v1
    v_lshl_add_u32 v12, v8, 1, v12
    v_add_u32 v12, s5, v12
    v_mov_b32 v13, 0x3f803f80
    """)
    for r in range(10): k(f"v_mov_b32 v{16+r}, 0")
    k("s_mov_b32 s13, 0")
    pv = Q(k, 'vmcnt', 63); pl = Q(k, 'lgkmcnt', 15)
    def pdma(n):
        k(f"s_add_u32 m0, s5, {1024*(n % 16)}")
        k(f"s_add_u32 s14, s12, {(n >> 2)*32768 + (n & 3)*8192}")
        pv.issue(f"buffer_load_dwordx4 v3, s[24:27], s14 offen sc1 lds", f"d{n}")
    def prd(n):
        pv.need(f"d{n}")
        r = 32 + 4*(n % 4)
        pl.issue(f"ds_read_b64_tr_b16 v[{r}:{r+1}], v12 offset:{1024*(n%16)}", f"r{n}")
        pl.issue(f"ds_read_b64_tr_b16 v[{r+2}:{r+3}], v12 offset:{1024*(n%16)+256}", f"r{n}")
    def dots(n):
        r = 32 + 4*(n % 8); lb = n >> 2
        for e in range(4):
            k(f"v_dot2_f32_bf16 v{16+2*lb}, v{r+e}, v13, v{16+2*lb}")
            k(f"v_dot2_f32_bf16 v{17+2*lb}, v{r+e}, v{r+e}, v{17+2*lb}")
    def prd8(n):
        pv.need(f"d{n}")
        r = 32 + 4*(n % 8)
        pl.issue(f"ds_read_b64_tr_b16 v[{r}:{r+1}], v12 offset:{1024*(n%16)}", f"r{n}")
        pl.issue(f"ds_read_b64_tr_b16 v[{r+2}:{r+3}], v12 offset:{1024*(n%16)+256}", f"r{n}")
    def bcheck(lb):
        k("s_nop 2")
        k.label(f"L_pv{lb}")
        k(f"v_cmp_u_f32 vcc, v{17+2*lb}, v{17+2*lb}")
        k("s_cmp_eq_u64 vcc, 0")
        k(f"s_cbranch_scc1 L_po{lb}")
        k("s_add_u32 s13, s13, 1")
        k(f"s_cmp_ge_u32 s13, {RETRY}")
        k(f"s_cbranch_scc1 L_po{lb}")
        k(f"s_sleep {RSL}")
        for n in range(4*lb, 4*lb+4):
            k(f"s_add_u32 m0, s5, {1024*(n % 16)}")
            k(f"s_add_u32 s14, s12, {(n >> 2)*32768 + (n & 3)*8192}")
            k(f"buffer_load_dwordx4 v3, s[24:27], s14 offen sc1 lds")
        k(f"v_mov_b32 v{16+2*lb}, 0")
        k(f"v_mov_b32 v{17+2*lb}, 0")
        k("s_waitcnt vmcnt(0) lgkmcnt(0)")
        for n in range(4*lb, 4*lb+4):
            r = 64 + 4*(n & 3)
            k(f"ds_read_b64_tr_b16 v[{r}:{r+1}], v12 offset:{1024*(n%16)}")
            k(f"ds_read_b64_tr_b16 v[{r+2}:{r+3}], v12 offset:{1024*(n%16)+256}")
        k("s_waitcnt lgkmcnt(0)")
        for r in range(64, 80):
            k(f"v_dot2_f32_bf16 v{16+2*lb}, v{r}, v13, v{16+2*lb}")
            k(f"v_dot2_f32_bf16 v{17+2*lb}, v{r}, v{r}, v{17+2*lb}")
        k("s_nop 2")
        k(f"s_branch L_pv{lb}")
        k.label(f"L_po{lb}")
    for n in range(4): pdma(n)
    for n in range(4): prd8(n)
    for n in range(4): pl.need(f"r{n}"); dots(n)
    bcheck(0)
    stamp(k, 2)
    for n in range(4, 20): pdma(n)
    prd8(4); prd8(5); prd8(6)
    for n in range(4, 20):
        if n+3 < 20: prd8(n+3)
        pl.need(f"r{n}"); dots(n)
        if n % 4 == 3: bcheck(n >> 2)
    k("s_nop 2")
    for lb in range(5): k(f"v_permlane32_swap_b32 v{16+2*lb}, v{17+2*lb}")
    for lb in range(5): k(f"v_add_f32 v{16+2*lb}, v{16+2*lb}, v{17+2*lb}")
    k(f"""
    v_and_b32 v8, 31, v1
    v_lshlrev_b32 v8, 3, v8
    v_lshl_add_u32 v8, v7, 2, v8
    v_add_u32 v8, s5, v8
    """)
    for lb in range(5): k(f"ds_write_b32 v8, v{16+2*lb} offset:{256*lb}")
    k(f"""
    s_waitcnt lgkmcnt(0)
    s_barrier
    s_cmp_ge_u32 s3, 3
    s_cbranch_scc1 L_{N}_pe
    v_lshlrev_b32 v8, 3, v0
    v_add_u32 v9, 0x10000, v8
    """)
    for w in range(8): k(f"ds_read_b64 v[{32+2*w}:{33+2*w}], v{8 + (w >> 2)} offset:{16384*(w & 3)}")
    k("s_waitcnt lgkmcnt(0)")
    for st in (1, 2, 4):
        for w in range(0, 8, 2*st): k(f"v_pk_add_f32 {P(32+2*w)}, {P(32+2*w)}, {P(32+2*(w+st))}")
    k(f"""
    s_mov_b32 s24, {f32hex(1.0/512)}
    s_mov_b32 s25, {f32hex(1e-5)}
    v_mul_f32 v14, s24, v32
    v_mul_f32 v16, s24, v33
    v_fma_f32 v16, -v14, v14, v16
    v_max_f32 v16, 0, v16
    v_cvt_pk_bf16_f32 v14, v14, v16
    v_and_b32 v16, 0xffff0000, v14
    v_lshlrev_b32 v14, 16, v14
    v_add_f32 v16, s25, v16
    v_cvt_pk_bf16_f32 v16, v16, v16
    v_lshlrev_b32 v16, 16, v16
    v_sqrt_f32 v16, v16
    s_mul_i32 s4, s2, 1280
    s_add_u32 s4, s4, {FCG}
    v_cvt_pk_bf16_f32 v20, v14, v16
    v_mov_b32 v21, 1
    s_movk_i32 s6, 160
    v_cmp_gt_u32 vcc, s6, v0
    s_and_saveexec_b64 s[6:7], vcc
    buffer_store_dwordx2 v[20:21], v8, s[8:11], s4 offen sc1
    s_mov_b64 exec, s[6:7]
    s_nop 1
    L_{N}_pe:
    """)
    for i in (3, 5): stamp(k, i)
    k(f"s_branch L_{N}_dall")
    k.label(E)
    k("s_endpgm")
    return k

if __name__ == '__main__':
    import sys
    KN = "interleave_layers__ssm_conv_s4d__glu_gated_glu__prompt_kernel"
    sets1 = {86: XT0, 87: XT1, 88: ST1, 89: FCG1, 90: H, 91: HF1, 92: XT2, 93: 0, 94: CF1, 95: 2}
    sets2 = {86: XT2, 87: XT3, 88: ST3, 89: FCG2, 90: H2, 91: HF2, 92: 0, 93: 1, 94: CF2, 95: 6}
    p = Prog(); p.add_kernel(gen_mega(KN, sets1, sets2))
    t = p.text().replace('.amdgcn_target', f"; @launch grid=(256,1,1) block=(512,1,1) lds={LAYER_LDS}\n.amdgcn_target", 1)
    open(sys.argv[1], 'w').write(t)
```
